```python
import torch

def _softmax(x, axis=-1):
    return torch.softmax(x, dim=axis)
def _gelu(x):
    return torch.nn.functional.gelu(x, approximate="tanh")
def _silu(x):
    return torch.nn.functional.silu(x)
def _sigmoid(x):
    return torch.sigmoid(x)
def _layernorm(x, axis=-1, eps=1e-5):
    m = x.mean(dim=axis, keepdim=True)
    v = x.var(dim=axis, keepdim=True, unbiased=False)
    return (x - m) / torch.sqrt(v + eps)
def _scatter_add(tgt, idx, src, axis=0):
    return tgt.clone().index_add_(axis, idx, src)
def _segment_sum(src, seg, n):
    out = torch.zeros((n,) + src.shape[1:], dtype=src.dtype)
    return out.index_add_(0, seg, src)
def _pad(x, pw):
    flat = tuple(v for pair in reversed(pw) for v in pair)
    return torch.nn.functional.pad(x, flat)

kernel_name = 'recurrent_scan__gqa_block_cached__dense_activation_silu__prompt'

def setup_inputs():

    _w = (lambda a: (lambda t: t.to(torch.bfloat16) if t.is_floating_point() else t)(torch.as_tensor(a)))
    def _A_setup():
        B, Sq, D = 1, 2048, 640
        Hq, Hkv, Sk, Dh = 32, 32, 2048, 128
        assert Hq % Hkv == 0, (Hq, Hkv)
        return {
            "x": _w((lambda *s: torch.randn(*s, dtype=torch.bfloat16) * 0.05)(B, Sq, D)),
            "k_cache": _w((lambda *s: torch.randn(*s, dtype=torch.bfloat16) * 3.2)(B, Hkv, Sk, Dh)),
            "v_cache": _w((lambda *s: torch.randn(*s, dtype=torch.bfloat16) * 3.2)(B, Hkv, Sk, Dh)),
            "wq": _w((lambda *s: torch.randn(*s, dtype=torch.bfloat16) * 3.2)(D, Hq * Dh) * (D ** -0.5)),
            "wo": _w((lambda *s: torch.randn(*s, dtype=torch.bfloat16) * 3.2)(Hq * Dh, D) * ((Hq * Dh) ** -0.5)),
        }
    _A_in = _A_setup()

    def _B_setup():
        B, S, D, F = 1, 2048, 640, 1728
        return {
            "x": _w((lambda *s: torch.randn(*s, dtype=torch.bfloat16) * 0.05)(B, S, D)),
            "w1": _w((lambda *s: torch.randn(*s, dtype=torch.bfloat16) * 3.2)(D, F) * (D ** -0.5)),
            "w2": _w((lambda *s: torch.randn(*s, dtype=torch.bfloat16) * 0.4)(F, D) * (F ** -0.5)),
        }
    _B_in = _B_setup()

    return {
        "A_x": _A_in["x"],
        "A_k_cache": _A_in["k_cache"],
        "A_v_cache": _A_in["v_cache"],
        "A_wq": _A_in["wq"],
        "A_wo": _A_in["wo"],
        "B_x": _B_in["x"],
        "B_w1": _B_in["w1"],
        "B_w2": _B_in["w2"],
    }

def reference(A_x, A_k_cache, A_v_cache, A_wq, A_wo, B_x, B_w1, B_w2):
    def _A_ref(x, k_cache, v_cache, wq, wo):
        B, Sq, D = x.shape
        Hq, Dh = 32, 128
        Hkv = k_cache.shape[1]
        rep = Hq // Hkv
        q = (lambda x, *d: x.permute(*d))((x @ wq).reshape(B, Sq, Hq, Dh), 0, 2, 1, 3)
        k = (lambda x, n, axis: torch.repeat_interleave(x, n, dim=axis))(k_cache, rep, axis=1)
        v = (lambda x, n, axis: torch.repeat_interleave(x, n, dim=axis))(v_cache, rep, axis=1)
        scores = torch.einsum("bhqd,bhkd->bhqk", q, k) * (Dh ** -0.5)
        p = _softmax(scores, axis=-1)
        o = torch.einsum("bhqk,bhkd->bhqd", p, v)
        return (lambda x, *d: x.permute(*d))(o, 0, 2, 1, 3).reshape(B, Sq, Hq * Dh) @ wo

    def _B_ref(x, w1, w2):
        h = torch.einsum("bsd,df->bsf", x, w1)
        h = _silu(h)
        out = torch.einsum("bsf,fd->bsd", h, w2)
        return out

    x = A_x
    xn = _layernorm(x, axis=-1)
    s = _A_ref(xn, A_k_cache, A_v_cache, A_wq, A_wo)
    g = _silu(_B_ref(xn, B_w1, B_w2))
    return x + s * g
```

```python
import re

TRANS = ("v_exp_", "v_log_", "v_rcp_", "v_rsq_", "v_sqrt_", "v_sin_", "v_cos_")
REG_RE = re.compile(r"^-?\|?(?:abs\()?([vas])(?:(\d+)|\[(\d+):(\d+)\])\)?\|?$")


def regs_of(op):
    op = op.strip()
    if op in ("vcc", "exec", "m0", "scc"):
        return {op}
    if op in ("vcc_lo", "vcc_hi"):
        return {"vcc"}
    if op in ("exec_lo", "exec_hi"):
        return {"exec"}
    m = REG_RE.match(op)
    if not m:
        return set()
    k = m.group(1)
    if m.group(2) is not None:
        return {k + m.group(2)}
    return {f"{k}{i}" for i in range(int(m.group(3)), int(m.group(4)) + 1)}


class Ins:
    def __init__(self, text):
        self.text = text
        t = text.split(";")[0].strip()
        self.label = t[:-1] if t.endswith(":") else None
        self.directive = t.startswith(".") and not self.label
        parts = t.split(None, 1)
        self.mn = parts[0] if parts else ""
        rest = parts[1] if len(parts) > 1 else ""
        ops = [o.strip() for o in re.split(r",(?![^\[]*\])", rest)] if rest else []
        self.mods = ""
        if ops:
            last = ops[-1].split(None, 1)
            ops[-1] = last[0]
            self.mods = last[1] if len(last) > 1 else ""
        self.ops = ops
        self.kind = self._kind()
        self.rd, self.wr = set(), set()
        self.srcc, self.srcab, self.data = set(), set(), set()
        self._rw()

    def _kind(self):
        m = self.mn
        if self.label or self.directive or not m:
            return "none"
        if m.startswith("v_mfma"):
            return "mfma"
        if m.startswith("v_smfmac"):
            return "mfma"
        if m.startswith("v_"):
            return "valu"
        if m.startswith("ds_"):
            return "ds"
        if m.startswith(("buffer_", "global_")):
            return "vmem"
        if m.startswith(("s_load", "s_memtime", "s_memrealtime", "s_atomic")):
            return "smem"
        return "salu"

    def _rw(self):
        m, o, k = self.mn, self.ops, self.kind
        R = [regs_of(x) for x in o]
        if k == "mfma":
            self.wr = R[0]
            self.passes = 8 if "32x32" in m else 4
            if m.startswith("v_smfmac"):
                self.srcab = R[1] | R[2] | R[3]
                self.srcc = R[0]
            else:
                self.srcab = R[1] | R[2]
                self.srcc = R[3]
            self.rd = self.srcab | self.srcc
        elif k == "valu":
            if m.startswith("v_nop"):
                return
            self.wr = set(R[0])
            self.rd = set().union(*R[1:]) if len(R) > 1 else set()
            if "swap" in m:
                self.wr = R[0] | R[1]
                self.rd = R[0] | R[1]
            if m.startswith(("v_fmac", "v_dot2c", "v_pk_fmac", "v_writelane")) or "_dpp" in m:
                self.rd |= R[0]
            if m.startswith(("v_add_co", "v_sub_co", "v_addc_co", "v_subb_co")):
                self.wr |= R[1]
                self.rd = set().union(*R[2:])
            if m.startswith("v_cmpx"):
                self.wr |= {"exec"}
        elif k == "ds":
            if m.startswith("ds_read") or m.startswith("ds_bpermute") or m.startswith("ds_swizzle"):
                self.wr = R[0]
                self.rd = set().union(*R[1:])
            else:
                self.rd = set().union(*R)
                self.data = set().union(*R[1:])
        elif k == "vmem":
            if m.startswith(("buffer_wbl2", "buffer_inv")):
                return
            lds = " lds" in " " + self.mods
            if "load" in m and not lds:
                self.wr = R[0]
                self.rd = set().union(*R[1:])
            elif lds:
                self.rd = set().union(*R) | {"m0"}
            else:
                self.rd = set().union(*R)
                if m.startswith("buffer_"):
                    self.data = R[0]
                    if "atomic" in m and "sc0" in self.mods:
                        self.wr = R[0]
                else:
                    self.data = R[1]
        elif k == "smem":
            self.wr = R[0]
            self.rd = set().union(*R[1:]) if len(R) > 1 else set()
        elif k == "salu":
            if m.startswith(("s_cmp", "s_waitcnt", "s_nop", "s_barrier", "s_branch", "s_cbranch", "s_endpgm", "s_setprio", "s_sleep", "s_bitcmp")):
                self.rd = set().union(*R) if R else set()
                if m.startswith("s_cbranch_vcc"):
                    self.rd |= {"vcc"}
            else:
                self.wr = set(R[0]) if R else set()
                self.rd = set().union(*R[1:]) if len(R) > 1 else set()
                if "saveexec" in m:
                    self.wr |= {"exec"}

    @property
    def states(self):
        if self.kind == "none":
            return 0
        if self.mn == "s_nop":
            return int(self.ops[0], 0) + 1
        return 1

    @property
    def trans(self):
        return self.mn.startswith(TRANS)


def required(p, c):
    need = 0
    if p.kind == "mfma":
        tbl = {4: (8, 6, 3), 8: (12, 10, 7)}[p.passes]
        if c.kind == "mfma":
            if p.wr & c.srcab:
                need = max(need, tbl[0])
            if p.wr & c.srcc:
                same = p.wr == c.srcc and p.passes == c.passes
                need = max(need, 0 if same else tbl[1])
            elif p.wr & c.wr:
                need = max(need, 0 if p.wr == c.wr else tbl[1])
        elif c.kind in ("valu", "ds", "vmem"):
            if p.wr & (c.rd | c.wr):
                need = max(need, tbl[0])
            if c.kind == "valu" and p.srcc & c.wr:
                need = max(need, tbl[2])
    if p.kind == "valu":
        vw = {r for r in p.wr if r[0] in "va" and r != "vcc"}
        sw = p.wr - vw
        if c.kind == "mfma":
            if vw & c.rd:
                need = max(need, 2)
            if "exec" in sw:
                need = max(need, 4)
        if c.kind == "valu":
            if p.trans and (vw & c.rd) and not c.trans:
                need = max(need, 1)
            if ("permlane" in c.mn or "_dpp" in c.mn) and vw & c.rd:
                need = max(need, 2)
            if c.mn.startswith(("v_readfirstlane", "v_readlane")) and vw & c.rd:
                need = max(need, 1)
            if sw & c.rd:
                need = max(need, 2)
            if c.mn.startswith("v_cndmask") and "vcc" in sw:
                need = max(need, 2)
            if "exec" in sw and ("permlane" in c.mn or "_dpp" in c.mn or c.mn.startswith(("v_readfirstlane", "v_readlane"))):
                need = max(need, 5)
        if c.kind == "vmem" and sw & c.rd:
            need = max(need, 5)
    if p.kind == "vmem" and p.data and len(p.data) >= 3:
        if c.kind == "valu" and p.data & c.wr:
            need = max(need, 2)
        elif c.kind in ("ds", "vmem", "mfma") and p.data & c.wr:
            need = max(need, 1)
    if p.kind == "salu" and "m0" in p.wr and c.kind == "vmem" and "m0" in c.rd:
        need = max(need, 1)
    return need


def check_trace(trace, name=""):
    errs = []
    real = [i for i in trace if i.kind != "none"]
    for n, c in enumerate(real):
        dist = 0
        for b in range(n - 1, max(-1, n - 22), -1):
            p = real[b]
            r = required(p, c)
            if r > dist:
                errs.append(f"{name}: hazard need {r} have {dist}: [{p.text.strip()}] -> [{c.text.strip()}]")
            dist += p.states
            if dist > 20:
                break
    vm, lg = [], []
    for c in real:
        if c.mn == "s_waitcnt":
            t = c.text.split(";")[0]
            m = re.search(r"vmcnt\((\d+)\)", t)
            if m:
                n = int(m.group(1))
                vm = vm[len(vm) - n:] if n < len(vm) else vm
                if n == 0:
                    vm = []
            m = re.search(r"lgkmcnt\((\d+)\)", t)
            if m:
                n = int(m.group(1))
                if any(x.kind == "smem" for x in lg) and n > 0:
                    pass
                else:
                    lg = lg[len(lg) - n:] if n < len(lg) else lg
                    if n == 0:
                        lg = []
            continue
        touched = c.rd | c.wr
        for q, qn in ((vm, "vmcnt"), (lg, "lgkmcnt")):
            for x in q:
                if x.wr & touched and "nocheck" not in c.text and "nocheck" not in x.text:
                    errs.append(f"{name}: {qn} uncovered: [{x.text.strip()}] -> [{c.text.strip()}]")
        if c.kind == "vmem":
            vm.append(c)
            if len(vm) > 63:
                errs.append(f"{name}: vmcnt overflow at {c.text.strip()}")
        if c.kind in ("ds", "smem"):
            lg.append(c)
    return sorted(set(errs))


class Asm:
    def __init__(self):
        self.lines = []

    def __call__(self, s):
        for l in s.split("\n"):
            if l.strip():
                self.lines.append(l.strip())

    def text(self):
        out = []
        for l in self.lines:
            out.append(l if l.endswith(":") or l.startswith((".", ";")) else "    " + l)
        return "\n".join(out) + "\n"

    def trace(self, entry, decisions, limit=400000):
        ins = [Ins(l) for l in self.lines if not l.startswith(";")]
        pos = {i.label: n for n, i in enumerate(ins) if i.label}
        dec = {k: list(v) for k, v in decisions.items()}
        n, out = pos[entry], []
        while len(out) < limit:
            i = ins[n]
            out.append(i)
            if i.mn == "s_endpgm":
                return out
            if i.mn == "s_branch":
                n = pos[i.ops[0]]
                continue
            if i.mn.startswith("s_cbranch"):
                d = dec.get(i.ops[0])
                taken = d.pop(0) if d else False
                if taken:
                    n = pos[i.ops[0]]
                    continue
            n += 1
        raise RuntimeError("trace limit")
```

```python
import sys, struct
from asm import Asm, check_trace

NAME = "recurrent_scan__gqa_block_cached__dense_activation_silu__prompt"
WS_XN = 0
WS_ACT = 4 << 20
WS_WP = 32 << 20
NPAIR = 91
ACT_RG = NPAIR * 8192
WP_CG = NPAIR * 10240
SRD3 = "0x00020000"


def fbits(x):
    return "0x%08x" % struct.unpack("<I", struct.pack("<f", x))[0]


def vr(b, n=1):
    return f"v{b}" if n == 1 else f"v[{b}:{b+n-1}]"


def ar(b, n=1):
    return f"a{b}" if n == 1 else f"a[{b}:{b+n-1}]"


def sr(b, n=1):
    return f"s{b}" if n == 1 else f"s[{b}:{b+n-1}]"


def srd(e, d, lo, hi, off, size):
    if off is None:
        e(f"s_mov_b32 s{d}, s{lo}")
        e(f"s_mov_b32 s{d+1}, s{hi}")
    else:
        e(f"s_add_u32 s{d}, s{lo}, {off}")
        e(f"s_addc_u32 s{d+1}, s{hi}, 0")
    e(f"s_mov_b32 s{d+2}, {size}")
    e(f"s_mov_b32 s{d+3}, {SRD3}")


def kernel_head(e, name):
    e(f".globl {name}")
    e(".p2align 8")
    e(f".type {name},@function")
    e(f"{name}:")


def descriptor(e, name, vgpr, accum):
    e(".p2align 6")
    e(f".amdhsa_kernel {name}")
    e(f".amdhsa_next_free_vgpr {vgpr}")
    e(".amdhsa_next_free_sgpr 102")
    e(f".amdhsa_accum_offset {accum}")
    e(".amdhsa_group_segment_fixed_size 0")
    e(".amdhsa_kernarg_size 88")
    e(".amdhsa_user_sgpr_count 2")
    e(".amdhsa_user_sgpr_kernarg_segment_ptr 1")
    e(".amdhsa_system_sgpr_workgroup_id_x 1")
    e(".end_amdhsa_kernel")


def mfma(d, a, b, c):
    return f"v_mfma_f32_16x16x32_bf16 {d}, {a}, {b}, {c}"


def gen_prep(e):
    kernel_head(e, "prep_kernel")
    e("s_cmp_ge_u32 s2, 310")
    e("s_cbranch_scc1 P_end")
    e("s_load_dwordx2 s[4:5], s[0:1], 0")
    e("s_load_dwordx2 s[6:7], s[0:1], 80")
    e("s_load_dwordx2 s[16:17], s[0:1], 32")
    e("s_load_dwordx2 s[18:19], s[0:1], 56")
    e("v_lshrrev_b32 v1, 6, v0")
    e("v_and_b32 v2, 63, v0")
    e("v_readfirstlane_b32 s3, v1")
    e("s_waitcnt lgkmcnt(0)")
    e("s_cmp_ge_u32 s2, 128")
    e("s_cbranch_scc1 P_repack")
    srd(e, 8, 4, 5, None, 2621440)
    srd(e, 12, 6, 7, WS_XN, 2621440)
    e("v_lshrrev_b32 v3, 4, v0")
    e("v_and_b32 v4, 15, v0")
    e("s_mul_i32 s20, s2, 20480")
    e("v_mul_u32_u24 v5, 1280, v3")
    e("v_lshl_add_u32 v5, v4, 4, v5")
    for i in range(5):
        e(f"buffer_load_dwordx4 {vr(8+4*i,4)}, v5, s[8:11], s20 offen offset:{256*i}")
    e("s_lshr_b32 s21, s2, 2")
    e("s_mul_i32 s21, s21, 81920")
    e("s_and_b32 s22, s2, 3")
    e("s_lshl_b32 s22, s22, 11")
    e("s_add_u32 s21, s21, s22")
    e("v_lshrrev_b32 v6, 3, v4")
    e("v_lshlrev_b32 v6, 13, v6")
    e("v_and_b32 v7, 7, v4")
    e("v_lshl_add_u32 v6, v7, 8, v6")
    e("v_lshl_add_u32 v6, v3, 4, v6")
    X = 32
    for i in range(5):
        e(f"s_waitcnt vmcnt({4-i})")
        for j in range(4):
            e(f"v_lshlrev_b32 v{X+8*i+2*j}, 16, v{8+4*i+j}")
            e(f"v_and_b32 v{X+8*i+2*j+1}, 0xffff0000, v{8+4*i+j}")
    for k in range(4):
        e(f"v_add_f32 v{72+k}, v{X+k}, v{X+4+k}")
    for n in range(8, 40):
        e(f"v_add_f32 v{72+n%4}, v{72+n%4}, v{X+n}")

    def reduce16():
        e("v_add_f32 v72, v72, v73")
        e("v_add_f32 v74, v74, v75")
        e("v_add_f32 v72, v72, v74")
        for rot in (8, 4, 2, 1):
            e("s_nop 1")
            e(f"v_add_f32_dpp v72, v72, v72 row_ror:{rot} row_mask:0xf bank_mask:0xf")
        e(f"v_mul_f32 v72, {fbits(1.0/640)}, v72")

    reduce16()
    e("v_mov_b32 v76, v72")
    for n in range(40):
        e(f"v_sub_f32 v77, v{X+n}, v76")
        if n < 4:
            e(f"v_mul_f32 v{72+n}, v77, v77")
        else:
            e(f"v_fmac_f32 v{72+n%4}, v77, v77")
    reduce16()
    e("v_cvt_pk_bf16_f32 v73, v72, v76")
    e("v_and_b32 v76, 0xffff0000, v73")
    e("v_lshlrev_b32 v72, 16, v73")
    e(f"v_add_f32 v72, {fbits(1e-5)}, v72")
    e("v_cvt_pk_bf16_f32 v72, v72, v72")
    e("v_lshlrev_b32 v72, 16, v72")
    e("v_sqrt_f32 v72, v72")
    e("s_nop 0")
    e("v_cvt_pk_bf16_f32 v72, v72, v72")
    e("v_lshlrev_b32 v72, 16, v72")
    e("v_rcp_f32 v78, v72")
    for i in range(5):
        for j in range(4):
            a = X + 8 * i + 2 * j
            e(f"v_sub_f32 v{a}, v{a}, v76")
            e(f"v_sub_f32 v{a+1}, v{a+1}, v76")
            e(f"v_cvt_pk_bf16_f32 v77, v{a}, v{a+1}")
            e(f"v_lshlrev_b32 v{a}, 16, v77")
            e(f"v_and_b32 v{a+1}, 0xffff0000, v77")
            e(f"v_mul_f32 v{a}, v{a}, v78")
            e(f"v_mul_f32 v{a+1}, v{a+1}, v78")
            e(f"v_cvt_pk_bf16_f32 v{8+4*i+j}, v{a}, v{a+1}")
        e(f"buffer_store_dwordx4 {vr(8+4*i,4)}, v6, s[12:15], s21 offen")
        e("s_add_u32 s21, s21, 16384")
    e("s_endpgm")

    e("P_repack:")
    e("s_sub_u32 s20, s2, 128")
    e("s_sub_u32 s21, s2, 256")
    e("s_cmp_lt_u32 s20, 128")
    e("s_cselect_b32 s4, s16, s18")
    e("s_cselect_b32 s5, s17, s19")
    e("s_cselect_b32 s21, s20, s21")
    e("s_mul_i32 s21, s21, 40960")
    srd(e, 8, 4, 5, "s21", 40960)
    srd(e, 12, 6, 7, WS_WP, 8 * WP_CG)
    e("s_mul_i32 s22, s3, 10240")
    e("v_lshlrev_b32 v3, 4, v2")
    for n in range(10):
        if n % 4 == 0:
            e("s_mov_b32 m0, s22")
            e("s_nop 0")
        e(f"buffer_load_dwordx4 v3, s[8:11], s22 offen offset:{(n%4)*1024} lds")
        if n % 4 == 3:
            e("s_add_u32 s22, s22, 4096")
    e("v_lshrrev_b32 v4, 2, v2")
    e("v_mul_u32_u24 v4, 1280, v4")
    e("v_and_b32 v5, 3, v2")
    e("v_lshl_add_u32 v4, v5, 3, v4")
    e("s_mul_i32 s23, s3, 320")
    e("v_add_u32 v4, s23, v4")
    e("s_lshr_b32 s24, s20, 1")
    e("s_mul_i32 s24, s24, 10240")
    e("s_and_b32 s25, s20, 1")
    e("s_lshl_b32 s25, s25, 10")
    e("s_add_u32 s24, s24, s25")
    e(f"s_mul_i32 s25, s3, {2*WP_CG}")
    e("s_add_u32 s24, s24, s25")
    e("s_waitcnt vmcnt(0)")
    e("s_barrier")
    for n in range(10):
        for v in range(2):
            e(f"ds_read_b64_tr_b16 {vr(8+4*n+2*v,2)}, v4 offset:{n*32+v*20480}")
        if n == 6:
            e("s_waitcnt lgkmcnt(8)")
    e("s_waitcnt lgkmcnt(0)")
    for n in range(10):
        e(f"s_add_u32 s26, s24, {(n//5)*WP_CG + (n%5)*2048}")
        e(f"buffer_store_dwordx4 {vr(8+4*n,4)}, v3, s[12:15], s26 offen")
    e("P_end:")
    e("s_endpgm")


V_KRD, V_VRD, V_KDMA, V_VDMA = 2, 6, 14, 18
V_T = 20
V_IDX, V_ONES, V_NM, V_S, V_P, V_O = 35, 36, 40, 56, 64, 128
A_Q, A_KF, A_VF, A_L = 0, 64, 128, 160
A_XF, A_WF = 64, 192
V_WQRD, V_W1RD, V_WQDMA, V_W1DMA, V_XOFF = 40, 48, 52, 56, 58
LDS_K, LDS_V, LDS_W1 = 0, 65536, 131072
LDS_FLAG = 131072
S_XN, S_WQ, S_W1, S_K, S_V, S_ACT, S_ACTH = 8, 12, 16, 20, 24, 28, 32
S_W, S_HEAD, S_QT, S_W4K, S_OFF, S_CNT, S_RETRY, S_TMP = 40, 41, 42, 43, 44, 45, 46, 48
S_M0K, S_M0V = 56, 60
WQ_SLOT = [LDS_V + 3 * 16384, LDS_V + 2 * 16384, LDS_K + 2 * 16384, LDS_K + 3 * 16384]
LOG2E = 1.4426950408889634
L_LIMIT = 2.0 ** 100


def o_reg(db, qb):
    return V_O + (db * 4 + qb) * 4


def k_dma(n):
    return f"buffer_load_dwordx4 v{V_KDMA+n}, {sr(S_K,4)}, s{S_OFF} offen offset:{n*1024} lds"


def v_dma(n):
    return f"buffer_load_dwordx4 v{V_VDMA+(n&1)}, {sr(S_V,4)}, s{S_OFF} offen offset:{n*1024} lds"


def k_read(tile, kb, ks):
    return f"ds_read_b128 {ar(A_KF+(kb*4+ks)*4,4)}, v{V_KRD+ks} offset:{(tile%4)*16384+kb*4096}"


def v_read(tile, db, t, v):
    return f"ds_read_b64_tr_b16 {ar(A_VF+((db%4)*2+t)*4+2*v,2)}, v{V_VRD+db} offset:{(tile%4)*16384+t*8192+v*4096}"


def kv_tile_dma(e, which, tile):
    if which == "K":
        e(f"s_mov_b32 m0, s{S_M0K + tile % 4}")
        e(f"s_mov_b32 s{S_OFF}, {tile*16384}")
        for n in range(4):
            e(k_dma(n))
    else:
        e(f"s_mov_b32 m0, s{S_M0V + tile % 4}")
        e(f"s_mov_b32 s{S_OFF}, {tile*16384}")
        for n in range(4):
            e(v_dma(n))


LK = LV = 5


def attn_step(e, j, qk=True, pv=True):
    pw = V_P + ((j + 1) % 2) * 32
    pr = V_P + (j % 2) * 32
    for u in range(16):
        kb, qb = u // 4, u % 4
        s_cur = V_S + (u % 2) * 4
        s_prev = V_S + ((u + 1) % 2) * 4
        if u > 0:
            do_exp = qk
            pdst = pw + ((u - 1) % 4) * 8 + ((u - 1) // 4) * 2
        else:
            do_exp = pv
            pdst = pr + 3 * 8 + 3 * 2
        M = []
        if qk:
            for ks in range(4):
                c = vr(V_NM + qb * 4, 4) if ks == 0 else vr(s_cur, 4)
                M.append(mfma(vr(s_cur, 4), ar(A_KF + (kb * 4 + ks) * 4, 4), ar(A_Q + (qb * 4 + ks) * 4, 4), c))
        else:
            M += [None] * 4
        if pv:
            db = u // 2
            for h in range(2):
                q2 = (u % 2) * 2 + h
                for t in ((0, 1) if h == 0 else (1, 0)):
                    o = vr(o_reg(db, q2), 4)
                    M.append(mfma(o, ar(A_VF + ((db % 4) * 2 + t) * 4, 4), vr(pr + q2 * 8 + t * 4, 4), o))
        else:
            M += [None] * 4
        F = [[] for _ in range(8)]
        if do_exp:
            for r in range(4):
                F[2 * r].append(f"v_exp_f32 v{s_prev+r}, v{s_prev+r}")
            F[3].append(f"v_cvt_pk_bf16_f32 v{pdst}, v{s_prev}, v{s_prev+1}")
            F[7].append(f"v_cvt_pk_bf16_f32 v{pdst+1}, v{s_prev+2}, v{s_prev+3}")
        nreads = 0
        n = u + LK
        if qk:
            F[1].append(k_read(j + 1 + n // 16, (n % 16) // 4, n % 4))
            nreads += 1
        n = u + LV
        if (pv and n < 16) or (qk and n >= 16):
            F[3].append(v_read(j + n // 16, (n % 16) // 2, n % 2, 0))
            F[5].append(v_read(j + n // 16, (n % 16) // 2, n % 2, 1))
            nreads += 2
        if qk:
            if u == 10:
                F[5].append(f"s_waitcnt vmcnt({8 if pv else 16})")
                F[7].append("s_barrier")
            if u == 11:
                F[1].append(f"s_mov_b32 m0, s{S_M0K + j % 4}")
            if u in (11, 13, 15):
                F[5].append(k_dma((u - 11) // 2))
            if pv:
                if u == 1:
                    F[5].append(k_dma(3))
                if u == 2:
                    F[1].append(f"s_sub_u32 s{S_OFF}, s{S_OFF}, 16384")
                if u == 3:
                    F[1].append(f"s_mov_b32 m0, s{S_M0V + (j + 2) % 4}")
                if u in (3, 5, 7, 9):
                    F[5].append(v_dma((u - 3) // 2))
                if u == 10:
                    F[1].append(f"s_add_u32 s{S_OFF}, s{S_OFF}, 32768")
        if u % 2 == 1:
            F[7].append(f"s_waitcnt lgkmcnt({nreads})")
        if qk and not pv:
            z = [f"v_mov_b32 v{V_O + u*8 + i}, 0" for i in range(8)]
            order = [M[0], z[0], z[1], M[1]] + F[1] + [z[2], M[2], z[3], z[4], M[3]]
            order += F[0] + [z[5]] + F[2] + [z[6]] + F[3] + F[4] + F[5] + F[6] + [z[7]] + F[7]
            for x in order:
                e(x)
        else:
            for i in range(8):
                if M[i]:
                    e(M[i])
                for x in F[i]:
                    e(x)
                if not qk and u == 0 and i in (0, 2):
                    e("s_nop 0")
        if pv and u % 4 == 3:
            q2 = u // 4
            e(f"v_smfmac_f32_16x16x64_bf16 {ar(A_L+q2*4,4)}, {vr(V_ONES,4)}, {vr(pr+q2*8,8)}, v{V_IDX}")


def row_max_finish(e, m):
    t = V_T + 4
    for swap in ("v_permlane32_swap_b32", "v_permlane16_swap_b32"):
        for qb in range(4):
            e(f"v_mov_b32 v{t+qb}, v{m+qb}")
        for qb in range(4):
            e(f"{swap} v{m+qb}, v{t+qb}")
        for qb in range(4):
            e(f"v_max_f32 v{m+qb}, v{m+qb}, v{t+qb}")
    for qb in range(4):
        for r in range(4):
            e(f"v_sub_f32 v{V_NM+qb*4+r}, 0, v{m+qb}")


def gen_main(e):
    kernel_head(e, "main_kernel")
    e("s_cmp_ge_u32 s2, 256")
    e("s_cbranch_scc1 M_end")
    e("s_load_dwordx4 s[64:67], s[0:1], 8")
    e("s_load_dwordx2 s[68:69], s[0:1], 24")
    e("s_load_dwordx2 s[70:71], s[0:1], 48")
    e("s_load_dwordx2 s[72:73], s[0:1], 80")
    e("v_lshrrev_b32 v1, 6, v0")
    e("v_and_b32 v0, 63, v0")
    e(f"v_readfirstlane_b32 s{S_W}, v1")
    e("s_and_b32 s3, s2, 7")
    e("s_lshr_b32 s4, s2, 3")
    e(f"s_lshr_b32 s{S_QT}, s4, 2")
    e("s_and_b32 s4, s4, 3")
    e(f"s_lshl_b32 s{S_HEAD}, s3, 2")
    e(f"s_add_u32 s{S_HEAD}, s{S_HEAD}, s4")
    e(f"s_lshl_b32 s5, s{S_QT}, 2")
    e(f"s_add_u32 s5, s5, s{S_W}")
    e(f"s_lshl_b32 s{S_W4K}, s{S_W}, 12")
    e(f"s_mov_b32 s{S_RETRY}, 0")
    for i in range(4):
        e(f"s_add_u32 s{S_M0K+i}, s{S_W4K}, {LDS_K + i*16384}")
        e(f"s_add_u32 s{S_M0V+i}, s{S_W4K}, {LDS_V + i*16384}")
    e("v_and_b32 v20, 15, v0")
    e("v_lshrrev_b32 v21, 4, v0")
    e("v_bfe_u32 v22, v0, 2, 2")
    e("v_and_b32 v23, 3, v0")
    e("s_waitcnt lgkmcnt(0)")
    e("s_mul_i32 s6, s5, 81920")
    e(f"s_add_u32 s6, s6, {WS_XN}")
    srd(e, S_XN, 72, 73, "s6", 81920)
    e(f"s_lshl_b32 s6, s{S_HEAD}, 8")
    srd(e, S_WQ, 68, 69, "s6", 640 * 8192 - 31 * 256)
    e(f"s_lshl_b32 s6, s{S_HEAD}, 7")
    srd(e, S_W1, 70, 71, "s6", 640 * 3456 - 26 * 128)
    e(f"s_lshl_b32 s6, s{S_HEAD}, 19")
    srd(e, S_K, 64, 65, "s6", 524288)
    srd(e, S_V, 66, 67, "s6", 524288)
    e(f"s_mul_i32 s6, s5, {ACT_RG}")
    e(f"s_add_u32 s6, s6, {WS_ACT}")
    e(f"s_lshl_b32 s7, s{S_HEAD}, 14")
    e("s_add_u32 s7, s7, s6")
    srd(e, S_ACT, 72, 73, "s7", 16384)
    e(f"s_lshl_b32 s7, s{S_HEAD}, 13")
    e(f"s_add_u32 s7, s7, {64*8192}")
    e("s_add_u32 s7, s7, s6")
    srd(e, S_ACTH, 72, 73, "s7", 8192)
    e(f"s_cmp_lt_u32 s{S_HEAD}, 27")
    e(f"s_cselect_b32 s{S_W1+2}, s{S_W1+2}, 0")
    e(f"s_cselect_b32 s{S_ACTH+2}, s{S_ACTH+2}, 0")

    e(f"v_lshlrev_b32 v{V_XOFF}, 4, v0")
    e(f"v_add_u32 v{V_XOFF+1}, 4096, v{V_XOFF}")
    e(f"s_lshl_b32 s6, s{S_W}, 17")
    e("v_lshlrev_b32 v24, 13, v21")
    e("v_add_u32 v24, s6, v24")
    for n in range(4):
        e(f"v_lshlrev_b32 v25, 1, v21")
        if n >> 1:
            e("v_xor_b32 v25, 8, v25")
        e("v_xor_b32 v25, v25, v20")
        e(f"v_lshl_add_u32 v25, v25, 4, v24")
        e(f"v_add_u32 v{V_WQDMA+n}, {n*(4*8192-1024)}, v25")
    e(f"s_mul_i32 s6, s{S_W}, {16*3456}")
    e("v_lshrrev_b32 v24, 3, v0")
    e("v_mul_u32_u24 v25, 3456, v24")
    e("v_add_u32 v25, s6, v25")
    e("v_and_b32 v24, 2, v24")
    e("v_and_b32 v26, 7, v0")
    e("v_xor_b32 v24, v24, v26")
    e(f"v_lshl_add_u32 v{V_W1DMA}, v24, 4, v25")
    e("v_xor_b32 v24, 4, v24")
    e("v_lshl_add_u32 v24, v24, 4, v25")
    e(f"v_add_u32 v{V_W1DMA+1}, {8*3456-1024}, v24")
    e(f"s_lshl_b32 s{S_TMP}, s{S_W}, 11")

    def w_dma(c):
        out = [f"s_add_u32 m0, s{S_W4K}, {WQ_SLOT[c%4]}", f"s_mov_b32 s{S_TMP+1}, {c*64*8192}"]
        out += [f"buffer_load_dwordx4 v{V_WQDMA+n}, {sr(S_WQ,4)}, s{S_TMP+1} offen offset:{n*1024} lds" for n in range(4)]
        out += [f"s_add_u32 m0, s{S_TMP}, {LDS_W1+(c%4)*8192}", f"s_mov_b32 s{S_TMP+1}, {c*64*3456}"]
        out += [f"buffer_load_dwordx4 v{V_W1DMA+n}, {sr(S_W1,4)}, s{S_TMP+1} offen offset:{n*1024} lds" for n in range(2)]
        return out

    def x_load(c):
        out = [f"s_mov_b32 s{S_TMP+2}, {c*8192}"]
        for f in range(8):
            out.append(f"buffer_load_dwordx4 {ar(A_XF+(c%4)*32+f*4,4)}, v{V_XOFF+f//4}, {sr(S_XN,4)}, s{S_TMP+2} offen offset:{(f%4)*1024}")
        return out

    for c in range(3):
        for x in w_dma(c) + x_load(c):
            e(x)

    e("v_and_b32 v24, 1, v21")
    e("v_lshl_add_u32 v24, v24, 2, v22")
    e("v_lshl_add_u32 v25, v21, 3, v22")
    e("v_lshlrev_b32 v26, 8, v25")
    e("v_lshl_add_u32 v26, v23, 3, v26")
    for nb in range(8):
        e(f"v_xor_b32 v27, {nb}, v24")
        e(f"v_lshl_add_u32 v{V_WQRD+nb}, v27, 5, v26")
    e("v_lshlrev_b32 v26, 7, v25")
    e("v_lshl_add_u32 v26, v23, 3, v26")
    e(f"v_add_u32 v26, {LDS_W1}, v26")
    e("v_lshrrev_b32 v27, 1, v24")
    for nb in range(4):
        e(f"v_xor_b32 v28, {nb}, v27")
        e(f"v_lshl_add_u32 v{V_W1RD+nb}, v28, 5, v26")
    e("v_xor_b32 v26, v20, v21")
    for ks in range(4):
        e(f"v_xor_b32 v27, {4*ks}, v26")
        e("v_lshlrev_b32 v27, 4, v27")
        e(f"v_lshl_add_u32 v{V_KRD+ks}, v20, 8, v27")
    e("v_lshrrev_b32 v26, 2, v0")
    e("v_lshlrev_b32 v26, 8, v26")
    e("v_lshl_add_u32 v26, v23, 3, v26")
    e(f"v_add_u32 v26, {LDS_V}, v26")
    for db in range(8):
        e(f"v_xor_b32 v27, {db}, v24")
        e(f"v_lshl_add_u32 v{V_VRD+db}, v27, 5, v26")
    e("v_lshlrev_b32 v26, 8, v21")
    e(f"v_add_u32 v26, s{S_W4K}, v26")
    e("v_xor_b32 v27, v20, v21")
    for n in range(4):
        e(f"v_xor_b32 v28, {4*n}, v27")
        e(f"v_lshl_add_u32 v{V_KDMA+n}, v28, 4, v26")
    e("v_lshlrev_b32 v27, 1, v21")
    e("v_xor_b32 v27, v27, v20")
    for n in range(2):
        e(f"v_xor_b32 v28, {8*n}, v27")
        e(f"v_lshl_add_u32 v{V_VDMA+n}, v28, 4, v26")
    e("v_and_b32 v26, 1, v0")
    e("v_cmp_eq_u32 vcc, 0, v26")
    e("v_mov_b32 v27, 0x44444444")
    e("v_mov_b32 v28, 0xeeeeeeee")
    e(f"v_cndmask_b32 v{V_IDX}, v28, v27, vcc")
    e("v_and_b32 v26, 2, v0")
    e("v_cmp_eq_u32 vcc, 0, v26")
    e("v_mov_b32 v27, 0x3f803f80")
    e("v_mov_b32 v28, 0")
    for r in range(4):
        e(f"v_cndmask_b32 v{V_ONES+r}, v28, v27, vcc")

    def w_read(c, nb, t, v):
        d = ar(A_WF + ((nb % 4) * 2 + t) * 4 + 2 * v, 2)
        if nb < 8:
            base = WQ_SLOT[c % 4]
            return ("hi" if base >= 65536 else "lo", f"ds_read_b64_tr_b16 {d}, v{V_WQRD+nb} offset:{base%65536+t*8192+v*1024}")
        return (None, f"ds_read_b64_tr_b16 {d}, v{V_W1RD+nb-8} offset:{(c%4)*8192+t*4096+v*512}")

    half = ["lo"] * 8

    def w_read_seq(c, nb):
        out = []
        for t in range(2):
            for v in range(2):
                h, s = w_read(c, nb, t, v)
                if h and half[nb] != h:
                    out.append(f"v_xor_b32 v{V_WQRD+nb}, 0x10000, v{V_WQRD+nb}")
                    half[nb] = h
                out.append(s)
        return out

    e("s_waitcnt vmcnt(28)")
    e("s_barrier")
    for nb in range(2):
        for x in w_read_seq(0, nb):
            e(x)

    kv_seq = [("K", 0), ("K", 1), ("V", 0), ("K", 2), ("V", 1)]

    def kv_items(lst):
        tmp = Asm()
        for w, t in lst:
            kv_tile_dma(tmp, w, t)
        return tmp.lines

    for c in range(10):
        early = x_load(c + 3) if c + 3 < 10 else []
        late = w_dma(c + 3) if c + 3 < 10 else []
        if c == 8:
            early = kv_items(kv_seq[:3])
        if c == 9:
            early = kv_items(kv_seq[3:])
        for nb in range(12):
            fill = []
            n2 = nb + 2
            reads = []
            if n2 < 12:
                reads = w_read_seq(c, n2)
            elif c < 9:
                reads = w_read_seq(c + 1, n2 - 12)
            if nb == 10 and c < 9:
                left = {7: 14, 8: 12}.get(c, 22)
                if c == 7:
                    left = 14
                fill += [f"s_waitcnt vmcnt({left})", "s_barrier"]
            fill += reads
            if nb < 10:
                k = -(-len(early) // (10 - nb))
                fill += early[:k]
                early = early[k:]
            else:
                k = -(-len(late) // (12 - nb))
                fill += late[:k]
                late = late[k:]
            nds = sum(1 for x in reads if x.startswith("ds_"))
            if nb == 0 and c == 0:
                e("s_waitcnt lgkmcnt(4)")
            slots = [[] for _ in range(8)]
            for i, x in enumerate(fill):
                slots[min(7, i * 8 // max(len(fill), 8))].append(x)
            slots[7].append(f"s_waitcnt lgkmcnt({nds})")
            i = 0
            for qb in range(4):
                for t in ((0, 1) if qb % 2 == 0 else (1, 0)):
                    acc = vr(o_reg(nb, qb), 4) if nb < 8 else vr(V_P + ((nb - 8) * 4 + qb) * 4, 4)
                    first = c == 0 and i % 2 == 0
                    e(mfma(acc, ar(A_WF + ((nb % 4) * 2 + t) * 4, 4), ar(A_XF + (c % 4) * 32 + (qb * 2 + t) * 4, 4), "0" if first else acc))
                    for x in slots[i]:
                        e(x)
                    i += 1

    e(f"s_mov_b32 s6, {fbits(LOG2E * 128 ** -0.5)}")
    e("s_mov_b32 s7, s6")
    for qb in range(4):
        for j in range(4):
            t = V_T + (j % 2) * 4
            for u in range(2):
                a = o_reg(2 * j + u, qb)
                e(f"v_pk_mul_f32 {vr(a,2)}, {vr(a,2)}, s[6:7]")
                e(f"v_pk_mul_f32 {vr(a+2,2)}, {vr(a+2,2)}, s[6:7]")
            for u in range(2):
                a = o_reg(2 * j + u, qb)
                e(f"v_cvt_pk_bf16_f32 v{t+2*u}, v{a}, v{a+1}")
                e(f"v_cvt_pk_bf16_f32 v{t+2*u+1}, v{a+2}, v{a+3}")
            e("s_nop 0")
            e(f"v_permlane32_swap_b32 v{t}, v{t+2}")
            e(f"v_permlane32_swap_b32 v{t+1}, v{t+3}")
            e("s_nop 0")
            e(f"v_permlane16_swap_b32 v{t}, v{t+2}")
            e(f"v_permlane16_swap_b32 v{t+1}, v{t+3}")
            for r in range(4):
                e(f"v_accvgpr_write_b32 a{A_Q+(qb*4+j)*4+r}, v{t+r}")
    e(f"s_mov_b32 s6, {fbits(-LOG2E)}")
    e("s_mov_b32 s7, s6")
    for qb in range(4):
        for jj in range(2):
            t = V_O + jj * 16
            src = [V_P + ((2 * jj + u) * 4 + qb) * 4 for u in range(2)]
            for u in range(2):
                for p in range(2):
                    e(f"v_pk_mul_f32 {vr(t+4*u+2*p,2)}, {vr(src[u]+2*p,2)}, s[6:7]")
            for r in range(8):
                e(f"v_exp_f32 v{t+r}, v{t+r}")
            for p in range(4):
                e(f"v_pk_add_f32 {vr(t+2*p,2)}, {vr(t+2*p,2)}, 1.0 op_sel_hi:[1,0]")
            for r in range(8):
                e(f"v_rcp_f32 v{t+r}, v{t+r}")
            for u in range(2):
                for p in range(2):
                    e(f"v_pk_mul_f32 {vr(t+4*u+2*p,2)}, {vr(t+4*u+2*p,2)}, {vr(src[u]+2*p,2)}")
            for p in range(4):
                e(f"v_cvt_pk_bf16_f32 v{t+8+p}, v{t+2*p}, v{t+2*p+1}")
            e(f"buffer_store_dwordx4 {vr(t+8,4)}, v{V_XOFF+qb//2}, {sr(S_ACTH,4)}, 0 offen offset:{(qb%2)*2048+jj*1024}")
    e(f"v_mov_b32 v1, v{V_XOFF}")

    e("s_waitcnt vmcnt(24)")
    e("s_barrier")
    for kb in range(2):
        for ks in range(4):
            e(k_read(0, kb, ks))
    for kb in range(2):
        e(f"s_waitcnt lgkmcnt({4-4*kb})")
        for qb in range(4):
            d = vr(V_P + (qb * 2 + kb) * 4, 4)
            for ks in range(4):
                e(mfma(d, ar(A_KF + (kb * 4 + ks) * 4, 4), ar(A_Q + (qb * 4 + ks) * 4, 4), "0" if ks == 0 else d))
    m = V_T
    for qb in range(4):
        b = V_P + qb * 8
        e(f"v_max3_f32 v{m+qb}, v{b}, v{b+1}, v{b+2}")
        e(f"v_max3_f32 v{m+qb}, v{m+qb}, v{b+3}, v{b+4}")
        e(f"v_max3_f32 v{m+qb}, v{m+qb}, v{b+5}, v{b+6}")
        e(f"v_max_f32 v{m+qb}, v{m+qb}, v{b+7}")
    e("M_restart:")
    row_max_finish(e, m)
    for r in range(16):
        e(f"v_accvgpr_write_b32 a{A_L+r}, 0")
    e(f"s_mov_b32 s{S_OFF}, {3*16384}")
    e(f"s_mov_b32 s{S_CNT}, 8")
    attn_step(e, -1, qk=True, pv=False)
    e(".p2align 6")
    e("M_loop:")
    for j in range(3):
        attn_step(e, j)
    e(f"s_sub_u32 s{S_CNT}, s{S_CNT}, 1")
    e(f"s_cmp_eq_u32 s{S_CNT}, 0")
    e("s_cbranch_scc1 M_last")
    attn_step(e, 3)
    e("s_branch M_loop")
    e("M_last:")
    attn_step(e, 3, qk=False, pv=True)

    e("s_nop 7")
    for qb in range(4):
        e(f"v_accvgpr_read_b32 v{V_T+2*qb}, a{A_L+qb*4}")
        e(f"v_accvgpr_read_b32 v{V_T+2*qb+1}, a{A_L+qb*4+1}")
    for qb in range(4):
        e(f"v_add_f32 v{V_T+2*qb}, v{V_T+2*qb}, v{V_T+2*qb+1}")
    e(f"s_mov_b32 s6, {fbits(L_LIMIT)}")
    e("s_mov_b64 s[50:51], 0")
    for qb in range(4):
        e(f"v_cmp_nge_f32 vcc, s6, v{V_T+2*qb}")
        e("s_or_b64 s[50:51], s[50:51], vcc")
    for qb in range(4):
        e(f"v_rcp_f32 v{V_T+2*qb}, v{V_T+2*qb}")
    e("s_or_b32 s50, s50, s51")
    e(f"s_lshl_b32 s51, s{S_W}, 2")
    e(f"s_add_u32 s51, s51, {LDS_FLAG}")
    e("v_mov_b32 v28, s50")
    e("v_mov_b32 v29, s51")
    e("ds_write_b32 v29, v28")
    e("v_add_u32 v30, 4096, v1")
    e("s_mov_b32 s6, 8192")
    for jp in range(2):
        for qb in range(4):
            for t in range(2):
                j = 2 * jp + t
                d = V_P + ((qb * 2 + t) % 4) * 4
                for u in range(2):
                    a = o_reg(2 * j + u, qb)
                    e(f"v_pk_mul_f32 {vr(a,2)}, {vr(a,2)}, {vr(V_T+2*qb,2)} op_sel_hi:[1,0]")
                    e(f"v_pk_mul_f32 {vr(a+2,2)}, {vr(a+2,2)}, {vr(V_T+2*qb,2)} op_sel_hi:[1,0]")
                for u in range(2):
                    a = o_reg(2 * j + u, qb)
                    e(f"v_cvt_pk_bf16_f32 v{d+2*u}, v{a}, v{a+1}")
                    e(f"v_cvt_pk_bf16_f32 v{d+2*u+1}, v{a+2}, v{a+3}")
                e(f"buffer_store_dwordx4 {vr(d,4)}, {'v1' if qb < 2 else 'v30'}, {sr(S_ACT,4)}, {'s6' if jp else '0'} offen offset:{(qb%2)*2048+t*1024}")
    e("s_waitcnt lgkmcnt(0)")
    e("s_barrier")
    e(f"v_mov_b32 v29, {LDS_FLAG}")
    e("ds_read_b128 v[24:27], v29")
    e("s_waitcnt lgkmcnt(0)")
    e("v_or_b32 v24, v24, v25")
    e("v_or3_b32 v24, v24, v26, v27")
    e("s_nop 0")
    e("v_readfirstlane_b32 s50, v24")
    e(f"s_cmp_lg_u32 s{S_RETRY}, 0")
    e("s_cbranch_scc1 M_end")
    e("s_cmp_eq_u32 s50, 0")
    e("s_cbranch_scc1 M_end")

    e(f"s_mov_b32 s{S_RETRY}, 1")
    for qb in range(4):
        e(f"v_mov_b32 v{m+qb}, 0xff800000")
    e(f"s_mov_b32 s{S_OFF}, 0")
    e("M_maxloop:")
    e("s_waitcnt vmcnt(0)")
    e("s_barrier")
    e(f"s_mov_b32 m0, s{S_M0K}")
    e("s_nop 0")
    for n in range(4):
        e(k_dma(n))
    e("s_waitcnt vmcnt(0)")
    e("s_barrier")
    for kb in range(4):
        for ks in range(4):
            e(k_read(0, kb, ks))
        e("s_waitcnt lgkmcnt(0)")
        for qb in range(4):
            d = vr(V_P + qb * 4, 4)
            for ks in range(4):
                e(mfma(d, ar(A_KF + (kb * 4 + ks) * 4, 4), ar(A_Q + (qb * 4 + ks) * 4, 4), "0" if ks == 0 else d))
        e("s_nop 7")
        for qb in range(4):
            b = V_P + qb * 4
            e(f"v_max3_f32 v{m+qb}, v{m+qb}, v{b}, v{b+1}")
            e(f"v_max3_f32 v{m+qb}, v{m+qb}, v{b+2}, v{b+3}")
    e(f"s_add_u32 s{S_OFF}, s{S_OFF}, 16384")
    e(f"s_cmp_lt_u32 s{S_OFF}, 524288")
    e("s_cbranch_scc1 M_maxloop")
    e("s_barrier")
    for w, t in kv_seq:
        kv_tile_dma(e, w, t)
    e("s_waitcnt vmcnt(0)")
    e("s_barrier")
    for kb in range(2):
        for ks in range(4):
            e(k_read(0, kb, ks))
    e("s_waitcnt lgkmcnt(0)")
    e("s_branch M_restart")
    e("M_end:")
    e("s_endpgm")


def gen_tail(e):
    kernel_head(e, "tail_kernel")
    SA, SW, SX, SO = 8, 12, 16, 20
    VA, VW, VXO, VX = 2, 6, 9, 10
    ACC = {"G": 32, "S": 112}
    e("s_cmp_ge_u32 s2, 256")
    e("s_cbranch_scc1 T_end")
    e("s_load_dwordx2 s[4:5], s[0:1], 0")
    e("s_load_dwordx2 s[6:7], s[0:1], 80")
    e("s_load_dwordx2 s[24:25], s[0:1], 64")
    e("v_lshrrev_b32 v1, 6, v0")
    e("v_and_b32 v0, 63, v0")
    e("v_readfirstlane_b32 s3, v1")
    e("s_and_b32 s26, s2, 7")
    e("s_lshr_b32 s27, s2, 3")
    e("s_lshl_b32 s26, s26, 2")
    e("s_and_b32 s28, s27, 3")
    e("s_add_u32 s26, s26, s28")
    e("s_lshr_b32 s27, s27, 2")
    e(f"v_lshlrev_b32 v{VW}, 4, v0")
    e(f"v_add_u32 v{VW+1}, 4096, v{VW}")
    e(f"v_add_u32 v{VW+2}, 8192, v{VW}")
    for s in range(4):
        e(f"v_xor_b32 v20, {s}, v1")
        e(f"v_lshl_add_u32 v{VA+s}, v20, 11, v{VW}")
    e("v_and_b32 v20, 15, v0")
    e("v_lshl_add_u32 v20, v1, 4, v20")
    e("v_mul_u32_u24 v20, 1280, v20")
    e("v_lshrrev_b32 v21, 4, v0")
    e(f"v_lshl_add_u32 v{VXO}, v21, 3, v20")
    e("s_waitcnt lgkmcnt(0)")
    e(f"s_mul_i32 s28, s26, {ACT_RG}")
    e(f"s_add_u32 s28, s28, {WS_ACT}")
    srd(e, SA, 6, 7, "s28", ACT_RG)
    e(f"s_mul_i32 s28, s27, {WP_CG}")
    e(f"s_add_u32 s28, s28, {WS_WP}")
    srd(e, SW, 6, 7, "s28", WP_CG)
    srd(e, SX, 4, 5, None, 2621440)
    srd(e, SO, 24, 25, None, 2621440)
    e("s_mul_i32 s29, s26, 81920")
    e("s_mul_i32 s28, s27, 160")
    e("s_add_u32 s29, s29, s28")
    e("s_mul_i32 s30, s3, 7")
    e("s_add_u32 s30, s30, 64")
    e("s_lshl_b32 s31, s3, 4")
    e("s_lshl_b32 s32, s30, 13")
    e("s_mul_i32 s33, s30, 10240")
    e("s_lshl_b32 s34, s31, 13")
    e("s_mul_i32 s35, s31, 10240")
    steps = ["G"] * 7 + ["S"] * 16

    def loads(s):
        b = (s % 3) * 72
        sa, sw = (32, 33) if steps[s] == "G" else (34, 35)
        out = []
        wl = [f"buffer_load_dwordx4 {ar(b+32+f*4,4)}, v{VW+f//4}, {sr(SW,4)}, s{sw} offen offset:{(f%4)*1024}" for f in range(10)]
        al = [f"buffer_load_dwordx4 {ar(b+f*4,4)}, v{VA+f//2}, {sr(SA,4)}, s{sa} offen offset:{(f%2)*1024}" for f in range(8)]
        out = wl[:2] + al + wl[2:]
        out.append(f"s_add_u32 s{sa}, s{sa}, 8192")
        out.append(f"s_add_u32 s{sw}, s{sw}, 10240")
        return out

    for x in loads(0) + loads(1):
        e(x)
    for nb in range(5):
        e(f"buffer_load_dwordx2 {vr(VX+2*nb,2)}, v{VXO}, {sr(SX,4)}, s29 offen offset:{nb*32}")
    for s in range(1, 4):
        e(f"v_xor_b32 v20, {s}, v1")
        e(f"v_mul_u32_u24 v20, 30720, v20")
        e(f"v_add_u32 v{23+s}, v20, v{VW}")
    e("v_mul_u32_u24 v20, 30720, v1")
    e(f"v_add_u32 v23, v20, v{VW}")

    def flush(kind):
        out = []
        for s in range(1, 4):
            for nb in range(5):
                off = ((s - 1) * 5 + nb) * 1024 + (15360 if kind == "S" else 0)
                out.append(f"ds_write_b128 v{23+s}, {vr(ACC[kind]+(nb*4+s)*4,4)} offset:{off}")
        return out

    n = len(steps)
    for s in range(n):
        b = (s % 3) * 72
        left = 18 if s + 1 < n else 0
        if s < 2:
            left += 5
        e(f"s_waitcnt vmcnt({left})")
        fill = loads(s + 2) if s + 2 < n else []
        if s == 8:
            fill = fill + flush("G")
        first = s == 0 or s == 7
        i = 0
        for nb in range(5):
            for rb in range(4):
                for t in ((0, 1) if rb % 2 == 0 else (1, 0)):
                    acc = vr(ACC[steps[s]] + (nb * 4 + rb) * 4, 4)
                    e(mfma(acc, ar(b + 32 + (nb * 2 + t) * 4, 4), ar(b + (rb * 2 + t) * 4, 4), "0" if first and i % 2 == 0 else acc))
                    if i < len(fill):
                        e(fill[i])
                    i += 1
    e("s_nop 7")
    for x in flush("S"):
        e(x)
    e("s_waitcnt lgkmcnt(0)")
    e("s_barrier")
    R = 192
    for kind in ("G", "S"):
        for s in range(3):
            for nb in range(5):
                off = (s * 5 + nb) * 1024 + (15360 if kind == "S" else 0)
                e(f"ds_read_b128 {vr(R+(s*5+nb)*4,4)}, v23 offset:{off}")
        for s in range(3):
            e(f"s_waitcnt lgkmcnt({10-5*s})")
            for nb in range(5):
                a = ACC[kind] + nb * 16
                for p in range(2):
                    e(f"v_pk_add_f32 {vr(a+2*p,2)}, {vr(a+2*p,2)}, {vr(R+(s*5+nb)*4+2*p,2)}")
    e(f"s_mov_b32 s6, {fbits(-LOG2E)}")
    e("s_mov_b32 s7, s6")
    for nb in range(5):
        g = ACC["G"] + nb * 16
        s = ACC["S"] + nb * 16
        t = R + nb * 8
        for p in range(2):
            e(f"v_pk_mul_f32 {vr(t+2*p,2)}, {vr(g+2*p,2)}, s[6:7]")
        for r in range(4):
            e(f"v_exp_f32 v{t+r}, v{t+r}")
        for p in range(2):
            e(f"v_lshlrev_b32 v{t+4+2*p}, 16, v{VX+2*nb+p}")
            e(f"v_and_b32 v{t+5+2*p}, 0xffff0000, v{VX+2*nb+p}")
        for p in range(2):
            e(f"v_pk_add_f32 {vr(t+2*p,2)}, {vr(t+2*p,2)}, 1.0 op_sel_hi:[1,0]")
        for r in range(4):
            e(f"v_rcp_f32 v{t+r}, v{t+r}")
        for p in range(2):
            e(f"v_pk_mul_f32 {vr(s+2*p,2)}, {vr(s+2*p,2)}, {vr(g+2*p,2)}")
        for p in range(2):
            e(f"v_pk_fma_f32 {vr(t+2*p,2)}, {vr(t+2*p,2)}, {vr(s+2*p,2)}, {vr(t+4+2*p,2)}")
        for p in range(2):
            e(f"v_cvt_pk_bf16_f32 v{t+4+p}, v{t+2*p}, v{t+2*p+1}")
        e(f"buffer_store_dwordx2 {vr(t+4,2)}, v{VXO}, {sr(SO,4)}, s29 offen offset:{nb*32}")
    e("T_end:")
    e("s_endpgm")


def build():
    e = Asm()
    ref = open(f"cdna_kernels/{NAME}.s.ref").read().split("\n")
    for l in ref:
        if not l.startswith(";") or "@launch" in l or "Override launch" in l or "grid=ceil" in l:
            if not l.startswith(";"):
                break
            continue
        e(l)
    e("; @launch kernel=prep_kernel grid=(310,1,1) block=(256,1,1) lds=40960")
    e("; @launch kernel=main_kernel grid=(256,1,1) block=(256,1,1) lds=163840")
    e("; @launch kernel=tail_kernel grid=(256,1,1) block=(256,1,1) lds=122880")
    e('.amdgcn_target "amdgcn-amd-amdhsa--gfx950"')
    e(".text")
    gen_prep(e)
    gen_main(e)
    gen_tail(e)
    e('.section .rodata,"a"')
    descriptor(e, "prep_kernel", 80, 80)
    descriptor(e, "main_kernel", 512, 256)
    descriptor(e, "tail_kernel", 512, 256)
    errs = []
    errs += check_trace(e.trace("prep_kernel", {}), "prep-ln")
    errs += check_trace(e.trace("prep_kernel", {"P_repack": [True]}), "prep-repack")
    errs += check_trace(e.trace("main_kernel", {"M_last": [False, False, True, False, True], "M_end": [False, False, False, True], "M_maxloop": [True, False]}), "main")
    errs += check_trace(e.trace("tail_kernel", {}), "tail")
    return e.text(), errs


if __name__ == "__main__":
    text, errs = build()
    for x in errs:
        print(x)
    out = sys.argv[1] if len(sys.argv) > 1 else f"cdna_kernels/{NAME}.s"
    open(out, "w").write(text)
    print("wrote", out, len(text), "bytes;", len(errs), "check findings")
```

```python
import sys, struct
from asm import Asm, check_trace

NAME = "recurrent_scan__gqa_block_cached__dense_activation_silu__prompt"
WS_XN = 0
WS_ACT = 4 << 20
WS_WP = 32 << 20
NPAIR = 91
ACT_RG = NPAIR * 8192
WP_CG = NPAIR * 10240
SRD3 = "0x00020000"


def fbits(x):
    return "0x%08x" % struct.unpack("<I", struct.pack("<f", x))[0]


def vr(b, n=1):
    return f"v{b}" if n == 1 else f"v[{b}:{b+n-1}]"


def ar(b, n=1):
    return f"a{b}" if n == 1 else f"a[{b}:{b+n-1}]"


def sr(b, n=1):
    return f"s{b}" if n == 1 else f"s[{b}:{b+n-1}]"


def srd(e, d, lo, hi, off, size):
    if off is None:
        e(f"s_mov_b32 s{d}, s{lo}")
        e(f"s_mov_b32 s{d+1}, s{hi}")
    else:
        e(f"s_add_u32 s{d}, s{lo}, {off}")
        e(f"s_addc_u32 s{d+1}, s{hi}, 0")
    e(f"s_mov_b32 s{d+2}, {size}")
    e(f"s_mov_b32 s{d+3}, {SRD3}")


STAMPS = False
OPT = {}
WS_STAMP = 64 << 20


def stamp(e, i):
    if STAMPS:
        e("s_memrealtime s[96:97]")
        e("s_memtime s[98:99]")
        e("s_waitcnt lgkmcnt(0)")
        e(f"s_mov_b32 s{76+2*i}, s96")
        e(f"s_mov_b32 s{77+2*i}, s98")


def stamp_flush(e, kid, lo, hi, wave, n):
    if not STAMPS:
        return
    e("s_waitcnt vmcnt(0) lgkmcnt(0)")
    stamp(e, n)
    srd(e, 8, lo, hi, WS_STAMP + kid * 262144, 262144)
    e("s_lshl_b32 s12, s2, 2")
    e(f"s_add_u32 s12, s12, s{wave}")
    e("s_lshl_b32 s12, s12, 7")
    e("v_mov_b32 v2, 0")
    for i in range(2 * n + 2):
        e(f"v_mov_b32 v3, s{76+i}")
        e(f"buffer_store_dword v3, v2, s[8:11], s12 offen offset:{4*i}")


def stamp_start(e):
    stamp(e, 0)


def code_prefetch(e, tag, end, nbytes, v0=60):
    if not OPT.get("pf", 1):
        return 0
    e("s_getpc_b64 s[92:93]")
    e(f"{tag}:")
    e(f"s_mov_b32 s94, {end}-{tag}")
    e(f"s_mov_b32 s95, {SRD3}")
    e(f"v_lshlrev_b32 v{v0}, 6, v0")
    n = -(-nbytes // 16384)
    for i in range(n):
        e(f"s_mov_b32 s91, {i*16384}")
        e(f"buffer_load_dword v{v0+1}, v{v0}, s[92:95], s91 offen ; nocheck")
    return n


def kernel_head(e, name):
    e(f".globl {name}")
    e(".p2align 8")
    e(f".type {name},@function")
    e(f"{name}:")


def descriptor(e, name, vgpr, accum):
    e(".p2align 6")
    e(f".amdhsa_kernel {name}")
    e(f".amdhsa_next_free_vgpr {vgpr}")
    e(".amdhsa_next_free_sgpr 102")
    e(f".amdhsa_accum_offset {accum}")
    e(".amdhsa_group_segment_fixed_size 0")
    e(".amdhsa_kernarg_size 88")
    e(".amdhsa_user_sgpr_count 2")
    e(".amdhsa_user_sgpr_kernarg_segment_ptr 1")
    e(".amdhsa_system_sgpr_workgroup_id_x 1")
    e(".end_amdhsa_kernel")


def mfma(d, a, b, c):
    return f"v_mfma_f32_16x16x32_bf16 {d}, {a}, {b}, {c}"


def gen_prep(e):
    kernel_head(e, "prep_kernel")
    e("s_cmp_ge_u32 s2, 310")
    e("s_cbranch_scc1 P_end")
    stamp_start(e)
    e("s_load_dwordx2 s[4:5], s[0:1], 0")
    e("s_load_dwordx2 s[6:7], s[0:1], 80")
    e("s_load_dwordx2 s[16:17], s[0:1], 32")
    e("s_load_dwordx2 s[18:19], s[0:1], 56")
    e("v_lshrrev_b32 v1, 6, v0")
    e("v_and_b32 v2, 63, v0")
    e("v_readfirstlane_b32 s3, v1")
    e("s_waitcnt lgkmcnt(0)")
    e("s_cmp_ge_u32 s2, 128")
    e("s_cbranch_scc1 P_repack")
    srd(e, 8, 4, 5, None, 2621440)
    srd(e, 12, 6, 7, WS_XN, 2621440)
    e("v_lshrrev_b32 v3, 4, v0")
    e("v_and_b32 v4, 15, v0")
    e("s_mul_i32 s20, s2, 20480")
    e("v_mul_u32_u24 v5, 1280, v3")
    e("v_lshl_add_u32 v5, v4, 4, v5")
    for i in range(5):
        e(f"buffer_load_dwordx4 {vr(8+4*i,4)}, v5, s[8:11], s20 offen offset:{256*i}")
    e("s_lshr_b32 s21, s2, 2")
    e("s_mul_i32 s21, s21, 81920")
    e("s_and_b32 s22, s2, 3")
    e("s_lshl_b32 s22, s22, 11")
    e("s_add_u32 s21, s21, s22")
    e("v_lshrrev_b32 v6, 3, v4")
    e("v_lshlrev_b32 v6, 13, v6")
    e("v_and_b32 v7, 7, v4")
    e("v_lshl_add_u32 v6, v7, 8, v6")
    e("v_lshl_add_u32 v6, v3, 4, v6")
    X = 32
    for i in range(5):
        e(f"s_waitcnt vmcnt({4-i})")
        for j in range(4):
            e(f"v_lshlrev_b32 v{X+8*i+2*j}, 16, v{8+4*i+j}")
            e(f"v_and_b32 v{X+8*i+2*j+1}, 0xffff0000, v{8+4*i+j}")
    for k in range(4):
        e(f"v_add_f32 v{72+k}, v{X+k}, v{X+4+k}")
    for n in range(8, 40):
        e(f"v_add_f32 v{72+n%4}, v{72+n%4}, v{X+n}")

    def reduce16():
        e("v_add_f32 v72, v72, v73")
        e("v_add_f32 v74, v74, v75")
        e("v_add_f32 v72, v72, v74")
        for rot in (8, 4, 2, 1):
            e("s_nop 1")
            e(f"v_add_f32_dpp v72, v72, v72 row_ror:{rot} row_mask:0xf bank_mask:0xf")
        e(f"v_mul_f32 v72, {fbits(1.0/640)}, v72")

    reduce16()
    e("v_mov_b32 v76, v72")
    for n in range(40):
        e(f"v_sub_f32 v77, v{X+n}, v76")
        if n < 4:
            e(f"v_mul_f32 v{72+n}, v77, v77")
        else:
            e(f"v_fmac_f32 v{72+n%4}, v77, v77")
    reduce16()
    e("v_cvt_pk_bf16_f32 v73, v72, v76")
    e("v_and_b32 v76, 0xffff0000, v73")
    e("v_lshlrev_b32 v72, 16, v73")
    e(f"v_add_f32 v72, {fbits(1e-5)}, v72")
    e("v_cvt_pk_bf16_f32 v72, v72, v72")
    e("v_lshlrev_b32 v72, 16, v72")
    e("v_sqrt_f32 v72, v72")
    e("s_nop 0")
    e("v_cvt_pk_bf16_f32 v72, v72, v72")
    e("v_lshlrev_b32 v72, 16, v72")
    e("v_rcp_f32 v78, v72")
    for i in range(5):
        for j in range(4):
            a = X + 8 * i + 2 * j
            e(f"v_sub_f32 v{a}, v{a}, v76")
            e(f"v_sub_f32 v{a+1}, v{a+1}, v76")
            e(f"v_cvt_pk_bf16_f32 v77, v{a}, v{a+1}")
            e(f"v_lshlrev_b32 v{a}, 16, v77")
            e(f"v_and_b32 v{a+1}, 0xffff0000, v77")
            e(f"v_mul_f32 v{a}, v{a}, v78")
            e(f"v_mul_f32 v{a+1}, v{a+1}, v78")
            e(f"v_cvt_pk_bf16_f32 v{8+4*i+j}, v{a}, v{a+1}")
        e(f"buffer_store_dwordx4 {vr(8+4*i,4)}, v6, s[12:15], s21 offen")
        e("s_add_u32 s21, s21, 16384")
    stamp_flush(e, 0, 6, 7, 3, 1)
    e("s_endpgm")

    e("P_repack:")
    e("s_sub_u32 s20, s2, 128")
    e("s_sub_u32 s21, s2, 256")
    e("s_cmp_lt_u32 s20, 128")
    e("s_cselect_b32 s4, s16, s18")
    e("s_cselect_b32 s5, s17, s19")
    e("s_cselect_b32 s21, s20, s21")
    e("s_mul_i32 s21, s21, 40960")
    srd(e, 8, 4, 5, "s21", 40960)
    srd(e, 12, 6, 7, WS_WP, 8 * WP_CG)
    e("s_mul_i32 s22, s3, 10240")
    e("v_lshlrev_b32 v3, 4, v2")
    for n in range(10):
        if n % 4 == 0:
            e("s_mov_b32 m0, s22")
            e("s_nop 0")
        e(f"buffer_load_dwordx4 v3, s[8:11], s22 offen offset:{(n%4)*1024} lds")
        if n % 4 == 3:
            e("s_add_u32 s22, s22, 4096")
    e("v_lshrrev_b32 v4, 2, v2")
    e("v_mul_u32_u24 v4, 1280, v4")
    e("v_and_b32 v5, 3, v2")
    e("v_lshl_add_u32 v4, v5, 3, v4")
    e("s_mul_i32 s23, s3, 320")
    e("v_add_u32 v4, s23, v4")
    e("s_lshr_b32 s24, s20, 1")
    e("s_mul_i32 s24, s24, 10240")
    e("s_and_b32 s25, s20, 1")
    e("s_lshl_b32 s25, s25, 10")
    e("s_add_u32 s24, s24, s25")
    e(f"s_mul_i32 s25, s3, {2*WP_CG}")
    e("s_add_u32 s24, s24, s25")
    e("s_waitcnt vmcnt(0)")
    e("s_barrier")
    for n in range(10):
        for v in range(2):
            e(f"ds_read_b64_tr_b16 {vr(8+4*n+2*v,2)}, v4 offset:{n*32+v*20480}")
        if n == 6:
            e("s_waitcnt lgkmcnt(8)")
    e("s_waitcnt lgkmcnt(0)")
    for n in range(10):
        e(f"s_add_u32 s26, s24, {(n//5)*WP_CG + (n%5)*2048}")
        e(f"buffer_store_dwordx4 {vr(8+4*n,4)}, v3, s[12:15], s26 offen")
    stamp_flush(e, 0, 6, 7, 3, 1)
    e("P_end:")
    e("s_endpgm")


V_KRD, V_VRD, V_KDMA, V_VDMA = 2, 6, 14, 18
V_T = 20
V_IDX, V_ONES, V_NM, V_S, V_P, V_O = 35, 36, 40, 56, 64, 128
A_Q, A_KF, A_VF, A_L = 0, 64, 128, 160
A_XF, A_WF = 64, 192
V_WQRD, V_W1RD, V_WQDMA, V_W1DMA, V_XOFF = 40, 48, 52, 56, 58
LDS_K, LDS_V, LDS_W1 = 0, 65536, 131072
LDS_FLAG = 131072
S_XN, S_WQ, S_W1, S_K, S_V, S_ACT, S_ACTH = 8, 12, 16, 20, 24, 28, 32
S_W, S_HEAD, S_QT, S_W4K, S_OFF, S_CNT, S_RETRY, S_TMP = 40, 41, 42, 43, 44, 45, 46, 48
S_M0K, S_M0V = 56, 60
WQ_SLOT = [LDS_V + 3 * 16384, LDS_V + 2 * 16384, LDS_K + 2 * 16384, LDS_K + 3 * 16384]
LOG2E = 1.4426950408889634
L_LIMIT = 2.0 ** 100


def o_reg(db, qb):
    return V_O + (db * 4 + qb) * 4


def k_dma(n):
    return f"buffer_load_dwordx4 v{V_KDMA+n}, {sr(S_K,4)}, s{S_OFF} offen offset:{n*1024} lds"


def v_dma(n):
    return f"buffer_load_dwordx4 v{V_VDMA+(n&1)}, {sr(S_V,4)}, s{S_OFF} offen offset:{n*1024} lds"


def k_read(tile, kb, ks):
    return f"ds_read_b128 {ar(A_KF+(kb*4+ks)*4,4)}, v{V_KRD+ks} offset:{(tile%4)*16384+kb*4096}"


def v_read(tile, db, t, v):
    return f"ds_read_b64_tr_b16 {ar(A_VF+((db%4)*2+t)*4+2*v,2)}, v{V_VRD+db} offset:{(tile%4)*16384+t*8192+v*4096}"


def kv_tile_dma(e, which, tile):
    if which == "K":
        e(f"s_mov_b32 m0, s{S_M0K + tile % 4}")
        e(f"s_mov_b32 s{S_OFF}, {tile*16384}")
        for n in range(4):
            e(k_dma(n))
    else:
        e(f"s_mov_b32 m0, s{S_M0V + tile % 4}")
        e(f"s_mov_b32 s{S_OFF}, {tile*16384}")
        for n in range(4):
            e(v_dma(n))


LK = LV = 5


SBUF = [56, 60, 24, 28]


def attn_step(e, j, qk=True, pv=True):
    pw = V_P + ((j + 1) % 2) * 32
    pr = V_P + (j % 2) * 32

    def pdst(x):
        on, base = (qk, pw) if x >= 0 else (pv, pr)
        x %= 16
        return on, base + (x % 4) * 8 + (x // 4) * 2, SBUF[x % 4]

    for u in range(16):
        kb, qb = u // 4, u % 4
        s_cur = SBUF[u % 4]
        M = []
        if qk:
            for ks in range(4):
                c = vr(V_NM + qb * 4, 4) if ks == 0 else vr(s_cur, 4)
                M.append(mfma(vr(s_cur, 4), ar(A_KF + (kb * 4 + ks) * 4, 4), ar(A_Q + (qb * 4 + ks) * 4, 4), c))
        else:
            M += [None] * 4
        if pv:
            db = u // 2
            for h in range(2):
                q2 = (u % 2) * 2 + h
                for t in ((0, 1) if h == 0 else (1, 0)):
                    o = vr(o_reg(db, q2), 4)
                    M.append(mfma(o, ar(A_VF + ((db % 4) * 2 + t) * 4, 4), vr(pr + q2 * 8 + t * 4, 4), o))
        else:
            M += [None] * 4
        F = [[] for _ in range(8)]
        nreads = 0
        n = u + LK
        if qk:
            F[1].append(k_read(j + 1 + n // 16, (n % 16) // 4, n % 4))
            nreads += 1
        n = u + LV
        if (pv and n < 16) or (qk and n >= 16):
            F[3].append(v_read(j + n // 16, (n % 16) // 2, n % 2, 0))
            F[5].append(v_read(j + n // 16, (n % 16) // 2, n % 2, 1))
            nreads += 2
        on, p, sb = pdst(u - 1)
        if on:
            for r in range(4):
                F[2 * r].append(f"v_exp_f32 v{sb+r}, v{sb+r}")
            F[5].append(f"v_cvt_pk_bf16_f32 v{p}, v{sb}, v{sb+1}")
        on, p, sb = pdst(u - 2)
        if on:
            F[1].append(f"v_cvt_pk_bf16_f32 v{p+1}, v{sb+2}, v{sb+3}")
        post = []
        if qk:
            if u == 10:
                post += [f"s_waitcnt vmcnt({8 if pv else 16})", "s_barrier"]
            if u == 12:
                F[3].append(f"s_mov_b32 m0, s{S_M0K + j % 4}")
            if u in (12, 14):
                F[7].append(k_dma((u - 12) // 2))
            if pv:
                if u in (0, 2):
                    F[7].append(k_dma(2 + u // 2))
                if u == 3:
                    F[3].append(f"s_sub_u32 s{S_OFF}, s{S_OFF}, 16384")
                if u == 4:
                    F[3].append(f"s_mov_b32 m0, s{S_M0V + (j + 2) % 4}")
                if u in (4, 6, 8, 10):
                    F[7].append(v_dma((u - 4) // 2))
                if u == 11:
                    F[3].append(f"s_add_u32 s{S_OFF}, s{S_OFF}, 32768")
        if u % 2 == 1:
            F[7].append(f"s_waitcnt lgkmcnt({nreads})")
        if qk and pv:
            drop = []
            for k, pat in (("nodma", "buffer_load"), ("nobar", "s_barrier"), ("novm", "s_waitcnt vmcnt"), ("nods", "ds_read"),
                           ("nokds", "ds_read_b128"), ("novds", "ds_read_b64")):
                if OPT.get(k):
                    drop.append(pat)
            F = [[x for x in f if not x.startswith(tuple(drop))] if drop else f for f in F]
        if qk and not pv:
            z = [f"v_mov_b32 v{V_O + u*8 + i}, 0" for i in range(8)]
            order = [M[0], z[0], z[1], M[1]] + F[1] + [M[2], z[3], z[4], M[3], z[2]]
            order += F[0] + [z[5]] + F[2] + [z[6]] + F[3] + F[4] + F[5] + F[6] + [z[7]] + F[7]
            for x in order:
                e(x)
        else:
            for i in range(8):
                if M[i]:
                    e(M[i])
                for x in F[i]:
                    e(x)
        if pv and u % 4 == 2:
            q2 = u // 4
            e(f"v_smfmac_f32_16x16x64_bf16 {ar(A_L+q2*4,4)}, {vr(V_ONES,4)}, {vr(pr+q2*8,8)}, v{V_IDX}")
        for x in post:
            e(x)


def row_max_finish(e, m):
    t = V_T + 4
    for swap in ("v_permlane32_swap_b32", "v_permlane16_swap_b32"):
        for qb in range(4):
            e(f"v_mov_b32 v{t+qb}, v{m+qb}")
        for qb in range(4):
            e(f"{swap} v{m+qb}, v{t+qb}")
        for qb in range(4):
            e(f"v_max_f32 v{m+qb}, v{m+qb}, v{t+qb}")
    for qb in range(4):
        for r in range(4):
            e(f"v_sub_f32 v{V_NM+qb*4+r}, 0, v{m+qb}")


def gen_main(e):
    kernel_head(e, "main_kernel")
    e("s_cmp_ge_u32 s2, 256")
    e("s_cbranch_scc1 M_exit")
    stamp_start(e)
    e("s_load_dwordx4 s[64:67], s[0:1], 8")
    e("s_load_dwordx2 s[68:69], s[0:1], 24")
    e("s_load_dwordx2 s[70:71], s[0:1], 48")
    e("s_load_dwordx2 s[72:73], s[0:1], 80")
    code_prefetch(e, "M_pc", "M_exit", 40000)
    e("v_lshrrev_b32 v1, 6, v0")
    e("v_and_b32 v0, 63, v0")
    e(f"v_readfirstlane_b32 s{S_W}, v1")
    e("s_and_b32 s3, s2, 7")
    e("s_lshr_b32 s4, s2, 3")
    e(f"s_lshr_b32 s{S_QT}, s4, 2")
    e("s_and_b32 s4, s4, 3")
    e(f"s_lshl_b32 s{S_HEAD}, s3, 2")
    e(f"s_add_u32 s{S_HEAD}, s{S_HEAD}, s4")
    e(f"s_lshl_b32 s5, s{S_QT}, 2")
    e(f"s_add_u32 s5, s5, s{S_W}")
    e(f"s_lshl_b32 s{S_W4K}, s{S_W}, 12")
    e(f"s_mov_b32 s{S_RETRY}, 0")
    for i in range(4):
        e(f"s_add_u32 s{S_M0K+i}, s{S_W4K}, {LDS_K + i*16384}")
        e(f"s_add_u32 s{S_M0V+i}, s{S_W4K}, {LDS_V + i*16384}")
    e("v_and_b32 v20, 15, v0")
    e("v_lshrrev_b32 v21, 4, v0")
    e("v_bfe_u32 v22, v0, 2, 2")
    e("v_and_b32 v23, 3, v0")
    e("s_waitcnt lgkmcnt(0)")
    e("s_mul_i32 s6, s5, 81920")
    e(f"s_add_u32 s6, s6, {WS_XN}")
    srd(e, S_XN, 72, 73, "s6", 81920)
    e(f"s_lshl_b32 s6, s{S_HEAD}, 8")
    srd(e, S_WQ, 68, 69, "s6", 640 * 8192 - 31 * 256)
    e(f"s_lshl_b32 s6, s{S_HEAD}, 7")
    srd(e, S_W1, 70, 71, "s6", 640 * 3456 - 26 * 128)
    e(f"s_lshl_b32 s6, s{S_HEAD}, 19")
    srd(e, S_K, 64, 65, "s6", 524288)
    srd(e, S_V, 66, 67, "s6", 524288)
    e(f"s_mul_i32 s6, s5, {ACT_RG}")
    e(f"s_add_u32 s6, s6, {WS_ACT}")
    e(f"s_lshl_b32 s7, s{S_HEAD}, 14")
    e("s_add_u32 s7, s7, s6")
    srd(e, S_ACT, 72, 73, "s7", 16384)
    e(f"s_lshl_b32 s7, s{S_HEAD}, 13")
    e(f"s_add_u32 s7, s7, {64*8192}")
    e("s_add_u32 s7, s7, s6")
    srd(e, S_ACTH, 72, 73, "s7", 8192)
    e(f"s_cmp_lt_u32 s{S_HEAD}, 27")
    e(f"s_cselect_b32 s{S_W1+2}, s{S_W1+2}, 0")
    e(f"s_cselect_b32 s{S_ACTH+2}, s{S_ACTH+2}, 0")

    e(f"v_lshlrev_b32 v{V_XOFF}, 4, v0")
    e(f"v_add_u32 v{V_XOFF+1}, 4096, v{V_XOFF}")
    e(f"s_lshl_b32 s6, s{S_W}, 17")
    e("v_lshlrev_b32 v24, 13, v21")
    e("v_add_u32 v24, s6, v24")
    for n in range(4):
        e(f"v_lshlrev_b32 v25, 1, v21")
        if n >> 1:
            e("v_xor_b32 v25, 8, v25")
        e("v_xor_b32 v25, v25, v20")
        e(f"v_lshl_add_u32 v25, v25, 4, v24")
        e(f"v_add_u32 v{V_WQDMA+n}, {n*(4*8192-1024)}, v25")
    e(f"s_mul_i32 s6, s{S_W}, {16*3456}")
    e("v_lshrrev_b32 v24, 3, v0")
    e("v_mul_u32_u24 v25, 3456, v24")
    e("v_add_u32 v25, s6, v25")
    e("v_and_b32 v24, 2, v24")
    e("v_and_b32 v26, 7, v0")
    e("v_xor_b32 v24, v24, v26")
    e(f"v_lshl_add_u32 v{V_W1DMA}, v24, 4, v25")
    e("v_xor_b32 v24, 4, v24")
    e("v_lshl_add_u32 v24, v24, 4, v25")
    e(f"v_add_u32 v{V_W1DMA+1}, {8*3456-1024}, v24")
    e(f"s_lshl_b32 s{S_TMP}, s{S_W}, 11")

    def w_dma(c):
        out = [f"s_add_u32 m0, s{S_W4K}, {WQ_SLOT[c%4]}", f"s_mov_b32 s{S_TMP+1}, {c*64*8192}"]
        out += [f"buffer_load_dwordx4 v{V_WQDMA+n}, {sr(S_WQ,4)}, s{S_TMP+1} offen offset:{n*1024} lds" for n in range(4)]
        out += [f"s_add_u32 m0, s{S_TMP}, {LDS_W1+(c%4)*8192}", f"s_mov_b32 s{S_TMP+1}, {c*64*3456}"]
        out += [f"buffer_load_dwordx4 v{V_W1DMA+n}, {sr(S_W1,4)}, s{S_TMP+1} offen offset:{n*1024} lds" for n in range(2)]
        return out

    def x_load(c):
        out = [f"s_mov_b32 s{S_TMP+2}, {c*8192}"]
        for f in range(8):
            out.append(f"buffer_load_dwordx4 {ar(A_XF+(c%4)*32+f*4,4)}, v{V_XOFF+f//4}, {sr(S_XN,4)}, s{S_TMP+2} offen offset:{(f%4)*1024}")
        return out

    for c in range(3):
        for x in w_dma(c) + x_load(c):
            e(x)

    e("v_and_b32 v24, 1, v21")
    e("v_lshl_add_u32 v24, v24, 2, v22")
    e("v_lshl_add_u32 v25, v21, 3, v22")
    e("v_lshlrev_b32 v26, 8, v25")
    e("v_lshl_add_u32 v26, v23, 3, v26")
    for nb in range(8):
        e(f"v_xor_b32 v27, {nb}, v24")
        e(f"v_lshl_add_u32 v{V_WQRD+nb}, v27, 5, v26")
    e("v_lshlrev_b32 v26, 7, v25")
    e("v_lshl_add_u32 v26, v23, 3, v26")
    e(f"v_add_u32 v26, {LDS_W1}, v26")
    e("v_lshrrev_b32 v27, 1, v24")
    for nb in range(4):
        e(f"v_xor_b32 v28, {nb}, v27")
        e(f"v_lshl_add_u32 v{V_W1RD+nb}, v28, 5, v26")
    e("v_xor_b32 v26, v20, v21")
    for ks in range(4):
        e(f"v_xor_b32 v27, {4*ks}, v26")
        e("v_lshlrev_b32 v27, 4, v27")
        e(f"v_lshl_add_u32 v{V_KRD+ks}, v20, 8, v27")
    e("v_lshrrev_b32 v26, 2, v0")
    e("v_lshlrev_b32 v26, 8, v26")
    e("v_lshl_add_u32 v26, v23, 3, v26")
    e(f"v_add_u32 v26, {LDS_V}, v26")
    for db in range(8):
        e(f"v_xor_b32 v27, {db}, v24")
        e(f"v_lshl_add_u32 v{V_VRD+db}, v27, 5, v26")
    e("v_lshlrev_b32 v26, 8, v21")
    e(f"v_add_u32 v26, s{S_W4K}, v26")
    e("v_xor_b32 v27, v20, v21")
    for n in range(4):
        e(f"v_xor_b32 v28, {4*n}, v27")
        e(f"v_lshl_add_u32 v{V_KDMA+n}, v28, 4, v26")
    e("v_lshlrev_b32 v27, 1, v21")
    e("v_xor_b32 v27, v27, v20")
    for n in range(2):
        e(f"v_xor_b32 v28, {8*n}, v27")
        e(f"v_lshl_add_u32 v{V_VDMA+n}, v28, 4, v26")
    e("v_and_b32 v26, 1, v0")
    e("v_cmp_eq_u32 vcc, 0, v26")
    e("v_mov_b32 v27, 0x44444444")
    e("v_mov_b32 v28, 0xeeeeeeee")
    e(f"v_cndmask_b32 v{V_IDX}, v28, v27, vcc")
    e("v_and_b32 v26, 2, v0")
    e("v_cmp_eq_u32 vcc, 0, v26")
    e("v_mov_b32 v27, 0x3f803f80")
    e("v_mov_b32 v28, 0")
    for r in range(4):
        e(f"v_cndmask_b32 v{V_ONES+r}, v28, v27, vcc")

    def w_read(c, nb, t, v):
        d = ar(A_WF + ((nb % 4) * 2 + t) * 4 + 2 * v, 2)
        if nb < 8:
            base = WQ_SLOT[c % 4]
            return ("hi" if base >= 65536 else "lo", f"ds_read_b64_tr_b16 {d}, v{V_WQRD+nb} offset:{base%65536+t*8192+v*1024}")
        return (None, f"ds_read_b64_tr_b16 {d}, v{V_W1RD+nb-8} offset:{(c%4)*8192+t*4096+v*512}")

    half = ["lo"] * 8

    def w_read_seq(c, nb):
        out = []
        for t in range(2):
            for v in range(2):
                h, s = w_read(c, nb, t, v)
                if h and half[nb] != h:
                    out.append(f"v_xor_b32 v{V_WQRD+nb}, 0x10000, v{V_WQRD+nb}")
                    half[nb] = h
                out.append(s)
        return out

    e("s_waitcnt vmcnt(28)")
    e("s_barrier")
    stamp(e, 1)
    if STAMPS:
        e("s_waitcnt lgkmcnt(0)")
    for nb in range(2):
        for x in w_read_seq(0, nb):
            e(x)

    kv_seq = [("K", 0), ("K", 1), ("V", 0), ("K", 2), ("V", 1)]

    def kv_items(lst):
        tmp = Asm()
        for w, t in lst:
            kv_tile_dma(tmp, w, t)
        return tmp.lines

    for c in range(10):
        early = x_load(c + 3) if c + 3 < 10 else []
        late = w_dma(c + 3) if c + 3 < 10 else []
        if c == 8:
            early = kv_items(kv_seq[:3])
        if c == 9:
            early = kv_items(kv_seq[3:])
        for nb in range(12):
            fill = []
            n2 = nb + 2
            reads = []
            if n2 < 12:
                reads = w_read_seq(c, n2)
            elif c < 9:
                reads = w_read_seq(c + 1, n2 - 12)
            if nb == 10 and c < 9:
                left = {7: 14, 8: 12}.get(c, 22)
                if c == 7:
                    left = 14
                fill += [f"s_waitcnt vmcnt({left})", "s_barrier"]
            fill += reads
            if nb < 10:
                k = -(-len(early) // (10 - nb))
                fill += early[:k]
                early = early[k:]
            else:
                k = -(-len(late) // (12 - nb))
                fill += late[:k]
                late = late[k:]
            nds = sum(1 for x in reads if x.startswith("ds_"))
            if nb == 0 and c == 0:
                e("s_waitcnt lgkmcnt(4)")
            slots = [[] for _ in range(8)]
            for i, x in enumerate(fill):
                slots[min(7, i * 8 // max(len(fill), 8))].append(x)
            slots[7].append(f"s_waitcnt lgkmcnt({nds})")
            i = 0
            for qb in range(4):
                for t in ((0, 1) if qb % 2 == 0 else (1, 0)):
                    acc = vr(o_reg(nb, qb), 4) if nb < 8 else vr(V_P + ((nb - 8) * 4 + qb) * 4, 4)
                    first = c == 0 and i % 2 == 0
                    e(mfma(acc, ar(A_WF + ((nb % 4) * 2 + t) * 4, 4), ar(A_XF + (c % 4) * 32 + (qb * 2 + t) * 4, 4), "0" if first else acc))
                    for x in slots[i]:
                        e(x)
                    i += 1

    stamp(e, 2)
    e(f"s_mov_b32 s6, {fbits(LOG2E * 128 ** -0.5)}")
    e("s_mov_b32 s7, s6")
    for qb in range(4):
        for j in range(4):
            t = V_T + (j % 2) * 4
            for u in range(2):
                a = o_reg(2 * j + u, qb)
                e(f"v_pk_mul_f32 {vr(a,2)}, {vr(a,2)}, s[6:7]")
                e(f"v_pk_mul_f32 {vr(a+2,2)}, {vr(a+2,2)}, s[6:7]")
            for u in range(2):
                a = o_reg(2 * j + u, qb)
                e(f"v_cvt_pk_bf16_f32 v{t+2*u}, v{a}, v{a+1}")
                e(f"v_cvt_pk_bf16_f32 v{t+2*u+1}, v{a+2}, v{a+3}")
            e("s_nop 0")
            e(f"v_permlane32_swap_b32 v{t}, v{t+2}")
            e(f"v_permlane32_swap_b32 v{t+1}, v{t+3}")
            e("s_nop 0")
            e(f"v_permlane16_swap_b32 v{t}, v{t+2}")
            e(f"v_permlane16_swap_b32 v{t+1}, v{t+3}")
            for r in range(4):
                e(f"v_accvgpr_write_b32 a{A_Q+(qb*4+j)*4+r}, v{t+r}")
    e(f"s_mov_b32 s6, {fbits(-LOG2E)}")
    e("s_mov_b32 s7, s6")
    for qb in range(4):
        for jj in range(2):
            t = V_O + jj * 16
            src = [V_P + ((2 * jj + u) * 4 + qb) * 4 for u in range(2)]
            for u in range(2):
                for p in range(2):
                    e(f"v_pk_mul_f32 {vr(t+4*u+2*p,2)}, {vr(src[u]+2*p,2)}, s[6:7]")
            for r in range(8):
                e(f"v_exp_f32 v{t+r}, v{t+r}")
            for p in range(4):
                e(f"v_pk_add_f32 {vr(t+2*p,2)}, {vr(t+2*p,2)}, 1.0 op_sel_hi:[1,0]")
            for r in range(8):
                e(f"v_rcp_f32 v{t+r}, v{t+r}")
            for u in range(2):
                for p in range(2):
                    e(f"v_pk_mul_f32 {vr(t+4*u+2*p,2)}, {vr(t+4*u+2*p,2)}, {vr(src[u]+2*p,2)}")
            for p in range(4):
                e(f"v_cvt_pk_bf16_f32 v{t+8+p}, v{t+2*p}, v{t+2*p+1}")
            e(f"buffer_store_dwordx4 {vr(t+8,4)}, v{V_XOFF+qb//2}, {sr(S_ACTH,4)}, 0 offen offset:{(qb%2)*2048+jj*1024}")
    e(f"v_mov_b32 v1, v{V_XOFF}")

    stamp(e, 3)
    if STAMPS:
        e("s_waitcnt lgkmcnt(0)")
    e("s_waitcnt vmcnt(24)")
    e("s_barrier")
    for kb in range(2):
        for ks in range(4):
            e(k_read(0, kb, ks))
    for kb in range(2):
        e(f"s_waitcnt lgkmcnt({4-4*kb})")
        for qb in range(4):
            d = vr(V_P + (qb * 2 + kb) * 4, 4)
            for ks in range(4):
                e(mfma(d, ar(A_KF + (kb * 4 + ks) * 4, 4), ar(A_Q + (qb * 4 + ks) * 4, 4), "0" if ks == 0 else d))
    m = V_T
    for qb in range(4):
        b = V_P + qb * 8
        e(f"v_max3_f32 v{m+qb}, v{b}, v{b+1}, v{b+2}")
        e(f"v_max3_f32 v{m+qb}, v{m+qb}, v{b+3}, v{b+4}")
        e(f"v_max3_f32 v{m+qb}, v{m+qb}, v{b+5}, v{b+6}")
        e(f"v_max_f32 v{m+qb}, v{m+qb}, v{b+7}")
    e("M_restart:")
    row_max_finish(e, m)
    for r in range(16):
        e(f"v_accvgpr_write_b32 a{A_L+r}, 0")
    e(f"s_mov_b32 s{S_OFF}, {3*16384}")
    e(f"s_mov_b32 s{S_CNT}, 8")
    attn_step(e, -1, qk=True, pv=False)
    if STAMPS:
        stamp(e, 4)
        e("s_waitcnt lgkmcnt(0)")
    e(".p2align 6")
    e("M_loop:")
    for j in range(3):
        attn_step(e, j)
    e(f"s_sub_u32 s{S_CNT}, s{S_CNT}, 1")
    e(f"s_cmp_eq_u32 s{S_CNT}, 0")
    e("s_cbranch_scc1 M_last")
    attn_step(e, 3)
    e("s_branch M_loop")
    e("M_last:")
    attn_step(e, 3, qk=False, pv=True)

    stamp(e, 5)
    e("s_nop 7")
    for qb in range(4):
        e(f"v_accvgpr_read_b32 v{V_T+2*qb}, a{A_L+qb*4}")
        e(f"v_accvgpr_read_b32 v{V_T+2*qb+1}, a{A_L+qb*4+1}")
    for qb in range(4):
        e(f"v_add_f32 v{V_T+2*qb}, v{V_T+2*qb}, v{V_T+2*qb+1}")
    e(f"s_mov_b32 s6, {fbits(L_LIMIT)}")
    e("s_mov_b64 s[50:51], 0")
    for qb in range(4):
        e(f"v_cmp_nge_f32 vcc, s6, v{V_T+2*qb}")
        e("s_or_b64 s[50:51], s[50:51], vcc")
    for qb in range(4):
        e(f"v_rcp_f32 v{V_T+2*qb}, v{V_T+2*qb}")
    e("s_or_b32 s50, s50, s51")
    e(f"s_lshl_b32 s51, s{S_W}, 2")
    e(f"s_add_u32 s51, s51, {LDS_FLAG}")
    e("v_mov_b32 v28, s50")
    e("v_mov_b32 v29, s51")
    e("ds_write_b32 v29, v28")
    e("v_add_u32 v30, 4096, v1")
    e("s_mov_b32 s6, 8192")
    for jp in range(2):
        for qb in range(4):
            for t in range(2):
                j = 2 * jp + t
                d = V_P + ((qb * 2 + t) % 4) * 4
                for u in range(2):
                    a = o_reg(2 * j + u, qb)
                    e(f"v_pk_mul_f32 {vr(a,2)}, {vr(a,2)}, {vr(V_T+2*qb,2)} op_sel_hi:[1,0]")
                    e(f"v_pk_mul_f32 {vr(a+2,2)}, {vr(a+2,2)}, {vr(V_T+2*qb,2)} op_sel_hi:[1,0]")
                for u in range(2):
                    a = o_reg(2 * j + u, qb)
                    e(f"v_cvt_pk_bf16_f32 v{d+2*u}, v{a}, v{a+1}")
                    e(f"v_cvt_pk_bf16_f32 v{d+2*u+1}, v{a+2}, v{a+3}")
                e(f"buffer_store_dwordx4 {vr(d,4)}, {'v1' if qb < 2 else 'v30'}, {sr(S_ACT,4)}, {'s6' if jp else '0'} offen offset:{(qb%2)*2048+t*1024}")
    e("s_waitcnt lgkmcnt(0)")
    e("s_barrier")
    e(f"v_mov_b32 v29, {LDS_FLAG}")
    e("ds_read_b128 v[24:27], v29")
    e("s_waitcnt lgkmcnt(0)")
    e("v_or_b32 v24, v24, v25")
    e("v_or3_b32 v24, v24, v26, v27")
    e("s_nop 0")
    e("v_readfirstlane_b32 s50, v24")
    e(f"s_cmp_lg_u32 s{S_RETRY}, 0")
    e("s_cbranch_scc1 M_end")
    e("s_cmp_eq_u32 s50, 0")
    e("s_cbranch_scc1 M_end")

    e(f"s_mov_b32 s{S_RETRY}, 1")
    for qb in range(4):
        e(f"v_mov_b32 v{m+qb}, 0xff800000")
    e(f"s_mov_b32 s{S_OFF}, 0")
    e("M_maxloop:")
    e("s_waitcnt vmcnt(0)")
    e("s_barrier")
    e(f"s_mov_b32 m0, s{S_M0K}")
    e("s_nop 0")
    for n in range(4):
        e(k_dma(n))
    e("s_waitcnt vmcnt(0)")
    e("s_barrier")
    for kb in range(4):
        for ks in range(4):
            e(k_read(0, kb, ks))
        e("s_waitcnt lgkmcnt(0)")
        for qb in range(4):
            d = vr(V_P + qb * 4, 4)
            for ks in range(4):
                e(mfma(d, ar(A_KF + (kb * 4 + ks) * 4, 4), ar(A_Q + (qb * 4 + ks) * 4, 4), "0" if ks == 0 else d))
        e("s_nop 7")
        for qb in range(4):
            b = V_P + qb * 4
            e(f"v_max3_f32 v{m+qb}, v{m+qb}, v{b}, v{b+1}")
            e(f"v_max3_f32 v{m+qb}, v{m+qb}, v{b+2}, v{b+3}")
    e(f"s_add_u32 s{S_OFF}, s{S_OFF}, 16384")
    e(f"s_cmp_lt_u32 s{S_OFF}, 524288")
    e("s_cbranch_scc1 M_maxloop")
    e("s_barrier")
    for w, t in kv_seq:
        kv_tile_dma(e, w, t)
    e("s_waitcnt vmcnt(0)")
    e("s_barrier")
    for kb in range(2):
        for ks in range(4):
            e(k_read(0, kb, ks))
    e("s_waitcnt lgkmcnt(0)")
    e("s_branch M_restart")
    e("M_end:")
    stamp_flush(e, 1, 72, 73, S_W, 6)
    e("M_exit:")
    e("s_endpgm")


def gen_tail(e):
    kernel_head(e, "tail_kernel")
    SA, SW, SX, SO = 8, 12, 16, 20
    VA, VW, VXO, VX = 2, 6, 9, 10
    ACC = {"G": 32, "S": 112}
    e("s_cmp_ge_u32 s2, 256")
    e("s_cbranch_scc1 T_end")
    stamp_start(e)
    e("s_load_dwordx2 s[4:5], s[0:1], 0")
    e("s_load_dwordx2 s[6:7], s[0:1], 80")
    e("s_load_dwordx2 s[24:25], s[0:1], 64")
    code_prefetch(e, "T_pc", "T_end", 16000, 28)
    e("v_lshrrev_b32 v1, 6, v0")
    e("v_and_b32 v0, 63, v0")
    e("v_readfirstlane_b32 s3, v1")
    e("s_and_b32 s26, s2, 7")
    e("s_lshr_b32 s27, s2, 3")
    e("s_lshl_b32 s26, s26, 2")
    e("s_and_b32 s28, s27, 3")
    e("s_add_u32 s26, s26, s28")
    e("s_lshr_b32 s27, s27, 2")
    e(f"v_lshlrev_b32 v{VW}, 4, v0")
    e(f"v_add_u32 v{VW+1}, 4096, v{VW}")
    e(f"v_add_u32 v{VW+2}, 8192, v{VW}")
    for s in range(4):
        e(f"v_xor_b32 v20, {s}, v1")
        e(f"v_lshl_add_u32 v{VA+s}, v20, 11, v{VW}")
    e("v_and_b32 v20, 15, v0")
    e("v_lshl_add_u32 v20, v1, 4, v20")
    e("v_mul_u32_u24 v20, 1280, v20")
    e("v_lshrrev_b32 v21, 4, v0")
    e(f"v_lshl_add_u32 v{VXO}, v21, 3, v20")
    e("s_waitcnt lgkmcnt(0)")
    e(f"s_mul_i32 s28, s26, {ACT_RG}")
    e(f"s_add_u32 s28, s28, {WS_ACT}")
    srd(e, SA, 6, 7, "s28", ACT_RG)
    e(f"s_mul_i32 s28, s27, {WP_CG}")
    e(f"s_add_u32 s28, s28, {WS_WP}")
    srd(e, SW, 6, 7, "s28", WP_CG)
    srd(e, SX, 4, 5, None, 2621440)
    srd(e, SO, 24, 25, None, 2621440)
    e("s_mul_i32 s29, s26, 81920")
    e("s_mul_i32 s28, s27, 160")
    e("s_add_u32 s29, s29, s28")
    e("s_mul_i32 s30, s3, 7")
    e("s_add_u32 s30, s30, 64")
    e("s_lshl_b32 s31, s3, 4")
    e("s_lshl_b32 s32, s30, 13")
    e("s_mul_i32 s33, s30, 10240")
    e("s_lshl_b32 s34, s31, 13")
    e("s_mul_i32 s35, s31, 10240")
    steps = ["G"] * 7 + ["S"] * 16

    def loads(s):
        b = (s % 3) * 72
        sa, sw = (32, 33) if steps[s] == "G" else (34, 35)
        out = []
        wl = [f"buffer_load_dwordx4 {ar(b+32+f*4,4)}, v{VW+f//4}, {sr(SW,4)}, s{sw} offen offset:{(f%4)*1024}" for f in range(10)]
        al = [f"buffer_load_dwordx4 {ar(b+f*4,4)}, v{VA+f//2}, {sr(SA,4)}, s{sa} offen offset:{(f%2)*1024}" for f in range(8)]
        out = wl[:2] + al + wl[2:]
        out.append(f"s_add_u32 s{sa}, s{sa}, 8192")
        out.append(f"s_add_u32 s{sw}, s{sw}, 10240")
        return out

    for x in loads(0) + loads(1):
        e(x)
    for nb in range(5):
        e(f"buffer_load_dwordx2 {vr(VX+2*nb,2)}, v{VXO}, {sr(SX,4)}, s29 offen offset:{nb*32}")
    for s in range(1, 4):
        e(f"v_xor_b32 v20, {s}, v1")
        e(f"v_mul_u32_u24 v20, 30720, v20")
        e(f"v_add_u32 v{23+s}, v20, v{VW}")
    e("v_mul_u32_u24 v20, 30720, v1")
    e(f"v_add_u32 v23, v20, v{VW}")

    def flush(kind):
        out = []
        for s in range(1, 4):
            for nb in range(5):
                off = ((s - 1) * 5 + nb) * 1024 + (15360 if kind == "S" else 0)
                out.append(f"ds_write_b128 v{23+s}, {vr(ACC[kind]+(nb*4+s)*4,4)} offset:{off}")
        return out

    n = len(steps)
    for s in range(n):
        b = (s % 3) * 72
        left = 18 if s + 1 < n else 0
        if s < 2:
            left += 5
        e(f"s_waitcnt vmcnt({left})")
        if s == 0:
            stamp(e, 1)
        if s == 7:
            stamp(e, 2)
        fill = loads(s + 2) if s + 2 < n else []
        if s == 8:
            fill = fill + flush("G")
        first = s == 0 or s == 7
        i = 0
        for nb in range(5):
            for rb in range(4):
                for t in ((0, 1) if rb % 2 == 0 else (1, 0)):
                    acc = vr(ACC[steps[s]] + (nb * 4 + rb) * 4, 4)
                    e(mfma(acc, ar(b + 32 + (nb * 2 + t) * 4, 4), ar(b + (rb * 2 + t) * 4, 4), "0" if first and i % 2 == 0 else acc))
                    if i < len(fill):
                        e(fill[i])
                    i += 1
    stamp(e, 3)
    e("s_nop 7")
    for x in flush("S"):
        e(x)
    e("s_waitcnt lgkmcnt(0)")
    e("s_barrier")
    R = 192
    for kind in ("G", "S"):
        for s in range(3):
            for nb in range(5):
                off = (s * 5 + nb) * 1024 + (15360 if kind == "S" else 0)
                e(f"ds_read_b128 {vr(R+(s*5+nb)*4,4)}, v23 offset:{off}")
        for s in range(3):
            e(f"s_waitcnt lgkmcnt({10-5*s})")
            for nb in range(5):
                a = ACC[kind] + nb * 16
                for p in range(2):
                    e(f"v_pk_add_f32 {vr(a+2*p,2)}, {vr(a+2*p,2)}, {vr(R+(s*5+nb)*4+2*p,2)}")
    e(f"s_mov_b32 s36, {fbits(-LOG2E)}")
    e("s_mov_b32 s37, s36")
    for nb in range(5):
        g = ACC["G"] + nb * 16
        s = ACC["S"] + nb * 16
        t = R + nb * 8
        for p in range(2):
            e(f"v_pk_mul_f32 {vr(t+2*p,2)}, {vr(g+2*p,2)}, s[36:37]")
        for r in range(4):
            e(f"v_exp_f32 v{t+r}, v{t+r}")
        for p in range(2):
            e(f"v_lshlrev_b32 v{t+4+2*p}, 16, v{VX+2*nb+p}")
            e(f"v_and_b32 v{t+5+2*p}, 0xffff0000, v{VX+2*nb+p}")
        for p in range(2):
            e(f"v_pk_add_f32 {vr(t+2*p,2)}, {vr(t+2*p,2)}, 1.0 op_sel_hi:[1,0]")
        for r in range(4):
            e(f"v_rcp_f32 v{t+r}, v{t+r}")
        for p in range(2):
            e(f"v_pk_mul_f32 {vr(s+2*p,2)}, {vr(s+2*p,2)}, {vr(g+2*p,2)}")
        for p in range(2):
            e(f"v_pk_fma_f32 {vr(t+2*p,2)}, {vr(t+2*p,2)}, {vr(s+2*p,2)}, {vr(t+4+2*p,2)}")
        for p in range(2):
            e(f"v_cvt_pk_bf16_f32 v{t+4+p}, v{t+2*p}, v{t+2*p+1}")
        e(f"buffer_store_dwordx2 {vr(t+4,2)}, v{VXO}, {sr(SO,4)}, s29 offen offset:{nb*32}")
    stamp_flush(e, 2, 6, 7, 3, 4)
    e("T_end:")
    e("s_endpgm")


def build():
    e = Asm()
    ref = open(f"cdna_kernels/{NAME}.s.ref").read().split("\n")
    for l in ref:
        if not l.startswith(";") or "@launch" in l or "Override launch" in l or "grid=ceil" in l:
            if not l.startswith(";"):
                break
            continue
        e(l)
    e("; @launch kernel=prep_kernel grid=(310,1,1) block=(256,1,1) lds=40960")
    e("; @launch kernel=main_kernel grid=(256,1,1) block=(256,1,1) lds=163840")
    e("; @launch kernel=tail_kernel grid=(256,1,1) block=(256,1,1) lds=122880")
    e('.amdgcn_target "amdgcn-amd-amdhsa--gfx950"')
    e(".text")
    gen_prep(e)
    gen_main(e)
    gen_tail(e)
    e('.section .rodata,"a"')
    descriptor(e, "prep_kernel", 80, 80)
    descriptor(e, "main_kernel", 512, 256)
    descriptor(e, "tail_kernel", 512, 256)
    errs = []
    errs += check_trace(e.trace("prep_kernel", {}), "prep-ln")
    errs += check_trace(e.trace("prep_kernel", {"P_repack": [True]}), "prep-repack")
    errs += check_trace(e.trace("main_kernel", {"M_last": [False, False, True, False, True], "M_end": [False, False, True], "M_maxloop": [True, False]}), "main")
    errs += check_trace(e.trace("tail_kernel", {}), "tail")
    return e.text(), errs


if __name__ == "__main__":
    if "--stamps" in sys.argv:
        sys.argv.remove("--stamps")
        STAMPS = True
    for a in [x for x in sys.argv if "=" in x]:
        sys.argv.remove(a)
        k, v = a.split("=")
        OPT[k] = int(v)
    text, errs = build()
    for x in errs:
        print(x)
    out = sys.argv[1] if len(sys.argv) > 1 else f"cdna_kernels/{NAME}.s"
    open(out, "w").write(text)
    print("wrote", out, len(text), "bytes;", len(errs), "check findings")
```

```python
import re

TRANS = ("v_exp_", "v_log_", "v_rcp_", "v_rsq_", "v_sqrt_", "v_sin_", "v_cos_")
REG_RE = re.compile(r"^-?\|?(?:abs\()?([vas])(?:(\d+)|\[(\d+):(\d+)\])\)?\|?$")


def regs_of(op):
    op = op.strip()
    if op in ("vcc", "exec", "m0", "scc"):
        return {op}
    if op in ("vcc_lo", "vcc_hi"):
        return {"vcc"}
    if op in ("exec_lo", "exec_hi"):
        return {"exec"}
    m = REG_RE.match(op)
    if not m:
        return set()
    k = m.group(1)
    if m.group(2) is not None:
        return {k + m.group(2)}
    return {f"{k}{i}" for i in range(int(m.group(3)), int(m.group(4)) + 1)}


class Ins:
    def __init__(self, text):
        self.text = text
        t = text.split(";")[0].strip()
        self.label = t[:-1] if t.endswith(":") else None
        self.directive = t.startswith(".") and not self.label
        parts = t.split(None, 1)
        self.mn = parts[0] if parts else ""
        rest = parts[1] if len(parts) > 1 else ""
        ops = [o.strip() for o in re.split(r",(?![^\[]*\])", rest)] if rest else []
        self.mods = ""
        if ops:
            last = ops[-1].split(None, 1)
            ops[-1] = last[0]
            self.mods = last[1] if len(last) > 1 else ""
        self.ops = ops
        self.kind = self._kind()
        self.rd, self.wr = set(), set()
        self.srcc, self.srcab, self.data = set(), set(), set()
        self._rw()

    def _kind(self):
        m = self.mn
        if self.label or self.directive or not m:
            return "none"
        if m.startswith("v_mfma"):
            return "mfma"
        if m.startswith("v_smfmac"):
            return "mfma"
        if m.startswith("v_"):
            return "valu"
        if m.startswith("ds_"):
            return "ds"
        if m.startswith(("buffer_", "global_")):
            return "vmem"
        if m.startswith(("s_load", "s_memtime", "s_memrealtime", "s_atomic")):
            return "smem"
        return "salu"

    def _rw(self):
        m, o, k = self.mn, self.ops, self.kind
        R = [regs_of(x) for x in o]
        if k == "mfma":
            self.wr = R[0]
            self.passes = 8 if "32x32" in m else 4
            if m.startswith("v_smfmac"):
                self.srcab = R[1] | R[2] | R[3]
                self.srcc = R[0]
            else:
                self.srcab = R[1] | R[2]
                self.srcc = R[3]
            self.rd = self.srcab | self.srcc
        elif k == "valu":
            if m.startswith("v_nop"):
                return
            self.wr = set(R[0])
            self.rd = set().union(*R[1:]) if len(R) > 1 else set()
            if "swap" in m:
                self.wr = R[0] | R[1]
                self.rd = R[0] | R[1]
            if m.startswith(("v_fmac", "v_dot2c", "v_pk_fmac", "v_writelane")) or "_dpp" in m:
                self.rd |= R[0]
            if m.startswith(("v_add_co", "v_sub_co", "v_addc_co", "v_subb_co")):
                self.wr |= R[1]
                self.rd = set().union(*R[2:])
            if m.startswith("v_cmpx"):
                self.wr |= {"exec"}
        elif k == "ds":
            if m.startswith("ds_read") or m.startswith("ds_bpermute") or m.startswith("ds_swizzle"):
                self.wr = R[0]
                self.rd = set().union(*R[1:])
            else:
                self.rd = set().union(*R)
                self.data = set().union(*R[1:])
        elif k == "vmem":
            if m.startswith(("buffer_wbl2", "buffer_inv")):
                return
            lds = " lds" in " " + self.mods
            if "load" in m and not lds:
                self.wr = R[0]
                self.rd = set().union(*R[1:])
            elif lds:
                self.rd = set().union(*R) | {"m0"}
            else:
                self.rd = set().union(*R)
                if m.startswith("buffer_"):
                    self.data = R[0]
                    if "atomic" in m and "sc0" in self.mods:
                        self.wr = R[0]
                else:
                    self.data = R[1]
        elif k == "smem":
            self.wr = R[0]
            self.rd = set().union(*R[1:]) if len(R) > 1 else set()
        elif k == "salu":
            if m.startswith(("s_cmp", "s_waitcnt", "s_nop", "s_barrier", "s_branch", "s_cbranch", "s_endpgm", "s_setprio", "s_sleep", "s_bitcmp")):
                self.rd = set().union(*R) if R else set()
                if m.startswith("s_cbranch_vcc"):
                    self.rd |= {"vcc"}
            else:
                self.wr = set(R[0]) if R else set()
                self.rd = set().union(*R[1:]) if len(R) > 1 else set()
                if "saveexec" in m:
                    self.wr |= {"exec"}

    @property
    def states(self):
        if self.kind == "none":
            return 0
        if self.mn == "s_nop":
            return int(self.ops[0], 0) + 1
        return 1

    @property
    def trans(self):
        return self.mn.startswith(TRANS)


def required(p, c):
    need = 0
    if p.kind == "mfma":
        tbl = {4: (8, 6, 3), 8: (12, 10, 7)}[p.passes]
        if c.kind == "mfma":
            if p.wr & c.srcab:
                need = max(need, tbl[0])
            if p.wr & c.srcc:
                same = p.wr == c.srcc and p.passes == c.passes
                need = max(need, 0 if same else tbl[1])
            elif p.wr & c.wr:
                need = max(need, 0 if p.wr == c.wr else tbl[1])
        elif c.kind in ("valu", "ds", "vmem"):
            if p.wr & (c.rd | c.wr):
                need = max(need, tbl[0])
            if c.kind == "valu" and p.srcc & c.wr:
                need = max(need, tbl[2])
    if p.kind == "valu":
        vw = {r for r in p.wr if r[0] in "va" and r != "vcc"}
        sw = p.wr - vw
        if c.kind == "mfma":
            if vw & c.rd:
                need = max(need, 2)
            if "exec" in sw:
                need = max(need, 4)
        if c.kind == "valu":
            if p.trans and (vw & c.rd) and not c.trans:
                need = max(need, 1)
            if ("permlane" in c.mn or "_dpp" in c.mn) and vw & c.rd:
                need = max(need, 2)
            if c.mn.startswith(("v_readfirstlane", "v_readlane")) and vw & c.rd:
                need = max(need, 1)
            if sw & c.rd:
                need = max(need, 2)
            if c.mn.startswith("v_cndmask") and "vcc" in sw:
                need = max(need, 2)
            if "exec" in sw and ("permlane" in c.mn or "_dpp" in c.mn or c.mn.startswith(("v_readfirstlane", "v_readlane"))):
                need = max(need, 5)
        if c.kind == "vmem" and sw & c.rd:
            need = max(need, 5)
    if p.kind == "vmem" and p.data and len(p.data) >= 3:
        if c.kind == "valu" and p.data & c.wr:
            need = max(need, 2)
        elif c.kind in ("ds", "vmem", "mfma") and p.data & c.wr:
            need = max(need, 1)
    if p.kind == "salu" and "m0" in p.wr and c.kind == "vmem" and "m0" in c.rd:
        need = max(need, 1)
    return need


def check_trace(trace, name=""):
    errs = []
    real = [i for i in trace if i.kind != "none"]
    for n, c in enumerate(real):
        dist = 0
        for b in range(n - 1, max(-1, n - 22), -1):
            p = real[b]
            r = required(p, c)
            if r > dist:
                errs.append(f"{name}: hazard need {r} have {dist}: [{p.text.strip()}] -> [{c.text.strip()}]")
            dist += p.states
            if dist > 20:
                break
    vm, lg = [], []
    for c in real:
        if c.mn == "s_waitcnt":
            t = c.text.split(";")[0]
            m = re.search(r"vmcnt\((\d+)\)", t)
            if m:
                n = int(m.group(1))
                vm = vm[len(vm) - n:] if n < len(vm) else vm
                if n == 0:
                    vm = []
            m = re.search(r"lgkmcnt\((\d+)\)", t)
            if m:
                n = int(m.group(1))
                if any(x.kind == "smem" for x in lg) and n > 0:
                    pass
                else:
                    lg = lg[len(lg) - n:] if n < len(lg) else lg
                    if n == 0:
                        lg = []
            continue
        touched = c.rd | c.wr
        for q, qn in ((vm, "vmcnt"), (lg, "lgkmcnt")):
            for x in q:
                if x.wr & touched and "nocheck" not in c.text and "nocheck" not in x.text:
                    errs.append(f"{name}: {qn} uncovered: [{x.text.strip()}] -> [{c.text.strip()}]")
        if c.kind == "vmem":
            vm.append(c)
            if len(vm) > 63:
                errs.append(f"{name}: vmcnt overflow at {c.text.strip()}")
        if c.kind in ("ds", "smem"):
            lg.append(c)
    return sorted(set(errs))


def is_marker(l):
    return l.startswith(("WAITVM", "WAITLG"))


def as_ins(l):
    return Ins("s_waitcnt vmcnt(63)") if is_marker(l) else Ins(l)


class Asm:
    def __init__(self):
        self.lines = []

    def hazard_free(self, text):
        c = as_ins(text.split("\n")[0])
        dist = 0
        for l in reversed(self.lines[-24:]):
            if l.startswith(";"):
                continue
            p = as_ins(l)
            if p.kind == "none":
                continue
            if required(p, c) > dist:
                return False
            dist += p.states
        return True

    def safe(self, text):
        while not self.hazard_free(text):
            self("s_nop 0")
        self(text)

    def resolve(self):
        out = []
        for n, l in enumerate(self.lines):
            if not is_marker(l):
                out.append(l)
                continue
            parts = l.split()
            kind = "vmem" if parts[0] == "WAITVM" else "ds"
            tags = set(parts[1:])
            cnt, found = 0, False
            for b in range(n - 1, -1, -1):
                x = self.lines[b]
                if is_marker(x) or x.startswith(";"):
                    continue
                i = Ins(x)
                if i.kind != kind:
                    continue
                t = x.split("@")[1].split()[0] if "@" in x else None
                if t in tags:
                    found = True
                    break
                cnt += 1
            assert found, f"no operation tagged {tags} before marker"
            lim = 63 if kind == "vmem" else 15
            out.append(f"s_waitcnt {'vmcnt' if kind == 'vmem' else 'lgkmcnt'}({min(cnt, lim)})")
        self.lines = out

    def __call__(self, s):
        for l in s.split("\n"):
            if l.strip():
                self.lines.append(l.strip())

    def text(self):
        out = []
        for l in self.lines:
            if not l.startswith(";"):
                l = l.split(";")[0].rstrip()
            out.append(l if l.endswith(":") or l.startswith((".", ";")) else "    " + l)
        return "\n".join(out) + "\n"

    def trace(self, entry, decisions, limit=400000):
        ins = [Ins(l) for l in self.lines if not l.startswith(";")]
        pos = {i.label: n for n, i in enumerate(ins) if i.label}
        dec = {k: list(v) for k, v in decisions.items()}
        n, out = pos[entry], []
        while len(out) < limit:
            i = ins[n]
            out.append(i)
            if i.mn == "s_endpgm":
                return out
            if i.mn == "s_branch":
                n = pos[i.ops[0]]
                continue
            if i.mn.startswith("s_cbranch"):
                d = dec.get(i.ops[0])
                taken = d.pop(0) if d else False
                if taken:
                    n = pos[i.ops[0]]
                    continue
            n += 1
        raise RuntimeError("trace limit")
```

```python
import sys, struct
from asm import Asm, check_trace

NAME = "recurrent_scan__gqa_block_cached__dense_activation_silu__prompt"
KERNEL = NAME + "_kernel"
WS_MISC = 0
MISC_CNTA, MISC_CNTO, MISC_SIZE = 16384, 20480, 24576
WS_ACT = 4 << 20
WS_WP = 32 << 20
WS_STAMP = 64 << 20
NPAIR = 91
ACT_RG = NPAIR * 8192
WP_CG = NPAIR * 10240
SRD3 = "0x00020000"
OOB = 0x1000000
LOG2E = 1.4426950408889634
L_LIMIT = 2.0 ** 100
STAMPS = False
OPT = {}

S_X, S_WQ, S_W1, S_K, S_V, S_ACT, S_ACTH, S_DBG, S_WS, S_R0, S_R1, S_WP, S_TA, S_TW, S_OUT = range(8, 68, 4)
S_M0K, S_M0V = 68, 72
S_W, S_HEAD, S_QT, S_W4K, S_OFF, S_CNT, S_RETRY = range(76, 83)
S_RS = 83
S_GA, S_GW, S_SA, S_SW, S_XO = range(87, 92)
S_SIGS, S_SIGA, S_SIGO, S_POLLO = 92, 93, 94, 95
S_W2K, S_W8K = 100, 101
V_L16 = 1
V_KRD, V_VRD, V_KDMA, V_VDMA = 2, 6, 14, 18
V_STAMP, V_IDX, V_ONES, V_NM, V_P, V_O = 34, 35, 36, 40, 64, 128
SBUF = [56, 60, 24, 28]
V_POFF, V_PVAL, V_ONE, V_SIG = 20, 21, 32, 33
V_XDMA, V_XRD, V_RRD = 20, 24, 26
V_WQRD, V_W1RD, V_WQDMA, V_W1DMA, V_ST = 40, 48, 52, 56, 52
A_Q, A_KF, A_VF, A_L = 0, 64, 128, 160
A_XF, A_WF, A_CS, A_RP = 64, 128, 160, 176
LDS_K, LDS_V, LDS_W1 = 0, 65536, 131072
LDS_CS = LDS_W1 + 3 * 8192
LDS_FLAG = LDS_W1 + 2 * 8192
WQ_SLOT = [LDS_V + 3 * 16384, LDS_V + 2 * 16384, LDS_K + 2 * 16384, LDS_K + 3 * 16384]
X_SLOT = [LDS_V, LDS_K]
LK = LV = 5


def fbits(x):
    return "0x%08x" % struct.unpack("<I", struct.pack("<f", x))[0]


def vr(b, n=1):
    return f"v{b}" if n == 1 else f"v[{b}:{b+n-1}]"


def ar(b, n=1):
    return f"a{b}" if n == 1 else f"a[{b}:{b+n-1}]"


def sr(b, n=4):
    return f"s[{b}:{b+n-1}]"


def srd(e, d, src, off, size):
    if off is not None:
        e(f"s_add_u32 s{d}, s{src}, {off}")
        e(f"s_addc_u32 s{d+1}, s{src+1}, 0")
    elif src != d:
        e(f"s_mov_b32 s{d}, s{src}")
        e(f"s_mov_b32 s{d+1}, s{src+1}")
    e(f"s_mov_b32 s{d+2}, {size}")
    e(f"s_mov_b32 s{d+3}, {SRD3}")


def mfma(d, a, b, c):
    return f"v_mfma_f32_16x16x32_bf16 {d}, {a}, {b}, {c}"


def smfmac(d, b):
    return f"v_smfmac_f32_16x16x64_bf16 {d}, {vr(V_ONES,4)}, {b}, v{V_IDX}"


nstamp = [0]


def stamp(e):
    if STAMPS:
        i = nstamp[0]
        nstamp[0] += 1
        e("s_memrealtime s[96:97]")
        e("s_memtime s[98:99]")
        e("s_waitcnt lgkmcnt(0)")
        e(f"v_writelane_b32 v{V_STAMP}, s96, {2*i}")
        e(f"v_writelane_b32 v{V_STAMP}, s98, {2*i+1}")


def stamp_flush(e):
    if not STAMPS:
        return
    e("s_waitcnt vmcnt(0) lgkmcnt(0)")
    stamp(e)
    srd(e, 8, S_WS, WS_STAMP - WS_MISC, 262144)
    e("s_lshl_b32 s12, s2, 2")
    e(f"s_add_u32 s12, s12, s{S_W}")
    e("s_lshl_b32 s12, s12, 8")
    e(f"v_lshrrev_b32 v2, 2, v{V_L16}")
    e(f"buffer_store_dword v{V_STAMP}, v2, s[8:11], s12 offen")


def interleave(e, mf, fixed, streams, cap=2):
    for i, m in enumerate(mf):
        e.safe(m)
        used = 0
        pre, post = fixed.get(i, ([], []))
        for x in pre:
            e.safe(x)
            used += 1
        room = cap - len(post)
        progress = True
        while used < room and progress:
            progress = False
            for s in streams:
                if not s:
                    continue
                cost = 2 if s[0].startswith(("v_exp", "v_rcp", "v_sqrt", "buffer_")) else 1
                if used + cost > room or not e.hazard_free(s[0]):
                    continue
                e(s.pop(0))
                used += cost
                progress = True
                break
        for x in post:
            e.safe(x)


def drain(e, streams):
    for s in streams:
        while s:
            e.safe(s.pop(0))


def o_reg(db, qb):
    return V_O + (db * 4 + qb) * 4


def k_dma(n, tag=""):
    return f"buffer_load_dwordx4 v{V_KDMA+n}, {sr(S_K)}, s{S_OFF} offen offset:{n*1024} lds{tag}"


def v_dma(n, tag=""):
    return f"buffer_load_dwordx4 v{V_VDMA+(n&1)}, {sr(S_V)}, s{S_OFF} offen offset:{n*1024} lds{tag}"


def k_read(tile, kb, ks):
    return f"ds_read_b128 {ar(A_KF+(kb*4+ks)*4,4)}, v{V_KRD+ks} offset:{(tile%4)*16384+kb*4096}"


def v_read(tile, db, t, v):
    return f"ds_read_b64_tr_b16 {ar(A_VF+((db%4)*2+t)*4+2*v,2)}, v{V_VRD+db} offset:{(tile%4)*16384+t*8192+v*4096}"


def kv_tile(which, tile):
    tag = f" ; @{which}{tile}"
    out = [f"s_mov_b32 m0, s{(S_M0K if which == 'K' else S_M0V) + tile % 4}", f"s_mov_b32 s{S_OFF}, {tile*16384}"]
    return out + [(k_dma if which == "K" else v_dma)(n, tag) for n in range(4)]


spins = []


def poll_check(name, load, cond):
    spins.append((name, load, cond))
    return cond + [f"s_cbranch_vccnz {name}_spin\n{name}_back:"]


def emit_spins(e):
    for name, load, cond in spins:
        e(f"{name}_spin:")
        e("s_mov_b32 s3, 0x100000")
        e(f"{name}_loop:")
        e("s_sleep 2")
        e(load)
        e("s_waitcnt vmcnt(0)")
        for x in cond:
            e(x)
        e(f"s_cbranch_vccz {name}_back")
        e("s_sub_u32 s3, s3, 1")
        e("s_cmp_lg_u32 s3, 0")
        e(f"s_cbranch_scc1 {name}_loop")
        e(f"s_branch {name}_back")


POLL_A = f"buffer_load_dword v{V_PVAL}, v{V_POFF}, {sr(S_WS)}, 0 offen sc1"


def attn_step(e, j, qk=True, pv=True, extra=None):
    pw = V_P + ((j + 1) % 2) * 32
    pr = V_P + (j % 2) * 32

    def pdst(x):
        on, base = (qk, pw) if x >= 0 else (pv, pr)
        x %= 16
        return on, base + (x % 4) * 8 + (x // 4) * 2, SBUF[x % 4]

    for u in range(16):
        kb, qb = u // 4, u % 4
        s_cur = SBUF[u % 4]
        M = []
        if qk:
            for ks in range(4):
                c = vr(V_NM + qb * 4, 4) if ks == 0 else vr(s_cur, 4)
                M.append(mfma(vr(s_cur, 4), ar(A_KF + (kb * 4 + ks) * 4, 4), ar(A_Q + (qb * 4 + ks) * 4, 4), c))
        else:
            M += [None] * 4
        if pv:
            db = u // 2
            for h in range(2):
                q2 = (u % 2) * 2 + h
                for t in ((0, 1) if h == 0 else (1, 0)):
                    o = vr(o_reg(db, q2), 4)
                    M.append(mfma(o, ar(A_VF + ((db % 4) * 2 + t) * 4, 4), vr(pr + q2 * 8 + t * 4, 4), o))
        else:
            M += [None] * 4
        F = [[] for _ in range(8)]
        nreads = 0
        n = u + LK
        if qk:
            F[1].append(k_read(j + 1 + n // 16, (n % 16) // 4, n % 4))
            nreads += 1
        n = u + LV
        if (pv and n < 16) or (qk and n >= 16):
            F[3].append(v_read(j + n // 16, (n % 16) // 2, n % 2, 0))
            F[5].append(v_read(j + n // 16, (n % 16) // 2, n % 2, 1))
            nreads += 2
        on, p, sb = pdst(u - 1)
        if on:
            for r in range(4):
                F[2 * r].append(f"v_exp_f32 v{sb+r}, v{sb+r}")
            F[5].append(f"v_cvt_pk_bf16_f32 v{p}, v{sb}, v{sb+1}")
        on, p, sb = pdst(u - 2)
        if on:
            F[1].append(f"v_cvt_pk_bf16_f32 v{p+1}, v{sb+2}, v{sb+3}")
        post = []
        if qk:
            if u == 10:
                if pv:
                    post += [f"s_waitcnt vmcnt({9 if j % 4 == 1 else 8})", "s_barrier"]
                else:
                    post += ["WAITVM HST", "s_barrier",
                             f"buffer_atomic_add v{V_ONE}, v{V_SIG}, {sr(S_WS)}, s{S_SIGA} offen"]
            if u == 12:
                F[3].append(f"s_mov_b32 m0, s{S_M0K + j % 4}")
            if u in (12, 14):
                F[7].append(k_dma((u - 12) // 2))
            if pv:
                if u in (0, 2):
                    F[7].append(k_dma(2 + u // 2))
                if u == 3:
                    F[3].append(f"s_sub_u32 s{S_OFF}, s{S_OFF}, 16384")
                if u == 4:
                    F[3].append(f"s_mov_b32 m0, s{S_M0V + (j + 2) % 4}")
                if u in (4, 6, 8, 10):
                    F[7].append(v_dma((u - 4) // 2))
                if u == 11:
                    F[3].append(f"s_add_u32 s{S_OFF}, s{S_OFF}, 32768")
                if u == 6 and j % 4 == 1:
                    post.append(POLL_A)
        if u % 2 == 1:
            F[7].append(f"s_waitcnt lgkmcnt({nreads})")
        if qk and not pv:
            z = [f"v_mov_b32 v{V_O + u*8 + i}, 0" for i in range(8)]
            order = [M[0], z[0], z[1], M[1]] + F[1] + [M[2], z[3], z[4], M[3], z[2]]
            order += F[0] + [z[5]] + F[2] + [z[6]] + F[3] + F[4] + F[5] + F[6] + [z[7]] + F[7]
            for x in order:
                e(x)
        elif qk:
            for i in range(8):
                e(M[i])
                for x in F[i]:
                    e(x)
        else:
            for x in F[0] + F[1] + F[2]:
                e.safe(x)
            fixed = {0: (F[3] + F[4], []), 1: (F[5], []), 2: (F[6], []), 3: ([], F[7])}
            interleave(e, M[4:], fixed, extra if u >= 2 else [])
        if pv and u % 4 == 2:
            q2 = u // 4
            e(smfmac(ar(A_L + q2 * 4, 4), vr(pr + q2 * 8, 8)))
        for x in post:
            e(x)


V_M = 24


def row_max_finish(e):
    m, t = V_M, V_M + 4
    for swap in ("v_permlane32_swap_b32", "v_permlane16_swap_b32"):
        for qb in range(4):
            e(f"v_mov_b32 v{t+qb}, v{m+qb}")
        for qb in range(4):
            e(f"{swap} v{m+qb}, v{t+qb}")
        for qb in range(4):
            e(f"v_max_f32 v{m+qb}, v{m+qb}, v{t+qb}")
    for qb in range(4):
        for r in range(4):
            e(f"v_sub_f32 v{V_NM+qb*4+r}, 0, v{m+qb}")


def x_dma(c):
    out = []
    for h in range(2):
        out += [f"s_add_u32 m0, s{S_W8K}, {X_SLOT[c%2] + h*4096}", f"s_mov_b32 s4, {c*128 + h*40960}"]
        out += [f"buffer_load_dwordx4 v{V_XDMA+n}, {sr(S_X)}, s4 offen offset:{n*1024} lds ; @X{c}" for n in range(4)]
    return out


def w_dma(c):
    out = [f"s_add_u32 m0, s{S_W4K}, {WQ_SLOT[c%4]}", f"s_mov_b32 s4, {c*64*8192}"]
    out += [f"buffer_load_dwordx4 v{V_WQDMA+n}, {sr(S_WQ)}, s4 offen offset:{n*1024} lds ; @W{c}" for n in range(4)]
    out += [f"s_add_u32 m0, s{S_W2K}, {LDS_W1+(c%4)*8192}", f"s_mov_b32 s4, {c*64*3456}"]
    out += [f"buffer_load_dwordx4 v{V_W1DMA+n}, {sr(S_W1)}, s4 offen offset:{n*1024} lds ; @W{c}" for n in range(2)]
    return out


def x_read(c):
    out = [f"ds_read_b128 {ar(A_XF+(c%2)*32+(qb*2+t)*4,4)}, v{V_XRD+t} offset:{qb*2048} ; @XR{c}" for qb in range(4) for t in range(2)]
    return out + [f"v_xor_b32 v{V_XRD+t}, 0x10000, v{V_XRD+t}" for t in range(2)]


def setup(e):
    e("s_cmp_ge_u32 s2, 256")
    e("s_cbranch_scc1 M_exit")
    for reg, off in ((S_X, 0), (S_WQ, 24), (S_W1, 48), (S_K, 8), (S_V, 16), (S_R0, 32), (S_R1, 56), (S_OUT, 64), (S_DBG, 72), (S_WS, 80)):
        e(f"s_load_dwordx2 {sr(reg,2)}, s[0:1], {off}")
    e("v_lshrrev_b32 v31, 6, v0")
    e("v_cmp_eq_u32 vcc, 0, v0")
    e(f"v_readfirstlane_b32 s{S_W}, v31")
    e("v_mov_b32 v62, v0")
    e("v_and_b32 v0, 63, v0")
    e(f"v_mov_b32 v{V_SIG}, {OOB}")
    e(f"v_cndmask_b32 v{V_SIG}, v{V_SIG}, v0, vcc")
    e("s_and_b32 s3, s2, 7")
    e("s_lshr_b32 s4, s2, 3")
    e(f"s_lshr_b32 s{S_QT}, s4, 2")
    e("s_and_b32 s5, s4, 3")
    e(f"s_lshl_b32 s{S_HEAD}, s3, 2")
    e(f"s_add_u32 s{S_HEAD}, s{S_HEAD}, s5")
    e(f"s_lshl_b32 s{S_W2K}, s{S_W}, 11")
    e(f"s_lshl_b32 s{S_W4K}, s{S_W}, 12")
    e(f"s_lshl_b32 s{S_W8K}, s{S_W}, 13")
    e(f"s_lshl_b32 s5, s{S_QT}, 2")
    e(f"s_add_u32 s5, s5, s{S_W}")
    e("s_mul_i32 s6, s5, 81920")
    e("v_and_b32 v28, 15, v0")
    e("v_lshrrev_b32 v29, 4, v0")
    e("v_lshrrev_b32 v30, 3, v0")
    e("v_and_b32 v31, 7, v0")
    e(f"v_lshlrev_b32 v{V_L16}, 4, v0")
    e("v_mul_u32_u24 v26, 1280, v30")
    e("v_add_u32 v26, s6, v26")
    e("v_xor_b32 v27, v31, v29")
    e(f"v_lshl_add_u32 v{V_XDMA}, v27, 4, v26")
    e(f"v_add_u32 v{V_XDMA+2}, {2*(10240-1024)}, v{V_XDMA}")
    e(f"v_xor_b32 v27, 64, v{V_XDMA}")
    e(f"v_add_u32 v{V_XDMA+1}, {10240-1024}, v27")
    e(f"v_add_u32 v{V_XDMA+3}, {3*(10240-1024)}, v27")
    e(f"s_lshl_b32 s6, s{S_W}, 17")
    e("v_lshlrev_b32 v26, 13, v29")
    e("v_add_u32 v26, s6, v26")
    e("v_lshlrev_b32 v27, 1, v29")
    e("v_xor_b32 v27, v27, v28")
    e(f"v_lshl_add_u32 v{V_WQDMA}, v27, 4, v26")
    e(f"v_add_u32 v{V_WQDMA+1}, {32768-1024}, v{V_WQDMA}")
    e(f"v_xor_b32 v27, 128, v{V_WQDMA}")
    e(f"v_add_u32 v{V_WQDMA+2}, {2*(32768-1024)}, v27")
    e(f"v_add_u32 v{V_WQDMA+3}, {3*(32768-1024)}, v27")
    e(f"s_mul_i32 s6, s{S_W}, {16*3456}")
    e("v_mul_u32_u24 v26, 3456, v30")
    e("v_add_u32 v26, s6, v26")
    e("v_and_b32 v27, 2, v30")
    e("v_xor_b32 v27, v27, v31")
    e(f"v_lshl_add_u32 v{V_W1DMA}, v27, 4, v26")
    e(f"v_xor_b32 v27, 64, v{V_W1DMA}")
    e(f"v_add_u32 v{V_W1DMA+1}, {8*3456-1024}, v27")
    e("s_waitcnt lgkmcnt(0)")
    stamp(e)
    srd(e, S_X, S_X, None, 2621440)
    for x in x_dma(0):
        e.safe(x)
    e(f"s_lshl_b32 s6, s{S_HEAD}, 8")
    srd(e, S_WQ, S_WQ, "s6", 640 * 8192 - 31 * 256)
    e(f"s_lshl_b32 s6, s{S_HEAD}, 7")
    srd(e, S_W1, S_W1, "s6", 640 * 3456 - 26 * 128)
    e(f"s_cmp_lt_u32 s{S_HEAD}, 27")
    e(f"s_cselect_b32 s{S_W1+2}, s{S_W1+2}, 0")
    for x in w_dma(0):
        e.safe(x)
    e(f"s_lshl_b32 s6, s{S_QT}, 5")
    e(f"s_add_u32 s6, s6, s{S_HEAD}")
    e("s_lshl_b32 s6, s6, 2")
    e(f"s_add_u32 s6, s6, s{S_W}")
    e("s_lshl_b32 s6, s6, 1")
    e("v_lshrrev_b32 v26, 5, v0")
    e("v_add_u32 v26, s6, v26")
    e("v_mul_u32_u24 v27, 1280, v26")
    e("v_and_b32 v12, 31, v0")
    e("v_lshl_add_u32 v13, v12, 4, v27")
    e("v_lshl_add_u32 v14, v12, 3, v27")
    e(f"buffer_load_dwordx4 v[2:5], v13, {sr(S_X)}, 0 offen ; @SROW")
    e(f"buffer_load_dwordx4 v[6:9], v13, {sr(S_X)}, 0 offen offset:512 ; @SROW")
    e(f"buffer_load_dwordx2 v[10:11], v14, {sr(S_X)}, 0 offen offset:1024 ; @SROW")
    e("v_cmp_eq_u32 vcc, 0, v12")
    e("v_lshlrev_b32 v26, 3, v26")
    e(f"v_mov_b32 v19, {OOB}")
    e("v_cndmask_b32 v19, v19, v26, vcc")
    for x in x_dma(1) + w_dma(1) + w_dma(2):
        e.safe(x)
    if OPT.get("pf", 1):
        e("s_getpc_b64 s[96:97]")
        e("M_pc:")
        e("s_mov_b32 s98, M_exit-M_pc")
        e(f"s_mov_b32 s99, {SRD3}")
        e("v_lshlrev_b32 v62, 6, v62")
        for i in range(4):
            e(f"s_mov_b32 s4, {i*16384}")
            e("buffer_load_dword v63, v62, s[96:99], s4 offen ; nocheck")
    e(f"s_lshl_b32 s6, s{S_HEAD}, 19")
    srd(e, S_K, S_K, "s6", 524288)
    srd(e, S_V, S_V, "s6", 524288)
    e(f"s_mul_i32 s6, s5, {ACT_RG}")
    e(f"s_add_u32 s6, s6, {WS_ACT}")
    e(f"s_lshl_b32 s7, s{S_HEAD}, 14")
    e("s_add_u32 s7, s7, s6")
    srd(e, S_ACT, S_WS, "s7", 16384)
    e(f"s_lshl_b32 s7, s{S_HEAD}, 13")
    e(f"s_add_u32 s7, s7, {64*8192}")
    e("s_add_u32 s7, s7, s6")
    srd(e, S_ACTH, S_WS, "s7", 8192)
    e(f"s_cmp_lt_u32 s{S_HEAD}, 27")
    e(f"s_cselect_b32 s{S_ACTH+2}, s{S_ACTH+2}, 0")
    srd(e, S_WP, S_WS, WS_WP, 8 * WP_CG)
    srd(e, S_DBG, S_DBG, None, 256)
    srd(e, S_OUT, S_OUT, None, 2621440)
    e("s_lshr_b32 s4, s2, 3")
    if OPT.get("map", 0) == 0:
        e(f"s_mov_b32 s5, s{S_HEAD}")
        e(f"s_mov_b32 s6, s{S_QT}")
    else:
        e("s_lshr_b32 s5, s3, 1")
        e("s_lshl_b32 s5, s5, 3")
        e("s_and_b32 s6, s4, 7")
        e("s_add_u32 s5, s5, s6")
        e("s_and_b32 s6, s3, 1")
        e("s_lshl_b32 s6, s6, 2")
        e("s_lshr_b32 s7, s4, 3")
        e("s_add_u32 s6, s6, s7")
    e(f"s_mul_i32 s7, s5, {ACT_RG}")
    e(f"s_add_u32 s7, s7, {WS_ACT}")
    srd(e, S_TA, S_WS, "s7", ACT_RG)
    e(f"s_mul_i32 s7, s6, {WP_CG}")
    e(f"s_add_u32 s7, s7, {WS_WP}")
    srd(e, S_TW, S_WS, "s7", WP_CG)
    e(f"s_mul_i32 s{S_XO}, s5, 81920")
    e("s_mul_i32 s7, s6, 160")
    e(f"s_add_u32 s{S_XO}, s{S_XO}, s7")
    e("s_lshr_b32 s7, s5, 2")
    e("s_lshl_b32 s7, s7, 8")
    e(f"s_add_u32 s{S_POLLO}, s7, {MISC_CNTO}")
    srd(e, S_WS, S_WS, WS_MISC if WS_MISC else None, MISC_SIZE)
    e(f"s_lshl_b32 s{S_SIGS}, s{S_QT}, 5")
    e(f"s_lshl_b32 s7, s{S_QT}, 8")
    e(f"s_add_u32 s{S_SIGA}, s7, {MISC_CNTA}")
    e(f"s_add_u32 s{S_SIGO}, s7, {MISC_CNTO}")
    e(f"s_cmp_eq_u32 s{S_HEAD}, 0")
    e(f"s_cselect_b32 s6, s{S_SIGA}, {OOB}")
    e(f"s_cselect_b32 s7, s{S_SIGO}, {OOB}")
    e(f"v_mov_b32 v{V_ONE}, 0")
    e(f"buffer_store_dword v{V_ONE}, v{V_SIG}, {sr(S_WS)}, s6 offen sc1")
    e(f"buffer_store_dword v{V_ONE}, v{V_SIG}, {sr(S_WS)}, s7 offen sc1")
    for i in range(4):
        e(f"s_add_u32 s{S_M0K+i}, s{S_W4K}, {LDS_K + i*16384}")
        e(f"s_add_u32 s{S_M0V+i}, s{S_W4K}, {LDS_V + i*16384}")
    e(f"s_mov_b32 s{S_RETRY}, 0")
    e(f"s_mov_b64 s[96:97], {sr(S_R0,2)}")
    e(f"s_mov_b64 s[98:99], {sr(S_R1,2)}")
    for s, R in enumerate((S_R0, S_R1)):
        e("s_lshl_b32 s3, s2, 1")
        e(f"s_add_u32 s3, s3, {s}")
        e("s_mul_i32 s4, s3, 52429")
        e("s_lshr_b32 s4, s4, 18")
        e("s_mul_i32 s5, s4, 5")
        e("s_sub_u32 s5, s3, s5")
        e("s_sub_u32 s6, s4, 64")
        e("s_cmp_lt_u32 s4, 64")
        e(f"s_cselect_b64 {sr(R,2)}, s[96:97], s[98:99]")
        e("s_cselect_b32 s6, s4, s6")
        e("s_mul_i32 s6, s6, 81920")
        e("s_lshl_b32 s7, s5, 8")
        e("s_add_u32 s6, s6, s7")
        srd(e, R, R, "s6", 63 * 1280 + 256)
        e(f"s_cmp_lt_u32 s3, {NPAIR*5}")
        e(f"s_cselect_b32 s{R+2}, s{R+2}, 0")
        e("s_mul_i32 s4, s4, 10240")
        e(f"s_cselect_b32 s4, s4, {OOB}")
        for i in range(2):
            e("s_lshl_b32 s6, s5, 2")
            e(f"s_add_u32 s6, s6, s{S_W}")
            e("s_lshl_b32 s6, s6, 1")
            e(f"s_add_u32 s6, s6, {i}")
            e("s_mul_i32 s7, s6, 52429")
            e("s_lshr_b32 s7, s7, 18")
            e(f"s_mul_i32 s7, s7, {WP_CG - 5*2048}")
            e("s_lshl_b32 s6, s6, 11")
            e("s_add_u32 s6, s6, s7")
            e(f"s_add_u32 s{S_RS+2*s+i}, s6, s4")
    e(f"s_mul_i32 s6, s{S_W}, 7")
    e("s_add_u32 s6, s6, 64")
    e(f"s_lshl_b32 s{S_GA}, s6, 13")
    e(f"s_mul_i32 s{S_GW}, s6, 10240")
    e(f"s_lshl_b32 s{S_SA}, s{S_W}, 17")
    e(f"s_mul_i32 s{S_SW}, s{S_W}, 163840")
    e("v_bfe_u32 v30, v0, 2, 3")
    e("v_and_b32 v31, 3, v0")
    e("v_bfe_u32 v26, v0, 2, 2")
    e("v_lshl_add_u32 v26, v29, 3, v26")
    e("v_lshlrev_b32 v27, 8, v26")
    e("v_lshl_add_u32 v27, v31, 3, v27")
    e(f"s_lshl_b32 s6, s{S_W}, 1")
    e("v_xor_b32 v12, s6, v30")
    e(f"v_lshl_add_u32 v{V_WQRD}, v12, 5, v27")
    for nb in range(1, 8):
        e(f"v_xor_b32 v{V_WQRD+nb}, {nb*32}, v{V_WQRD}")
    e("v_lshlrev_b32 v27, 7, v26")
    e("v_lshl_add_u32 v27, v31, 3, v27")
    e(f"v_add_u32 v27, {LDS_W1}, v27")
    e("v_lshrrev_b32 v12, 1, v30")
    e(f"s_and_b32 s6, s{S_W}, 2")
    e("v_xor_b32 v12, s6, v12")
    e(f"v_lshl_add_u32 v{V_W1RD}, v12, 5, v27")
    for nb in range(1, 4):
        e(f"v_xor_b32 v{V_W1RD+nb}, {nb*32}, v{V_W1RD}")
    e("v_lshrrev_b32 v12, 1, v28")
    e("v_xor_b32 v12, v12, v29")
    e("v_lshlrev_b32 v12, 4, v12")
    e("v_lshl_add_u32 v12, v28, 7, v12")
    e(f"s_add_u32 s6, s{S_W8K}, {X_SLOT[0]}")
    e(f"v_add_u32 v{V_XRD}, s6, v12")
    e(f"v_xor_b32 v{V_XRD+1}, 64, v{V_XRD}")
    e("v_and_b32 v26, 1, v0")
    e("v_cmp_eq_u32 vcc, 0, v26")
    e("v_mov_b32 v27, 0x44444444")
    e("v_mov_b32 v12, 0xeeeeeeee")
    e(f"v_cndmask_b32 v{V_IDX}, v12, v27, vcc")
    e("v_and_b32 v26, 2, v0")
    e("v_cmp_eq_u32 vcc, 0, v26")
    e("v_mov_b32 v27, 0x3f803f80")
    e("v_mov_b32 v12, 0")
    for r in range(4):
        e(f"v_cndmask_b32 v{V_ONES+r}, v12, v27, vcc")
    for r in range(16):
        e(f"v_accvgpr_write_b32 a{A_CS+r}, 0")
    e(f"v_mov_b32 v{V_ONE}, 1")


def stats_stream():
    s = ["WAITVM SROW"]

    def unpack(i, dst):
        return f"v_lshlrev_b32 v{dst}, 16, v{2+i//2}" if i % 2 == 0 else f"v_and_b32 v{dst}, 0xffff0000, v{2+i//2}"

    def reduce32():
        out = ["v_add_f32 v12, v12, v13"]
        for rot in (8, 4, 2, 1):
            out.append(f"v_add_f32_dpp v12, v12, v12 row_ror:{rot} row_mask:0xf bank_mask:0xf")
        out += ["v_mov_b32 v13, v12", "v_permlane16_swap_b32 v12, v13", "v_add_f32 v12, v12, v13",
                f"v_mul_f32 v12, {fbits(1.0/640)}, v12"]
        return out

    s += [unpack(0, 12), unpack(1, 13)]
    for i in range(2, 20, 2):
        s += [unpack(i, 14), unpack(i + 1, 15), "v_add_f32 v12, v12, v14", "v_add_f32 v13, v13, v15"]
    s += reduce32() + ["v_mov_b32 v16, v12"]
    for i in range(0, 20, 2):
        s += [unpack(i, 14), unpack(i + 1, 15), "v_sub_f32 v14, v14, v16", "v_sub_f32 v15, v15, v16"]
        op = "v_mul_f32" if i == 0 else "v_fmac_f32"
        s += [f"{op} v12, v14, v14", f"{op} v13, v15, v15"]
    s += reduce32()
    s += ["v_cvt_pk_bf16_f32 v13, v12, v16", "v_and_b32 v16, 0xffff0000, v13", "v_lshlrev_b32 v12, 16, v13",
          "v_xor_b32 v16, 0x80000000, v16", f"v_add_f32 v12, {fbits(1e-5)}, v12", "v_cvt_pk_bf16_f32 v12, v12, v12",
          "v_lshlrev_b32 v12, 16, v12", "v_sqrt_f32 v12, v12", "v_cvt_pk_bf16_f32 v12, v12, v12",
          "v_lshlrev_b32 v12, 16, v12", "v_rcp_f32 v17, v12", "s_nop 0",
          f"buffer_store_dwordx2 v[16:17], v19, {sr(S_WS)}, 0 offen sc1 ; @SST"]
    return s


def kv_addr_stream():
    s = [f"s_lshl_b32 s5, s{S_W}, 2", "v_xor_b32 v26, v28, v29", "v_xor_b32 v27, s5, v26", "v_lshlrev_b32 v27, 4, v27",
         f"v_lshl_add_u32 v{V_KRD}, v28, 8, v27"]
    s += [f"v_xor_b32 v{V_KRD+ks}, {64*ks}, v{V_KRD}" for ks in range(1, 4)]
    s += ["v_lshlrev_b32 v27, 8, v29", f"v_add_u32 v27, s{S_W4K}, v27", f"v_lshl_add_u32 v{V_KDMA}, v26, 4, v27"]
    s += [f"v_xor_b32 v{V_KDMA+n}, {64*n}, v{V_KDMA}" for n in range(1, 4)]
    s += ["v_lshlrev_b32 v26, 1, v29", "v_xor_b32 v26, v26, v28", f"v_lshl_add_u32 v{V_VDMA}, v26, 4, v27",
          f"v_xor_b32 v{V_VDMA+1}, 128, v{V_VDMA}"]
    s += ["v_lshrrev_b32 v27, 2, v0", "v_lshlrev_b32 v27, 8, v27", "v_lshl_add_u32 v27, v31, 3, v27",
          f"v_add_u32 v27, {LDS_V}, v27", f"v_lshl_add_u32 v{V_VRD}, v30, 5, v27"]
    s += [f"v_xor_b32 v{V_VRD+db}, {32*db}, v{V_VRD}" for db in range(1, 8)]
    s += [f"s_lshl_b32 s5, s{S_W}, 6", f"v_xor_b32 v{V_RRD}, s5, v{V_VRD}", f"v_xor_b32 v{V_RRD+1}, 32, v{V_RRD}"]
    return s


def repack_addr_stream():
    s = [f"s_mul_i32 s5, s{S_W}, {16*1280}", "v_mul_u32_u24 v61, 1280, v29", "v_add_u32 v61, s5, v61",
         "v_lshlrev_b32 v60, 1, v29", "v_xor_b32 v60, v60, v28", f"v_lshl_add_u32 v{V_XDMA}, v60, 4, v61",
         f"v_add_u32 v{V_XDMA+2}, {2*(5120-1024)}, v{V_XDMA}", f"v_xor_b32 v60, 128, v{V_XDMA}",
         f"v_add_u32 v{V_XDMA+1}, {5120-1024}, v60", f"v_add_u32 v{V_XDMA+3}, {3*(5120-1024)}, v60"]
    return s


def repack_dma():
    out = []
    for s, R in enumerate((S_R0, S_R1)):
        out.append(f"s_mov_b32 m0, s{S_M0V+s}")
        out += [f"buffer_load_dwordx4 v{V_XDMA+n}, {sr(R)}, 0 offen offset:{n*1024} lds ; @RP" for n in range(4)]
    return out


def repack_move():
    out = []
    for s in range(2):
        for i in range(2):
            for t in range(2):
                for v in range(2):
                    out.append(f"ds_read_b64_tr_b16 {ar(A_RP+((s*2+i)*2+t)*4+2*v,2)}, v{V_RRD+i} offset:{s*16384+t*8192+v*4096} ; @RR{s}")
    for s in range(2):
        out.append(f"WAITLG RR{s}")
        for i in range(2):
            for t in range(2):
                out.append(f"buffer_store_dwordx4 {ar(A_RP+((s*2+i)*2+t)*4,4)}, v{V_L16}, {sr(S_WP)}, s{S_RS+2*s+i} offen offset:{t*1024} sc1")
    return out


CS_SITES = {0: 0, 1: 1, 8: 2, 9: 3}


def phase1(e):
    half = ["lo"] * 8

    def w_reads(c, nb):
        out = []
        if nb < 8:
            base = WQ_SLOT[c % 4]
            h = "hi" if base >= 65536 else "lo"
            if half[nb] != h:
                out.append(f"v_xor_b32 v{V_WQRD+nb}, 0x10000, v{V_WQRD+nb}")
                half[nb] = h
        for t in range(2):
            for v in range(2):
                d = ar(A_WF + ((nb % 4) * 2 + t) * 4 + 2 * v, 2)
                if nb < 8:
                    out.append(f"ds_read_b64_tr_b16 {d}, v{V_WQRD+nb} offset:{base%65536+t*8192+v*1024} ; @WR{c}_{nb}")
                else:
                    out.append(f"ds_read_b64_tr_b16 {d}, v{V_W1RD+nb-8} offset:{(c%4)*8192+t*4096+v*512} ; @WR{c}_{nb}")
        return out

    e("WAITVM W0")
    e("s_barrier")
    stamp(e)
    for x in x_read(0) + w_reads(0, 0) + w_reads(0, 1):
        e(x)
    e("WAITLG WR0_0")
    poll_s = f"buffer_load_dword v63, v62, {sr(S_DBG)}, 0 offen sc1"
    mem, alu = x_dma(2), stats_stream()
    for c in range(10):
        if c < 9:
            mem += [f"WAITVM X{c+1}"] + x_read(c + 1)
            if c + 3 < 10:
                mem += [f"WAITLG XR{c+1}"] + x_dma(c + 3)
        if c == 3:
            alu += kv_addr_stream()
        if c == 7:
            alu += repack_addr_stream()
            mem += ["v_and_b32 v62, 7, v0", "v_lshlrev_b32 v62, 5, v62", poll_s + " ; @PS"]
        if c == 8:
            mem += ["WAITVM PS"] + poll_check("M_ps", poll_s, ["v_cmp_gt_u32 vcc, 32, v63"])
            mem += [f"s_lshl_b32 s5, s{S_QT}, 2", f"s_add_u32 s5, s5, s{S_W}", "s_lshl_b32 s5, s5, 9", "v_lshlrev_b32 v62, 3, v28"]
            mem += [f"buffer_load_dwordx2 {vr(V_ST+2*qb,2)}, v62, {sr(S_WS)}, s5 offen offset:{qb*128} sc1 ; @STL" for qb in range(4)]
        for nb in range(12):
            fixed = {}
            n2 = nb + 2
            reads = w_reads(c, n2) if n2 < 12 else (w_reads(c + 1, n2 - 12) if c < 9 else [])
            pre = []
            if nb == 10 and c < 9:
                assert not mem, (c, mem)
                tags = f"W{c+1}" + (" SST" if c == 2 else "") + (" RP" if c == 8 else "")
                pre = [f"WAITVM {tags}", "s_barrier"]
                if c == 2:
                    assert not alu
                    mem += [f"buffer_atomic_add v{V_ONE}, v{V_SIG}, {sr(S_DBG)}, s{S_SIGS} offen"]
                if c + 3 < 10:
                    mem += w_dma(c + 3)
                if c == 7:
                    assert not alu
                    mem += repack_dma()
                if c == 8:
                    mem += kv_tile("K", 0) + kv_tile("K", 1) + kv_tile("K", 2)
                    alu += repack_move()
            if c == 9 and nb == 10:
                assert not alu and not mem, (alu, mem)
                alu += [f"s_lshl_b32 s5, s{S_W}, 7", f"s_add_u32 s5, s5, {LDS_CS}", "v_lshl_add_u32 v60, v28, 2, s5",
                        f"s_and_b32 s5, s{S_W}, 2", "s_lshl_b32 s5, s5, 6", f"s_add_u32 s5, s5, {LDS_CS+512}", "v_lshl_add_u32 v61, v28, 2, s5"]
                for k in range(4):
                    alu += [f"v_accvgpr_read_b32 v62, a{A_CS+4*k}", f"v_accvgpr_read_b32 v63, a{A_CS+4*k+1}",
                            f"v_add_f32 v{20+k}, v62, v63", f"ds_write_b32 v{60+k//2}, v{20+k} offset:{(k%2)*64}"]
            slot = 0
            if pre:
                fixed[0] = (pre, [])
                slot = 1
            extra = len(reads) - 4
            for i, x in enumerate(reads):
                k = slot + max(0, i - max(extra, 0))
                fixed.setdefault(k, ([], []))[0].append(x)
            nxt = (c, nb + 1) if nb < 11 else (c + 1, 0)
            mf = []
            for qb in range(4):
                for t in ((0, 1) if qb % 2 == 0 else (1, 0)):
                    acc = vr(o_reg(nb, qb), 4) if nb < 8 else vr(V_P + ((nb - 8) * 4 + qb) * 4, 4)
                    first = c == 0 and len(mf) % 2 == 0
                    mf.append(mfma(acc, ar(A_WF + ((nb % 4) * 2 + t) * 4, 4), ar(A_XF + (c % 2) * 32 + (qb * 2 + t) * 4, 4), "0" if first else acc))
            if nb in CS_SITES:
                mf.append(smfmac(ar(A_CS + 4 * CS_SITES[nb], 4), ar(A_WF + (nb % 4) * 8, 8)))
            if nxt[0] < 10:
                fixed.setdefault(len(mf) - 1, ([], []))[1].append(f"WAITLG WR{nxt[0]}_{nxt[1]}")
            interleave(e, mf, fixed, [mem, alu])
    drain(e, [mem, alu])
    stamp(e)
    e("s_waitcnt lgkmcnt(0)")
    e("s_barrier")
    for x in kv_tile("V", 0) + kv_tile("V", 1):
        e.safe(x)


def proj_epilogue(e):
    CSR, T = 40, 20
    e(f"s_lshl_b32 s5, s{S_W}, 7")
    e(f"s_add_u32 s5, s5, {LDS_CS}")
    e("v_lshl_add_u32 v60, v29, 4, s5")
    e(f"s_and_b32 s5, s{S_W}, 2")
    e("s_lshl_b32 s6, s5, 6")
    e(f"s_add_u32 s6, s6, {LDS_CS+512}")
    e("v_lshl_add_u32 v61, v29, 4, s6")
    e("s_lshl_b32 s5, s5, 9")
    e(f"v_xor_b32 v30, s5, v{V_L16}")
    e("v_xor_b32 v31, 1024, v30")

    def cs_read(g):
        out = []
        src = 60 if g < 4 else 61
        k = g if g < 4 else g - 4
        if k:
            out.append(f"v_xor_b32 v{src}, {128*(k^(k-1))}, v{src}")
        for u in range(2):
            out.append(f"ds_read_b128 {vr(CSR+u*4,4)}, v{src} offset:{u*64} ; @CS{g}")
        return out

    for x in cs_read(0):
        e(x)
    e("WAITVM STL")
    e(f"s_mov_b32 s6, {fbits(LOG2E * 128 ** -0.5)}")
    for qb in range(4):
        e(f"v_mul_f32 v{48+qb}, s6, v{V_ST+2*qb+1}")

    def center(g, regs):
        e(f"WAITLG CS{g}")
        for qb in range(4):
            for u in range(2):
                a = regs(u, qb)
                for p in range(2):
                    e(f"v_pk_fma_f32 {vr(a+2*p,2)}, {vr(CSR+u*4+2*p,2)}, {vr(V_ST+2*qb,2)}, {vr(a+2*p,2)} op_sel_hi:[1,0,1]")
        if g < 5:
            for x in cs_read(g + 1):
                e(x)

    for j in range(4):
        center(j, lambda u, qb: o_reg(2 * j + u, qb))
        for qb in range(4):
            t = T + (qb % 2) * 4
            sel = "op_sel_hi:[1,0]" if qb % 2 == 0 else "op_sel:[0,1] op_sel_hi:[1,1]"
            for u in range(2):
                a = o_reg(2 * j + u, qb)
                for p in range(2):
                    e(f"v_pk_mul_f32 {vr(a+2*p,2)}, {vr(a+2*p,2)}, {vr(48+(qb//2)*2,2)} {sel}")
            for u in range(2):
                a = o_reg(2 * j + u, qb)
                e(f"v_cvt_pk_bf16_f32 v{t+2*u}, v{a}, v{a+1}")
                e(f"v_cvt_pk_bf16_f32 v{t+2*u+1}, v{a+2}, v{a+3}")
            for swap in ("v_permlane32_swap_b32", "v_permlane16_swap_b32"):
                e.safe(f"{swap} v{t}, v{t+2}")
                e.safe(f"{swap} v{t+1}, v{t+3}")
            for r in range(4):
                e(f"v_accvgpr_write_b32 a{A_Q+(qb*4+j)*4+r}, v{t+r}")
    e(f"s_mov_b32 s6, {fbits(-LOG2E)}")
    e("s_mov_b32 s7, s6")
    e("s_mov_b32 s5, 4096")
    for jj in range(2):
        hreg = lambda u, qb: V_P + ((2 * jj + u) * 4 + qb) * 4
        center(4 + jj, hreg)
        for qb in range(4):
            t = V_O + (qb % 2) * 16
            for u in range(2):
                for p in range(2):
                    a = hreg(u, qb) + 2 * p
                    e(f"v_pk_mul_f32 {vr(a,2)}, {vr(a,2)}, {vr(V_ST+2*qb,2)} op_sel:[0,1] op_sel_hi:[1,1]")
            for u in range(2):
                for p in range(2):
                    e(f"v_pk_mul_f32 {vr(t+4*u+2*p,2)}, {vr(hreg(u,qb)+2*p,2)}, s[6:7]")
            for r in range(8):
                e(f"v_exp_f32 v{t+r}, v{t+r}")
            for p in range(4):
                e(f"v_pk_add_f32 {vr(t+2*p,2)}, {vr(t+2*p,2)}, 1.0 op_sel_hi:[1,0]")
            for r in range(8):
                e(f"v_rcp_f32 v{t+r}, v{t+r}")
            for u in range(2):
                for p in range(2):
                    e(f"v_pk_mul_f32 {vr(t+4*u+2*p,2)}, {vr(t+4*u+2*p,2)}, {vr(hreg(u,qb)+2*p,2)}")
            for p in range(4):
                e(f"v_cvt_pk_bf16_f32 v{t+8+p}, v{t+2*p}, v{t+2*p+1}")
            e(f"buffer_store_dwordx4 {vr(t+8,4)}, v{30+jj}, {sr(S_ACTH)}, {'s5' if qb >= 2 else '0'} offen offset:{(qb%2)*2048} sc1 ; @HST")


V_TA, V_TW1, V_XO, V_RED, V_X = 40, 44, 46, 47, 2
ACC = {"G": 64, "S": 144}
FREE = list(range(176, 256, 4)) + list(range(64, 128, 4))
TBUF = [FREE[:18], FREE[18:36], list(range(0, 64, 4)) + [128, 132]]
TSTEPS = ["G"] * 7 + ["S"] * 16


def tail_addr_stream():
    s = [f"v_add_u32 v{V_TW1}, 4096, v{V_L16}", f"v_add_u32 v{V_TW1+1}, 8192, v{V_L16}",
         f"v_add_u32 v{V_TA}, s{S_W2K}, v{V_L16}"]
    s += [f"v_xor_b32 v{V_TA+k}, {2048*k}, v{V_TA}" for k in range(1, 4)]
    return s


def tail_loads(s):
    b = TBUF[s % 3]
    sa, sw = (S_GA, S_GW) if TSTEPS[s] == "G" else (S_SA, S_SW)
    vw = [V_L16, V_TW1, V_TW1 + 1]
    wl = [f"buffer_load_dwordx4 {ar(b[8+f],4)}, v{vw[f//4]}, {sr(S_TW)}, s{sw} offen offset:{(f%4)*1024} sc1 ; @T{s}" for f in range(10)]
    al = [f"buffer_load_dwordx4 {ar(b[f],4)}, v{V_TA+f//2}, {sr(S_TA)}, s{sa} offen offset:{(f%2)*1024} sc1 ; @T{s}" for f in range(8)]
    return wl[:2] + al + wl[2:] + [f"s_add_u32 s{sa}, s{sa}, 8192", f"s_add_u32 s{sw}, s{sw}, 10240"]


def tail(e):
    e("v_and_b32 v12, 15, v0")
    e(f"s_mul_i32 s5, s{S_W}, {16*1280}")
    e("v_mul_u32_u24 v12, 1280, v12")
    e("v_lshrrev_b32 v13, 4, v0")
    e("v_lshl_add_u32 v12, v13, 3, v12")
    e(f"v_add_u32 v{V_XO}, s5, v12")
    for k in range(4):
        e(f"s_xor_b32 s5, s{S_W}, {k}")
        e("s_mul_i32 s5, s5, 30720")
        e(f"v_add_u32 v{V_RED+k}, s5, v{V_L16}")

    def flush(kind):
        return [f"ds_write_b128 v{V_RED+k}, {vr(ACC[kind]+(nb*4+k)*4,4)} offset:{((k-1)*5+nb)*1024 + (15360 if kind == 'S' else 0)}"
                for k in range(1, 4) for nb in range(5)]

    poll_o = f"buffer_load_dword v{V_PVAL}, off, {sr(S_WS)}, s{S_POLLO} sc1"
    n = len(TSTEPS)
    for s in range(n):
        b = TBUF[s % 3]
        if s == 1:
            e("WAITVM OST")
            e("s_barrier")
            e(f"buffer_atomic_add v{V_ONE}, v{V_SIG}, {sr(S_WS)}, s{S_SIGO} offen")
        elif s == 5:
            e("WAITVM PO")
            stamp(e)
            for x in poll_check("M_po", poll_o, [f"v_cmp_gt_u32 vcc, 32, v{V_PVAL}"]):
                e(x)
            stamp(e)
        else:
            e(f"WAITVM T{s}")
        mem = tail_loads(s + 2) if s + 2 < n else []
        if s == 3:
            mem.append(poll_o + " ; @PO")
        if s == 10:
            mem += [f"buffer_load_dwordx2 {vr(V_X+2*nb,2)}, v{V_XO}, {sr(S_X)}, s{S_XO} offen offset:{nb*32}" for nb in range(5)]
        alu = flush("G") if s == 8 else []
        first = s in (0, 7)
        mf = []
        for nb in range(5):
            for rb in range(4):
                for t in ((0, 1) if rb % 2 == 0 else (1, 0)):
                    acc = vr(ACC[TSTEPS[s]] + (nb * 4 + rb) * 4, 4)
                    mf.append(mfma(acc, ar(b[8 + nb * 2 + t], 4), ar(b[rb * 2 + t], 4), "0" if first and len(mf) % 2 == 0 else acc))
        interleave(e, mf, {}, [mem, alu])
        drain(e, [mem, alu])
    stamp(e)
    for x in flush("S"):
        e.safe(x)
    e("s_waitcnt lgkmcnt(0)")
    e("s_barrier")
    for kind in ("G", "S"):
        for k in range(1, 4):
            for nb in range(5):
                e(f"ds_read_b128 {vr(ACC[kind]+(nb*4+k)*4,4)}, v{V_RED} offset:{((k-1)*5+nb)*1024 + (15360 if kind == 'S' else 0)} ; @R{kind}{k}")
        for k in range(1, 4):
            e(f"WAITLG R{kind}{k}")
            for nb in range(5):
                a = ACC[kind] + nb * 16
                for p in range(2):
                    e(f"v_pk_add_f32 {vr(a+2*p,2)}, {vr(a+2*p,2)}, {vr(a+4*k+2*p,2)}")
    e(f"s_mov_b32 s6, {fbits(-LOG2E)}")
    e("s_mov_b32 s7, s6")
    for nb in range(5):
        g = ACC["G"] + nb * 16
        s = ACC["S"] + nb * 16
        t = g + 4
        for p in range(2):
            e(f"v_pk_mul_f32 {vr(t+2*p,2)}, {vr(g+2*p,2)}, s[6:7]")
        for r in range(4):
            e(f"v_exp_f32 v{t+r}, v{t+r}")
        for p in range(2):
            e(f"v_lshlrev_b32 v{t+4+2*p}, 16, v{V_X+2*nb+p}")
            e(f"v_and_b32 v{t+5+2*p}, 0xffff0000, v{V_X+2*nb+p}")
        for p in range(2):
            e(f"v_pk_add_f32 {vr(t+2*p,2)}, {vr(t+2*p,2)}, 1.0 op_sel_hi:[1,0]")
        for r in range(4):
            e(f"v_rcp_f32 v{t+r}, v{t+r}")
        for p in range(2):
            e(f"v_pk_mul_f32 {vr(s+2*p,2)}, {vr(s+2*p,2)}, {vr(g+2*p,2)}")
        for p in range(2):
            e(f"v_pk_fma_f32 {vr(t+2*p,2)}, {vr(t+2*p,2)}, {vr(s+2*p,2)}, {vr(t+4+2*p,2)}")
        for p in range(2):
            e(f"v_cvt_pk_bf16_f32 v{t+4+p}, v{t+2*p}, v{t+2*p+1}")
        e(f"buffer_store_dwordx2 {vr(t+4,2)}, v{V_XO}, {sr(S_OUT)}, s{S_XO} offen offset:{nb*32}")


def attention(e):
    m = V_M
    e("WAITVM K0")
    e("s_barrier")
    for kb in range(2):
        for ks in range(4):
            e(k_read(0, kb, ks))
    e(f"v_and_b32 v{V_POFF}, 7, v0")
    e(f"v_lshlrev_b32 v{V_POFF}, 8, v{V_POFF}")
    e(f"v_add_u32 v{V_POFF}, {MISC_CNTA}, v{V_POFF}")
    for kb in range(2):
        e(f"s_waitcnt lgkmcnt({4-4*kb})")
        for qb in range(4):
            d = vr(V_P + (qb * 2 + kb) * 4, 4)
            for ks in range(4):
                e(mfma(d, ar(A_KF + (kb * 4 + ks) * 4, 4), ar(A_Q + (qb * 4 + ks) * 4, 4), "0" if ks == 0 else d))
    for qb in range(4):
        b = V_P + qb * 8
        e(f"v_max3_f32 v{m+qb}, v{b}, v{b+1}, v{b+2}")
        e(f"v_max3_f32 v{m+qb}, v{m+qb}, v{b+3}, v{b+4}")
        e(f"v_max3_f32 v{m+qb}, v{m+qb}, v{b+5}, v{b+6}")
        e(f"v_max_f32 v{m+qb}, v{m+qb}, v{b+7}")
    e("M_restart:")
    row_max_finish(e)
    for r in range(16):
        e(f"v_accvgpr_write_b32 a{A_L+r}, 0")
    e(f"s_mov_b32 s{S_OFF}, {3*16384}")
    e(f"s_mov_b32 s{S_CNT}, 8")
    attn_step(e, -1, qk=True, pv=False)
    stamp(e)
    e(".p2align 6")
    e("M_loop:")
    for j in range(3):
        attn_step(e, j)
    e(f"s_sub_u32 s{S_CNT}, s{S_CNT}, 1")
    e(f"s_cmp_eq_u32 s{S_CNT}, 0")
    e("s_cbranch_scc1 M_last")
    attn_step(e, 3)
    e("s_branch M_loop")
    e("M_last:")
    for x in poll_check("M_pa", POLL_A, [f"v_cmp_gt_u32 vcc, 32, v{V_PVAL}"]):
        e(x)
    extra = [tail_addr_stream() + tail_loads(0) + tail_loads(1)]
    attn_step(e, 3, qk=False, pv=True, extra=extra)
    drain(e, extra)
    stamp(e)

    T = 24
    for qb in range(4):
        e.safe(f"v_accvgpr_read_b32 v{T+2*qb}, a{A_L+qb*4}")
        e.safe(f"v_accvgpr_read_b32 v{T+2*qb+1}, a{A_L+qb*4+1}")
    for qb in range(4):
        e(f"v_add_f32 v{T+2*qb}, v{T+2*qb}, v{T+2*qb+1}")
    e(f"s_mov_b32 s6, {fbits(L_LIMIT)}")
    e("s_mov_b64 s[4:5], 0")
    for qb in range(4):
        e(f"v_cmp_nge_f32 vcc, s6, v{T+2*qb}")
        e("s_or_b64 s[4:5], s[4:5], vcc")
    for qb in range(4):
        e(f"v_rcp_f32 v{T+2*qb}, v{T+2*qb}")
    e("s_or_b32 s4, s4, s5")
    e(f"s_lshl_b32 s5, s{S_W}, 2")
    e(f"s_add_u32 s5, s5, {LDS_FLAG}")
    e("v_mov_b32 v56, s4")
    e("v_mov_b32 v57, s5")
    e("ds_write_b32 v57, v56")
    e("s_mov_b32 s6, 8192")
    for jp in range(2):
        for qb in range(4):
            for t in range(2):
                j = 2 * jp + t
                d = V_P + ((qb * 2 + t) % 4) * 4
                for u in range(2):
                    a = o_reg(2 * j + u, qb)
                    e(f"v_pk_mul_f32 {vr(a,2)}, {vr(a,2)}, {vr(T+2*qb,2)} op_sel_hi:[1,0]")
                    e(f"v_pk_mul_f32 {vr(a+2,2)}, {vr(a+2,2)}, {vr(T+2*qb,2)} op_sel_hi:[1,0]")
                for u in range(2):
                    a = o_reg(2 * j + u, qb)
                    e(f"v_cvt_pk_bf16_f32 v{d+2*u}, v{a}, v{a+1}")
                    e(f"v_cvt_pk_bf16_f32 v{d+2*u+1}, v{a+2}, v{a+3}")
                e(f"buffer_store_dwordx4 {vr(d,4)}, v{V_L16 if qb < 2 else V_TW1}, {sr(S_ACT)}, {'s6' if jp else '0'} offen offset:{(qb%2)*2048+t*1024} sc1 ; @OST")
    e("s_waitcnt lgkmcnt(0)")
    e("s_barrier")
    e(f"v_mov_b32 v57, {LDS_FLAG}")
    e("ds_read_b128 v[60:63], v57")
    e("s_waitcnt lgkmcnt(0)")
    e("v_or_b32 v60, v60, v61")
    e("v_or3_b32 v60, v60, v62, v63")
    e.safe("v_readfirstlane_b32 s4, v60")
    e(f"s_andn2_b32 s4, s4, s{S_RETRY}")
    e("s_cbranch_scc1 M_fallback")


def fallback(e):
    m = V_M
    e("M_fallback:")
    e(f"s_mov_b32 s{S_RETRY}, -1")
    e(f"s_mov_b32 s{S_SIGA}, {OOB}")
    e(f"s_sub_u32 s{S_GA}, s{S_GA}, {2*8192}")
    e(f"s_sub_u32 s{S_GW}, s{S_GW}, {2*10240}")
    for qb in range(4):
        e(f"v_mov_b32 v{m+qb}, 0xff800000")
    e(f"s_mov_b32 s{S_OFF}, 0")
    e("M_maxloop:")
    e("s_waitcnt vmcnt(0)")
    e("s_barrier")
    e(f"s_mov_b32 m0, s{S_M0K}")
    e("s_nop 0")
    for n in range(4):
        e(k_dma(n))
    e("s_waitcnt vmcnt(0)")
    e("s_barrier")
    for kb in range(4):
        for ks in range(4):
            e(k_read(0, kb, ks))
        e("s_waitcnt lgkmcnt(0)")
        for qb in range(4):
            d = vr(V_P + qb * 4, 4)
            for ks in range(4):
                e(mfma(d, ar(A_KF + (kb * 4 + ks) * 4, 4), ar(A_Q + (qb * 4 + ks) * 4, 4), "0" if ks == 0 else d))
        e("s_nop 7")
        for qb in range(4):
            b = V_P + qb * 4
            e(f"v_max3_f32 v{m+qb}, v{m+qb}, v{b}, v{b+1}")
            e(f"v_max3_f32 v{m+qb}, v{m+qb}, v{b+2}, v{b+3}")
    e(f"s_add_u32 s{S_OFF}, s{S_OFF}, 16384")
    e(f"s_cmp_lt_u32 s{S_OFF}, 524288")
    e("s_cbranch_scc1 M_maxloop")
    e("s_barrier")
    for w, t in (("K", 0), ("K", 1), ("K", 2), ("V", 0), ("V", 1)):
        for x in kv_tile(w, t):
            e(x)
    e("s_waitcnt vmcnt(0)")
    e("s_barrier")
    for kb in range(2):
        for ks in range(4):
            e(k_read(0, kb, ks))
    e("s_waitcnt lgkmcnt(0)")
    e("s_branch M_restart")


def build():
    e = Asm()
    for l in open(f"cdna_kernels/{NAME}.s.ref").read().split("\n"):
        if not l.startswith(";"):
            break
        if "@launch" not in l:
            e(l)
    e("; @launch grid=(256,1,1) block=(256,1,1) lds=163840")
    e('.amdgcn_target "amdgcn-amd-amdhsa--gfx950"')
    e(".text")
    e(f".globl {KERNEL}")
    e(".p2align 8")
    e(f".type {KERNEL},@function")
    e(f"{KERNEL}:")
    setup(e)
    phase1(e)
    proj_epilogue(e)
    stamp(e)
    attention(e)
    stamp(e)
    tail(e)
    stamp_flush(e)
    e("M_exit:")
    e("s_endpgm")
    fallback(e)
    emit_spins(e)
    e('.section .rodata,"a"')
    e(".p2align 6")
    e(f".amdhsa_kernel {KERNEL}")
    for d in ("next_free_vgpr 512", "next_free_sgpr 102", "accum_offset 256", "group_segment_fixed_size 0", "kernarg_size 88",
              "user_sgpr_count 2", "user_sgpr_kernarg_segment_ptr 1", "system_sgpr_workgroup_id_x 1"):
        e(f".amdhsa_{d}")
    e(".end_amdhsa_kernel")
    e.resolve()
    errs = []
    errs += check_trace(e.trace(KERNEL, {"M_last": [False, False, True]}), "fast")
    errs += check_trace(e.trace(KERNEL, {"M_last": [False, True, False, True], "M_fallback": [True, False], "M_maxloop": [True, False],
                                         "M_ps_spin": [True], "M_pa_spin": [True, True], "M_po_spin": [True],
                                         "M_ps_back": [True], "M_pa_back": [True, True], "M_po_back": [True]}), "slow")
    return e.text(), errs


if __name__ == "__main__":
    if "--stamps" in sys.argv:
        sys.argv.remove("--stamps")
        STAMPS = True
    for a in [x for x in sys.argv if "=" in x]:
        sys.argv.remove(a)
        k, v = a.split("=")
        OPT[k] = int(v)
    text, errs = build()
    for x in errs:
        print(x)
    out = sys.argv[1] if len(sys.argv) > 1 else f"cdna_kernels/{NAME}.s"
    open(out, "w").write(text)
    print("wrote", out, len(text), "bytes;", len(errs), "check findings; stamps", nstamp[0])
```

```python
import re

TRANS = ("v_exp_", "v_log_", "v_rcp_", "v_rsq_", "v_sqrt_", "v_sin_", "v_cos_")
REG_RE = re.compile(r"^-?\|?(?:abs\()?([vas])(?:(\d+)|\[(\d+):(\d+)\])\)?\|?$")


def regs_of(op):
    op = op.strip()
    if op in ("vcc", "exec", "m0", "scc"):
        return {op}
    if op in ("vcc_lo", "vcc_hi"):
        return {"vcc"}
    if op in ("exec_lo", "exec_hi"):
        return {"exec"}
    m = REG_RE.match(op)
    if not m:
        return set()
    k = m.group(1)
    if m.group(2) is not None:
        return {k + m.group(2)}
    return {f"{k}{i}" for i in range(int(m.group(3)), int(m.group(4)) + 1)}


class Ins:
    def __init__(self, text):
        self.text = text
        t = text.split(";")[0].strip()
        self.label = t[:-1] if t.endswith(":") else None
        self.directive = t.startswith(".") and not self.label
        parts = t.split(None, 1)
        self.mn = parts[0] if parts else ""
        rest = parts[1] if len(parts) > 1 else ""
        ops = [o.strip() for o in re.split(r",(?![^\[]*\])", rest)] if rest else []
        self.mods = ""
        if ops:
            last = ops[-1].split(None, 1)
            ops[-1] = last[0]
            self.mods = last[1] if len(last) > 1 else ""
        self.ops = ops
        self.kind = self._kind()
        self.rd, self.wr = set(), set()
        self.srcc, self.srcab, self.data = set(), set(), set()
        self._rw()

    def _kind(self):
        m = self.mn
        if self.label or self.directive or not m:
            return "none"
        if m.startswith("v_mfma"):
            return "mfma"
        if m.startswith("v_smfmac"):
            return "mfma"
        if m.startswith("v_"):
            return "valu"
        if m.startswith("ds_"):
            return "ds"
        if m.startswith(("buffer_", "global_")):
            return "vmem"
        if m.startswith(("s_load", "s_memtime", "s_memrealtime", "s_atomic")):
            return "smem"
        return "salu"

    def _rw(self):
        m, o, k = self.mn, self.ops, self.kind
        R = [regs_of(x) for x in o]
        if k == "mfma":
            self.wr = R[0]
            self.passes = 8 if "32x32" in m else 4
            if m.startswith("v_smfmac"):
                self.srcab = R[1] | R[2] | R[3]
                self.srcc = R[0]
            else:
                self.srcab = R[1] | R[2]
                self.srcc = R[3]
            self.rd = self.srcab | self.srcc
        elif k == "valu":
            if m.startswith("v_nop"):
                return
            self.wr = set(R[0])
            self.rd = set().union(*R[1:]) if len(R) > 1 else set()
            if "swap" in m:
                self.wr = R[0] | R[1]
                self.rd = R[0] | R[1]
            if m.startswith(("v_fmac", "v_dot2c", "v_pk_fmac", "v_writelane")) or "_dpp" in m:
                self.rd |= R[0]
            if m.startswith(("v_add_co", "v_sub_co", "v_addc_co", "v_subb_co")):
                self.wr |= R[1]
                self.rd = set().union(*R[2:])
            if m.startswith("v_cmpx"):
                self.wr |= {"exec"}
        elif k == "ds":
            if m.startswith("ds_read") or m.startswith("ds_bpermute") or m.startswith("ds_swizzle"):
                self.wr = R[0]
                self.rd = set().union(*R[1:])
            else:
                self.rd = set().union(*R)
                self.data = set().union(*R[1:])
        elif k == "vmem":
            if m.startswith(("buffer_wbl2", "buffer_inv")):
                return
            lds = " lds" in " " + self.mods
            if "load" in m and not lds:
                self.wr = R[0]
                self.rd = set().union(*R[1:])
            elif lds:
                self.rd = set().union(*R) | {"m0"}
            else:
                self.rd = set().union(*R)
                if m.startswith("buffer_"):
                    self.data = R[0]
                    if "atomic" in m and "sc0" in self.mods:
                        self.wr = R[0]
                else:
                    self.data = R[1]
        elif k == "smem":
            self.wr = R[0]
            self.rd = set().union(*R[1:]) if len(R) > 1 else set()
        elif k == "salu":
            if m.startswith(("s_cmp", "s_waitcnt", "s_nop", "s_barrier", "s_branch", "s_cbranch", "s_endpgm", "s_setprio", "s_sleep", "s_bitcmp")):
                self.rd = set().union(*R) if R else set()
                if m.startswith("s_cbranch_vcc"):
                    self.rd |= {"vcc"}
            else:
                self.wr = set(R[0]) if R else set()
                self.rd = set().union(*R[1:]) if len(R) > 1 else set()
                if "saveexec" in m:
                    self.wr |= {"exec"}

    @property
    def states(self):
        if self.kind == "none":
            return 0
        if self.mn == "s_nop":
            return int(self.ops[0], 0) + 1
        return 1

    @property
    def trans(self):
        return self.mn.startswith(TRANS)


def required(p, c):
    need = 0
    if p.kind == "mfma":
        tbl = {4: (8, 6, 3), 8: (12, 10, 7)}[p.passes]
        if c.kind == "mfma":
            if p.wr & c.srcab:
                need = max(need, tbl[0])
            if p.wr & c.srcc:
                same = p.wr == c.srcc and p.passes == c.passes
                need = max(need, 0 if same else tbl[1])
            elif p.wr & c.wr:
                need = max(need, 0 if p.wr == c.wr else tbl[1])
        elif c.kind in ("valu", "ds", "vmem"):
            if p.wr & (c.rd | c.wr):
                need = max(need, tbl[0])
            if c.kind == "valu" and p.srcc & c.wr:
                need = max(need, tbl[2])
    if p.kind == "valu":
        vw = {r for r in p.wr if r[0] in "va" and r != "vcc"}
        sw = p.wr - vw
        if c.kind == "mfma":
            if vw & c.rd:
                need = max(need, 2)
            if "exec" in sw:
                need = max(need, 4)
        if c.kind == "valu":
            if p.trans and (vw & c.rd) and not c.trans:
                need = max(need, 1)
            if ("permlane" in c.mn or "_dpp" in c.mn) and vw & c.rd:
                need = max(need, 2)
            if c.mn.startswith(("v_readfirstlane", "v_readlane")) and vw & c.rd:
                need = max(need, 1)
            if sw & c.rd:
                need = max(need, 2)
            if c.mn.startswith("v_cndmask") and "vcc" in sw:
                need = max(need, 2)
            if "exec" in sw and ("permlane" in c.mn or "_dpp" in c.mn or c.mn.startswith(("v_readfirstlane", "v_readlane"))):
                need = max(need, 5)
        if c.kind == "vmem" and sw & c.rd:
            need = max(need, 5)
    if p.kind == "valu" and p.mn.startswith("v_dot") and c.kind in ("valu", "vmem", "ds", "mfma") and p.wr & (c.rd | c.wr):
        same_c = c.mn == p.mn and not (p.wr & (regs_of(c.ops[1]) | regs_of(c.ops[2])))
        need = max(need, 0 if same_c else 3)
    if p.kind == "vmem" and p.data and len(p.data) >= 3:
        if c.kind == "valu" and p.data & c.wr:
            need = max(need, 2)
        elif c.kind in ("ds", "vmem", "mfma") and p.data & c.wr:
            need = max(need, 1)
    if p.kind == "salu" and "m0" in p.wr and c.kind == "vmem" and "m0" in c.rd:
        need = max(need, 1)
    return need


def check_trace(trace, name=""):
    errs = []
    real = [i for i in trace if i.kind != "none"]
    for n, c in enumerate(real):
        dist = 0
        for b in range(n - 1, max(-1, n - 22), -1):
            p = real[b]
            r = required(p, c)
            if r > dist:
                errs.append(f"{name}: hazard need {r} have {dist}: [{p.text.strip()}] -> [{c.text.strip()}]")
            dist += p.states
            if dist > 20:
                break
    vm, lg = [], []
    for c in real:
        if c.mn == "s_waitcnt":
            t = c.text.split(";")[0]
            m = re.search(r"vmcnt\((\d+)\)", t)
            if m:
                n = int(m.group(1))
                vm = vm[len(vm) - n:] if n < len(vm) else vm
                if n == 0:
                    vm = []
            m = re.search(r"lgkmcnt\((\d+)\)", t)
            if m:
                n = int(m.group(1))
                if any(x.kind == "smem" for x in lg) and n > 0:
                    pass
                else:
                    lg = lg[len(lg) - n:] if n < len(lg) else lg
                    if n == 0:
                        lg = []
            continue
        touched = c.rd | c.wr
        for q, qn in ((vm, "vmcnt"), (lg, "lgkmcnt")):
            for x in q:
                if x.wr & touched and "nocheck" not in c.text and "nocheck" not in x.text:
                    errs.append(f"{name}: {qn} uncovered: [{x.text.strip()}] -> [{c.text.strip()}]")
        if c.kind == "vmem":
            vm.append(c)
            if len(vm) > 63:
                errs.append(f"{name}: vmcnt overflow at {c.text.strip()}")
        if c.kind in ("ds", "smem"):
            lg.append(c)
    return sorted(set(errs))


def is_marker(l):
    return l.startswith(("WAITVM", "WAITLG"))


def as_ins(l):
    return Ins("s_waitcnt vmcnt(63)") if is_marker(l) else Ins(l)


class Asm:
    def __init__(self):
        self.lines = []

    def hazard_free(self, text):
        c = as_ins(text.split("\n")[0])
        dist = 0
        for l in reversed(self.lines[-24:]):
            if l.startswith(";"):
                continue
            p = as_ins(l)
            if p.kind == "none":
                continue
            if required(p, c) > dist:
                return False
            dist += p.states
        return True

    def safe(self, text):
        while not self.hazard_free(text):
            self("s_nop 0")
        self(text)

    def resolve(self):
        out = []
        for n, l in enumerate(self.lines):
            if not is_marker(l):
                out.append(l)
                continue
            parts = l.split()
            kind = "vmem" if parts[0] == "WAITVM" else "ds"
            tags = set(parts[1:])
            cnt, found = 0, False
            for b in range(n - 1, -1, -1):
                x = self.lines[b]
                if is_marker(x) or x.startswith(";"):
                    continue
                i = Ins(x)
                if i.kind != kind:
                    continue
                t = x.split("@")[1].split()[0] if "@" in x else None
                if t in tags:
                    found = True
                    break
                cnt += 1
            assert found, f"no operation tagged {tags} before marker"
            for x in self.lines[n + 1:]:
                if x.startswith("s_endpgm"):
                    break
                if "@" in x and not x.startswith(";"):
                    assert x.split("@")[1].split()[0] not in tags, f"operation tagged {tags} after its wait"
            lim = 63 if kind == "vmem" else 15
            out.append(f"s_waitcnt {'vmcnt' if kind == 'vmem' else 'lgkmcnt'}({min(cnt, lim)})")
        self.lines = out

    def __call__(self, s):
        for l in s.split("\n"):
            if l.strip():
                self.lines.append(l.strip())

    def text(self):
        out = []
        for l in self.lines:
            if not l.startswith(";"):
                l = l.split(";")[0].rstrip()
            out.append(l if l.endswith(":") or l.startswith((".", ";")) else "    " + l)
        return "\n".join(out) + "\n"

    def trace(self, entry, decisions, limit=400000):
        ins = [Ins(l) for l in self.lines if not l.startswith(";")]
        pos = {i.label: n for n, i in enumerate(ins) if i.label}
        dec = {k: list(v) for k, v in decisions.items()}
        n, out = pos[entry], []
        while len(out) < limit:
            i = ins[n]
            out.append(i)
            if i.mn == "s_endpgm":
                return out
            if i.mn == "s_branch":
                n = pos[i.ops[0]]
                continue
            if i.mn.startswith("s_cbranch"):
                d = dec.get(i.ops[0])
                taken = d.pop(0) if d else False
                if taken:
                    n = pos[i.ops[0]]
                    continue
            n += 1
        raise RuntimeError("trace limit")
```

```python
import sys, struct
from asm import Asm, check_trace

NAME = "recurrent_scan__gqa_block_cached__dense_activation_silu__prompt"
KERNEL = NAME + "_kernel"
WS_MISC = 0
MISC_CNTA, MISC_CNTO, MISC_SIZE = 16384, 20480, 24576
WS_ACT = 4 << 20
WS_WP = 32 << 20
WS_STAMP = 64 << 20
NPAIR = 91
ACT_RG = NPAIR * 8192
WP_PAIR = 81920
SRD3 = "0x00020000"
OOB = 0x1000000
LOG2E = 1.4426950408889634
L_LIMIT = 2.0 ** 100
STAMPS = False
OPT = {}

S_X, S_WQ, S_W1, S_K, S_V, S_ACT, S_ACTH, S_DBG, S_WS, S_R0, S_R1, S_WP, S_TA, S_TW, S_OUT = range(8, 68, 4)
S_M0K, S_M0V = 68, 72
S_W, S_HEAD, S_QT, S_W4K, S_OFF, S_CNT, S_RETRY = range(76, 83)
S_RSRC, S_RSRC2, S_RDST, S_M0R = 83, 84, 85, 86
S_GA, S_GW, S_SA, S_SW, S_XO = range(87, 92)
S_SIGS, S_SIGA, S_SIGO, S_POLLO = 92, 93, 94, 95
S_W2K, S_W8K = 100, 101
V_L16 = 1
V_KRD, V_VRD, V_KDMA, V_VDMA = 2, 6, 14, 18
V_STAMP, V_IDX, V_ONES, V_NM, V_P, V_O = 34, 35, 36, 40, 64, 128
SBUF = [56, 60, 24, 28]
V_POFF, V_PVAL, V_ONE, V_SIG = 20, 21, 32, 33
V_XDMA, V_XRD = 20, 24
V_RDMA, V_RRD = 22, 23
V_WQRD, V_W1RD, V_WQDMA, V_W1DMA, V_ST = 40, 48, 52, 56, 52
A_Q, A_KF, A_VF, A_L = 0, 64, 128, 160
A_XF, A_WF, A_CS, A_RP = 64, 128, 160, 176
LDS_K, LDS_V, LDS_W1 = 0, 65536, 131072
LDS_CS = LDS_W1 + 3 * 8192
LDS_FLAG = LDS_W1 + 2 * 8192
WQ_SLOT = [LDS_V + 3 * 16384, LDS_V + 2 * 16384, LDS_K + 2 * 16384, LDS_K + 3 * 16384]
X_SLOT = [LDS_V, LDS_K]
LK = LV = 5


def fbits(x):
    return "0x%08x" % struct.unpack("<I", struct.pack("<f", x))[0]


def vr(b, n=1):
    return f"v{b}" if n == 1 else f"v[{b}:{b+n-1}]"


def ar(b, n=1):
    return f"a{b}" if n == 1 else f"a[{b}:{b+n-1}]"


def sr(b, n=4):
    return f"s[{b}:{b+n-1}]"


def srd(e, d, src, off, size):
    if off is not None:
        e(f"s_add_u32 s{d}, s{src}, {off}")
        e(f"s_addc_u32 s{d+1}, s{src+1}, 0")
    elif src != d:
        e(f"s_mov_b32 s{d}, s{src}")
        e(f"s_mov_b32 s{d+1}, s{src+1}")
    e(f"s_mov_b32 s{d+2}, {size}")
    e(f"s_mov_b32 s{d+3}, {SRD3}")


def mfma(d, a, b, c):
    return f"v_mfma_f32_16x16x32_bf16 {d}, {a}, {b}, {c}"


def smfmac(d, b):
    return f"v_smfmac_f32_16x16x64_bf16 {d}, {vr(V_ONES,4)}, {b}, v{V_IDX}"


nstamp = [0]


def stamp(e):
    if STAMPS:
        i = nstamp[0]
        nstamp[0] += 1
        e("s_memrealtime s[96:97]")
        e("s_memtime s[98:99]")
        e("s_waitcnt lgkmcnt(0)")
        e(f"v_writelane_b32 v{V_STAMP}, s96, {2*i}")
        e(f"v_writelane_b32 v{V_STAMP}, s98, {2*i+1}")


def stamp_flush(e):
    if not STAMPS:
        return
    e("s_waitcnt vmcnt(0) lgkmcnt(0)")
    stamp(e)
    srd(e, 8, S_WS, WS_STAMP - WS_MISC, 262144)
    e("s_lshl_b32 s12, s2, 2")
    e(f"s_add_u32 s12, s12, s{S_W}")
    e("s_lshl_b32 s12, s12, 8")
    e(f"v_lshrrev_b32 v2, 2, v{V_L16}")
    e(f"buffer_store_dword v{V_STAMP}, v2, s[8:11], s12 offen")


def interleave(e, mf, fixed, streams, cap=2, quota=99):
    for i, m in enumerate(mf):
        e.safe(m)
        used = 0
        pre, post = fixed.get(i, ([], []))
        for x in pre:
            e.safe(x)
            used += 1
        room = cap - len(post)
        progress = True
        while used < room and progress:
            progress = False
            for s in streams:
                if not s:
                    continue
                vm = s[0].startswith("buffer_")
                cost = 2 if vm or s[0].startswith(("v_exp", "v_rcp", "v_sqrt")) else 1
                if used + cost > room or (vm and quota == 0) or not e.hazard_free(s[0]):
                    continue
                e(s.pop(0))
                used += cost
                quota -= vm
                progress = True
                break
        for x in post:
            e.safe(x)


def drain(e, streams):
    for s in streams:
        while s:
            e.safe(s.pop(0))


def o_reg(db, qb):
    return V_O + (db * 4 + qb) * 4


def k_dma(n, tag=""):
    return f"buffer_load_dwordx4 v{V_KDMA+n}, {sr(S_K)}, s{S_OFF} offen offset:{n*1024} lds{tag}"


def v_dma(n, tag=""):
    return f"buffer_load_dwordx4 v{V_VDMA+(n&1)}, {sr(S_V)}, s{S_OFF} offen offset:{n*1024} lds{tag}"


def k_read(tile, kb, ks):
    return f"ds_read_b128 {ar(A_KF+(kb*4+ks)*4,4)}, v{V_KRD+ks} offset:{(tile%4)*16384+kb*4096}"


def v_read(tile, db, t, v):
    return f"ds_read_b64_tr_b16 {ar(A_VF+((db%4)*2+t)*4+2*v,2)}, v{V_VRD+db} offset:{(tile%4)*16384+t*8192+v*4096}"


def kv_tile(which, tile):
    tag = f" ; @{which}{tile}"
    out = [f"s_mov_b32 m0, s{(S_M0K if which == 'K' else S_M0V) + tile % 4}", f"s_mov_b32 s{S_OFF}, {tile*16384}"]
    return out + [(k_dma if which == "K" else v_dma)(n, tag) for n in range(4)]


spins = []


def poll_check(name, load, cond):
    spins.append((name, load, cond))
    return cond + [f"s_cbranch_vccnz {name}_spin\n{name}_back:"]


def emit_spins(e):
    for name, load, cond in spins:
        e(f"{name}_spin:")
        e("s_mov_b32 s3, 0x100000")
        e(f"{name}_loop:")
        e("s_sleep 2")
        e(load)
        e("s_waitcnt vmcnt(0)")
        for x in cond:
            e(x)
        e(f"s_cbranch_vccz {name}_back")
        e("s_sub_u32 s3, s3, 1")
        e("s_cmp_lg_u32 s3, 0")
        e(f"s_cbranch_scc1 {name}_loop")
        e(f"s_branch {name}_back")


POLL_A = f"buffer_load_dword v{V_PVAL}, v{V_POFF}, {sr(S_WS)}, 0 offen sc1"


def attn_step(e, j, qk=True, pv=True, extra=None):
    pw = V_P + ((j + 1) % 2) * 32
    pr = V_P + (j % 2) * 32

    def pdst(x):
        on, base = (qk, pw) if x >= 0 else (pv, pr)
        x %= 16
        return on, base + (x % 4) * 8 + (x // 4) * 2, SBUF[x % 4]

    for u in range(16):
        kb, qb = u // 4, u % 4
        s_cur = SBUF[u % 4]
        M = []
        if qk:
            for ks in range(4):
                c = vr(V_NM + qb * 4, 4) if ks == 0 else vr(s_cur, 4)
                M.append(mfma(vr(s_cur, 4), ar(A_KF + (kb * 4 + ks) * 4, 4), ar(A_Q + (qb * 4 + ks) * 4, 4), c))
        else:
            M += [None] * 4
        if pv:
            db = u // 2
            for h in range(2):
                q2 = (u % 2) * 2 + h
                for t in ((0, 1) if h == 0 else (1, 0)):
                    o = vr(o_reg(db, q2), 4)
                    M.append(mfma(o, ar(A_VF + ((db % 4) * 2 + t) * 4, 4), vr(pr + q2 * 8 + t * 4, 4), o))
        else:
            M += [None] * 4
        F = [[] for _ in range(8)]
        nreads = 0
        n = u + LK
        if qk:
            F[1].append(k_read(j + 1 + n // 16, (n % 16) // 4, n % 4))
            nreads += 1
        n = u + LV
        if (pv and n < 16) or (qk and n >= 16):
            F[3].append(v_read(j + n // 16, (n % 16) // 2, n % 2, 0))
            F[5].append(v_read(j + n // 16, (n % 16) // 2, n % 2, 1))
            nreads += 2
        on, p, sb = pdst(u - 1)
        if on:
            for r in range(4):
                F[2 * r].append(f"v_exp_f32 v{sb+r}, v{sb+r}")
            F[5].append(f"v_cvt_pk_bf16_f32 v{p}, v{sb}, v{sb+1}")
        on, p, sb = pdst(u - 2)
        if on:
            F[1].append(f"v_cvt_pk_bf16_f32 v{p+1}, v{sb+2}, v{sb+3}")
        post = []
        if qk:
            if u == 10:
                post += [f"s_waitcnt vmcnt({[10, 9, 11, 8][j % 4]})" if pv else "WAITVM K1", "s_barrier"]
            if u == 12:
                F[3].append(f"s_mov_b32 m0, s{S_M0K + j % 4}")
            if u in (12, 14):
                F[7].append(k_dma((u - 12) // 2))
            if pv:
                if u in (0, 2):
                    F[7].append(k_dma(2 + u // 2))
                if u == 2:
                    post.append(f"s_sub_u32 s{S_OFF}, s{S_OFF}, 16384")
                if u == 4:
                    F[3].append(f"s_mov_b32 m0, s{S_M0V + (j + 2) % 4}")
                if u in (4, 6, 8, 10):
                    F[7].append(v_dma((u - 4) // 2))
                if u == 11:
                    F[3].append(f"s_add_u32 s{S_OFF}, s{S_OFF}, 32768")
                if j % 4 == 0:
                    if u == 2:
                        post.append(f"s_mov_b32 m0, s{S_M0R}")
                    if u == 3:
                        F[3].append(f"buffer_load_dwordx4 v{V_RDMA}, {sr(S_R0)}, s{S_RSRC} offen lds")
                        F[7].append(f"buffer_load_dwordx4 v{V_RDMA}, {sr(S_R0)}, s{S_RSRC2} offen offset:1024 lds")
                    if u == 5:
                        F[3].append(f"s_add_u32 s{S_RSRC}, s{S_RSRC}, 256")
                    if u == 6:
                        F[3].append(f"s_add_u32 s{S_RSRC2}, s{S_RSRC2}, 256")
                        post += [f"s_cmp_gt_u32 s{S_CNT}, 4", f"s_cselect_b32 s{S_R0+2}, s{S_R0+2}, 0"]
                    if u == 14:
                        post += [f"s_cmp_eq_u32 s{S_CNT}, 3", f"s_cselect_b32 s5, s{S_SIGA}, {OOB}"]
                if j % 4 == 1:
                    if u == 6:
                        post.append(POLL_A)
                    if u == 14:
                        post.append(f"buffer_atomic_add v{V_ONE}, v{V_SIG}, {sr(S_WS)}, s5 offen")
                    if u in (13, 14, 15):
                        k = u - 13
                        F[3].append(f"ds_read_b64_tr_b16 {ar(A_RP+2*k,2)}, v{V_RRD} offset:{(k//2)*32+(k%2)*4096}")
                        nreads += 1
                if j % 4 == 2:
                    if u == 0:
                        F[3].append(f"ds_read_b64_tr_b16 {ar(A_RP+6,2)}, v{V_RRD} offset:{32+4096}")
                        nreads += 1
                    if u == 3:
                        F[3].append(f"buffer_store_dwordx4 {ar(A_RP,4)}, v{V_L16}, {sr(S_WP)}, s{S_RDST} offen sc1")
                    if u == 6:
                        post.append(f"buffer_store_dwordx4 {ar(A_RP+4,4)}, v{V_L16}, {sr(S_WP)}, s{S_RDST} offen offset:2048 sc1")
                    if u == 7:
                        F[3].append(f"s_add_u32 s{S_RDST}, s{S_RDST}, 16384")
        if u % 2 == 1:
            F[7].append(f"s_waitcnt lgkmcnt({nreads})")
        if qk and not pv:
            z = [f"v_mov_b32 v{V_O + u*8 + i}, 0" for i in range(8)]
            order = [M[0], z[0], z[1], M[1]] + F[1] + [M[2], z[3], z[4], M[3], z[2]]
            order += F[0] + [z[5]] + F[2] + [z[6]] + F[3] + F[4] + F[5] + F[6] + [z[7]] + F[7]
            for x in order:
                e(x)
        elif qk:
            for i in range(8):
                e(M[i])
                for x in F[i]:
                    e(x)
        else:
            for x in F[0] + F[1] + F[2]:
                e.safe(x)
            fixed = {0: (F[3] + F[4], []), 1: (F[5], []), 2: (F[6], []), 3: ([], F[7])}
            interleave(e, M[4:], fixed, extra if u >= 2 else [])
        if pv and u % 4 == 2:
            q2 = u // 4
            e(smfmac(ar(A_L + q2 * 4, 4), vr(pr + q2 * 8, 8)))
        for x in post:
            e(x)


V_M = 24


def row_max_finish(e):
    m, t = V_M, V_M + 4
    for swap in ("v_permlane32_swap_b32", "v_permlane16_swap_b32"):
        for qb in range(4):
            e(f"v_mov_b32 v{t+qb}, v{m+qb}")
        for qb in range(4):
            e(f"{swap} v{m+qb}, v{t+qb}")
        for qb in range(4):
            e(f"v_max_f32 v{m+qb}, v{m+qb}, v{t+qb}")
    for qb in range(4):
        for r in range(4):
            e(f"v_sub_f32 v{V_NM+qb*4+r}, 0, v{m+qb}")


def x_dma(c):
    out = []
    for h in range(2):
        out += [f"s_add_u32 m0, s{S_W8K}, {X_SLOT[c%2] + h*4096}", f"s_mov_b32 s4, {c*128 + h*40960}"]
        out += [f"buffer_load_dwordx4 v{V_XDMA+n}, {sr(S_X)}, s4 offen offset:{n*1024} lds ; @X{c}" for n in range(4)]
    return out


def w_dma(c):
    out = [f"s_add_u32 m0, s{S_W4K}, {WQ_SLOT[c%4]}", f"s_mov_b32 s4, {c*64*8192}"]
    out += [f"buffer_load_dwordx4 v{V_WQDMA+n}, {sr(S_WQ)}, s4 offen offset:{n*1024} lds ; @W{c}" for n in range(4)]
    out += [f"s_add_u32 m0, s{S_W2K}, {LDS_W1+(c%4)*8192}", f"s_mov_b32 s4, {c*64*3456}"]
    out += [f"buffer_load_dwordx4 v{V_W1DMA+n}, {sr(S_W1)}, s4 offen offset:{n*1024} lds ; @W{c}" for n in range(2)]
    return out


def x_read(c):
    out = [f"ds_read_b128 {ar(A_XF+(c%2)*32+(qb*2+t)*4,4)}, v{V_XRD+t} offset:{qb*2048} ; @XR{c}" for qb in range(4) for t in range(2)]
    return out + [f"v_xor_b32 v{V_XRD+t}, 0x10000, v{V_XRD+t}" for t in range(2)]


def setup(e):
    e("s_cmp_ge_u32 s2, 256")
    e("s_cbranch_scc1 M_exit")
    for reg, off in ((S_X, 0), (S_WQ, 24), (S_W1, 48), (S_K, 8), (S_V, 16), (S_R0, 32), (S_R1, 56), (S_OUT, 64), (S_DBG, 72), (S_WS, 80)):
        e(f"s_load_dwordx2 {sr(reg,2)}, s[0:1], {off}")
    e("v_lshrrev_b32 v31, 6, v0")
    e("v_mov_b32 v62, v0")
    e(f"v_readfirstlane_b32 s{S_W}, v31")
    e("v_and_b32 v0, 63, v0")
    e("s_and_b32 s3, s2, 7")
    e("s_lshr_b32 s4, s2, 3")
    e(f"s_lshr_b32 s{S_QT}, s4, 2")
    e("s_and_b32 s5, s4, 3")
    e(f"s_lshl_b32 s{S_HEAD}, s3, 2")
    e(f"s_add_u32 s{S_HEAD}, s{S_HEAD}, s5")
    e(f"s_lshl_b32 s{S_W2K}, s{S_W}, 11")
    e(f"s_lshl_b32 s{S_W4K}, s{S_W}, 12")
    e(f"s_lshl_b32 s{S_W8K}, s{S_W}, 13")
    e(f"s_lshl_b32 s5, s{S_QT}, 2")
    e(f"s_add_u32 s5, s5, s{S_W}")
    e("s_mul_i32 s6, s5, 81920")
    e("v_and_b32 v28, 15, v0")
    e("v_lshrrev_b32 v29, 4, v0")
    e("v_lshrrev_b32 v30, 3, v0")
    e("v_and_b32 v31, 7, v0")
    e("v_mul_u32_u24 v26, 1280, v30")
    e("v_add_u32 v26, s6, v26")
    e("v_xor_b32 v27, v31, v29")
    e(f"v_lshl_add_u32 v{V_XDMA}, v27, 4, v26")
    e(f"v_add_u32 v{V_XDMA+2}, {2*(10240-1024)}, v{V_XDMA}")
    e(f"v_xor_b32 v27, 64, v{V_XDMA}")
    e(f"v_add_u32 v{V_XDMA+1}, {10240-1024}, v27")
    e(f"v_add_u32 v{V_XDMA+3}, {3*(10240-1024)}, v27")
    e(f"s_lshl_b32 s6, s{S_W}, 17")
    e("v_lshlrev_b32 v26, 13, v29")
    e("v_add_u32 v26, s6, v26")
    e("v_lshlrev_b32 v27, 1, v29")
    e("v_xor_b32 v27, v27, v28")
    e(f"v_lshl_add_u32 v{V_WQDMA}, v27, 4, v26")
    e(f"v_add_u32 v{V_WQDMA+1}, {32768-1024}, v{V_WQDMA}")
    e(f"v_xor_b32 v27, 128, v{V_WQDMA}")
    e(f"v_add_u32 v{V_WQDMA+2}, {2*(32768-1024)}, v27")
    e(f"v_add_u32 v{V_WQDMA+3}, {3*(32768-1024)}, v27")
    e(f"s_lshl_b32 s6, s{S_HEAD}, 8")
    e(f"s_mov_b32 s{S_X+2}, 2621440")
    e(f"s_mov_b32 s{S_X+3}, {SRD3}")
    e("s_waitcnt lgkmcnt(0)")
    stamp(e)
    for x in x_dma(0):
        e.safe(x)
    srd(e, S_WQ, S_WQ, "s6", 640 * 8192 - 31 * 256)
    e(f"s_lshl_b32 s6, s{S_HEAD}, 7")
    srd(e, S_W1, S_W1, "s6", 640 * 3456 - 26 * 128)
    e(f"s_cmp_lt_u32 s{S_HEAD}, 27")
    e(f"s_cselect_b32 s{S_W1+2}, s{S_W1+2}, 0")
    e(f"s_mul_i32 s6, s{S_W}, {16*3456}")
    e("v_mul_u32_u24 v26, 3456, v30")
    e("v_add_u32 v26, s6, v26")
    e("v_and_b32 v27, 2, v30")
    e("v_xor_b32 v27, v27, v31")
    e(f"v_lshl_add_u32 v{V_W1DMA}, v27, 4, v26")
    e(f"v_xor_b32 v27, 64, v{V_W1DMA}")
    e(f"v_add_u32 v{V_W1DMA+1}, {8*3456-1024}, v27")
    e(f"v_lshlrev_b32 v{V_L16}, 4, v0")
    e("v_bfe_u32 v30, v0, 2, 3")
    e("v_and_b32 v31, 3, v0")
    e("v_bfe_u32 v26, v0, 2, 2")
    e("v_lshl_add_u32 v26, v29, 3, v26")
    e("v_lshlrev_b32 v27, 8, v26")
    e("v_lshl_add_u32 v27, v31, 3, v27")
    e(f"s_lshl_b32 s6, s{S_W}, 1")
    e("v_xor_b32 v12, s6, v30")
    e(f"v_lshl_add_u32 v{V_WQRD}, v12, 5, v27")
    for nb in range(1, 8):
        e(f"v_xor_b32 v{V_WQRD+nb}, {nb*32}, v{V_WQRD}")
    e("v_lshlrev_b32 v27, 7, v26")
    e("v_lshl_add_u32 v27, v31, 3, v27")
    e(f"v_add_u32 v27, {LDS_W1}, v27")
    e("v_lshrrev_b32 v12, 1, v30")
    e(f"s_and_b32 s6, s{S_W}, 2")
    e("v_xor_b32 v12, s6, v12")
    e(f"v_lshl_add_u32 v{V_W1RD}, v12, 5, v27")
    for nb in range(1, 4):
        e(f"v_xor_b32 v{V_W1RD+nb}, {nb*32}, v{V_W1RD}")
    e("v_lshrrev_b32 v12, 1, v28")
    e("v_xor_b32 v12, v12, v29")
    e("v_lshlrev_b32 v12, 4, v12")
    e("v_lshl_add_u32 v12, v28, 7, v12")
    e(f"s_add_u32 s6, s{S_W8K}, {X_SLOT[0]}")
    e(f"v_add_u32 v{V_XRD}, s6, v12")
    e(f"v_xor_b32 v{V_XRD+1}, 64, v{V_XRD}")
    e("v_and_b32 v26, 1, v0")
    e("v_cmp_eq_u32 vcc, 0, v26")
    e("v_mov_b32 v27, 0x44444444")
    e("v_mov_b32 v12, 0xeeeeeeee")
    e(f"v_cndmask_b32 v{V_IDX}, v12, v27, vcc")
    e("v_and_b32 v26, 2, v0")
    e("v_cmp_eq_u32 vcc, 0, v26")
    e("v_mov_b32 v27, 0x3f803f80")
    e("v_mov_b32 v12, 0")
    for r in range(4):
        e(f"v_cndmask_b32 v{V_ONES+r}, v12, v27, vcc")
    for r in range(16):
        e(f"v_accvgpr_write_b32 a{A_CS+r}, 0")
    e(f"s_lshl_b32 s6, s{S_QT}, 5")
    e(f"s_add_u32 s6, s6, s{S_HEAD}")
    e("s_lshl_b32 s6, s6, 2")
    e(f"s_add_u32 s6, s6, s{S_W}")
    e("s_lshl_b32 s6, s6, 1")
    e("v_lshrrev_b32 v26, 5, v0")
    e("v_add_u32 v26, s6, v26")
    e("v_mul_u32_u24 v27, 1280, v26")
    e("v_and_b32 v12, 31, v0")
    e("v_lshl_add_u32 v13, v12, 4, v27")
    e("v_lshl_add_u32 v14, v12, 3, v27")
    e("v_cmp_eq_u32 vcc, 0, v12")
    e("v_lshlrev_b32 v26, 3, v26")
    e(f"v_mov_b32 v19, {OOB}")
    e("v_cndmask_b32 v19, v19, v26, vcc")
    e("v_cmp_eq_u32 vcc, 0, v62")
    e(f"v_mov_b32 v{V_SIG}, {OOB}")
    e(f"v_mov_b32 v{V_ONE}, 0")
    e(f"v_cndmask_b32 v{V_SIG}, v{V_SIG}, v0, vcc")
    for x in w_dma(0):
        e.safe(x)
    late = Asm()
    late_setup(late)
    for x in late.lines:
        e.safe(x)
    mem = [f"buffer_load_dwordx4 v[2:5], v13, {sr(S_X)}, 0 offen ; @SROW",
           f"buffer_load_dwordx4 v[6:9], v13, {sr(S_X)}, 0 offen offset:512 ; @SROW",
           f"buffer_load_dwordx2 v[10:11], v14, {sr(S_X)}, 0 offen offset:1024 ; @SROW"]
    mem = x_dma(1) + w_dma(1) + mem
    for x in mem[:OPT.get("nearly", 10)]:
        e.safe(x)
    return mem[OPT.get("nearly", 10):]
    for x in mem:
        e.safe(x)


def late_setup(e):
    e(f"s_lshl_b32 s6, s{S_HEAD}, 19")
    srd(e, S_K, S_K, "s6", 524288)
    srd(e, S_V, S_V, "s6", 524288)
    e(f"s_mul_i32 s6, s5, {ACT_RG}")
    e(f"s_add_u32 s6, s6, {WS_ACT}")
    e(f"s_lshl_b32 s7, s{S_HEAD}, 14")
    e("s_add_u32 s7, s7, s6")
    srd(e, S_ACT, S_WS, "s7", 16384)
    e(f"s_lshl_b32 s7, s{S_HEAD}, 13")
    e(f"s_add_u32 s7, s7, {64*8192}")
    e("s_add_u32 s7, s7, s6")
    srd(e, S_ACTH, S_WS, "s7", 8192)
    e(f"s_cmp_lt_u32 s{S_HEAD}, 27")
    e(f"s_cselect_b32 s{S_ACTH+2}, s{S_ACTH+2}, 0")
    srd(e, S_DBG, S_DBG, None, 256)
    srd(e, S_OUT, S_OUT, None, 2621440)
    e("s_lshr_b32 s4, s2, 3")
    if OPT.get("map", 1) == 0:
        e(f"s_mov_b32 s5, s{S_HEAD}")
        e(f"s_mov_b32 s6, s{S_QT}")
    else:
        e("s_lshr_b32 s5, s3, 1")
        e("s_lshl_b32 s5, s5, 3")
        e("s_and_b32 s6, s4, 7")
        e("s_add_u32 s5, s5, s6")
        e("s_and_b32 s6, s3, 1")
        e("s_lshl_b32 s6, s6, 2")
        e("s_lshr_b32 s7, s4, 3")
        e("s_add_u32 s6, s6, s7")
    e(f"s_mul_i32 s7, s5, {ACT_RG}")
    e(f"s_add_u32 s7, s7, {WS_ACT}")
    srd(e, S_TA, S_WS, "s7", ACT_RG)
    e("s_mul_i32 s7, s6, 10240")
    e(f"s_add_u32 s7, s7, {WS_WP}")
    srd(e, S_TW, S_WS, "s7", (NPAIR - 1) * WP_PAIR + 10240)
    e(f"s_mul_i32 s{S_XO}, s5, 81920")
    e("s_mul_i32 s7, s6, 160")
    e(f"s_add_u32 s{S_XO}, s{S_XO}, s7")
    e("s_lshr_b32 s7, s5, 2")
    e("s_lshl_b32 s7, s7, 8")
    e(f"s_add_u32 s{S_POLLO}, s7, {MISC_CNTO}")
    e("s_sub_u32 s6, s2, 128")
    e("s_cmp_lt_u32 s2, 128")
    e(f"s_cselect_b64 {sr(S_R0,2)}, {sr(S_R0,2)}, {sr(S_R1,2)}")
    e("s_cselect_b32 s6, s2, s6")
    e("s_mul_i32 s6, s6, 40960")
    srd(e, S_R0, S_R0, "s6", 40960)
    e("s_lshr_b32 s6, s2, 1")
    e(f"s_mul_i32 s6, s6, {WP_PAIR}")
    e(f"s_add_u32 s6, s6, {WS_WP}")
    srd(e, S_WP, S_WS, "s6", WP_PAIR)
    e(f"s_cmp_lt_u32 s2, {2*NPAIR}")
    e(f"s_cselect_b32 s{S_R0+2}, s{S_R0+2}, 0")
    e(f"s_cselect_b32 s{S_WP+2}, s{S_WP+2}, 0")
    e("s_and_b32 s6, s2, 1")
    e("s_lshl_b32 s6, s6, 10")
    e(f"s_add_u32 s{S_RDST}, s6, s{S_W4K}")
    e(f"s_mov_b32 s{S_RSRC}, 0")
    e(f"s_mov_b32 s{S_RSRC2}, 4096")
    e(f"s_add_u32 s{S_M0R}, s{S_W2K}, {LDS_W1}")
    srd(e, S_WS, S_WS, WS_MISC if WS_MISC else None, MISC_SIZE)
    e(f"s_lshl_b32 s{S_SIGS}, s{S_QT}, 5")
    e(f"s_lshl_b32 s7, s{S_QT}, 8")
    e(f"s_add_u32 s{S_SIGA}, s7, {MISC_CNTA}")
    e(f"s_add_u32 s{S_SIGO}, s7, {MISC_CNTO}")
    for i in range(4):
        e(f"s_add_u32 s{S_M0K+i}, s{S_W4K}, {LDS_K + i*16384}")
        e(f"s_add_u32 s{S_M0V+i}, s{S_W4K}, {LDS_V + i*16384}")
    e(f"s_mov_b32 s{S_RETRY}, 0")
    e(f"s_mul_i32 s6, s{S_W}, 7")
    e("s_add_u32 s6, s6, 64")
    e(f"s_lshl_b32 s{S_GA}, s6, 13")
    e(f"s_mul_i32 s{S_GW}, s6, {WP_PAIR}")
    e(f"s_lshl_b32 s{S_SA}, s{S_W}, 17")
    e(f"s_mul_i32 s{S_SW}, s{S_W}, {16*WP_PAIR}")
    e(f"s_cmp_eq_u32 s{S_HEAD}, 0")
    e(f"s_cselect_b32 s6, s{S_SIGA}, {OOB}")
    e(f"s_cselect_b32 s7, s{S_SIGO}, {OOB}")
    if OPT.get("pf", 1):
        e("s_getpc_b64 s[48:49]")
        e("M_pc:")
        e("s_mov_b32 s50, M_exit-M_pc")
        e(f"s_mov_b32 s51, {SRD3}")
        e("v_lshlrev_b32 v62, 7, v62")


def early_mem():
    out = [f"buffer_store_dword v{V_ONE}, v{V_SIG}, {sr(S_WS)}, s6 offen sc1",
           f"buffer_store_dword v{V_ONE}, v{V_SIG}, {sr(S_WS)}, s7 offen sc1"]
    if OPT.get("pf", 1):
        out += ["buffer_load_dword v63, v62, s[48:51], 0 offen ; nocheck", "s_mov_b32 s4, 32768",
                "buffer_load_dword v63, v62, s[48:51], s4 offen ; nocheck"]
    return out + [f"v_mov_b32 v{V_ONE}, 1"]


def stats_stream():
    s = ["WAITVM SROW"]

    def unpack(i, dst):
        return f"v_lshlrev_b32 v{dst}, 16, v{2+i//2}" if i % 2 == 0 else f"v_and_b32 v{dst}, 0xffff0000, v{2+i//2}"

    def reduce32():
        out = ["v_add_f32 v12, v12, v13"]
        for rot in (8, 4, 2, 1):
            out.append(f"v_add_f32_dpp v12, v12, v12 row_ror:{rot} row_mask:0xf bank_mask:0xf")
        out += ["v_mov_b32 v13, v12", "v_permlane16_swap_b32 v12, v13", "v_add_f32 v12, v12, v13",
                f"v_mul_f32 v12, {fbits(1.0/640)}, v12"]
        return out

    s += [unpack(0, 12), unpack(1, 13)]
    for i in range(2, 20, 2):
        s += [unpack(i, 14), unpack(i + 1, 15), "v_add_f32 v12, v12, v14", "v_add_f32 v13, v13, v15"]
    s += reduce32() + ["v_mov_b32 v16, v12"]
    for i in range(0, 20, 2):
        s += [unpack(i, 14), unpack(i + 1, 15), "v_sub_f32 v14, v14, v16", "v_sub_f32 v15, v15, v16"]
        op = "v_mul_f32" if i == 0 else "v_fmac_f32"
        s += [f"{op} v12, v14, v14", f"{op} v13, v15, v15"]
    s += reduce32()
    s += ["v_cvt_pk_bf16_f32 v13, v12, v16", "v_and_b32 v16, 0xffff0000, v13", "v_lshlrev_b32 v12, 16, v13",
          "v_xor_b32 v16, 0x80000000, v16", f"v_add_f32 v12, {fbits(1e-5)}, v12", "v_cvt_pk_bf16_f32 v12, v12, v12",
          "v_lshlrev_b32 v12, 16, v12", "v_sqrt_f32 v12, v12", "v_cvt_pk_bf16_f32 v12, v12, v12",
          "v_lshlrev_b32 v12, 16, v12", "v_rcp_f32 v17, v12", "s_nop 0",
          f"buffer_store_dwordx2 v[16:17], v19, {sr(S_WS)}, 0 offen sc1 ; @SST"]
    return s


def kv_addr_stream():
    s = [f"s_lshl_b32 s5, s{S_W}, 2", "v_xor_b32 v26, v28, v29", "v_xor_b32 v27, s5, v26", "v_lshlrev_b32 v27, 4, v27",
         f"v_lshl_add_u32 v{V_KRD}, v28, 8, v27"]
    s += [f"v_xor_b32 v{V_KRD+ks}, {64*ks}, v{V_KRD}" for ks in range(1, 4)]
    s += ["v_lshlrev_b32 v27, 8, v29", f"v_add_u32 v27, s{S_W4K}, v27", f"v_lshl_add_u32 v{V_KDMA}, v26, 4, v27"]
    s += [f"v_xor_b32 v{V_KDMA+n}, {64*n}, v{V_KDMA}" for n in range(1, 4)]
    s += ["v_lshlrev_b32 v26, 1, v29", "v_xor_b32 v26, v26, v28", f"v_lshl_add_u32 v{V_VDMA}, v26, 4, v27",
          f"v_xor_b32 v{V_VDMA+1}, 128, v{V_VDMA}"]
    s += ["v_lshrrev_b32 v27, 2, v0", "v_lshlrev_b32 v27, 8, v27", "v_lshl_add_u32 v27, v31, 3, v27",
          f"v_add_u32 v27, {LDS_V}, v27", f"v_lshl_add_u32 v{V_VRD}, v30, 5, v27"]
    s += [f"v_xor_b32 v{V_VRD+db}, {32*db}, v{V_VRD}" for db in range(1, 8)]
    return s


def repack_addr(e):
    e(f"s_mul_i32 s5, s{S_W}, {8*1280}")
    e("v_lshrrev_b32 v56, 4, v0")
    e("v_mul_u32_u24 v57, 1280, v56")
    e("v_add_u32 v57, s5, v57")
    e("v_lshlrev_b32 v56, 6, v56")
    e(f"v_and_b32 v58, 255, v{V_L16}")
    e("v_xor_b32 v56, v56, v58")
    e(f"v_add_u32 v{V_RDMA}, v56, v57")
    e("v_lshrrev_b32 v56, 2, v0")
    e("v_and_b32 v57, 3, v56")
    e(f"v_xor_b32 v57, s{S_W}, v57")
    e("v_lshlrev_b32 v57, 6, v57")
    e("v_lshl_add_u32 v57, v56, 8, v57")
    e("v_and_b32 v56, 3, v0")
    e("v_lshl_add_u32 v57, v56, 3, v57")
    e(f"v_add_u32 v{V_RRD}, {LDS_W1}, v57")


CS_SITES = {0: 0, 1: 1, 8: 2, 9: 3}


XR_AT, SIG_AT = 6, 3


def phase1(e, carry):
    half = ["lo"] * 8

    def w_reads(c, nb):
        out = []
        if nb < 8:
            base = WQ_SLOT[c % 4]
            h = "hi" if base >= 65536 else "lo"
            if half[nb] != h:
                out.append(f"v_xor_b32 v{V_WQRD+nb}, 0x10000, v{V_WQRD+nb}")
                half[nb] = h
        for t in range(2):
            for v in range(2):
                d = ar(A_WF + ((nb % 4) * 2 + t) * 4 + 2 * v, 2)
                if nb < 8:
                    out.append(f"ds_read_b64_tr_b16 {d}, v{V_WQRD+nb} offset:{base%65536+t*8192+v*1024} ; @WR{c}_{nb}")
                else:
                    out.append(f"ds_read_b64_tr_b16 {d}, v{V_W1RD+nb-8} offset:{(c%4)*8192+t*4096+v*512} ; @WR{c}_{nb}")
        return out

    e("WAITVM W0")
    e("s_barrier")
    stamp(e)
    for x in x_read(0) + w_reads(0, 0) + w_reads(0, 1):
        e(x)
    e("WAITLG WR0_0")
    poll_s = f"buffer_load_dword v63, v62, {sr(S_DBG)}, 0 offen sc1"
    mem, alu, xr = carry + early_mem(), [], []
    for c in range(10):
        if c + 2 < 10:
            mem += x_dma(c + 2) + w_dma(c + 2)
        if c == 1:
            alu += stats_stream()
        if c == 5:
            alu += kv_addr_stream()
        if c == 8:
            mem += ["v_and_b32 v62, 7, v0", "v_lshlrev_b32 v62, 5, v62", poll_s + " ; @PS"]
            mem += kv_tile("V", 0) + kv_tile("V", 1)
        if c == 9:
            pre9 = ["WAITVM PS"] + poll_check("M_ps", poll_s, ["v_cmp_gt_u32 vcc, 32, v63"])
            pre9 += [f"s_lshl_b32 s5, s{S_QT}, 2", f"s_add_u32 s5, s5, s{S_W}", "s_lshl_b32 s5, s5, 9", "v_lshlrev_b32 v62, 3, v28"]
            pre9 += [f"buffer_load_dwordx2 {vr(V_ST+2*qb,2)}, v62, {sr(S_WS)}, s5 offen offset:{qb*128} sc1 ; @STL" for qb in range(4)]
            mem += pre9 + kv_tile("K", 1) + kv_tile("K", 2)
        for nb in range(12):
            fixed = {}
            n2 = nb + 2
            reads = w_reads(c, n2) if n2 < 12 else (w_reads(c + 1, n2 - 12) if c < 9 else [])
            pre = []
            if nb == XR_AT and c < 9:
                xr += [f"WAITVM X{c+1}"] + x_read(c + 1)
            if nb == 10 and c < 9:
                assert not xr, (c, xr)
                pre = [f"WAITVM W{c+1}" + (" SST" if c == SIG_AT else ""), "s_barrier"]
                if c >= 7:
                    pre = [f"WAITLG XR{c+1}"] + pre
                if c == SIG_AT:
                    assert not alu
                    mem.insert(0, f"buffer_atomic_add v{V_ONE}, v{V_SIG}, {sr(S_DBG)}, s{S_SIGS} offen")
                if c == 8:
                    mem += kv_tile("K", 0)
            if c == 9 and nb == 10:
                assert not alu and not any("@STL" in x for x in mem), alu
                alu += [f"s_lshl_b32 s5, s{S_W}, 7", f"s_add_u32 s5, s5, {LDS_CS}", "v_lshl_add_u32 v60, v28, 2, s5",
                        f"s_and_b32 s5, s{S_W}, 2", "s_lshl_b32 s5, s5, 6", f"s_add_u32 s5, s5, {LDS_CS+512}", "v_lshl_add_u32 v61, v28, 2, s5"]
                for k in range(4):
                    alu += [f"v_accvgpr_read_b32 v62, a{A_CS+4*k}", f"v_accvgpr_read_b32 v63, a{A_CS+4*k+1}",
                            f"v_add_f32 v{20+k}, v62, v63", f"ds_write_b32 v{60+k//2}, v{20+k} offset:{(k%2)*64}"]
            slot = 0
            if pre:
                fixed[0] = (pre, [])
                slot = 1
            extra = len(reads) - 4
            for i, x in enumerate(reads):
                k = slot + max(0, i - max(extra, 0))
                fixed.setdefault(k, ([], []))[0].append(x)
            nxt = (c, nb + 1) if nb < 11 else (c + 1, 0)
            mf = []
            for qb in range(4):
                for t in ((0, 1) if qb % 2 == 0 else (1, 0)):
                    acc = vr(o_reg(nb, qb), 4) if nb < 8 else vr(V_P + ((nb - 8) * 4 + qb) * 4, 4)
                    first = c == 0 and len(mf) % 2 == 0
                    mf.append(mfma(acc, ar(A_WF + ((nb % 4) * 2 + t) * 4, 4), ar(A_XF + (c % 2) * 32 + (qb * 2 + t) * 4, 4), "0" if first else acc))
            if nb in CS_SITES:
                mf.append(smfmac(ar(A_CS + 4 * CS_SITES[nb], 4), ar(A_WF + (nb % 4) * 8, 8)))
            if nxt[0] < 10:
                fixed.setdefault(len(mf) - 1, ([], []))[1].append(f"WAITLG WR{nxt[0]}_{nxt[1]}")
            nvm = sum(x.startswith("buffer_") for x in mem)
            interleave(e, mf, fixed, [xr, mem, alu], quota=-(-nvm // (12 - nb)) + (1 if alu else 0))
        assert not mem or c in (0, 8), (c, mem)
        if OPT.get("p1st") and c < 9:
            stamp(e)
    drain(e, [mem, alu])
    stamp(e)
    e("s_waitcnt lgkmcnt(0)")
    e("s_barrier")


def proj_epilogue(e):
    CSR, T = 40, 20
    e(f"s_lshl_b32 s5, s{S_W}, 7")
    e(f"s_add_u32 s5, s5, {LDS_CS}")
    e("v_lshl_add_u32 v60, v29, 4, s5")
    e(f"s_and_b32 s5, s{S_W}, 2")
    e("s_lshl_b32 s6, s5, 6")
    e(f"s_add_u32 s6, s6, {LDS_CS+512}")
    e("v_lshl_add_u32 v61, v29, 4, s6")
    e("s_lshl_b32 s5, s5, 9")
    e(f"v_xor_b32 v30, s5, v{V_L16}")
    e("v_xor_b32 v31, 1024, v30")

    def cs_read(g):
        out = []
        src = 60 if g < 4 else 61
        k = g if g < 4 else g - 4
        if k:
            out.append(f"v_xor_b32 v{src}, {128*(k^(k-1))}, v{src}")
        for u in range(2):
            out.append(f"ds_read_b128 {vr(CSR+u*4,4)}, v{src} offset:{u*64} ; @CS{g}")
        return out

    for x in cs_read(0):
        e(x)
    e("WAITVM STL")
    e(f"s_mov_b32 s6, {fbits(LOG2E * 128 ** -0.5)}")
    for qb in range(4):
        e(f"v_mul_f32 v{48+qb}, s6, v{V_ST+2*qb+1}")

    def center(g, regs):
        e(f"WAITLG CS{g}")
        for qb in range(4):
            for u in range(2):
                a = regs(u, qb)
                for p in range(2):
                    e(f"v_pk_fma_f32 {vr(a+2*p,2)}, {vr(CSR+u*4+2*p,2)}, {vr(V_ST+2*qb,2)}, {vr(a+2*p,2)} op_sel_hi:[1,0,1]")
        if g < 5:
            for x in cs_read(g + 1):
                e(x)

    for j in range(4):
        center(j, lambda u, qb: o_reg(2 * j + u, qb))
        for qb in range(4):
            t = T + (qb % 2) * 4
            sel = "op_sel_hi:[1,0]" if qb % 2 == 0 else "op_sel:[0,1] op_sel_hi:[1,1]"
            for u in range(2):
                a = o_reg(2 * j + u, qb)
                for p in range(2):
                    e(f"v_pk_mul_f32 {vr(a+2*p,2)}, {vr(a+2*p,2)}, {vr(48+(qb//2)*2,2)} {sel}")
            for u in range(2):
                a = o_reg(2 * j + u, qb)
                e(f"v_cvt_pk_bf16_f32 v{t+2*u}, v{a}, v{a+1}")
                e(f"v_cvt_pk_bf16_f32 v{t+2*u+1}, v{a+2}, v{a+3}")
            for swap in ("v_permlane32_swap_b32", "v_permlane16_swap_b32"):
                e.safe(f"{swap} v{t}, v{t+2}")
                e.safe(f"{swap} v{t+1}, v{t+3}")
            for r in range(4):
                e(f"v_accvgpr_write_b32 a{A_Q+(qb*4+j)*4+r}, v{t+r}")
    e(f"s_mov_b32 s6, {fbits(-LOG2E)}")
    e("s_mov_b32 s7, s6")
    e("s_mov_b32 s5, 4096")
    for jj in range(2):
        hreg = lambda u, qb: V_P + ((2 * jj + u) * 4 + qb) * 4
        center(4 + jj, hreg)
        for qb in range(4):
            t = V_O + (qb % 2) * 16
            for u in range(2):
                for p in range(2):
                    a = hreg(u, qb) + 2 * p
                    e(f"v_pk_mul_f32 {vr(a,2)}, {vr(a,2)}, {vr(V_ST+2*qb,2)} op_sel:[0,1] op_sel_hi:[1,1]")
            for u in range(2):
                for p in range(2):
                    e(f"v_pk_mul_f32 {vr(t+4*u+2*p,2)}, {vr(hreg(u,qb)+2*p,2)}, s[6:7]")
            for r in range(8):
                e(f"v_exp_f32 v{t+r}, v{t+r}")
            for p in range(4):
                e(f"v_pk_add_f32 {vr(t+2*p,2)}, {vr(t+2*p,2)}, 1.0 op_sel_hi:[1,0]")
            for r in range(8):
                e(f"v_rcp_f32 v{t+r}, v{t+r}")
            for u in range(2):
                for p in range(2):
                    e(f"v_pk_mul_f32 {vr(t+4*u+2*p,2)}, {vr(t+4*u+2*p,2)}, {vr(hreg(u,qb)+2*p,2)}")
            for p in range(4):
                e(f"v_cvt_pk_bf16_f32 v{t+8+p}, v{t+2*p}, v{t+2*p+1}")
            e(f"buffer_store_dwordx4 {vr(t+8,4)}, v{30+jj}, {sr(S_ACTH)}, {'s5' if qb >= 2 else '0'} offen offset:{(qb%2)*2048} sc1 ; @HST")


V_TA, V_TW1, V_XO, V_RED, V_X = 40, 44, 46, 47, 2
ACC = {"G": 64, "S": 144}
FREE = list(range(176, 256, 4)) + list(range(64, 128, 4))
TBUF = [FREE[:18], FREE[18:36], list(range(0, 64, 4)) + [128, 132]]
TSTEPS = ["G"] * 7 + ["S"] * 16


def tail_addr_stream():
    s = [f"v_add_u32 v{V_TW1}, 4096, v{V_L16}", f"v_add_u32 v{V_TW1+1}, 8192, v{V_L16}",
         f"v_add_u32 v{V_TA}, s{S_W2K}, v{V_L16}"]
    s += [f"v_xor_b32 v{V_TA+k}, {2048*k}, v{V_TA}" for k in range(1, 4)]
    return s


def tail_loads(s):
    b = TBUF[s % 3]
    sa, sw = (S_GA, S_GW) if TSTEPS[s] == "G" else (S_SA, S_SW)
    vw = [V_L16, V_TW1, V_TW1 + 1]
    wl = [f"buffer_load_dwordx4 {ar(b[8+f],4)}, v{vw[f//4]}, {sr(S_TW)}, s{sw} offen offset:{(f%4)*1024} sc1 ; @T{s}" for f in range(10)]
    al = [f"buffer_load_dwordx4 {ar(b[f],4)}, v{V_TA+f//2}, {sr(S_TA)}, s{sa} offen offset:{(f%2)*1024} sc1 ; @T{s}" for f in range(8)]
    return wl[:2] + al + wl[2:] + [f"s_add_u32 s{sa}, s{sa}, 8192", f"s_add_u32 s{sw}, s{sw}, {WP_PAIR}"]


def tail(e):
    e("v_and_b32 v12, 15, v0")
    e(f"s_mul_i32 s5, s{S_W}, {16*1280}")
    e("v_mul_u32_u24 v12, 1280, v12")
    e("v_lshrrev_b32 v13, 4, v0")
    e("v_lshl_add_u32 v12, v13, 3, v12")
    e(f"v_add_u32 v{V_XO}, s5, v12")
    for k in range(4):
        e(f"s_xor_b32 s5, s{S_W}, {k}")
        e("s_mul_i32 s5, s5, 30720")
        e(f"v_add_u32 v{V_RED+k}, s5, v{V_L16}")

    def flush(kind):
        return [f"ds_write_b128 v{V_RED+k}, {vr(ACC[kind]+(nb*4+k)*4,4)} offset:{((k-1)*5+nb)*1024 + (15360 if kind == 'S' else 0)}"
                for k in range(1, 4) for nb in range(5)]

    poll_o = f"buffer_load_dword v{V_PVAL}, off, {sr(S_WS)}, s{S_POLLO} sc1"
    n = len(TSTEPS)
    for s in range(n):
        b = TBUF[s % 3]
        if s == 1:
            e("WAITVM OST")
            e("s_barrier")
            e(f"buffer_atomic_add v{V_ONE}, v{V_SIG}, {sr(S_WS)}, s{S_SIGO} offen")
        elif s == 5:
            e("WAITVM PO")
            stamp(e)
            for x in poll_check("M_po", poll_o, [f"v_cmp_gt_u32 vcc, 32, v{V_PVAL}"]):
                e(x)
            stamp(e)
        else:
            e(f"WAITVM T{s}")
        mem = tail_loads(s + 2) if s + 2 < n else []
        if s == 3:
            mem.append(poll_o + " ; @PO")
        if s == 10:
            mem += [f"buffer_load_dwordx2 {vr(V_X+2*nb,2)}, v{V_XO}, {sr(S_X)}, s{S_XO} offen offset:{nb*32}" for nb in range(5)]
        alu = flush("G") if s == 8 else []
        first = s in (0, 7)
        mf = []
        for nb in range(5):
            for rb in range(4):
                for t in ((0, 1) if rb % 2 == 0 else (1, 0)):
                    acc = vr(ACC[TSTEPS[s]] + (nb * 4 + rb) * 4, 4)
                    mf.append(mfma(acc, ar(b[8 + nb * 2 + t], 4), ar(b[rb * 2 + t], 4), "0" if first and len(mf) % 2 == 0 else acc))
        interleave(e, mf, {}, [mem, alu])
        drain(e, [mem, alu])
    stamp(e)
    for x in flush("S"):
        e.safe(x)
    e("s_waitcnt lgkmcnt(0)")
    e("s_barrier")
    for kind in ("G", "S"):
        for k in range(1, 4):
            for nb in range(5):
                e(f"ds_read_b128 {vr(ACC[kind]+(nb*4+k)*4,4)}, v{V_RED} offset:{((k-1)*5+nb)*1024 + (15360 if kind == 'S' else 0)} ; @R{kind}{k}")
        for k in range(1, 4):
            e(f"WAITLG R{kind}{k}")
            for nb in range(5):
                a = ACC[kind] + nb * 16
                for p in range(2):
                    e(f"v_pk_add_f32 {vr(a+2*p,2)}, {vr(a+2*p,2)}, {vr(a+4*k+2*p,2)}")
    e(f"s_mov_b32 s6, {fbits(-LOG2E)}")
    e("s_mov_b32 s7, s6")
    for nb in range(5):
        g = ACC["G"] + nb * 16
        s = ACC["S"] + nb * 16
        t = g + 4
        for p in range(2):
            e(f"v_pk_mul_f32 {vr(t+2*p,2)}, {vr(g+2*p,2)}, s[6:7]")
        for r in range(4):
            e(f"v_exp_f32 v{t+r}, v{t+r}")
        for p in range(2):
            e(f"v_lshlrev_b32 v{t+4+2*p}, 16, v{V_X+2*nb+p}")
            e(f"v_and_b32 v{t+5+2*p}, 0xffff0000, v{V_X+2*nb+p}")
        for p in range(2):
            e(f"v_pk_add_f32 {vr(t+2*p,2)}, {vr(t+2*p,2)}, 1.0 op_sel_hi:[1,0]")
        for r in range(4):
            e(f"v_rcp_f32 v{t+r}, v{t+r}")
        for p in range(2):
            e(f"v_pk_mul_f32 {vr(s+2*p,2)}, {vr(s+2*p,2)}, {vr(g+2*p,2)}")
        for p in range(2):
            e(f"v_pk_fma_f32 {vr(t+2*p,2)}, {vr(t+2*p,2)}, {vr(s+2*p,2)}, {vr(t+4+2*p,2)}")
        for p in range(2):
            e(f"v_cvt_pk_bf16_f32 v{t+4+p}, v{t+2*p}, v{t+2*p+1}")
        e(f"buffer_store_dwordx2 {vr(t+4,2)}, v{V_XO}, {sr(S_OUT)}, s{S_XO} offen offset:{nb*32}")


def attention(e):
    m = V_M
    e("WAITVM K0")
    e("s_barrier")
    for kb in range(2):
        for ks in range(4):
            e(k_read(0, kb, ks))
    e(f"v_and_b32 v{V_POFF}, 7, v0")
    e(f"v_lshlrev_b32 v{V_POFF}, 8, v{V_POFF}")
    e(f"v_add_u32 v{V_POFF}, {MISC_CNTA}, v{V_POFF}")
    repack_addr(e)
    for kb in range(2):
        e(f"s_waitcnt lgkmcnt({4-4*kb})")
        for qb in range(4):
            d = vr(V_P + (qb * 2 + kb) * 4, 4)
            for ks in range(4):
                e(mfma(d, ar(A_KF + (kb * 4 + ks) * 4, 4), ar(A_Q + (qb * 4 + ks) * 4, 4), "0" if ks == 0 else d))
    for qb in range(4):
        b = V_P + qb * 8
        e(f"v_max3_f32 v{m+qb}, v{b}, v{b+1}, v{b+2}")
        e(f"v_max3_f32 v{m+qb}, v{m+qb}, v{b+3}, v{b+4}")
        e(f"v_max3_f32 v{m+qb}, v{m+qb}, v{b+5}, v{b+6}")
        e(f"v_max_f32 v{m+qb}, v{m+qb}, v{b+7}")
    e("M_restart:")
    row_max_finish(e)
    for r in range(16):
        e(f"v_accvgpr_write_b32 a{A_L+r}, 0")
    e(f"s_mov_b32 s{S_OFF}, {3*16384}")
    e(f"s_mov_b32 s{S_CNT}, 8")
    attn_step(e, -1, qk=True, pv=False)
    stamp(e)
    e(".p2align 6")
    e("M_loop:")
    for j in range(3):
        attn_step(e, j)
    e(f"s_sub_u32 s{S_CNT}, s{S_CNT}, 1")
    e(f"s_cmp_eq_u32 s{S_CNT}, 0")
    e("s_cbranch_scc1 M_last")
    attn_step(e, 3)
    e("s_branch M_loop")
    e("M_last:")
    for x in poll_check("M_pa", POLL_A, [f"v_cmp_gt_u32 vcc, 32, v{V_PVAL}"]):
        e(x)
    extra = [tail_addr_stream() + tail_loads(0) + tail_loads(1)]
    attn_step(e, 3, qk=False, pv=True, extra=extra)
    drain(e, extra)
    stamp(e)

    T = 24
    e("s_waitcnt vmcnt(36)")
    for qb in range(4):
        e.safe(f"v_accvgpr_read_b32 v{T+2*qb}, a{A_L+qb*4}")
        e.safe(f"v_accvgpr_read_b32 v{T+2*qb+1}, a{A_L+qb*4+1}")
    for qb in range(4):
        e(f"v_add_f32 v{T+2*qb}, v{T+2*qb}, v{T+2*qb+1}")
    e(f"s_mov_b32 s6, {fbits(L_LIMIT)}")
    e("s_mov_b64 s[4:5], 0")
    for qb in range(4):
        e(f"v_cmp_nge_f32 vcc, s6, v{T+2*qb}")
        e("s_or_b64 s[4:5], s[4:5], vcc")
    for qb in range(4):
        e(f"v_rcp_f32 v{T+2*qb}, v{T+2*qb}")
    e("s_or_b32 s4, s4, s5")
    e(f"s_lshl_b32 s5, s{S_W}, 2")
    e(f"s_add_u32 s5, s5, {LDS_FLAG}")
    e("v_mov_b32 v56, s4")
    e("v_mov_b32 v57, s5")
    e("ds_write_b32 v57, v56")
    e("s_mov_b32 s6, 8192")
    for jp in range(2):
        for qb in range(4):
            for t in range(2):
                j = 2 * jp + t
                d = V_P + ((qb * 2 + t) % 4) * 4
                for u in range(2):
                    a = o_reg(2 * j + u, qb)
                    e(f"v_pk_mul_f32 {vr(a,2)}, {vr(a,2)}, {vr(T+2*qb,2)} op_sel_hi:[1,0]")
                    e(f"v_pk_mul_f32 {vr(a+2,2)}, {vr(a+2,2)}, {vr(T+2*qb,2)} op_sel_hi:[1,0]")
                for u in range(2):
                    a = o_reg(2 * j + u, qb)
                    e(f"v_cvt_pk_bf16_f32 v{d+2*u}, v{a}, v{a+1}")
                    e(f"v_cvt_pk_bf16_f32 v{d+2*u+1}, v{a+2}, v{a+3}")
                e(f"buffer_store_dwordx4 {vr(d,4)}, v{V_L16 if qb < 2 else V_TW1}, {sr(S_ACT)}, {'s6' if jp else '0'} offen offset:{(qb%2)*2048+t*1024} sc1 ; @OST")
    e("s_waitcnt lgkmcnt(0)")
    e("s_barrier")
    e(f"v_mov_b32 v57, {LDS_FLAG}")
    e("ds_read_b128 v[60:63], v57")
    e("s_waitcnt lgkmcnt(0)")
    e("v_or_b32 v60, v60, v61")
    e("v_or3_b32 v60, v60, v62, v63")
    e.safe("v_readfirstlane_b32 s4, v60")
    e(f"s_andn2_b32 s4, s4, s{S_RETRY}")
    e("s_cbranch_scc1 M_fallback")


def fallback(e):
    m = V_M
    e("M_fallback:")
    e(f"s_mov_b32 s{S_RETRY}, -1")
    e(f"s_mov_b32 s{S_SIGA}, {OOB}")
    e(f"s_sub_u32 s{S_GA}, s{S_GA}, {2*8192}")
    e(f"s_sub_u32 s{S_GW}, s{S_GW}, {2*WP_PAIR}")
    for qb in range(4):
        e(f"v_mov_b32 v{m+qb}, 0xff800000")
    e(f"s_mov_b32 s{S_OFF}, 0")
    e("M_maxloop:")
    e("s_waitcnt vmcnt(0)")
    e("s_barrier")
    e(f"s_mov_b32 m0, s{S_M0K}")
    e("s_nop 0")
    for n in range(4):
        e(k_dma(n))
    e("s_waitcnt vmcnt(0)")
    e("s_barrier")
    for kb in range(4):
        for ks in range(4):
            e(k_read(0, kb, ks))
        e("s_waitcnt lgkmcnt(0)")
        for qb in range(4):
            d = vr(V_P + qb * 4, 4)
            for ks in range(4):
                e(mfma(d, ar(A_KF + (kb * 4 + ks) * 4, 4), ar(A_Q + (qb * 4 + ks) * 4, 4), "0" if ks == 0 else d))
        e("s_nop 7")
        for qb in range(4):
            b = V_P + qb * 4
            e(f"v_max3_f32 v{m+qb}, v{m+qb}, v{b}, v{b+1}")
            e(f"v_max3_f32 v{m+qb}, v{m+qb}, v{b+2}, v{b+3}")
    e(f"s_add_u32 s{S_OFF}, s{S_OFF}, 16384")
    e(f"s_cmp_lt_u32 s{S_OFF}, 524288")
    e("s_cbranch_scc1 M_maxloop")
    e("s_barrier")
    for w, t in (("K", 0), ("K", 1), ("K", 2), ("V", 0), ("V", 1)):
        for x in kv_tile(w, t):
            e(x)
    e("s_waitcnt vmcnt(0)")
    e("s_barrier")
    for kb in range(2):
        for ks in range(4):
            e(k_read(0, kb, ks))
    e("s_waitcnt lgkmcnt(0)")
    e("s_branch M_restart")


def build():
    e = Asm()
    for l in open(f"cdna_kernels/{NAME}.s.ref").read().split("\n"):
        if not l.startswith(";"):
            break
        if "@launch" not in l:
            e(l)
    e("; @launch grid=(256,1,1) block=(256,1,1) lds=163840")
    e('.amdgcn_target "amdgcn-amd-amdhsa--gfx950"')
    e(".text")
    e(f".globl {KERNEL}")
    e(".p2align 8")
    e(f".type {KERNEL},@function")
    e(f"{KERNEL}:")
    phase1(e, setup(e))
    proj_epilogue(e)
    stamp(e)
    attention(e)
    stamp(e)
    tail(e)
    stamp_flush(e)
    e("M_exit:")
    e("s_endpgm")
    fallback(e)
    emit_spins(e)
    e('.section .rodata,"a"')
    e(".p2align 6")
    e(f".amdhsa_kernel {KERNEL}")
    for d in ("next_free_vgpr 512", "next_free_sgpr 102", "accum_offset 256", "group_segment_fixed_size 0", "kernarg_size 88",
              "user_sgpr_count 2", "user_sgpr_kernarg_segment_ptr 1", "system_sgpr_workgroup_id_x 1"):
        e(f".amdhsa_{d}")
    e(".end_amdhsa_kernel")
    e.resolve()
    errs = []
    errs += check_trace(e.trace(KERNEL, {"M_last": [False, False, True]}), "fast")
    errs += check_trace(e.trace(KERNEL, {"M_last": [False, True, False, True], "M_fallback": [True, False], "M_maxloop": [True, False],
                                         "M_ps_spin": [True], "M_pa_spin": [True, True], "M_po_spin": [True],
                                         "M_ps_back": [True], "M_pa_back": [True, True], "M_po_back": [True]}), "slow")
    return e.text(), errs


if __name__ == "__main__":
    if "--stamps" in sys.argv:
        sys.argv.remove("--stamps")
        STAMPS = True
    for a in [x for x in sys.argv if "=" in x]:
        sys.argv.remove(a)
        k, v = a.split("=")
        OPT[k] = int(v)
    text, errs = build()
    for x in errs:
        print(x)
    out = sys.argv[1] if len(sys.argv) > 1 else f"cdna_kernels/{NAME}.s"
    open(out, "w").write(text)
    print("wrote", out, len(text), "bytes;", len(errs), "check findings; stamps", nstamp[0])
```

```python
import sys, struct
from asm import Asm, check_trace

NAME = "recurrent_scan__gqa_block_cached__dense_activation_silu__prompt"
KERNEL = NAME + "_kernel"
WS_MISC = 0
MISC_CNTA, MISC_CNTO, MISC_SIZE = 16384, 20480, 24576
WS_ACT = 4 << 20
WS_WP = 32 << 20
WS_STAMP = 64 << 20
NPAIR = 91
ACT_RG = NPAIR * 8192
WP_PAIR = 81920
SRD3 = "0x00020000"
OOB = 0x1000000
LOG2E = 1.4426950408889634
L_LIMIT = 2.0 ** 100
STAMPS = False
OPT = {}

S_X, S_WQ, S_W1, S_K, S_V, S_ACT, S_ACTH, S_DBG, S_WS, S_R0, S_R1, S_WP, S_TA, S_TW, S_OUT = range(8, 68, 4)
S_M0K, S_M0V = 68, 72
S_W, S_HEAD, S_QT, S_W4K, S_OFF, S_CNT, S_RETRY = range(76, 83)
S_RSRC, S_RSRC2, S_RDST, S_M0R = 83, 84, 85, 86
S_GA, S_GW, S_SA, S_SW, S_XO = range(87, 92)
S_SIGS, S_SIGA, S_SIGO, S_POLLO = 92, 93, 94, 95
S_W2K, S_W8K = 100, 101
V_L16 = 1
V_KRD, V_VRD, V_KDMA, V_VDMA = 2, 6, 14, 18
V_STAMP, V_IDX, V_ONES, V_NM, V_P, V_O = 34, 35, 36, 40, 64, 128
SBUF = [56, 60, 24, 28]
V_POFF, V_PVAL, V_ONE, V_SIG = 20, 21, 32, 33
V_XDMA, V_XRD = 20, 24
V_RDMA, V_RRD = 22, 23
V_WQRD, V_W1RD, V_WQDMA, V_W1DMA, V_ST = 40, 48, 52, 56, 52
A_Q, A_KF, A_VF, A_L = 0, 64, 128, 160
A_XF, A_WF, A_CS, A_RP = 64, 128, 160, 176
LDS_K, LDS_V, LDS_W1 = 0, 65536, 131072
LDS_CS = LDS_W1 + 3 * 8192
LDS_FLAG = LDS_W1 + 2 * 8192
WQ_SLOT = [LDS_V + 3 * 16384, LDS_V + 2 * 16384, LDS_K + 2 * 16384, LDS_K + 3 * 16384]
X_SLOT = [LDS_V, LDS_K]
LK = LV = 5


def fbits(x):
    return "0x%08x" % struct.unpack("<I", struct.pack("<f", x))[0]


def vr(b, n=1):
    return f"v{b}" if n == 1 else f"v[{b}:{b+n-1}]"


def ar(b, n=1):
    return f"a{b}" if n == 1 else f"a[{b}:{b+n-1}]"


def sr(b, n=4):
    return f"s[{b}:{b+n-1}]"


def srd(e, d, src, off, size):
    if off is not None:
        e(f"s_add_u32 s{d}, s{src}, {off}")
        e(f"s_addc_u32 s{d+1}, s{src+1}, 0")
    elif src != d:
        e(f"s_mov_b32 s{d}, s{src}")
        e(f"s_mov_b32 s{d+1}, s{src+1}")
    e(f"s_mov_b32 s{d+2}, {size}")
    e(f"s_mov_b32 s{d+3}, {SRD3}")


def mfma(d, a, b, c):
    return f"v_mfma_f32_16x16x32_bf16 {d}, {a}, {b}, {c}"


def smfmac(d, b):
    return f"v_smfmac_f32_16x16x64_bf16 {d}, {vr(V_ONES,4)}, {b}, v{V_IDX}"


nstamp = [0]


def stamp(e):
    if STAMPS:
        i = nstamp[0]
        nstamp[0] += 1
        e("s_memrealtime s[96:97]")
        e("s_memtime s[98:99]")
        e("s_waitcnt lgkmcnt(0)")
        e(f"v_writelane_b32 v{V_STAMP}, s96, {2*i}")
        e(f"v_writelane_b32 v{V_STAMP}, s98, {2*i+1}")


def stamp_flush(e):
    if not STAMPS:
        return
    e("s_waitcnt vmcnt(0) lgkmcnt(0)")
    stamp(e)
    srd(e, 8, S_WS, WS_STAMP - WS_MISC, 262144)
    e("s_lshl_b32 s12, s2, 2")
    e(f"s_add_u32 s12, s12, s{S_W}")
    e("s_lshl_b32 s12, s12, 8")
    e(f"v_lshrrev_b32 v2, 2, v{V_L16}")
    e(f"buffer_store_dword v{V_STAMP}, v2, s[8:11], s12 offen")
    if "ea" in OPT:
        k = OPT.get("ecyc", 0)
        e(f"v_readlane_b32 s4, v{V_STAMP}, {2*OPT['ea']+k}")
        e(f"v_readlane_b32 s5, v{V_STAMP}, {2*OPT['eb']+k}")
        e("s_nop 3")
        e("s_sub_u32 s5, s5, s4")
        if k:
            e("s_mul_i32 s5, s5, 3277")
            e("s_lshr_b32 s5, s5, 16")
        e("s_add_u32 s5, s5, s96")
        e("M_echo:")
        e("s_memrealtime s[6:7]")
        e("s_waitcnt lgkmcnt(0)")
        e("s_sub_u32 s4, s6, s5")
        e("s_cmp_lt_i32 s4, 0")
        e("s_cbranch_scc1 M_echo")


def interleave(e, mf, fixed, streams, cap=2, quota=99):
    for i, m in enumerate(mf):
        e.safe(m)
        used = 0
        pre, post = fixed.get(i, ([], []))
        for x in pre:
            e.safe(x)
            used += 1
        room = cap - len(post)
        progress = True
        while used < room and progress:
            progress = False
            for s in streams:
                if not s:
                    continue
                vm = s[0].startswith("buffer_")
                cost = 2 if vm or s[0].startswith(("v_exp", "v_rcp", "v_sqrt")) else 1
                if used + cost > room or (vm and quota == 0) or not e.hazard_free(s[0]):
                    continue
                e(s.pop(0))
                used += cost
                quota -= vm
                progress = True
                break
        for x in post:
            e.safe(x)


def drain(e, streams):
    for s in streams:
        while s:
            e.safe(s.pop(0))


def o_reg(db, qb):
    return V_O + (db * 4 + qb) * 4


def k_dma(n, tag=""):
    return f"buffer_load_dwordx4 v{V_KDMA+n}, {sr(S_K)}, s{S_OFF} offen offset:{n*1024} lds{tag}"


def v_dma(n, tag=""):
    return f"buffer_load_dwordx4 v{V_VDMA+(n&1)}, {sr(S_V)}, s{S_OFF} offen offset:{n*1024} lds{tag}"


def k_read(tile, kb, ks):
    return f"ds_read_b128 {ar(A_KF+(kb*4+ks)*4,4)}, v{V_KRD+ks} offset:{(tile%4)*16384+kb*4096}"


def v_read(tile, db, t, v):
    return f"ds_read_b64_tr_b16 {ar(A_VF+((db%4)*2+t)*4+2*v,2)}, v{V_VRD+db} offset:{(tile%4)*16384+t*8192+v*4096}"


def kv_tile(which, tile):
    tag = f" ; @{which}{tile}"
    out = [f"s_mov_b32 m0, s{(S_M0K if which == 'K' else S_M0V) + tile % 4}", f"s_mov_b32 s{S_OFF}, {tile*16384}"]
    return out + [(k_dma if which == "K" else v_dma)(n, tag) for n in range(4)]


spins = []


def poll_check(name, load, cond):
    spins.append((name, load, cond))
    return cond + [f"s_cbranch_vccnz {name}_spin\n{name}_back:"]


def emit_spins(e):
    for name, load, cond in spins:
        e(f"{name}_spin:")
        e("s_mov_b32 s3, 0x100000")
        e(f"{name}_loop:")
        e("s_sleep 2")
        e(load)
        e("s_waitcnt vmcnt(0)")
        for x in cond:
            e(x)
        e(f"s_cbranch_vccz {name}_back")
        e("s_sub_u32 s3, s3, 1")
        e("s_cmp_lg_u32 s3, 0")
        e(f"s_cbranch_scc1 {name}_loop")
        e(f"s_branch {name}_back")


POLL_A = f"buffer_load_dword v{V_PVAL}, v{V_POFF}, {sr(S_WS)}, 0 offen sc1"


def attn_step(e, j, qk=True, pv=True, extra=None):
    pw = V_P + ((j + 1) % 2) * 32
    pr = V_P + (j % 2) * 32

    def pdst(x):
        on, base = (qk, pw) if x >= 0 else (pv, pr)
        x %= 16
        return on, base + (x % 4) * 8 + (x // 4) * 2, SBUF[x % 4]

    for u in range(16):
        kb, qb = u // 4, u % 4
        s_cur = SBUF[u % 4]
        M = []
        if qk:
            for ks in range(4):
                c = vr(V_NM + qb * 4, 4) if ks == 0 else vr(s_cur, 4)
                M.append(mfma(vr(s_cur, 4), ar(A_KF + (kb * 4 + ks) * 4, 4), ar(A_Q + (qb * 4 + ks) * 4, 4), c))
        else:
            M += [None] * 4
        if pv:
            db = u // 2
            for h in range(2):
                q2 = (u % 2) * 2 + h
                for t in ((0, 1) if h == 0 else (1, 0)):
                    o = vr(o_reg(db, q2), 4)
                    M.append(mfma(o, ar(A_VF + ((db % 4) * 2 + t) * 4, 4), vr(pr + q2 * 8 + t * 4, 4), o))
        else:
            M += [None] * 4
        F = [[] for _ in range(8)]
        nreads = 0
        n = u + LK
        if qk:
            F[1].append(k_read(j + 1 + n // 16, (n % 16) // 4, n % 4))
            nreads += 1
        n = u + LV
        if (pv and n < 16) or (qk and n >= 16):
            F[3].append(v_read(j + n // 16, (n % 16) // 2, n % 2, 0))
            F[5].append(v_read(j + n // 16, (n % 16) // 2, n % 2, 1))
            nreads += 2
        on, p, sb = pdst(u - 1)
        if on:
            for r in range(4):
                F[2 * r].append(f"v_exp_f32 v{sb+r}, v{sb+r}")
            F[5].append(f"v_cvt_pk_bf16_f32 v{p}, v{sb}, v{sb+1}")
        on, p, sb = pdst(u - 2)
        if on:
            F[1].append(f"v_cvt_pk_bf16_f32 v{p+1}, v{sb+2}, v{sb+3}")
        post = []
        if qk:
            if u == 10:
                post += [f"s_waitcnt vmcnt({[10, 9, 11, 8][j % 4]})" if pv else "WAITVM K1", "s_barrier"]
            if u == 12:
                F[3].append(f"s_mov_b32 m0, s{S_M0K + j % 4}")
            if u in (12, 14):
                F[7].append(k_dma((u - 12) // 2))
            if pv:
                if u in (0, 2):
                    F[7].append(k_dma(2 + u // 2))
                if u == 2:
                    post.append(f"s_sub_u32 s{S_OFF}, s{S_OFF}, 16384")
                if u == 4:
                    F[3].append(f"s_mov_b32 m0, s{S_M0V + (j + 2) % 4}")
                if u in (4, 6, 8, 10):
                    F[7].append(v_dma((u - 4) // 2))
                if u == 11:
                    F[3].append(f"s_add_u32 s{S_OFF}, s{S_OFF}, 32768")
                if j % 4 == 0:
                    if u == 2:
                        post.append(f"s_mov_b32 m0, s{S_M0R}")
                    if u == 3:
                        F[3].append(f"buffer_load_dwordx4 v{V_RDMA}, {sr(S_R0)}, s{S_RSRC} offen lds")
                        F[7].append(f"buffer_load_dwordx4 v{V_RDMA}, {sr(S_R0)}, s{S_RSRC2} offen offset:1024 lds")
                    if u == 5:
                        F[3].append(f"s_add_u32 s{S_RSRC}, s{S_RSRC}, 256")
                    if u == 6:
                        F[3].append(f"s_add_u32 s{S_RSRC2}, s{S_RSRC2}, 256")
                        post += [f"s_cmp_gt_u32 s{S_CNT}, 4", f"s_cselect_b32 s{S_R0+2}, s{S_R0+2}, 0"]
                    if u == 14:
                        post += [f"s_cmp_eq_u32 s{S_CNT}, 3", f"s_cselect_b32 s5, s{S_SIGA}, {OOB}"]
                if j % 4 == 1:
                    if u == 6:
                        post.append(POLL_A)
                    if u == 14:
                        post.append(f"buffer_atomic_add v{V_ONE}, v{V_SIG}, {sr(S_WS)}, s5 offen")
                    if u in (13, 14, 15):
                        k = u - 13
                        F[3].append(f"ds_read_b64_tr_b16 {ar(A_RP+2*k,2)}, v{V_RRD} offset:{(k//2)*32+(k%2)*4096}")
                        nreads += 1
                if j % 4 == 2:
                    if u == 0:
                        F[3].append(f"ds_read_b64_tr_b16 {ar(A_RP+6,2)}, v{V_RRD} offset:{32+4096}")
                        nreads += 1
                    if u == 3:
                        F[3].append(f"buffer_store_dwordx4 {ar(A_RP,4)}, v{V_L16}, {sr(S_WP)}, s{S_RDST} offen sc1")
                    if u == 6:
                        post.append(f"buffer_store_dwordx4 {ar(A_RP+4,4)}, v{V_L16}, {sr(S_WP)}, s{S_RDST} offen offset:2048 sc1")
                    if u == 7:
                        F[3].append(f"s_add_u32 s{S_RDST}, s{S_RDST}, 16384")
        if u % 2 == 1:
            F[7].append(f"s_waitcnt lgkmcnt({nreads})")
        if qk and not pv:
            z = [f"v_mov_b32 v{V_O + u*8 + i}, 0" for i in range(8)]
            order = [M[0], z[0], z[1], M[1]] + F[1] + [M[2], z[3], z[4], M[3], z[2]]
            order += F[0] + [z[5]] + F[2] + [z[6]] + F[3] + F[4] + F[5] + F[6] + [z[7]] + F[7]
            for x in order:
                e(x)
        elif qk:
            for i in range(8):
                e(M[i])
                for x in F[i]:
                    e(x)
        else:
            for x in F[0] + F[1] + F[2]:
                e.safe(x)
            fixed = {0: (F[3] + F[4], []), 1: (F[5], []), 2: (F[6], []), 3: ([], F[7])}
            interleave(e, M[4:], fixed, extra if u >= 2 else [])
        if pv and u % 4 == 2:
            q2 = u // 4
            e(smfmac(ar(A_L + q2 * 4, 4), vr(pr + q2 * 8, 8)))
        for x in post:
            e(x)


V_M = 24


def row_max_finish(e):
    m, t = V_M, V_M + 4
    for swap in ("v_permlane32_swap_b32", "v_permlane16_swap_b32"):
        for qb in range(4):
            e(f"v_mov_b32 v{t+qb}, v{m+qb}")
        for qb in range(4):
            e(f"{swap} v{m+qb}, v{t+qb}")
        for qb in range(4):
            e(f"v_max_f32 v{m+qb}, v{m+qb}, v{t+qb}")
    for qb in range(4):
        for r in range(4):
            e(f"v_sub_f32 v{V_NM+qb*4+r}, 0, v{m+qb}")


def x_dma(c):
    out = []
    for h in range(2):
        out += [f"s_add_u32 m0, s{S_W8K}, {X_SLOT[c%2] + h*4096}", f"s_mov_b32 s4, {c*128 + h*40960}"]
        out += [f"buffer_load_dwordx4 v{V_XDMA+n}, {sr(S_X)}, s4 offen offset:{n*1024} lds ; @X{c}" for n in range(4)]
    return out


def w_dma(c):
    out = [f"s_add_u32 m0, s{S_W4K}, {WQ_SLOT[c%4]}", f"s_mov_b32 s4, {c*64*8192}"]
    out += [f"buffer_load_dwordx4 v{V_WQDMA+n}, {sr(S_WQ)}, s4 offen offset:{n*1024} lds ; @W{c}" for n in range(4)]
    out += [f"s_add_u32 m0, s{S_W2K}, {LDS_W1+(c%4)*8192}", f"s_mov_b32 s4, {c*64*3456}"]
    out += [f"buffer_load_dwordx4 v{V_W1DMA+n}, {sr(S_W1)}, s4 offen offset:{n*1024} lds ; @W{c}" for n in range(2)]
    return out


def x_read(c):
    out = [f"ds_read_b128 {ar(A_XF+(c%2)*32+(qb*2+t)*4,4)}, v{V_XRD+t} offset:{qb*2048} ; @XR{c}" for qb in range(4) for t in range(2)]
    return out + [f"v_xor_b32 v{V_XRD+t}, 0x10000, v{V_XRD+t}" for t in range(2)]


def setup(e):
    e("s_cmp_ge_u32 s2, 256")
    e("s_cbranch_scc1 M_exit")
    for reg, off in ((S_X, 0), (S_WQ, 24), (S_W1, 48), (S_K, 8), (S_V, 16), (S_R0, 32), (S_R1, 56), (S_OUT, 64), (S_DBG, 72), (S_WS, 80)):
        e(f"s_load_dwordx2 {sr(reg,2)}, s[0:1], {off}")
    e("v_lshrrev_b32 v31, 6, v0")
    e("v_mov_b32 v62, v0")
    e(f"v_readfirstlane_b32 s{S_W}, v31")
    e("v_and_b32 v0, 63, v0")
    e("s_and_b32 s3, s2, 7")
    e("s_lshr_b32 s4, s2, 3")
    e(f"s_lshr_b32 s{S_QT}, s4, 2")
    e("s_and_b32 s5, s4, 3")
    e(f"s_lshl_b32 s{S_HEAD}, s3, 2")
    e(f"s_add_u32 s{S_HEAD}, s{S_HEAD}, s5")
    e(f"s_lshl_b32 s{S_W2K}, s{S_W}, 11")
    e(f"s_lshl_b32 s{S_W4K}, s{S_W}, 12")
    e(f"s_lshl_b32 s{S_W8K}, s{S_W}, 13")
    e(f"s_lshl_b32 s5, s{S_QT}, 2")
    e(f"s_add_u32 s5, s5, s{S_W}")
    e("s_mul_i32 s6, s5, 81920")
    e("v_and_b32 v28, 15, v0")
    e("v_lshrrev_b32 v29, 4, v0")
    e("v_lshrrev_b32 v30, 3, v0")
    e("v_and_b32 v31, 7, v0")
    e("v_mul_u32_u24 v26, 1280, v30")
    e("v_add_u32 v26, s6, v26")
    e("v_xor_b32 v27, v31, v29")
    e(f"v_lshl_add_u32 v{V_XDMA}, v27, 4, v26")
    e(f"v_add_u32 v{V_XDMA+2}, {2*(10240-1024)}, v{V_XDMA}")
    e(f"v_xor_b32 v27, 64, v{V_XDMA}")
    e(f"v_add_u32 v{V_XDMA+1}, {10240-1024}, v27")
    e(f"v_add_u32 v{V_XDMA+3}, {3*(10240-1024)}, v27")
    e(f"s_lshl_b32 s6, s{S_W}, 17")
    e("v_lshlrev_b32 v26, 13, v29")
    e("v_add_u32 v26, s6, v26")
    e("v_lshlrev_b32 v27, 1, v29")
    e("v_xor_b32 v27, v27, v28")
    e(f"v_lshl_add_u32 v{V_WQDMA}, v27, 4, v26")
    e(f"v_add_u32 v{V_WQDMA+1}, {32768-1024}, v{V_WQDMA}")
    e(f"v_xor_b32 v27, 128, v{V_WQDMA}")
    e(f"v_add_u32 v{V_WQDMA+2}, {2*(32768-1024)}, v27")
    e(f"v_add_u32 v{V_WQDMA+3}, {3*(32768-1024)}, v27")
    e(f"s_lshl_b32 s6, s{S_HEAD}, 8")
    e(f"s_mov_b32 s{S_X+2}, 2621440")
    e(f"s_mov_b32 s{S_X+3}, {SRD3}")
    e("s_waitcnt lgkmcnt(0)")
    stamp(e)
    for x in x_dma(0):
        e.safe(x)
    srd(e, S_WQ, S_WQ, "s6", 640 * 8192 - 31 * 256)
    e(f"s_lshl_b32 s6, s{S_HEAD}, 7")
    srd(e, S_W1, S_W1, "s6", 640 * 3456 - 26 * 128)
    e(f"s_cmp_lt_u32 s{S_HEAD}, 27")
    e(f"s_cselect_b32 s{S_W1+2}, s{S_W1+2}, 0")
    e(f"s_mul_i32 s6, s{S_W}, {16*3456}")
    e("v_mul_u32_u24 v26, 3456, v30")
    e("v_add_u32 v26, s6, v26")
    e("v_and_b32 v27, 2, v30")
    e("v_xor_b32 v27, v27, v31")
    e(f"v_lshl_add_u32 v{V_W1DMA}, v27, 4, v26")
    e(f"v_xor_b32 v27, 64, v{V_W1DMA}")
    e(f"v_add_u32 v{V_W1DMA+1}, {8*3456-1024}, v27")
    e(f"v_lshlrev_b32 v{V_L16}, 4, v0")
    e("v_bfe_u32 v30, v0, 2, 3")
    e("v_and_b32 v31, 3, v0")
    e("v_bfe_u32 v26, v0, 2, 2")
    e("v_lshl_add_u32 v26, v29, 3, v26")
    e("v_lshlrev_b32 v27, 8, v26")
    e("v_lshl_add_u32 v27, v31, 3, v27")
    e(f"s_lshl_b32 s6, s{S_W}, 1")
    e("v_xor_b32 v12, s6, v30")
    e(f"v_lshl_add_u32 v{V_WQRD}, v12, 5, v27")
    for nb in range(1, 8):
        e(f"v_xor_b32 v{V_WQRD+nb}, {nb*32}, v{V_WQRD}")
    e("v_lshlrev_b32 v27, 7, v26")
    e("v_lshl_add_u32 v27, v31, 3, v27")
    e(f"v_add_u32 v27, {LDS_W1}, v27")
    e("v_lshrrev_b32 v12, 1, v30")
    e(f"s_and_b32 s6, s{S_W}, 2")
    e("v_xor_b32 v12, s6, v12")
    e(f"v_lshl_add_u32 v{V_W1RD}, v12, 5, v27")
    for nb in range(1, 4):
        e(f"v_xor_b32 v{V_W1RD+nb}, {nb*32}, v{V_W1RD}")
    e("v_lshrrev_b32 v12, 1, v28")
    e("v_xor_b32 v12, v12, v29")
    e("v_lshlrev_b32 v12, 4, v12")
    e("v_lshl_add_u32 v12, v28, 7, v12")
    e(f"s_add_u32 s6, s{S_W8K}, {X_SLOT[0]}")
    e(f"v_add_u32 v{V_XRD}, s6, v12")
    e(f"v_xor_b32 v{V_XRD+1}, 64, v{V_XRD}")
    e("v_and_b32 v26, 1, v0")
    e("v_cmp_eq_u32 vcc, 0, v26")
    e("v_mov_b32 v27, 0x44444444")
    e("v_mov_b32 v12, 0xeeeeeeee")
    e(f"v_cndmask_b32 v{V_IDX}, v12, v27, vcc")
    e("v_and_b32 v26, 2, v0")
    e("v_cmp_eq_u32 vcc, 0, v26")
    e("v_mov_b32 v27, 0x3f803f80")
    e("v_mov_b32 v12, 0")
    for r in range(4):
        e(f"v_cndmask_b32 v{V_ONES+r}, v12, v27, vcc")
    for r in range(16):
        e(f"v_accvgpr_write_b32 a{A_CS+r}, 0")
    e(f"s_lshl_b32 s6, s{S_QT}, 5")
    e(f"s_add_u32 s6, s6, s{S_HEAD}")
    e("s_lshl_b32 s6, s6, 2")
    e(f"s_add_u32 s6, s6, s{S_W}")
    e("s_lshl_b32 s6, s6, 1")
    e("v_lshrrev_b32 v26, 5, v0")
    e("v_add_u32 v26, s6, v26")
    e("v_mul_u32_u24 v27, 1280, v26")
    e("v_and_b32 v12, 31, v0")
    e("v_lshl_add_u32 v13, v12, 4, v27")
    e("v_lshl_add_u32 v14, v12, 3, v27")
    e("v_cmp_eq_u32 vcc, 0, v12")
    e("v_lshlrev_b32 v26, 3, v26")
    e(f"v_mov_b32 v19, {OOB}")
    e("v_cndmask_b32 v19, v19, v26, vcc")
    e("v_cmp_eq_u32 vcc, 0, v62")
    e(f"v_mov_b32 v{V_SIG}, {OOB}")
    e(f"v_mov_b32 v{V_ONE}, 0")
    e(f"v_cndmask_b32 v{V_SIG}, v{V_SIG}, v0, vcc")
    for x in w_dma(0):
        e.safe(x)
    late = Asm()
    late_setup(late)
    for x in late.lines:
        e.safe(x)
    mem = [f"buffer_load_dwordx4 v[2:5], v13, {sr(S_X)}, 0 offen ; @SROW",
           f"buffer_load_dwordx4 v[6:9], v13, {sr(S_X)}, 0 offen offset:512 ; @SROW",
           f"buffer_load_dwordx2 v[10:11], v14, {sr(S_X)}, 0 offen offset:1024 ; @SROW"]
    mem = x_dma(1) + w_dma(1) + mem
    for x in mem[:OPT.get("nearly", 10)]:
        e.safe(x)
    return mem[OPT.get("nearly", 10):]
    for x in mem:
        e.safe(x)


def late_setup(e):
    e(f"s_lshl_b32 s6, s{S_HEAD}, 19")
    srd(e, S_K, S_K, "s6", 524288)
    srd(e, S_V, S_V, "s6", 524288)
    e(f"s_mul_i32 s6, s5, {ACT_RG}")
    e(f"s_add_u32 s6, s6, {WS_ACT}")
    e(f"s_lshl_b32 s7, s{S_HEAD}, 14")
    e("s_add_u32 s7, s7, s6")
    srd(e, S_ACT, S_WS, "s7", 16384)
    e(f"s_lshl_b32 s7, s{S_HEAD}, 13")
    e(f"s_add_u32 s7, s7, {64*8192}")
    e("s_add_u32 s7, s7, s6")
    srd(e, S_ACTH, S_WS, "s7", 8192)
    e(f"s_cmp_lt_u32 s{S_HEAD}, 27")
    e(f"s_cselect_b32 s{S_ACTH+2}, s{S_ACTH+2}, 0")
    srd(e, S_DBG, S_DBG, None, 256)
    srd(e, S_OUT, S_OUT, None, 2621440)
    e("s_lshr_b32 s4, s2, 3")
    if OPT.get("map", 1) == 0:
        e(f"s_mov_b32 s5, s{S_HEAD}")
        e(f"s_mov_b32 s6, s{S_QT}")
    else:
        e("s_lshr_b32 s5, s3, 1")
        e("s_lshl_b32 s5, s5, 3")
        e("s_and_b32 s6, s4, 7")
        e("s_add_u32 s5, s5, s6")
        e("s_and_b32 s6, s3, 1")
        e("s_lshl_b32 s6, s6, 2")
        e("s_lshr_b32 s7, s4, 3")
        e("s_add_u32 s6, s6, s7")
    e(f"s_mul_i32 s7, s5, {ACT_RG}")
    e(f"s_add_u32 s7, s7, {WS_ACT}")
    srd(e, S_TA, S_WS, "s7", ACT_RG)
    e("s_mul_i32 s7, s6, 10240")
    e(f"s_add_u32 s7, s7, {WS_WP}")
    srd(e, S_TW, S_WS, "s7", (NPAIR - 1) * WP_PAIR + 10240)
    e(f"s_mul_i32 s{S_XO}, s5, 81920")
    e("s_mul_i32 s7, s6, 160")
    e(f"s_add_u32 s{S_XO}, s{S_XO}, s7")
    e("s_lshr_b32 s7, s5, 2")
    e("s_lshl_b32 s7, s7, 8")
    e(f"s_add_u32 s{S_POLLO}, s7, {MISC_CNTO}")
    e("s_sub_u32 s6, s2, 128")
    e("s_cmp_lt_u32 s2, 128")
    e(f"s_cselect_b64 {sr(S_R0,2)}, {sr(S_R0,2)}, {sr(S_R1,2)}")
    e("s_cselect_b32 s6, s2, s6")
    e("s_mul_i32 s6, s6, 40960")
    srd(e, S_R0, S_R0, "s6", 40960)
    e("s_lshr_b32 s6, s2, 1")
    e(f"s_mul_i32 s6, s6, {WP_PAIR}")
    e(f"s_add_u32 s6, s6, {WS_WP}")
    srd(e, S_WP, S_WS, "s6", WP_PAIR)
    e(f"s_cmp_lt_u32 s2, {2*NPAIR}")
    e(f"s_cselect_b32 s{S_R0+2}, s{S_R0+2}, 0")
    e(f"s_cselect_b32 s{S_WP+2}, s{S_WP+2}, 0")
    e("s_and_b32 s6, s2, 1")
    e("s_lshl_b32 s6, s6, 10")
    e(f"s_add_u32 s{S_RDST}, s6, s{S_W4K}")
    e(f"s_mov_b32 s{S_RSRC}, 0")
    e(f"s_mov_b32 s{S_RSRC2}, 4096")
    e(f"s_add_u32 s{S_M0R}, s{S_W2K}, {LDS_W1}")
    srd(e, S_WS, S_WS, WS_MISC if WS_MISC else None, MISC_SIZE)
    e(f"s_lshl_b32 s{S_SIGS}, s{S_QT}, 5")
    e(f"s_lshl_b32 s7, s{S_QT}, 8")
    e(f"s_add_u32 s{S_SIGA}, s7, {MISC_CNTA}")
    e(f"s_add_u32 s{S_SIGO}, s7, {MISC_CNTO}")
    for i in range(4):
        e(f"s_add_u32 s{S_M0K+i}, s{S_W4K}, {LDS_K + i*16384}")
        e(f"s_add_u32 s{S_M0V+i}, s{S_W4K}, {LDS_V + i*16384}")
    e(f"s_mov_b32 s{S_RETRY}, 0")
    e(f"s_mul_i32 s6, s{S_W}, 7")
    e("s_add_u32 s6, s6, 64")
    e(f"s_lshl_b32 s{S_GA}, s6, 13")
    e(f"s_mul_i32 s{S_GW}, s6, {WP_PAIR}")
    e(f"s_lshl_b32 s{S_SA}, s{S_W}, 17")
    e(f"s_mul_i32 s{S_SW}, s{S_W}, {16*WP_PAIR}")
    e(f"s_cmp_eq_u32 s{S_HEAD}, 0")
    e(f"s_cselect_b32 s6, s{S_SIGA}, {OOB}")
    e(f"s_cselect_b32 s7, s{S_SIGO}, {OOB}")
    if OPT.get("pf", 1):
        e("s_getpc_b64 s[48:49]")
        e("M_pc:")
        e("s_mov_b32 s50, M_exit-M_pc")
        e(f"s_mov_b32 s51, {SRD3}")
        e("v_lshlrev_b32 v62, 7, v62")


def early_mem():
    out = [f"buffer_store_dword v{V_ONE}, v{V_SIG}, {sr(S_WS)}, s6 offen sc1",
           f"buffer_store_dword v{V_ONE}, v{V_SIG}, {sr(S_WS)}, s7 offen sc1"]
    if OPT.get("pf", 1):
        out += ["buffer_load_dword v63, v62, s[48:51], 0 offen ; nocheck", "s_mov_b32 s4, 32768",
                "buffer_load_dword v63, v62, s[48:51], s4 offen ; nocheck"]
    return out + [f"v_mov_b32 v{V_ONE}, 1"]


def stats_stream():
    s = ["WAITVM SROW"]

    def unpack(i, dst):
        return f"v_lshlrev_b32 v{dst}, 16, v{2+i//2}" if i % 2 == 0 else f"v_and_b32 v{dst}, 0xffff0000, v{2+i//2}"

    def reduce32():
        out = ["v_add_f32 v12, v12, v13"]
        for rot in (8, 4, 2, 1):
            out.append(f"v_add_f32_dpp v12, v12, v12 row_ror:{rot} row_mask:0xf bank_mask:0xf")
        out += ["v_mov_b32 v13, v12", "v_permlane16_swap_b32 v12, v13", "v_add_f32 v12, v12, v13",
                f"v_mul_f32 v12, {fbits(1.0/640)}, v12"]
        return out

    s += [unpack(0, 12), unpack(1, 13)]
    for i in range(2, 20, 2):
        s += [unpack(i, 14), unpack(i + 1, 15), "v_add_f32 v12, v12, v14", "v_add_f32 v13, v13, v15"]
    s += reduce32() + ["v_mov_b32 v16, v12"]
    for i in range(0, 20, 2):
        s += [unpack(i, 14), unpack(i + 1, 15), "v_sub_f32 v14, v14, v16", "v_sub_f32 v15, v15, v16"]
        op = "v_mul_f32" if i == 0 else "v_fmac_f32"
        s += [f"{op} v12, v14, v14", f"{op} v13, v15, v15"]
    s += reduce32()
    s += ["v_cvt_pk_bf16_f32 v13, v12, v16", "v_and_b32 v16, 0xffff0000, v13", "v_lshlrev_b32 v12, 16, v13",
          "v_xor_b32 v16, 0x80000000, v16", f"v_add_f32 v12, {fbits(1e-5)}, v12", "v_cvt_pk_bf16_f32 v12, v12, v12",
          "v_lshlrev_b32 v12, 16, v12", "v_sqrt_f32 v12, v12", "v_cvt_pk_bf16_f32 v12, v12, v12",
          "v_lshlrev_b32 v12, 16, v12", "v_rcp_f32 v17, v12", "s_nop 0",
          f"buffer_store_dwordx2 v[16:17], v19, {sr(S_WS)}, 0 offen sc1 ; @SST"]
    return s


def kv_addr_stream():
    s = [f"s_lshl_b32 s5, s{S_W}, 2", "v_xor_b32 v26, v28, v29", "v_xor_b32 v27, s5, v26", "v_lshlrev_b32 v27, 4, v27",
         f"v_lshl_add_u32 v{V_KRD}, v28, 8, v27"]
    s += [f"v_xor_b32 v{V_KRD+ks}, {64*ks}, v{V_KRD}" for ks in range(1, 4)]
    s += ["v_lshlrev_b32 v27, 8, v29", f"v_add_u32 v27, s{S_W4K}, v27", f"v_lshl_add_u32 v{V_KDMA}, v26, 4, v27"]
    s += [f"v_xor_b32 v{V_KDMA+n}, {64*n}, v{V_KDMA}" for n in range(1, 4)]
    s += ["v_lshlrev_b32 v26, 1, v29", "v_xor_b32 v26, v26, v28", f"v_lshl_add_u32 v{V_VDMA}, v26, 4, v27",
          f"v_xor_b32 v{V_VDMA+1}, 128, v{V_VDMA}"]
    s += ["v_lshrrev_b32 v27, 2, v0", "v_lshlrev_b32 v27, 8, v27", "v_lshl_add_u32 v27, v31, 3, v27",
          f"v_add_u32 v27, {LDS_V}, v27", f"v_lshl_add_u32 v{V_VRD}, v30, 5, v27"]
    s += [f"v_xor_b32 v{V_VRD+db}, {32*db}, v{V_VRD}" for db in range(1, 8)]
    return s


def repack_addr(e):
    e(f"s_mul_i32 s5, s{S_W}, {8*1280}")
    e("v_lshrrev_b32 v56, 4, v0")
    e("v_mul_u32_u24 v57, 1280, v56")
    e("v_add_u32 v57, s5, v57")
    e("v_lshlrev_b32 v56, 6, v56")
    e(f"v_and_b32 v58, 255, v{V_L16}")
    e("v_xor_b32 v56, v56, v58")
    e(f"v_add_u32 v{V_RDMA}, v56, v57")
    e("v_lshrrev_b32 v56, 2, v0")
    e("v_and_b32 v57, 3, v56")
    e(f"v_xor_b32 v57, s{S_W}, v57")
    e("v_lshlrev_b32 v57, 6, v57")
    e("v_lshl_add_u32 v57, v56, 8, v57")
    e("v_and_b32 v56, 3, v0")
    e("v_lshl_add_u32 v57, v56, 3, v57")
    e(f"v_add_u32 v{V_RRD}, {LDS_W1}, v57")


CS_SITES = {0: 0, 1: 1, 8: 2, 9: 3}


XR_AT, SIG_AT = 6, 3


def phase1(e, carry):
    half = ["lo"] * 8

    def w_reads(c, nb):
        out = []
        if nb < 8:
            base = WQ_SLOT[c % 4]
            h = "hi" if base >= 65536 else "lo"
            if half[nb] != h:
                out.append(f"v_xor_b32 v{V_WQRD+nb}, 0x10000, v{V_WQRD+nb}")
                half[nb] = h
        for t in range(2):
            for v in range(2):
                d = ar(A_WF + ((nb % 4) * 2 + t) * 4 + 2 * v, 2)
                if nb < 8:
                    out.append(f"ds_read_b64_tr_b16 {d}, v{V_WQRD+nb} offset:{base%65536+t*8192+v*1024} ; @WR{c}_{nb}")
                else:
                    out.append(f"ds_read_b64_tr_b16 {d}, v{V_W1RD+nb-8} offset:{(c%4)*8192+t*4096+v*512} ; @WR{c}_{nb}")
        return out

    e("WAITVM W0")
    e("s_barrier")
    stamp(e)
    for x in x_read(0) + w_reads(0, 0) + w_reads(0, 1):
        e(x)
    e("WAITLG WR0_0")
    poll_s = f"buffer_load_dword v63, v62, {sr(S_DBG)}, 0 offen sc1"
    mem, alu, xr = carry + early_mem(), [], []
    for c in range(10):
        if c + 2 < 10:
            mem += x_dma(c + 2) + w_dma(c + 2)
        if c == 1:
            alu += stats_stream()
        if c == 5:
            alu += kv_addr_stream()
        if c == 8:
            mem += ["v_and_b32 v62, 7, v0", "v_lshlrev_b32 v62, 5, v62", poll_s + " ; @PS"]
            mem += kv_tile("V", 0) + kv_tile("V", 1)
        if c == 9:
            pre9 = ["WAITVM PS"] + poll_check("M_ps", poll_s, ["v_cmp_gt_u32 vcc, 32, v63"])
            pre9 += [f"s_lshl_b32 s5, s{S_QT}, 2", f"s_add_u32 s5, s5, s{S_W}", "s_lshl_b32 s5, s5, 9", "v_lshlrev_b32 v62, 3, v28"]
            pre9 += [f"buffer_load_dwordx2 {vr(V_ST+2*qb,2)}, v62, {sr(S_WS)}, s5 offen offset:{qb*128} sc1 ; @STL" for qb in range(4)]
            mem += pre9 + kv_tile("K", 1) + kv_tile("K", 2)
        for nb in range(12):
            fixed = {}
            n2 = nb + 2
            reads = w_reads(c, n2) if n2 < 12 else (w_reads(c + 1, n2 - 12) if c < 9 else [])
            pre = []
            if nb == XR_AT and c < 9:
                xr += [f"WAITVM X{c+1}"] + x_read(c + 1)
            if nb == 10 and c < 9:
                assert not xr, (c, xr)
                pre = [f"WAITVM W{c+1}" + (" SST" if c == SIG_AT else ""), "s_barrier"]
                if c >= 7:
                    pre = [f"WAITLG XR{c+1}"] + pre
                if c == SIG_AT:
                    assert not alu
                    mem.insert(0, f"buffer_atomic_add v{V_ONE}, v{V_SIG}, {sr(S_DBG)}, s{S_SIGS} offen")
                if c == 8:
                    mem += kv_tile("K", 0)
            if c == 9 and nb == 10:
                assert not alu and not any("@STL" in x for x in mem), alu
                alu += [f"s_lshl_b32 s5, s{S_W}, 7", f"s_add_u32 s5, s5, {LDS_CS}", "v_lshl_add_u32 v60, v28, 2, s5",
                        f"s_and_b32 s5, s{S_W}, 2", "s_lshl_b32 s5, s5, 6", f"s_add_u32 s5, s5, {LDS_CS+512}", "v_lshl_add_u32 v61, v28, 2, s5"]
                for k in range(4):
                    alu += [f"v_accvgpr_read_b32 v62, a{A_CS+4*k}", f"v_accvgpr_read_b32 v63, a{A_CS+4*k+1}",
                            f"v_add_f32 v{20+k}, v62, v63", f"ds_write_b32 v{60+k//2}, v{20+k} offset:{(k%2)*64}"]
            slot = 0
            if pre:
                fixed[0] = (pre, [])
                slot = 1
            extra = len(reads) - 4
            for i, x in enumerate(reads):
                k = slot + max(0, i - max(extra, 0))
                fixed.setdefault(k, ([], []))[0].append(x)
            nxt = (c, nb + 1) if nb < 11 else (c + 1, 0)
            mf = []
            for qb in range(4):
                for t in ((0, 1) if qb % 2 == 0 else (1, 0)):
                    acc = vr(o_reg(nb, qb), 4) if nb < 8 else vr(V_P + ((nb - 8) * 4 + qb) * 4, 4)
                    first = c == 0 and len(mf) % 2 == 0
                    mf.append(mfma(acc, ar(A_WF + ((nb % 4) * 2 + t) * 4, 4), ar(A_XF + (c % 2) * 32 + (qb * 2 + t) * 4, 4), "0" if first else acc))
            if nb in CS_SITES:
                mf.append(smfmac(ar(A_CS + 4 * CS_SITES[nb], 4), ar(A_WF + (nb % 4) * 8, 8)))
            if nxt[0] < 10:
                fixed.setdefault(len(mf) - 1, ([], []))[1].append(f"WAITLG WR{nxt[0]}_{nxt[1]}")
            nvm = sum(x.startswith("buffer_") for x in mem)
            interleave(e, mf, fixed, [xr, mem, alu], quota=-(-nvm // (12 - nb)) + (1 if alu else 0))
        assert not mem or c in (0, 8), (c, mem)
        if OPT.get("p1st") and c < 9:
            stamp(e)
    drain(e, [mem, alu])
    stamp(e)
    e("s_waitcnt lgkmcnt(0)")
    e("s_barrier")


def proj_epilogue(e):
    CSR, T = 40, 20
    e(f"s_lshl_b32 s5, s{S_W}, 7")
    e(f"s_add_u32 s5, s5, {LDS_CS}")
    e("v_lshl_add_u32 v60, v29, 4, s5")
    e(f"s_and_b32 s5, s{S_W}, 2")
    e("s_lshl_b32 s6, s5, 6")
    e(f"s_add_u32 s6, s6, {LDS_CS+512}")
    e("v_lshl_add_u32 v61, v29, 4, s6")
    e("s_lshl_b32 s5, s5, 9")
    e(f"v_xor_b32 v30, s5, v{V_L16}")
    e("v_xor_b32 v31, 1024, v30")

    def cs_read(g):
        out = []
        src = 60 if g < 4 else 61
        k = g if g < 4 else g - 4
        if k:
            out.append(f"v_xor_b32 v{src}, {128*(k^(k-1))}, v{src}")
        for u in range(2):
            out.append(f"ds_read_b128 {vr(CSR+u*4,4)}, v{src} offset:{u*64} ; @CS{g}")
        return out

    for x in cs_read(0):
        e(x)
    e("WAITVM STL")
    e(f"s_mov_b32 s6, {fbits(LOG2E * 128 ** -0.5)}")
    for qb in range(4):
        e(f"v_mul_f32 v{48+qb}, s6, v{V_ST+2*qb+1}")

    def center(g, regs):
        e(f"WAITLG CS{g}")
        for qb in range(4):
            for u in range(2):
                a = regs(u, qb)
                for p in range(2):
                    e(f"v_pk_fma_f32 {vr(a+2*p,2)}, {vr(CSR+u*4+2*p,2)}, {vr(V_ST+2*qb,2)}, {vr(a+2*p,2)} op_sel_hi:[1,0,1]")
        if g < 5:
            for x in cs_read(g + 1):
                e(x)

    for j in range(4):
        center(j, lambda u, qb: o_reg(2 * j + u, qb))
        for qb in range(4):
            t = T + (qb % 2) * 4
            sel = "op_sel_hi:[1,0]" if qb % 2 == 0 else "op_sel:[0,1] op_sel_hi:[1,1]"
            for u in range(2):
                a = o_reg(2 * j + u, qb)
                for p in range(2):
                    e(f"v_pk_mul_f32 {vr(a+2*p,2)}, {vr(a+2*p,2)}, {vr(48+(qb//2)*2,2)} {sel}")
            for u in range(2):
                a = o_reg(2 * j + u, qb)
                e(f"v_cvt_pk_bf16_f32 v{t+2*u}, v{a}, v{a+1}")
                e(f"v_cvt_pk_bf16_f32 v{t+2*u+1}, v{a+2}, v{a+3}")
            for swap in ("v_permlane32_swap_b32", "v_permlane16_swap_b32"):
                e.safe(f"{swap} v{t}, v{t+2}")
                e.safe(f"{swap} v{t+1}, v{t+3}")
            for r in range(4):
                e(f"v_accvgpr_write_b32 a{A_Q+(qb*4+j)*4+r}, v{t+r}")
    e(f"s_mov_b32 s6, {fbits(-LOG2E)}")
    e("s_mov_b32 s7, s6")
    e("s_mov_b32 s5, 4096")
    for jj in range(2):
        hreg = lambda u, qb: V_P + ((2 * jj + u) * 4 + qb) * 4
        center(4 + jj, hreg)
        for qb in range(4):
            t = V_O + (qb % 2) * 16
            for u in range(2):
                for p in range(2):
                    a = hreg(u, qb) + 2 * p
                    e(f"v_pk_mul_f32 {vr(a,2)}, {vr(a,2)}, {vr(V_ST+2*qb,2)} op_sel:[0,1] op_sel_hi:[1,1]")
            for u in range(2):
                for p in range(2):
                    e(f"v_pk_mul_f32 {vr(t+4*u+2*p,2)}, {vr(hreg(u,qb)+2*p,2)}, s[6:7]")
            for r in range(8):
                e(f"v_exp_f32 v{t+r}, v{t+r}")
            for p in range(4):
                e(f"v_pk_add_f32 {vr(t+2*p,2)}, {vr(t+2*p,2)}, 1.0 op_sel_hi:[1,0]")
            for r in range(8):
                e(f"v_rcp_f32 v{t+r}, v{t+r}")
            for u in range(2):
                for p in range(2):
                    e(f"v_pk_mul_f32 {vr(t+4*u+2*p,2)}, {vr(t+4*u+2*p,2)}, {vr(hreg(u,qb)+2*p,2)}")
            for p in range(4):
                e(f"v_cvt_pk_bf16_f32 v{t+8+p}, v{t+2*p}, v{t+2*p+1}")
            e(f"buffer_store_dwordx4 {vr(t+8,4)}, v{30+jj}, {sr(S_ACTH)}, {'s5' if qb >= 2 else '0'} offen offset:{(qb%2)*2048} sc1 ; @HST")


V_TA, V_TW1, V_XO, V_RED, V_X = 40, 44, 46, 47, 2
ACC = {"G": 64, "S": 144}
FREE = list(range(176, 256, 4)) + list(range(64, 128, 4))
TBUF = [FREE[:18], FREE[18:36], list(range(0, 64, 4)) + [128, 132]]
TSTEPS = ["G"] * 7 + ["S"] * 16


def tail_addr_stream():
    s = [f"v_add_u32 v{V_TW1}, 4096, v{V_L16}", f"v_add_u32 v{V_TW1+1}, 8192, v{V_L16}",
         f"v_add_u32 v{V_TA}, s{S_W2K}, v{V_L16}"]
    s += [f"v_xor_b32 v{V_TA+k}, {2048*k}, v{V_TA}" for k in range(1, 4)]
    return s


def tail_loads(s):
    b = TBUF[s % 3]
    sa, sw = (S_GA, S_GW) if TSTEPS[s] == "G" else (S_SA, S_SW)
    vw = [V_L16, V_TW1, V_TW1 + 1]
    wl = [f"buffer_load_dwordx4 {ar(b[8+f],4)}, v{vw[f//4]}, {sr(S_TW)}, s{sw} offen offset:{(f%4)*1024} sc1 ; @T{s}" for f in range(10)]
    al = [f"buffer_load_dwordx4 {ar(b[f],4)}, v{V_TA+f//2}, {sr(S_TA)}, s{sa} offen offset:{(f%2)*1024} sc1 ; @T{s}" for f in range(8)]
    return wl[:2] + al + wl[2:] + [f"s_add_u32 s{sa}, s{sa}, 8192", f"s_add_u32 s{sw}, s{sw}, {WP_PAIR}"]


def tail(e):
    e("v_and_b32 v12, 15, v0")
    e(f"s_mul_i32 s5, s{S_W}, {16*1280}")
    e("v_mul_u32_u24 v12, 1280, v12")
    e("v_lshrrev_b32 v13, 4, v0")
    e("v_lshl_add_u32 v12, v13, 3, v12")
    e(f"v_add_u32 v{V_XO}, s5, v12")
    for k in range(4):
        e(f"s_xor_b32 s5, s{S_W}, {k}")
        e("s_mul_i32 s5, s5, 30720")
        e(f"v_add_u32 v{V_RED+k}, s5, v{V_L16}")

    def flush(kind):
        return [f"ds_write_b128 v{V_RED+k}, {vr(ACC[kind]+(nb*4+k)*4,4)} offset:{((k-1)*5+nb)*1024 + (15360 if kind == 'S' else 0)}"
                for k in range(1, 4) for nb in range(5)]

    poll_o = f"buffer_load_dword v{V_PVAL}, off, {sr(S_WS)}, s{S_POLLO} sc1"
    n = len(TSTEPS)
    for s in range(n):
        b = TBUF[s % 3]
        if s == 1:
            e("WAITVM OST")
            e("s_barrier")
            e(f"buffer_atomic_add v{V_ONE}, v{V_SIG}, {sr(S_WS)}, s{S_SIGO} offen")
        elif s == 5:
            e("WAITVM PO")
            stamp(e)
            for x in poll_check("M_po", poll_o, [f"v_cmp_gt_u32 vcc, 32, v{V_PVAL}"]):
                e(x)
            stamp(e)
        else:
            e(f"WAITVM T{s}")
        mem = tail_loads(s + 2) if s + 2 < n else []
        if s == 3:
            mem.append(poll_o + " ; @PO")
        if s == 10:
            mem += [f"buffer_load_dwordx2 {vr(V_X+2*nb,2)}, v{V_XO}, {sr(S_X)}, s{S_XO} offen offset:{nb*32}" for nb in range(5)]
        alu = flush("G") if s == 8 else []
        first = s in (0, 7)
        mf = []
        for nb in range(5):
            for rb in range(4):
                for t in ((0, 1) if rb % 2 == 0 else (1, 0)):
                    acc = vr(ACC[TSTEPS[s]] + (nb * 4 + rb) * 4, 4)
                    mf.append(mfma(acc, ar(b[8 + nb * 2 + t], 4), ar(b[rb * 2 + t], 4), "0" if first and len(mf) % 2 == 0 else acc))
        interleave(e, mf, {}, [mem, alu])
        drain(e, [mem, alu])
    stamp(e)
    for x in flush("S"):
        e.safe(x)
    e("s_waitcnt lgkmcnt(0)")
    e("s_barrier")
    for kind in ("G", "S"):
        for k in range(1, 4):
            for nb in range(5):
                e(f"ds_read_b128 {vr(ACC[kind]+(nb*4+k)*4,4)}, v{V_RED} offset:{((k-1)*5+nb)*1024 + (15360 if kind == 'S' else 0)} ; @R{kind}{k}")
        for k in range(1, 4):
            e(f"WAITLG R{kind}{k}")
            for nb in range(5):
                a = ACC[kind] + nb * 16
                for p in range(2):
                    e(f"v_pk_add_f32 {vr(a+2*p,2)}, {vr(a+2*p,2)}, {vr(a+4*k+2*p,2)}")
    e(f"s_mov_b32 s6, {fbits(-LOG2E)}")
    e("s_mov_b32 s7, s6")
    for nb in range(5):
        g = ACC["G"] + nb * 16
        s = ACC["S"] + nb * 16
        t = g + 4
        for p in range(2):
            e(f"v_pk_mul_f32 {vr(t+2*p,2)}, {vr(g+2*p,2)}, s[6:7]")
        for r in range(4):
            e(f"v_exp_f32 v{t+r}, v{t+r}")
        for p in range(2):
            e(f"v_lshlrev_b32 v{t+4+2*p}, 16, v{V_X+2*nb+p}")
            e(f"v_and_b32 v{t+5+2*p}, 0xffff0000, v{V_X+2*nb+p}")
        for p in range(2):
            e(f"v_pk_add_f32 {vr(t+2*p,2)}, {vr(t+2*p,2)}, 1.0 op_sel_hi:[1,0]")
        for r in range(4):
            e(f"v_rcp_f32 v{t+r}, v{t+r}")
        for p in range(2):
            e(f"v_pk_mul_f32 {vr(s+2*p,2)}, {vr(s+2*p,2)}, {vr(g+2*p,2)}")
        for p in range(2):
            e(f"v_pk_fma_f32 {vr(t+2*p,2)}, {vr(t+2*p,2)}, {vr(s+2*p,2)}, {vr(t+4+2*p,2)}")
        for p in range(2):
            e(f"v_cvt_pk_bf16_f32 v{t+4+p}, v{t+2*p}, v{t+2*p+1}")
        e(f"buffer_store_dwordx2 {vr(t+4,2)}, v{V_XO}, {sr(S_OUT)}, s{S_XO} offen offset:{nb*32}")


def attention(e):
    m = V_M
    e("WAITVM K0")
    e("s_barrier")
    for kb in range(2):
        for ks in range(4):
            e(k_read(0, kb, ks))
    e(f"v_and_b32 v{V_POFF}, 7, v0")
    e(f"v_lshlrev_b32 v{V_POFF}, 8, v{V_POFF}")
    e(f"v_add_u32 v{V_POFF}, {MISC_CNTA}, v{V_POFF}")
    repack_addr(e)
    for kb in range(2):
        e(f"s_waitcnt lgkmcnt({4-4*kb})")
        for qb in range(4):
            d = vr(V_P + (qb * 2 + kb) * 4, 4)
            for ks in range(4):
                e(mfma(d, ar(A_KF + (kb * 4 + ks) * 4, 4), ar(A_Q + (qb * 4 + ks) * 4, 4), "0" if ks == 0 else d))
    for qb in range(4):
        b = V_P + qb * 8
        e(f"v_max3_f32 v{m+qb}, v{b}, v{b+1}, v{b+2}")
        e(f"v_max3_f32 v{m+qb}, v{m+qb}, v{b+3}, v{b+4}")
        e(f"v_max3_f32 v{m+qb}, v{m+qb}, v{b+5}, v{b+6}")
        e(f"v_max_f32 v{m+qb}, v{m+qb}, v{b+7}")
    e("M_restart:")
    row_max_finish(e)
    for r in range(16):
        e(f"v_accvgpr_write_b32 a{A_L+r}, 0")
    e(f"s_mov_b32 s{S_OFF}, {3*16384}")
    e(f"s_mov_b32 s{S_CNT}, 8")
    attn_step(e, -1, qk=True, pv=False)
    stamp(e)
    e(".p2align 6")
    e("M_loop:")
    for j in range(3):
        attn_step(e, j)
    e(f"s_sub_u32 s{S_CNT}, s{S_CNT}, 1")
    e(f"s_cmp_eq_u32 s{S_CNT}, 0")
    e("s_cbranch_scc1 M_last")
    attn_step(e, 3)
    e("s_branch M_loop")
    e("M_last:")
    for x in poll_check("M_pa", POLL_A, [f"v_cmp_gt_u32 vcc, 32, v{V_PVAL}"]):
        e(x)
    extra = [tail_addr_stream() + tail_loads(0) + tail_loads(1)]
    attn_step(e, 3, qk=False, pv=True, extra=extra)
    drain(e, extra)
    stamp(e)

    T = 24
    e("s_waitcnt vmcnt(36)")
    for qb in range(4):
        e.safe(f"v_accvgpr_read_b32 v{T+2*qb}, a{A_L+qb*4}")
        e.safe(f"v_accvgpr_read_b32 v{T+2*qb+1}, a{A_L+qb*4+1}")
    for qb in range(4):
        e(f"v_add_f32 v{T+2*qb}, v{T+2*qb}, v{T+2*qb+1}")
    e(f"s_mov_b32 s6, {fbits(L_LIMIT)}")
    e("s_mov_b64 s[4:5], 0")
    for qb in range(4):
        e(f"v_cmp_nge_f32 vcc, s6, v{T+2*qb}")
        e("s_or_b64 s[4:5], s[4:5], vcc")
    for qb in range(4):
        e(f"v_rcp_f32 v{T+2*qb}, v{T+2*qb}")
    e("s_or_b32 s4, s4, s5")
    e(f"s_lshl_b32 s5, s{S_W}, 2")
    e(f"s_add_u32 s5, s5, {LDS_FLAG}")
    e("v_mov_b32 v56, s4")
    e("v_mov_b32 v57, s5")
    e("ds_write_b32 v57, v56")
    e("s_mov_b32 s6, 8192")
    for jp in range(2):
        for qb in range(4):
            for t in range(2):
                j = 2 * jp + t
                d = V_P + ((qb * 2 + t) % 4) * 4
                for u in range(2):
                    a = o_reg(2 * j + u, qb)
                    e(f"v_pk_mul_f32 {vr(a,2)}, {vr(a,2)}, {vr(T+2*qb,2)} op_sel_hi:[1,0]")
                    e(f"v_pk_mul_f32 {vr(a+2,2)}, {vr(a+2,2)}, {vr(T+2*qb,2)} op_sel_hi:[1,0]")
                for u in range(2):
                    a = o_reg(2 * j + u, qb)
                    e(f"v_cvt_pk_bf16_f32 v{d+2*u}, v{a}, v{a+1}")
                    e(f"v_cvt_pk_bf16_f32 v{d+2*u+1}, v{a+2}, v{a+3}")
                e(f"buffer_store_dwordx4 {vr(d,4)}, v{V_L16 if qb < 2 else V_TW1}, {sr(S_ACT)}, {'s6' if jp else '0'} offen offset:{(qb%2)*2048+t*1024} sc1 ; @OST")
    e("s_waitcnt lgkmcnt(0)")
    e("s_barrier")
    e(f"v_mov_b32 v57, {LDS_FLAG}")
    e("ds_read_b128 v[60:63], v57")
    e("s_waitcnt lgkmcnt(0)")
    e("v_or_b32 v60, v60, v61")
    e("v_or3_b32 v60, v60, v62, v63")
    e.safe("v_readfirstlane_b32 s4, v60")
    e(f"s_andn2_b32 s4, s4, s{S_RETRY}")
    e("s_cbranch_scc1 M_fallback")


def fallback(e):
    m = V_M
    e("M_fallback:")
    e(f"s_mov_b32 s{S_RETRY}, -1")
    e(f"s_mov_b32 s{S_SIGA}, {OOB}")
    e(f"s_sub_u32 s{S_GA}, s{S_GA}, {2*8192}")
    e(f"s_sub_u32 s{S_GW}, s{S_GW}, {2*WP_PAIR}")
    for qb in range(4):
        e(f"v_mov_b32 v{m+qb}, 0xff800000")
    e(f"s_mov_b32 s{S_OFF}, 0")
    e("M_maxloop:")
    e("s_waitcnt vmcnt(0)")
    e("s_barrier")
    e(f"s_mov_b32 m0, s{S_M0K}")
    e("s_nop 0")
    for n in range(4):
        e(k_dma(n))
    e("s_waitcnt vmcnt(0)")
    e("s_barrier")
    for kb in range(4):
        for ks in range(4):
            e(k_read(0, kb, ks))
        e("s_waitcnt lgkmcnt(0)")
        for qb in range(4):
            d = vr(V_P + qb * 4, 4)
            for ks in range(4):
                e(mfma(d, ar(A_KF + (kb * 4 + ks) * 4, 4), ar(A_Q + (qb * 4 + ks) * 4, 4), "0" if ks == 0 else d))
        e("s_nop 7")
        for qb in range(4):
            b = V_P + qb * 4
            e(f"v_max3_f32 v{m+qb}, v{m+qb}, v{b}, v{b+1}")
            e(f"v_max3_f32 v{m+qb}, v{m+qb}, v{b+2}, v{b+3}")
    e(f"s_add_u32 s{S_OFF}, s{S_OFF}, 16384")
    e(f"s_cmp_lt_u32 s{S_OFF}, 524288")
    e("s_cbranch_scc1 M_maxloop")
    e("s_barrier")
    for w, t in (("K", 0), ("K", 1), ("K", 2), ("V", 0), ("V", 1)):
        for x in kv_tile(w, t):
            e(x)
    e("s_waitcnt vmcnt(0)")
    e("s_barrier")
    for kb in range(2):
        for ks in range(4):
            e(k_read(0, kb, ks))
    e("s_waitcnt lgkmcnt(0)")
    e("s_branch M_restart")


def build():
    e = Asm()
    for l in open(f"cdna_kernels/{NAME}.s.ref").read().split("\n"):
        if not l.startswith(";"):
            break
        if "@launch" not in l:
            e(l)
    e("; @launch grid=(256,1,1) block=(256,1,1) lds=163840")
    e('.amdgcn_target "amdgcn-amd-amdhsa--gfx950"')
    e(".text")
    e(f".globl {KERNEL}")
    e(".p2align 8")
    e(f".type {KERNEL},@function")
    e(f"{KERNEL}:")
    phase1(e, setup(e))
    proj_epilogue(e)
    stamp(e)
    attention(e)
    stamp(e)
    tail(e)
    stamp_flush(e)
    e("M_exit:")
    e("s_endpgm")
    fallback(e)
    emit_spins(e)
    e('.section .rodata,"a"')
    e(".p2align 6")
    e(f".amdhsa_kernel {KERNEL}")
    for d in ("next_free_vgpr 512", "next_free_sgpr 102", "accum_offset 256", "group_segment_fixed_size 0", "kernarg_size 88",
              "user_sgpr_count 2", "user_sgpr_kernarg_segment_ptr 1", "system_sgpr_workgroup_id_x 1"):
        e(f".amdhsa_{d}")
    e(".end_amdhsa_kernel")
    e.resolve()
    errs = []
    errs += check_trace(e.trace(KERNEL, {"M_last": [False, False, True]}), "fast")
    errs += check_trace(e.trace(KERNEL, {"M_last": [False, True, False, True], "M_fallback": [True, False], "M_maxloop": [True, False],
                                         "M_ps_spin": [True], "M_pa_spin": [True, True], "M_po_spin": [True],
                                         "M_ps_back": [True], "M_pa_back": [True, True], "M_po_back": [True]}), "slow")
    return e.text(), errs


if __name__ == "__main__":
    if "--stamps" in sys.argv:
        sys.argv.remove("--stamps")
        STAMPS = True
    for a in [x for x in sys.argv if "=" in x]:
        sys.argv.remove(a)
        k, v = a.split("=")
        OPT[k] = int(v)
    text, errs = build()
    for x in errs:
        print(x)
    out = sys.argv[1] if len(sys.argv) > 1 else f"cdna_kernels/{NAME}.s"
    open(out, "w").write(text)
    print("wrote", out, len(text), "bytes;", len(errs), "check findings; stamps", nstamp[0])
```

```python
import re
NAME = "recurrent_scan__gqa_block_cached__dense_activation_silu__prompt_kernel"
s = open('g0.s').read()
desc = '''.p2align 6
.amdhsa_kernel %s
.amdhsa_next_free_vgpr 16
.amdhsa_next_free_sgpr 32
.amdhsa_accum_offset 16
.amdhsa_group_segment_fixed_size 0
.amdhsa_kernarg_size 88
.amdhsa_user_sgpr_count 2
.amdhsa_user_sgpr_kernarg_segment_ptr 1
.amdhsa_system_sgpr_workgroup_id_x 1
.end_amdhsa_kernel
'''
pre = '''.globl pre_kernel
.p2align 8
.type pre_kernel,@function
pre_kernel:
    s_memrealtime s[6:7]
    s_cmp_ge_u32 s2, 1
    s_cbranch_scc1 pre_end
    s_load_dwordx2 s[8:9], s[0:1], 80
    s_waitcnt lgkmcnt(0)
    s_add_u32 s8, s8, 0x5000000
    s_addc_u32 s9, s9, 0
    s_mov_b32 s10, 4096
    s_mov_b32 s11, 0x00020000
    v_mov_b32 v1, s6
    v_mov_b32 v2, 0
    buffer_store_dword v1, v2, s[8:11], 0 offen
pre_end:
    s_endpgm
'''
def post(mode):
    return '''.globl post_kernel
.p2align 8
.type post_kernel,@function
post_kernel:
    s_memrealtime s[6:7]
    s_cmp_ge_u32 s2, 1
    s_cbranch_scc1 post_end
    s_load_dwordx2 s[8:9], s[0:1], 80
    s_waitcnt lgkmcnt(0)
    s_add_u32 s8, s8, 0x4000000
    s_addc_u32 s9, s9, 0
    s_mov_b32 s10, 0x1001000
    s_mov_b32 s11, 0x00020000
    v_mov_b32 v2, 0
    s_mov_b32 s12, 0x1000000
    buffer_load_dword v3, v2, s[8:11], s12 offen
    buffer_load_dword v4, v2, s[8:11], 0 offen
    buffer_load_dword v5, v2, s[8:11], 0 offen offset:80
    s_waitcnt vmcnt(0)
    v_readfirstlane_b32 s13, v3
    v_readfirstlane_b32 s14, v4
    v_readfirstlane_b32 s15, v5
    s_nop 3
''' + {"none": "    s_mov_b32 s5, 0\n", "front": "    s_sub_u32 s5, s14, s13\n", "back": "    s_sub_u32 s5, s6, s15\n", "all": "    s_sub_u32 s5, s6, s13\n"}[mode] + '''    s_min_u32 s5, s5, 20000
    s_memrealtime s[6:7]
    s_waitcnt lgkmcnt(0)
    s_add_u32 s5, s5, s6
post_loop:
    s_memrealtime s[6:7]
    s_waitcnt lgkmcnt(0)
    s_sub_u32 s4, s6, s5
    s_cmp_lt_i32 s4, 0
    s_cbranch_scc1 post_loop
post_end:
    s_endpgm
'''
for mode in ("none", "front", "back", "all"):
    t = s.replace("; @launch grid=(256,1,1) block=(256,1,1) lds=163840",
      "; @launch kernel=pre_kernel grid=(1,1,1) block=(64,1,1) lds=0\n; @launch kernel=%s grid=(256,1,1) block=(256,1,1) lds=163840\n; @launch kernel=post_kernel grid=(1,1,1) block=(64,1,1) lds=0" % NAME)
    t = t.replace('.section .rodata,"a"\n', pre + post(mode) + '.section .rodata,"a"\n' + desc % "pre_kernel" + desc % "post_kernel")
    open(f"gap_{mode}.s", "w").write(t)
```

```python
import sys, struct
from asm import Asm, check_trace

NAME = "recurrent_scan__gqa_block_cached__dense_activation_silu__prompt"
KERNEL = NAME + "_kernel"
WS_MISC = 0
MISC_CNTA, MISC_CNTO, MISC_CNTP, MISC_SIZE = 16384, 20480, 28672, 45056
WS_ACT = 4 << 20
WS_WP = 32 << 20
WS_STAMP = 64 << 20
WS_PART = 96 << 20
PART_WAVE = 5120
PART_SRC = 4 * PART_WAVE
PART_TILE = 12 * PART_SRC
NPAIR = 91
ACT_RG = NPAIR * 8192
WP_PAIR = 81920
SRD3 = "0x00020000"
OOB = 0x1000000
LOG2E = 1.4426950408889634
L_LIMIT = 2.0 ** 120
O_LOW = 2.0 ** -110
STAMPS = False
OPT = {}

S_X, S_WQ, S_W1, S_K, S_V, S_ACT, S_ACTH, S_DBG, S_WS, S_R0, S_R1, S_WP, S_TA, S_TW, S_OUT = range(8, 68, 4)
S_M0K, S_M0V = 68, 72
S_W, S_HEAD, S_QT, S_W4K, S_OFF, S_CNT, S_RETRY = range(76, 83)
S_RSRC, S_RSRC2, S_RDST, S_M0R = 83, 84, 85, 86
S_GA, S_GW, S_SA, S_SW, S_XO = range(87, 92)
S_SIGS, S_SIGA, S_SIGO, S_POLLO = 92, 93, 94, 95
S_W2K, S_W8K = 100, 101
S_PART, S_KQ, S_SIGP, S_M0A, S_M0W, S_PS = 48, 12, 13, 14, 15, 16
V_L16 = 1
V_KRD, V_VRD, V_KDMA, V_VDMA = 2, 6, 14, 18
V_STAMP, V_IDX, V_ONES, V_NM, V_P, V_O = 34, 35, 36, 40, 64, 128
SBUF = [56, 60, 24, 28]
V_POFF, V_PVAL, V_ONE, V_SIG = 20, 21, 32, 33
V_XDMA, V_XRD = 20, 24
V_RDMA, V_RRD = 22, 23
V_WQRD, V_W1RD, V_WQDMA, V_W1DMA, V_ST = 40, 48, 52, 56, 52
A_Q, A_KF, A_VF, A_L = 0, 64, 128, 160
A_XF, A_WF, A_CS, A_RP = 64, 128, 160, 176
LDS_K, LDS_V, LDS_W1 = 0, 65536, 131072
LDS_CS = LDS_W1 + 3 * 8192
LDS_FLAG = LDS_W1 + 2 * 8192
WQ_SLOT = [LDS_V + 3 * 16384, LDS_V + 2 * 16384, LDS_K + 2 * 16384, LDS_K + 3 * 16384]
X_SLOT = [LDS_V, LDS_K]
LK = LV = 5


def fbits(x):
    return "0x%08x" % struct.unpack("<I", struct.pack("<f", x))[0]


def vr(b, n=1):
    return f"v{b}" if n == 1 else f"v[{b}:{b+n-1}]"


def ar(b, n=1):
    return f"a{b}" if n == 1 else f"a[{b}:{b+n-1}]"


def sr(b, n=4):
    return f"s[{b}:{b+n-1}]"


def srd(e, d, src, off, size):
    if off is not None:
        e(f"s_add_u32 s{d}, s{src}, {off}")
        e(f"s_addc_u32 s{d+1}, s{src+1}, 0")
    elif src != d:
        e(f"s_mov_b32 s{d}, s{src}")
        e(f"s_mov_b32 s{d+1}, s{src+1}")
    e(f"s_mov_b32 s{d+2}, {size}")
    e(f"s_mov_b32 s{d+3}, {SRD3}")


def mfma(d, a, b, c):
    return f"v_mfma_f32_16x16x32_bf16 {d}, {a}, {b}, {c}"


def smfmac(d, b):
    return f"v_smfmac_f32_16x16x64_bf16 {d}, {vr(V_ONES,4)}, {b}, v{V_IDX}"


nstamp = [0]


def stamp(e):
    if STAMPS:
        i = nstamp[0]
        nstamp[0] += 1
        e("s_memrealtime s[96:97]")
        e("s_memtime s[98:99]")
        e("s_waitcnt lgkmcnt(0)")
        e(f"v_writelane_b32 v{V_STAMP}, s96, {2*i}")
        e(f"v_writelane_b32 v{V_STAMP}, s98, {2*i+1}")


def stamp_flush(e):
    if not STAMPS:
        return
    e("s_waitcnt vmcnt(0) lgkmcnt(0)")
    stamp(e)
    srd(e, 8, S_WS, WS_STAMP - WS_MISC, 262144)
    e("s_lshl_b32 s12, s2, 2")
    e(f"s_add_u32 s12, s12, s{S_W}")
    e("s_lshl_b32 s12, s12, 8")
    e(f"v_lshrrev_b32 v2, 2, v{V_L16}")
    e(f"buffer_store_dword v{V_STAMP}, v2, s[8:11], s12 offen")
    if "ea" in OPT:
        k = OPT.get("ecyc", 0)
        e(f"v_readlane_b32 s4, v{V_STAMP}, {2*OPT['ea']+k}")
        e(f"v_readlane_b32 s5, v{V_STAMP}, {2*OPT['eb']+k}")
        e("s_nop 3")
        e("s_sub_u32 s5, s5, s4")
        if k:
            e("s_mul_i32 s5, s5, 3277")
            e("s_lshr_b32 s5, s5, 16")
        e("s_add_u32 s5, s5, s96")
        e("M_echo:")
        e("s_memrealtime s[6:7]")
        e("s_waitcnt lgkmcnt(0)")
        e("s_sub_u32 s4, s6, s5")
        e("s_cmp_lt_i32 s4, 0")
        e("s_cbranch_scc1 M_echo")


def interleave(e, mf, fixed, streams, cap=2, quota=99, space=0):
    last_vm = -space
    for i, m in enumerate(mf):
        e.safe(m)
        used = 0
        pre, post = fixed.get(i, ([], []))
        for x in pre:
            e.safe(x)
            used += 1
        room = cap - len(post)
        progress = True
        while used < room and progress:
            progress = False
            for s in streams:
                if not s:
                    continue
                vm = s[0].startswith("buffer_")
                cost = 2 if vm or s[0].startswith(("v_exp", "v_rcp", "v_sqrt")) else 1
                if used + cost > room or (vm and (quota == 0 or i - last_vm < space)) or not e.hazard_free(s[0]):
                    continue
                if vm:
                    last_vm = i
                e(s.pop(0))
                used += cost
                quota -= vm
                progress = True
                break
        for x in post:
            e.safe(x)


def drain(e, streams):
    for s in streams:
        while s:
            e.safe(s.pop(0))


def o_reg(db, qb):
    return V_O + (db * 4 + qb) * 4


def k_dma(n, tag=""):
    return f"buffer_load_dwordx4 v{V_KDMA+n}, {sr(S_K)}, s{S_OFF} offen offset:{n*1024} lds{tag}"


def v_dma(n, tag=""):
    return f"buffer_load_dwordx4 v{V_VDMA+(n&1)}, {sr(S_V)}, s{S_OFF} offen offset:{n*1024} lds{tag}"


def k_read(tile, kb, ks):
    return f"ds_read_b128 {ar(A_KF+(kb*4+ks)*4,4)}, v{V_KRD+ks} offset:{(tile%4)*16384+kb*4096}"


def v_read(tile, db, t, v):
    return f"ds_read_b64_tr_b16 {ar(A_VF+((db%4)*2+t)*4+2*v,2)}, v{V_VRD+db} offset:{(tile%4)*16384+t*8192+v*4096}"


def kv_tile(which, tile):
    tag = f" ; @{which}{tile}"
    out = [f"s_mov_b32 m0, s{(S_M0K if which == 'K' else S_M0V) + tile % 4}", f"s_mov_b32 s{S_OFF}, {tile*16384}"]
    return out + [(k_dma if which == "K" else v_dma)(n, tag) for n in range(4)]


spins = []


def poll_check(name, load, cond):
    spins.append((name, load, cond))
    return cond + [f"s_cbranch_vccnz {name}_spin\n{name}_back:"]


def emit_spins(e):
    for name, load, cond in spins:
        e(f"{name}_spin:")
        e("s_mov_b32 s3, 0x100000")
        e(f"{name}_loop:")
        e("s_sleep 2")
        e(load)
        e("s_waitcnt vmcnt(0)")
        for x in cond:
            e(x)
        e(f"s_cbranch_vccz {name}_back")
        e("s_sub_u32 s3, s3, 1")
        e("s_cmp_lg_u32 s3, 0")
        e(f"s_cbranch_scc1 {name}_loop")
        e(f"s_branch {name}_back")


POLL_A = f"buffer_load_dword v{V_PVAL}, v{V_POFF}, {sr(S_WS)}, 0 offen sc1"


def attn_step(e, j, qk=True, first=False, extra=None):
    pw = V_P + ((j + 1) % 2) * 32
    pr = V_P + (j % 2) * 32
    pv = True

    def pdst(x):
        on, base = (qk, pw) if x >= 0 else (not first, pr)
        x %= 16
        return on, base + (x % 4) * 8 + (x // 4) * 2, SBUF[x % 4]

    for u in range(16):
        kb, qb = u // 4, u % 4
        s_cur = SBUF[u % 4]
        M = []
        if qk:
            for ks in range(4):
                c = vr(V_NM + qb * 4, 4) if ks == 0 else vr(s_cur, 4)
                M.append(mfma(vr(s_cur, 4), ar(A_KF + (kb * 4 + ks) * 4, 4), ar(A_Q + (qb * 4 + ks) * 4, 4), c))
        else:
            M += [None] * 4
        if pv:
            db = u // 2
            for h in range(2):
                q2 = (u % 2) * 2 + h
                for t in ((0, 1) if h == 0 else (1, 0)):
                    o = vr(o_reg(db, q2), 4)
                    M.append(mfma(o, ar(A_VF + ((db % 4) * 2 + t) * 4, 4), vr(pr + q2 * 8 + t * 4, 4), "0" if first and t == h else o))
        else:
            M += [None] * 4
        F = [[] for _ in range(8)]
        nreads = 0
        n = u + LK
        if qk:
            F[1].append(k_read(j + 1 + n // 16, (n % 16) // 4, n % 4))
            nreads += 1
        n = u + LV
        if (pv and n < 16) or (qk and n >= 16):
            F[3].append(v_read(j + n // 16, (n % 16) // 2, n % 2, 0))
            F[5].append(v_read(j + n // 16, (n % 16) // 2, n % 2, 1))
            nreads += 2
        on, p, sb = pdst(u - 1)
        if on:
            for r in range(4):
                F[2 * r].append(f"v_exp_f32 v{sb+r}, v{sb+r}")
            F[5].append(f"v_cvt_pk_bf16_f32 v{p}, v{sb}, v{sb+1}")
        on, p, sb = pdst(u - 2)
        if on:
            F[1].append(f"v_cvt_pk_bf16_f32 v{p+1}, v{sb+2}, v{sb+3}")
        post = []
        if qk:
            if u == 10:
                post += [f"s_waitcnt vmcnt({10 if first else [11, 9, 10, 8][j % 4]})", "s_barrier"]
            if u == 12:
                F[3].append(f"s_mov_b32 m0, s{S_M0K + j % 4}")
            if u in (12, 14):
                F[7].append(k_dma((u - 12) // 2))
            if pv:
                if u in (0, 2):
                    F[7].append(k_dma(2 + u // 2))
                if u == 2:
                    post.append(f"s_sub_u32 s{S_OFF}, s{S_OFF}, 16384")
                if u == 4:
                    F[3].append(f"s_mov_b32 m0, s{S_M0V + (j + 2) % 4}")
                if u in (4, 6, 8, 10):
                    F[7].append(v_dma((u - 4) // 2))
                if u == 11:
                    F[3].append(f"s_add_u32 s{S_OFF}, s{S_OFF}, 32768")
                if j % 4 == 0:
                    if u == 2:
                        post.append(f"s_mov_b32 m0, s{S_M0R}")
                    if u == 3:
                        F[3].append(f"buffer_load_dwordx4 v{V_RDMA}, {sr(S_R0)}, s{S_RSRC} offen lds")
                        F[7].append(f"buffer_load_dwordx4 v{V_RDMA}, {sr(S_R0)}, s{S_RSRC2} offen offset:1024 lds")
                    if u == 5:
                        F[3].append(f"s_add_u32 s{S_RSRC}, s{S_RSRC}, 256")
                    if u == 6:
                        F[3].append(f"s_add_u32 s{S_RSRC2}, s{S_RSRC2}, 256")
                        post += [f"s_cmp_gt_u32 s{S_CNT}, 4", f"s_cselect_b32 s{S_R0+2}, s{S_R0+2}, 0"]
                if j % 4 == 3:
                    if u == 6:
                        post += [f"s_cmp_eq_u32 s{S_CNT}, 3", f"s_cselect_b32 s5, s{S_SIGA}, {OOB}"]
                    if u == 14:
                        post.append(f"buffer_atomic_add v{V_ONE}, v{V_SIG}, {sr(S_WS)}, s5 offen")
                if j % 4 == 1:
                    if u == 6:
                        post.append(POLL_A)
                    if u in (13, 14, 15):
                        k = u - 13
                        F[3].append(f"ds_read_b64_tr_b16 {ar(A_RP+2*k,2)}, v{V_RRD} offset:{(k//2)*32+(k%2)*4096}")
                        nreads += 1
                if j % 4 == 2:
                    if u == 0:
                        F[3].append(f"ds_read_b64_tr_b16 {ar(A_RP+6,2)}, v{V_RRD} offset:{32+4096}")
                        nreads += 1
                    if u == 3:
                        F[3].append(f"buffer_store_dwordx4 {ar(A_RP,4)}, v{V_L16}, {sr(S_WP)}, s{S_RDST} offen sc1")
                    if u == 6:
                        post.append(f"buffer_store_dwordx4 {ar(A_RP+4,4)}, v{V_L16}, {sr(S_WP)}, s{S_RDST} offen offset:2048 sc1")
                    if u == 7:
                        F[3].append(f"s_add_u32 s{S_RDST}, s{S_RDST}, 16384")
        if u % 2 == 1:
            F[7].append(f"s_waitcnt lgkmcnt({nreads})")
        if qk:
            for i in range(8):
                e(M[i])
                for x in F[i]:
                    e(x)
        else:
            for x in F[0] + F[1] + F[2]:
                e.safe(x)
            fixed = {0: (F[3] + F[4], []), 1: (F[5], []), 2: (F[6], []), 3: ([], F[7])}
            if 2 <= u < 6:
                M.append(smfmac(ar(A_L + (u - 2) * 4, 4), vr(pr + (u - 2) * 8, 8)))
            interleave(e, M[4:], fixed, extra(u), cap=OPT.get("fcap", 3), space=2)
        if qk and u % 4 == 2:
            q2 = u // 4
            e(smfmac(ar(A_L + q2 * 4, 4), vr(pr + q2 * 8, 8)))
        for x in post:
            e(x)


V_M = 24


def row_max_finish(e):
    m, t = V_M, V_M + 4
    for swap in ("v_permlane32_swap_b32", "v_permlane16_swap_b32"):
        for qb in range(4):
            e(f"v_mov_b32 v{t+qb}, v{m+qb}")
        for qb in range(4):
            e(f"{swap} v{m+qb}, v{t+qb}")
        for qb in range(4):
            e(f"v_max_f32 v{m+qb}, v{m+qb}, v{t+qb}")
    for qb in range(4):
        for r in range(4):
            e(f"v_sub_f32 v{V_NM+qb*4+r}, s7, v{m+qb}")


def x_dma(c):
    out = []
    for h in range(2):
        out += [f"s_add_u32 m0, s{S_W8K}, {X_SLOT[c%2] + h*4096}", f"s_mov_b32 s4, {c*128 + h*40960}"]
        out += [f"buffer_load_dwordx4 v{V_XDMA+n}, {sr(S_X)}, s4 offen offset:{n*1024} lds ; @X{c}" for n in range(4)]
    return out


def w_dma(c):
    out = [f"s_add_u32 m0, s{S_W4K}, {WQ_SLOT[c%4]}", f"s_mov_b32 s4, {c*64*8192}"]
    out += [f"buffer_load_dwordx4 v{V_WQDMA+n}, {sr(S_WQ)}, s4 offen offset:{n*1024} lds ; @W{c}" for n in range(4)]
    out += [f"s_add_u32 m0, s{S_W2K}, {LDS_W1+(c%4)*8192}", f"s_mov_b32 s4, {c*64*3456}"]
    out += [f"buffer_load_dwordx4 v{V_W1DMA+n}, {sr(S_W1)}, s4 offen offset:{n*1024} lds ; @W{c}" for n in range(2)]
    return out


def x_read(c):
    out = [f"ds_read_b128 {ar(A_XF+(c%2)*32+(qb*2+t)*4,4)}, v{V_XRD+t} offset:{qb*2048} ; @XR{c}" for qb in range(4) for t in range(2)]
    return out + [f"v_xor_b32 v{V_XRD+t}, 0x10000, v{V_XRD+t}" for t in range(2)]


def setup(e):
    e("s_cmp_ge_u32 s2, 256")
    e("s_cbranch_scc1 M_exit")
    for reg, off in ((S_X, 0), (S_WQ, 24), (S_W1, 48), (S_K, 8), (S_V, 16), (S_R0, 32), (S_R1, 56), (S_OUT, 64), (S_DBG, 72), (S_WS, 80)):
        e(f"s_load_dwordx2 {sr(reg,2)}, s[0:1], {off}")
    e("v_lshrrev_b32 v31, 6, v0")
    e("v_mov_b32 v62, v0")
    e(f"v_readfirstlane_b32 s{S_W}, v31")
    e("v_and_b32 v0, 63, v0")
    e("s_and_b32 s3, s2, 7")
    e("s_lshr_b32 s4, s2, 3")
    e(f"s_lshr_b32 s{S_QT}, s4, 2")
    e("s_and_b32 s5, s4, 3")
    e(f"s_lshl_b32 s{S_HEAD}, s3, 2")
    e(f"s_add_u32 s{S_HEAD}, s{S_HEAD}, s5")
    e(f"s_lshl_b32 s{S_W2K}, s{S_W}, 11")
    e(f"s_lshl_b32 s{S_W4K}, s{S_W}, 12")
    e(f"s_lshl_b32 s{S_W8K}, s{S_W}, 13")
    e(f"s_lshl_b32 s5, s{S_QT}, 2")
    e(f"s_add_u32 s5, s5, s{S_W}")
    e("s_mul_i32 s6, s5, 81920")
    e("v_and_b32 v28, 15, v0")
    e("v_lshrrev_b32 v29, 4, v0")
    e("v_lshrrev_b32 v30, 3, v0")
    e("v_and_b32 v31, 7, v0")
    e("v_mul_u32_u24 v26, 1280, v30")
    e("v_add_u32 v26, s6, v26")
    e("v_xor_b32 v27, v31, v29")
    e(f"v_lshl_add_u32 v{V_XDMA}, v27, 4, v26")
    e(f"v_add_u32 v{V_XDMA+2}, {2*(10240-1024)}, v{V_XDMA}")
    e(f"v_xor_b32 v27, 64, v{V_XDMA}")
    e(f"v_add_u32 v{V_XDMA+1}, {10240-1024}, v27")
    e(f"v_add_u32 v{V_XDMA+3}, {3*(10240-1024)}, v27")
    e(f"s_lshl_b32 s6, s{S_W}, 17")
    e("v_lshlrev_b32 v26, 13, v29")
    e("v_add_u32 v26, s6, v26")
    e("v_lshlrev_b32 v27, 2, v29")
    e("v_xor_b32 v27, v27, v28")
    e(f"v_lshl_add_u32 v{V_WQDMA}, v27, 4, v26")
    for n in range(1, 4):
        e(f"v_add_u32 v{V_WQDMA+n}, {n*(32768-1024)}, v{V_WQDMA}")
    e(f"s_lshl_b32 s6, s{S_HEAD}, 8")
    e(f"s_mov_b32 s{S_X+2}, 2621440")
    e(f"s_mov_b32 s{S_X+3}, {SRD3}")
    e("s_waitcnt lgkmcnt(0)")
    stamp(e)
    for x in x_dma(0):
        e.safe(x)
    srd(e, S_WQ, S_WQ, "s6", 640 * 8192 - 31 * 256)
    e(f"s_lshl_b32 s6, s{S_HEAD}, 7")
    srd(e, S_W1, S_W1, "s6", 640 * 3456 - 26 * 128)
    e(f"s_cmp_lt_u32 s{S_HEAD}, 27")
    e(f"s_cselect_b32 s{S_W1+2}, s{S_W1+2}, 0")
    e(f"s_mul_i32 s6, s{S_W}, {16*3456}")
    e("v_mul_u32_u24 v26, 3456, v30")
    e("v_add_u32 v26, s6, v26")
    e("v_and_b32 v27, 2, v30")
    e("v_xor_b32 v27, v27, v31")
    e(f"v_lshl_add_u32 v{V_W1DMA}, v27, 4, v26")
    e(f"v_xor_b32 v27, 64, v{V_W1DMA}")
    e(f"v_add_u32 v{V_W1DMA+1}, {8*3456-1024}, v27")
    e(f"v_lshlrev_b32 v{V_L16}, 4, v0")
    e("v_bfe_u32 v30, v0, 2, 3")
    e("v_and_b32 v31, 3, v0")
    e("v_bfe_u32 v12, v0, 2, 2")
    e("v_lshl_add_u32 v26, v29, 3, v12")
    e("v_lshlrev_b32 v27, 8, v26")
    e("v_lshl_add_u32 v27, v31, 4, v27")
    e(f"v_xor_b32 v12, s{S_W}, v12")
    e(f"v_lshl_add_u32 v{V_WQRD}, v12, 6, v27")
    for j in range(1, 4):
        e(f"v_xor_b32 v{V_WQRD+j}, {j*64}, v{V_WQRD}")
    e("v_lshlrev_b32 v27, 7, v26")
    e("v_lshl_add_u32 v27, v31, 3, v27")
    e(f"v_add_u32 v27, {LDS_W1}, v27")
    e("v_lshrrev_b32 v12, 1, v30")
    e(f"s_and_b32 s6, s{S_W}, 2")
    e("v_xor_b32 v12, s6, v12")
    e(f"v_lshl_add_u32 v{V_W1RD}, v12, 5, v27")
    for nb in range(1, 4):
        e(f"v_xor_b32 v{V_W1RD+nb}, {nb*32}, v{V_W1RD}")
    e("v_lshrrev_b32 v12, 1, v28")
    e("v_xor_b32 v12, v12, v29")
    e("v_lshlrev_b32 v12, 4, v12")
    e("v_lshl_add_u32 v12, v28, 7, v12")
    e(f"s_add_u32 s6, s{S_W8K}, {X_SLOT[0]}")
    e(f"v_add_u32 v{V_XRD}, s6, v12")
    e(f"v_xor_b32 v{V_XRD+1}, 64, v{V_XRD}")
    e("v_and_b32 v26, 1, v0")
    e("v_cmp_eq_u32 vcc, 0, v26")
    e("v_mov_b32 v27, 0x44444444")
    e("v_mov_b32 v12, 0xeeeeeeee")
    e(f"v_cndmask_b32 v{V_IDX}, v12, v27, vcc")
    e("v_and_b32 v26, 2, v0")
    e("v_cmp_eq_u32 vcc, 0, v26")
    e("v_mov_b32 v27, 0x3f803f80")
    e("v_mov_b32 v12, 0")
    for r in range(4):
        e(f"v_cndmask_b32 v{V_ONES+r}, v12, v27, vcc")
    for r in range(16):
        e(f"v_accvgpr_write_b32 a{A_CS+r}, 0")
    e(f"s_lshl_b32 s6, s{S_QT}, 5")
    e(f"s_add_u32 s6, s6, s{S_HEAD}")
    e("s_lshl_b32 s6, s6, 2")
    e(f"s_add_u32 s6, s6, s{S_W}")
    e("s_lshl_b32 s6, s6, 1")
    e("v_lshrrev_b32 v26, 5, v0")
    e("v_add_u32 v26, s6, v26")
    e("v_mul_u32_u24 v27, 1280, v26")
    e("v_and_b32 v12, 31, v0")
    e("v_lshl_add_u32 v13, v12, 4, v27")
    e("v_lshl_add_u32 v14, v12, 3, v27")
    e("v_cmp_eq_u32 vcc, 0, v12")
    e("v_lshlrev_b32 v26, 3, v26")
    e(f"v_mov_b32 v19, {OOB}")
    e("v_cndmask_b32 v19, v19, v26, vcc")
    e("v_cmp_eq_u32 vcc, 0, v62")
    e(f"v_mov_b32 v{V_SIG}, {OOB}")
    e(f"v_mov_b32 v{V_ONE}, 0")
    e(f"v_cndmask_b32 v{V_SIG}, v{V_SIG}, v0, vcc")
    for x in w_dma(0):
        e.safe(x)
    late = Asm()
    late_setup(late)
    for x in late.lines:
        e.safe(x)
    mem = [f"buffer_load_dwordx4 v[2:5], v13, {sr(S_X)}, 0 offen ; @SROW",
           f"buffer_load_dwordx4 v[6:9], v13, {sr(S_X)}, 0 offen offset:512 ; @SROW",
           f"buffer_load_dwordx2 v[10:11], v14, {sr(S_X)}, 0 offen offset:1024 ; @SROW"]
    mem = {0: x_dma(1) + w_dma(1) + mem, 1: mem + x_dma(1) + w_dma(1), 2: x_dma(1) + mem + w_dma(1)}[OPT.get("srow", 0)]
    for x in mem[:OPT.get("nearly", 10)]:
        e.safe(x)
    return mem[OPT.get("nearly", 10):]
    for x in mem:
        e.safe(x)


def tile_ids(e):
    e("s_bfe_u32 s4, s2, 0x20001")
    e("s_and_b32 s5, s2, 1")
    e("s_lshl_b32 s5, s5, 3")
    e("s_bfe_u32 s6, s2, 0x30003")
    e("s_add_u32 s5, s5, s6")
    e("s_lshr_b32 s6, s2, 6")


def late_setup(e):
    e(f"s_lshl_b32 s6, s{S_HEAD}, 19")
    srd(e, S_K, S_K, "s6", 524288)
    srd(e, S_V, S_V, "s6", 524288)
    e(f"s_mul_i32 s6, s5, {ACT_RG}")
    e(f"s_add_u32 s6, s6, {WS_ACT}")
    e(f"s_lshl_b32 s7, s{S_HEAD}, 14")
    e("s_add_u32 s7, s7, s6")
    srd(e, S_ACT, S_WS, "s7", 16384)
    e(f"s_lshl_b32 s7, s{S_HEAD}, 13")
    e(f"s_add_u32 s7, s7, {64*8192}")
    e("s_add_u32 s7, s7, s6")
    srd(e, S_ACTH, S_WS, "s7", 8192)
    e(f"s_cmp_lt_u32 s{S_HEAD}, 27")
    e(f"s_cselect_b32 s{S_ACTH+2}, s{S_ACTH+2}, 0")
    srd(e, S_DBG, S_DBG, None, 256)
    srd(e, S_OUT, S_OUT, None, 2621440)
    tile_ids(e)
    e("s_lshl_b32 s7, s5, 1")
    e(f"s_lshr_b32 s3, s{S_W}, 1")
    e("s_add_u32 s3, s7, s3")
    e(f"s_mul_i32 s7, s3, {ACT_RG}")
    e(f"s_add_u32 s7, s7, {WS_ACT}")
    e(f"s_and_b32 s{S_XO}, s{S_W4K}, 4096")
    e(f"s_add_u32 s7, s7, s{S_XO}")
    srd(e, S_TA, S_WS, "s7", (NPAIR - 1) * 8192 + 4096)
    e("s_lshl_b32 s7, s6, 2")
    e(f"s_add_u32 s7, s7, s{S_W}")
    e("s_mul_i32 s7, s7, 5120")
    e(f"s_add_u32 s7, s7, {WS_WP}")
    srd(e, S_TW, S_WS, "s7", (NPAIR - 1) * WP_PAIR + 5120)
    e("s_lshl_b32 s3, s3, 2")
    e("s_add_u32 s3, s3, s4")
    e(f"s_mul_i32 s{S_XO}, s3, 20480")
    e("s_lshl_b32 s7, s6, 1")
    e(f"s_and_b32 s3, s{S_W}, 1")
    e("s_add_u32 s7, s7, s3")
    e("s_mul_i32 s7, s7, 160")
    e(f"s_add_u32 s{S_XO}, s{S_XO}, s7")
    e("s_lshr_b32 s7, s5, 1")
    e("s_lshl_b32 s7, s7, 2")
    e("s_add_u32 s7, s7, s4")
    e("s_lshl_b32 s7, s7, 8")
    e(f"s_add_u32 s{S_POLLO}, s7, {MISC_CNTO}")
    e("s_mul_i32 s7, s4, 7")
    e("s_add_u32 s7, s7, 64")
    e(f"s_lshl_b32 s{S_GA}, s7, 13")
    e(f"s_mul_i32 s{S_GW}, s7, {WP_PAIR}")
    e(f"s_lshl_b32 s{S_SA}, s4, 17")
    e(f"s_mul_i32 s{S_SW}, s4, {16*WP_PAIR}")
    e("s_lshl_b32 s5, s5, 2")
    e("s_add_u32 s5, s5, s6")
    e("s_lshl_b32 s5, s5, 8")
    e(f"s_add_u32 s5, s5, {MISC_CNTP}")
    e("s_cmp_eq_u32 s4, 0")
    e(f"s_cselect_b32 s5, s5, {OOB}")
    e("s_sub_u32 s6, s2, 128")
    e("s_cmp_lt_u32 s2, 128")
    e(f"s_cselect_b64 {sr(S_R0,2)}, {sr(S_R0,2)}, {sr(S_R1,2)}")
    e("s_cselect_b32 s6, s2, s6")
    e("s_mul_i32 s6, s6, 40960")
    srd(e, S_R0, S_R0, "s6", 40960)
    e("s_lshr_b32 s6, s2, 1")
    e(f"s_mul_i32 s6, s6, {WP_PAIR}")
    e(f"s_add_u32 s6, s6, {WS_WP}")
    srd(e, S_WP, S_WS, "s6", WP_PAIR)
    e(f"s_cmp_lt_u32 s2, {2*NPAIR}")
    e(f"s_cselect_b32 s{S_R0+2}, s{S_R0+2}, 0")
    e(f"s_cselect_b32 s{S_WP+2}, s{S_WP+2}, 0")
    e("s_and_b32 s6, s2, 1")
    e("s_lshl_b32 s6, s6, 10")
    e(f"s_add_u32 s{S_RDST}, s6, s{S_W4K}")
    e(f"s_mov_b32 s{S_RSRC}, 0")
    e(f"s_mov_b32 s{S_RSRC2}, 4096")
    e(f"s_add_u32 s{S_M0R}, s{S_W2K}, {LDS_W1}")
    srd(e, S_WS, S_WS, WS_MISC if WS_MISC else None, MISC_SIZE)
    e(f"s_lshl_b32 s{S_SIGS}, s{S_QT}, 5")
    e(f"s_lshl_b32 s7, s{S_QT}, 8")
    e(f"s_add_u32 s{S_SIGA}, s7, {MISC_CNTA}")
    e(f"s_lshl_b32 s7, s{S_QT}, 2")
    e(f"s_lshr_b32 s6, s{S_HEAD}, 3")
    e("s_add_u32 s7, s7, s6")
    e("s_lshl_b32 s7, s7, 8")
    e(f"s_add_u32 s{S_SIGO}, s7, {MISC_CNTO}")
    for i in range(4):
        e(f"s_add_u32 s{S_M0K+i}, s{S_W4K}, {LDS_K + i*16384}")
        e(f"s_add_u32 s{S_M0V+i}, s{S_W4K}, {LDS_V + i*16384}")
    e(f"s_mov_b32 s{S_RETRY}, 0")
    e(f"s_cmp_eq_u32 s{S_HEAD}, 0")
    e(f"s_cselect_b32 s6, s{S_SIGA}, {OOB}")
    e(f"s_and_b32 s7, s{S_HEAD}, 7")
    e(f"s_cselect_b32 s7, {OOB}, s{S_SIGO}")
    if OPT.get("pf", 1):
        e("s_getpc_b64 s[48:49]")
        e("M_pc:")
        e("s_mov_b32 s50, M_exit-M_pc")
        e(f"s_mov_b32 s51, {SRD3}")
        e("s_lshr_b32 s3, s2, 3")
        e("s_lshl_b32 s3, s3, 11")
        e("v_cmp_gt_u32 vcc, 16, v62")
        e("v_lshl_add_u32 v62, v62, 7, s3")
        e(f"v_mov_b32 v63, {OOB}")
        e("v_cndmask_b32 v62, v63, v62, vcc")


def early_mem():
    out = [f"buffer_store_dword v{V_ONE}, v{V_SIG}, {sr(S_WS)}, s6 offen sc1",
           f"buffer_store_dword v{V_ONE}, v{V_SIG}, {sr(S_WS)}, s7 offen sc1",
           f"buffer_store_dword v{V_ONE}, v{V_SIG}, {sr(S_WS)}, s5 offen sc1"]
    if OPT.get("pf", 1):
        out += ["buffer_load_dword v63, v62, s[48:51], 0 offen ; nocheck"]
    return out + [f"v_mov_b32 v{V_ONE}, 1"]


def stats_stream():
    s = ["WAITVM SROW"]

    def unpack(i, dst):
        return f"v_lshlrev_b32 v{dst}, 16, v{2+i//2}" if i % 2 == 0 else f"v_and_b32 v{dst}, 0xffff0000, v{2+i//2}"

    def reduce32():
        out = ["v_add_f32 v12, v12, v13"]
        for rot in (8, 4, 2, 1):
            out.append(f"v_add_f32_dpp v12, v12, v12 row_ror:{rot} row_mask:0xf bank_mask:0xf")
        out += ["v_mov_b32 v13, v12", "v_permlane16_swap_b32 v12, v13", "v_add_f32 v12, v12, v13",
                f"v_mul_f32 v12, {fbits(1.0/640)}, v12"]
        return out

    s += [unpack(0, 12), unpack(1, 13)]
    for i in range(2, 20, 2):
        s += [unpack(i, 14), unpack(i + 1, 15), "v_add_f32 v12, v12, v14", "v_add_f32 v13, v13, v15"]
    s += reduce32() + ["v_mov_b32 v16, v12"]
    for i in range(0, 20, 2):
        s += [unpack(i, 14), unpack(i + 1, 15), "v_sub_f32 v14, v14, v16", "v_sub_f32 v15, v15, v16"]
        op = "v_mul_f32" if i == 0 else "v_fmac_f32"
        s += [f"{op} v12, v14, v14", f"{op} v13, v15, v15"]
    s += reduce32()
    s += ["v_cvt_pk_bf16_f32 v13, v12, v16", "v_and_b32 v16, 0xffff0000, v13", "v_lshlrev_b32 v12, 16, v13",
          "v_xor_b32 v16, 0x80000000, v16", f"v_add_f32 v12, {fbits(1e-5)}, v12", "v_cvt_pk_bf16_f32 v12, v12, v12",
          "v_lshlrev_b32 v12, 16, v12", "v_sqrt_f32 v12, v12", "v_cvt_pk_bf16_f32 v12, v12, v12",
          "v_lshlrev_b32 v12, 16, v12", "v_rcp_f32 v17, v12", "s_nop 0",
          f"buffer_store_dwordx2 v[16:17], v19, {sr(S_WS)}, 0 offen sc1 ; @SST"]
    return s


def kv_addr_stream():
    s = [f"s_lshl_b32 s5, s{S_W}, 2", "v_xor_b32 v26, v28, v29", "v_xor_b32 v27, s5, v26", "v_lshlrev_b32 v27, 4, v27",
         f"v_lshl_add_u32 v{V_KRD}, v28, 8, v27"]
    s += [f"v_xor_b32 v{V_KRD+ks}, {64*ks}, v{V_KRD}" for ks in range(1, 4)]
    s += ["v_lshlrev_b32 v27, 8, v29", f"v_add_u32 v27, s{S_W4K}, v27", f"v_lshl_add_u32 v{V_KDMA}, v26, 4, v27"]
    s += [f"v_xor_b32 v{V_KDMA+n}, {64*n}, v{V_KDMA}" for n in range(1, 4)]
    s += ["v_lshlrev_b32 v26, 1, v29", "v_xor_b32 v26, v26, v28", f"v_lshl_add_u32 v{V_VDMA}, v26, 4, v27",
          f"v_xor_b32 v{V_VDMA+1}, 128, v{V_VDMA}"]
    s += ["v_lshrrev_b32 v27, 2, v0", "v_lshlrev_b32 v27, 8, v27", "v_lshl_add_u32 v27, v31, 3, v27",
          f"v_add_u32 v27, {LDS_V}, v27", f"v_lshl_add_u32 v{V_VRD}, v30, 5, v27"]
    s += [f"v_xor_b32 v{V_VRD+db}, {32*db}, v{V_VRD}" for db in range(1, 8)]
    return s


def repack_addr(e):
    e(f"s_mul_i32 s5, s{S_W}, {8*1280}")
    e("v_lshrrev_b32 v56, 4, v0")
    e("v_mul_u32_u24 v57, 1280, v56")
    e("v_add_u32 v57, s5, v57")
    e("v_lshlrev_b32 v56, 6, v56")
    e(f"v_and_b32 v58, 255, v{V_L16}")
    e("v_xor_b32 v56, v56, v58")
    e(f"v_add_u32 v{V_RDMA}, v56, v57")
    e("v_lshrrev_b32 v56, 2, v0")
    e("v_and_b32 v57, 3, v56")
    e(f"v_xor_b32 v57, s{S_W}, v57")
    e("v_lshlrev_b32 v57, 6, v57")
    e("v_lshl_add_u32 v57, v56, 8, v57")
    e("v_and_b32 v56, 3, v0")
    e("v_lshl_add_u32 v57, v56, 3, v57")
    e(f"v_add_u32 v{V_RRD}, {LDS_W1}, v57")


CS_SITES = {0: 0, 1: 1, 8: 2, 9: 3}


XR_AT, SIG_AT = 6, 3


def phase1(e, carry):
    half = ["lo"] * 8

    def w_reads(c, nb):
        out = []
        if nb < 8:
            base = WQ_SLOT[c % 4]
            h = "hi" if base >= 65536 else "lo"
            if half[nb // 2] != h:
                out.append(f"v_xor_b32 v{V_WQRD+nb//2}, 0x10000, v{V_WQRD+nb//2}")
                half[nb // 2] = h
        for t in range(2):
            for v in range(2):
                d = ar(A_WF + ((nb % 4) * 2 + t) * 4 + 2 * v, 2)
                if nb < 8:
                    out.append(f"ds_read_b64_tr_b16 {d}, v{V_WQRD+nb//2} offset:{base%65536+t*8192+v*1024+(nb%2)*8} ; @WR{c}_{nb}")
                else:
                    out.append(f"ds_read_b64_tr_b16 {d}, v{V_W1RD+nb-8} offset:{(c%4)*8192+t*4096+v*512} ; @WR{c}_{nb}")
        return out

    e("WAITVM W0")
    e("s_barrier")
    stamp(e)
    for x in x_read(0) + w_reads(0, 0) + w_reads(0, 1):
        e(x)
    e("WAITLG WR0_0")
    poll_s = f"buffer_load_dword v63, v62, {sr(S_DBG)}, 0 offen sc1"
    mem, alu, xr = carry, [], []
    ramp = OPT.get("ramp", 36)
    for c in range(10):
        if c + 2 < 10:
            mem += x_dma(c + 2) + w_dma(c + 2)
        if c == 0:
            mem += early_mem()
        if c == 1:
            alu += stats_stream()
        if c == 5:
            alu += kv_addr_stream()
        if c == 8:
            alu += tail_scalar_stream()
            mem += ["v_and_b32 v62, 7, v0", "v_lshlrev_b32 v62, 5, v62", poll_s + " ; @PS"]
            mem += kv_tile("V", 0) + kv_tile("V", 1)
        if c == 9:
            assert not alu
            pre9 = ["WAITVM PS"] + poll_check("M_ps", poll_s, ["v_cmp_gt_u32 vcc, 32, v63"])
            pre9 += [f"s_lshl_b32 s5, s{S_QT}, 2", f"s_add_u32 s5, s5, s{S_W}", "s_lshl_b32 s5, s5, 9", "v_lshlrev_b32 v62, 3, v28"]
            pre9 += [f"buffer_load_dwordx2 {vr(V_ST+2*qb,2)}, v62, {sr(S_WS)}, s5 offen offset:{qb*128} sc1 ; @STL" for qb in range(4)]
            mem += pre9 + kv_tile("K", 1) + kv_tile("K", 2)
        for nb in range(12):
            fixed = {}
            n2 = nb + 2
            reads = w_reads(c, n2) if n2 < 12 else (w_reads(c + 1, n2 - 12) if c < 9 else [])
            pre = []
            if nb == XR_AT and c < 9:
                xr += [f"WAITVM X{c+1}"] + x_read(c + 1)
            if nb == 10 and c < 9:
                assert not xr, (c, xr)
                pre = [f"WAITVM W{c+1}" + (" SST" if c == SIG_AT else ""), "s_barrier"]
                if c >= 7:
                    pre = [f"WAITLG XR{c+1}"] + pre
                if c == SIG_AT:
                    assert not alu
                    mem.insert(0, f"buffer_atomic_add v{V_ONE}, v{V_SIG}, {sr(S_DBG)}, s{S_SIGS} offen")
                if c == 8:
                    mem += kv_tile("K", 0)
            if c == 9 and nb == 10:
                assert not alu and not any("@STL" in x for x in mem), alu
                alu += [f"s_lshl_b32 s5, s{S_W}, 7", f"s_add_u32 s5, s5, {LDS_CS}", "v_lshl_add_u32 v60, v28, 2, s5",
                        f"s_and_b32 s5, s{S_W}, 2", "s_lshl_b32 s5, s5, 6", f"s_add_u32 s5, s5, {LDS_CS+512}", "v_lshl_add_u32 v61, v28, 2, s5"]
                for k in range(4):
                    alu += [f"v_accvgpr_read_b32 v62, a{A_CS+4*k}", f"v_accvgpr_read_b32 v63, a{A_CS+4*k+1}",
                            f"v_add_f32 v{20+k}, v62, v63", f"ds_write_b32 v{60+k//2}, v{20+k} offset:{(k%2)*64}"]
            slot = 0
            if pre:
                fixed[0] = (pre, [])
                slot = 1
            extra = len(reads) - 4
            for i, x in enumerate(reads):
                k = slot + max(0, i - max(extra, 0))
                fixed.setdefault(k, ([], []))[0].append(x)
            nxt = (c, nb + 1) if nb < 11 else (c + 1, 0)
            mf = []
            for qb in range(4):
                for t in ((0, 1) if qb % 2 == 0 else (1, 0)):
                    acc = vr(o_reg(nb, qb), 4) if nb < 8 else vr(V_P + ((nb - 8) * 4 + qb) * 4, 4)
                    first = c == 0 and len(mf) % 2 == 0
                    mf.append(mfma(acc, ar(A_WF + ((nb % 4) * 2 + t) * 4, 4), ar(A_XF + (c % 2) * 32 + (qb * 2 + t) * 4, 4), "0" if first else acc))
            if nb in CS_SITES:
                mf.append(smfmac(ar(A_CS + 4 * CS_SITES[nb], 4), ar(A_WF + (nb % 4) * 8, 8)))
            if nxt[0] < 10:
                fixed.setdefault(len(mf) - 1, ([], []))[1].append(f"WAITLG WR{nxt[0]}_{nxt[1]}")
            nvm = sum(x.startswith("buffer_") for x in mem)
            quota = min(-(-nvm // (12 - nb)), (nb + 1) * ramp // 12 - nb * ramp // 12)
            interleave(e, mf, fixed, [xr, mem, alu], quota=quota + any(x.startswith("buffer_") for x in alu[:12]))
        assert not mem or c in (0, 1, 2, 3, 4, 8), (c, mem)
        if OPT.get("p1st") and c < 9:
            stamp(e)
    drain(e, [mem, alu])
    stamp(e)
    e("s_waitcnt lgkmcnt(0)")
    e("s_barrier")


def proj_epilogue(e):
    CSR, T = 40, 20
    e(f"s_lshl_b32 s5, s{S_W}, 7")
    e(f"s_add_u32 s5, s5, {LDS_CS}")
    e("v_lshl_add_u32 v60, v29, 4, s5")
    e(f"s_and_b32 s5, s{S_W}, 2")
    e("s_lshl_b32 s6, s5, 6")
    e(f"s_add_u32 s6, s6, {LDS_CS+512}")
    e("v_lshl_add_u32 v61, v29, 4, s6")
    e("s_lshl_b32 s5, s5, 9")
    e(f"v_xor_b32 v30, s5, v{V_L16}")
    e("v_xor_b32 v31, 1024, v30")

    def cs_read(g):
        out = []
        src = 60 if g < 4 else 61
        k = g if g < 4 else g - 4
        if k:
            out.append(f"v_xor_b32 v{src}, {128*(k^(k-1))}, v{src}")
        for u in range(2):
            out.append(f"ds_read_b128 {vr(CSR+u*4,4)}, v{src} offset:{u*64} ; @CS{g}")
        return out

    for x in cs_read(0):
        e(x)
    e("WAITVM STL")
    e(f"s_mov_b32 s6, {fbits(LOG2E * 128 ** -0.5)}")
    for qb in range(4):
        e(f"v_mul_f32 v{48+qb}, s6, v{V_ST+2*qb+1}")

    def center(g, regs):
        e(f"WAITLG CS{g}")
        for qb in range(4):
            for u in range(2):
                a = regs(u, qb)
                for p in range(2):
                    e(f"v_pk_fma_f32 {vr(a+2*p,2)}, {vr(CSR+u*4+2*p,2)}, {vr(V_ST+2*qb,2)}, {vr(a+2*p,2)} op_sel_hi:[1,0,1]")
        if g < 5:
            for x in cs_read(g + 1):
                e(x)

    for j in range(4):
        center(j, lambda u, qb: o_reg(2 * j + u, qb))
        for q0 in (0, 2):
            pair = [(q0 + i, T + 4 * i) for i in range(2)]
            for qb, t in pair:
                sel = "op_sel_hi:[1,0]" if qb % 2 == 0 else "op_sel:[0,1] op_sel_hi:[1,1]"
                for u in range(2):
                    a = o_reg(2 * j + u, qb)
                    for p in range(2):
                        e(f"v_pk_mul_f32 {vr(a+2*p,2)}, {vr(a+2*p,2)}, {vr(48+q0,2)} {sel}")
            for qb, t in pair:
                for u in range(2):
                    a = o_reg(2 * j + u, qb)
                    e(f"v_cvt_pk_bf16_f32 v{t+2*u}, v{a}, v{a+1}")
                    e(f"v_cvt_pk_bf16_f32 v{t+2*u+1}, v{a+2}, v{a+3}")
            for qb, t in pair:
                for r in range(4):
                    e(f"v_accvgpr_write_b32 a{A_Q+(qb*4+j)*4+r}, v{t+r}")
    e(f"s_mov_b32 s6, {fbits(-LOG2E)}")
    for qb in range(4):
        e(f"v_mul_f32 v{48+qb}, s6, v{V_ST+2*qb+1}")
        e(f"v_rcp_f32 v{V_ST+2*qb+1}, v{V_ST+2*qb+1}")
    for jj in range(2):
        hreg = lambda u, qb: V_P + ((2 * jj + u) * 4 + qb) * 4
        center(4 + jj, hreg)
        if jj == 0:
            e("WAITVM K0")
            e("s_barrier")
            for kb in range(4):
                for ks in range(4):
                    e(k_read(0, kb, ks) + f" ; @K0R{kb}")
        for qb in range(4):
            sel = "op_sel_hi:[1,0]" if qb % 2 == 0 else "op_sel:[0,1] op_sel_hi:[1,1]"
            for u in range(2):
                for p in range(2):
                    a = hreg(u, qb) + 2 * p
                    e(f"v_pk_mul_f32 {vr(a+64,2)}, {vr(a,2)}, {vr(48+(qb//2)*2,2)} {sel}")
    e("WAITLG K0R3")
    for i, m in enumerate(first_scores()):
        e.safe(m)
        e(f"v_exp_f32 v{V_O+i}, v{V_O+i}")
    e("s_mov_b32 s5, 4096")
    for jj in range(2):
        for qb in range(4):
            regs = [V_P + ((2 * jj + u) * 4 + qb) * 4 + 2 * p for u in range(2) for p in range(2)]
            d = T + (qb % 2) * 4
            for a in regs:
                e(f"v_pk_fma_f32 {vr(a+64,2)}, {vr(a+64,2)}, {vr(V_ST+2*qb,2)}, {vr(V_ST+2*qb,2)} op_sel:[0,1,1] op_sel_hi:[1,1,1]")
            for a in regs:
                e(f"v_rcp_f32 v{a+64}, v{a+64}")
                e(f"v_rcp_f32 v{a+65}, v{a+65}")
            for a in regs:
                e(f"v_pk_mul_f32 {vr(a,2)}, {vr(a,2)}, {vr(a+64,2)}")
            for p, a in enumerate(regs):
                e(f"v_cvt_pk_bf16_f32 v{d+p}, v{a}, v{a+1}")
            e(f"buffer_store_dwordx4 {vr(d,4)}, v{30+jj}, {sr(S_ACTH)}, {'s5' if qb >= 2 else '0'} offen offset:{(qb%2)*2048} sc1 ; @HST")


V_S0 = V_O + 64


def first_scores():
    out = []
    for kb in range(4):
        for qb in range(4):
            d = vr(V_S0 + (qb * 4 + kb) * 4, 4)
            for ks in range(4):
                out.append(mfma(d, ar(A_KF + (kb * 4 + ks) * 4, 4), ar(A_Q + (qb * 4 + ks) * 4, 4), "0" if ks == 0 else d))
    return out


V_MX, V_TW1, V_XO, V_C256, V_TRD, V_X = 40, 44, 46, 47, 48, 2
ACC = {"G": [128, 144, 160, 176, 192], "S": [64, 80, 96, 112, 208]}
TSTEPS = ["G"] * 7 + ["S"] * 16
TSLOT = 36864
PK = 224


def tail_scalar_stream():
    t = Asm()
    tile_ids(t)
    t("s_lshl_b32 s5, s5, 2")
    t("s_add_u32 s5, s5, s6")
    t(f"s_lshl_b32 s{S_SIGP}, s5, 8")
    t(f"s_add_u32 s{S_SIGP}, s{S_SIGP}, {MISC_CNTP}")
    t(f"s_mul_i32 s5, s5, {PART_TILE}")
    t(f"s_mul_i32 s{S_M0W}, s{S_W}, {PART_WAVE}")
    t(f"s_add_u32 s5, s5, s{S_M0W}")
    t(f"s_add_u32 s5, s5, {WS_PART - WS_MISC}")
    t(f"s_add_u32 s{S_PART}, s{S_WS}, s5\ns_addc_u32 s{S_PART+1}, s{S_WS+1}, 0".replace("\n", "|"))
    t(f"s_mov_b32 s{S_PART+2}, {PART_TILE - 3 * PART_WAVE}")
    t(f"s_mov_b32 s{S_PART+3}, {SRD3}")
    t(f"s_add_u32 s{S_M0W}, s{S_M0W}, 16384")
    for k in range(1, 4):
        t(f"s_xor_b32 s5, s4, {k}")
        t("s_mul_i32 s5, s5, 3")
        t(f"s_add_u32 s5, s5, {k-1}")
        t(f"s_mul_i32 s{S_PS+k}, s5, {PART_SRC}")
    t(f"s_mul_i32 s{S_PS}, s4, {3*PART_SRC}")
    t(f"s_add_u32 s{S_M0A}, s{S_PS}, {PART_SRC}")
    t(f"s_add_u32 s{S_KQ}, s{S_PS}, {2*PART_SRC}")
    return [x.replace("|", "\n") for x in t.lines]


def tail_vector_stream():
    t = Asm()
    t(f"s_lshr_b32 s5, s{S_W}, 1")
    t("s_lshl_b32 s5, s5, 2")
    t("s_bfe_u32 s4, s2, 0x20001")
    t("s_add_u32 s5, s5, s4")
    t("s_lshl_b32 s5, s5, 11")
    t(f"v_add_u32 v{V_TRD}, s5, v{V_L16}")
    for k in range(1, 4):
        t(f"v_xor_b32 v{V_TRD+k}, {2048*k}, v{V_TRD}")
    t(f"s_and_b32 s5, s{S_W}, 1")
    t("s_mul_i32 s5, s5, 10240")
    t("s_add_u32 s5, s5, 16384")
    t(f"v_add_u32 v{V_TRD+4}, s5, v{V_L16}")
    return t.lines


def tail_vector_late():
    t = Asm()
    for k in range(5):
        t(f"v_add_u32 v{V_TRD+5+k}, {2*TSLOT}, v{V_TRD+k}")
    t(f"v_and_b32 v12, 255, v{V_L16}")
    t("v_mul_u32_u24 v12, 80, v12")
    t(f"v_lshrrev_b32 v13, 8, v{V_L16}")
    t(f"v_lshl_add_u32 v{V_XO}, v13, 3, v12")
    t(f"v_lshrrev_b32 v{V_TW1+1}, 1, v{V_L16}")
    t(f"v_add_u32 v{V_TW1+1}, 4096, v{V_TW1+1}")
    t(f"v_mov_b32 v{V_C256}, 0x100")
    t("v_mov_b32 v12, 0x3f80")
    t("v_mov_b32 v13, 0x3f800000")
    return t.lines


def tail_dma(s, part="WA"):
    g = TSTEPS[s] == "G"
    sa, sw = (S_GA, S_GW) if g else (S_SA, S_SW)
    step = 1 if g else (2 if s != 14 else -13)
    op = "s_add_u32" if step > 0 else "s_sub_u32"
    base = (s % 4) * TSLOT
    out = []
    if "W" in part:
        out += [f"s_add_u32 m0, s{S_M0W}, {base}"]
        out += [f"buffer_load_dwordx4 v{V_L16}, {sr(S_TW)}, s{sw} offen offset:{f*1024} sc1 lds ; @T{s}" for f in range(4)]
        out += [f"s_add_u32 m0, s{S_M0W}, {base+4096}", f"buffer_load_dwordx4 v{V_TW1}, {sr(S_TW)}, s{sw} offen sc1 lds ; @T{s}",
                f"{op} s{sw}, s{sw}, {abs(step)*WP_PAIR}"]
    if "A" in part:
        out += [f"s_add_u32 m0, s{S_W4K}, {base}"]
        out += [f"buffer_load_dwordx4 v{V_L16}, {sr(S_TA)}, s{sa} offen offset:{f*1024} sc1 lds ; @T{s}" for f in range(4)]
        out += [f"{op} s{sa}, s{sa}, {abs(step)*8192}"]
    return out


def tbuf(s):
    return ((s + 1) % 2) * 72


def tail_reads(s):
    b = tbuf(s)
    rd = V_TRD + ((s % 4) // 2) * 5
    off = (s % 2) * TSLOT
    wl = [f"ds_read_b128 {ar(b+32+f*4,4)}, v{rd+4} offset:{off+f*1024} ; @TR{s}" for f in range(10)]
    al = [f"ds_read_b128 {ar(b+f*4,4)}, v{rd+f//2} offset:{off+(f%2)*1024} ; @TR{s}" for f in range(8)]
    return wl[:2] + al + wl[2:]


def merge(a, b):
    pos = [i for i, x in enumerate(a) if x.startswith("buffer_")]
    out = list(a)
    for k in range(len(b) - 1, -1, -1):
        out.insert(pos[k * len(pos) // len(b)] + 1 if pos else 0, b[k])
    return out


def tail(e, ost):
    rsoff = [S_PS, S_M0A, S_KQ]

    def xfer(op, kind, base, soff, tag):
        o = 2048 if kind == "S" else 0
        return [f"buffer_{op}_dwordx4 {vr(base,4)}, v{V_L16}, {sr(S_PART)}, s{soff} offen offset:{o} sc1 ; @{tag}",
                f"buffer_{op}_dwordx4 {vr(base+4,4)}, v{V_L16}, {sr(S_PART)}, s{soff} offen offset:{o+1024} sc1 ; @{tag}",
                f"buffer_{op}_dwordx2 {vr(base+8,2)}, v{V_TW1+1}, {sr(S_PART)}, s{soff} offen offset:{o//4} sc1 ; @{tag}"]

    def pack(kind, k):
        return [f"v_cvt_pk_bf16_f32 v{PK+(k-1)*10+2*nb+p}, v{ACC[kind][nb]+4*k+2*p}, v{ACC[kind][nb]+4*k+2*p+1}"
                for nb in range(5) for p in range(2)]

    def send(kind, k):
        return xfer("store", kind, PK + (k - 1) * 10, S_PS + k, "SEND" + kind)

    def recv(kind):
        return [x for k in range(3) for x in xfer("load", kind, ACC[kind][k] + 4, rsoff[k], f"R{kind}{k}")]

    def accumulate(kind):
        for k in range(3):
            e(f"WAITVM R{kind}{k}")
            for nb in range(5):
                for r in range(4):
                    a = ACC[kind][nb] + r
                    e(f"v_dot2_f32_bf16 v{a}, v{ACC[kind][k]+4+2*nb+r//2}, v{12+r%2}, v{a}")

    def atomic(val, soff):
        return f"buffer_atomic_add v{val}, v{V_SIG}, {sr(S_WS)}, s{soff} offen"

    poll_o = f"buffer_load_dword v{V_PVAL}, off, {sr(S_WS)}, s{S_POLLO} sc1"
    poll_p = f"buffer_load_dword v{V_PVAL}, off, {sr(S_WS)}, s{S_SIGP} sc1"
    low = f"v_and_b32 v{V_PVAL}, 0xff, v{V_PVAL}"
    n = len(TSTEPS)
    SIGA, CHKA, SIGB, CHKB = OPT.get("siga", 3), OPT.get("chka", 5), OPT.get("sigb", 6), 11
    GSIG, GCHK = OPT.get("gsig", 14), OPT.get("gchk", 19)
    opace = OPT.get("opace", 3)
    gsend = [x for k in range(1, 4) for x in send("G", k)]
    xres = [f"buffer_load_dwordx2 {vr(V_X+2*nb,2)}, v{V_XO}, {sr(S_X)}, s{S_XO} offen offset:{nb*32}" for nb in range(5)]
    late = recv("G")
    alu = tail_vector_late()
    for s in range(n):
        b = tbuf(s)
        e(f"WAITLG TR{s}")
        if s + 1 < n:
            e(f"WAITVM T{s+1}" + {SIGA: " OST0", SIGB: " OST1", CHKA: " POA", CHKB: " POB", GSIG: " SENDG", GCHK: " PG"}.get(s, ""))
            e("s_barrier")
        if OPT.get("tst") and s != CHKA and s not in (9, 13, 15):
            stamp(e)
        head, side = [], []
        assert s != 1 or not alu
        assert s != 7 or not ost
        if s == SIGA:
            head.append(atomic(V_ONE, S_SIGO))
        if s == SIGB:
            head.append(atomic(V_C256, S_SIGO))
        if s == GSIG:
            head.append(atomic(V_ONE, S_SIGP))
        if s == CHKA - 1:
            head.append(poll_o + " ; @POA")
        if s == CHKB - 2:
            head.append(poll_o + " ; @POB")
        if s == GCHK - OPT.get("gpoll", 2):
            head.append(poll_p + " ; @PG")
        if s == CHKA:
            stamp(e)
            for x in poll_check("M_poa", poll_o, [low, f"v_cmp_gt_u32 vcc, 8, v{V_PVAL}"]):
                e(x)
            stamp(e)
        if s == CHKB:
            for x in poll_check("M_pob", poll_o, [f"v_cmp_gt_u32 vcc, 0x800, v{V_PVAL}"]):
                e(x)
        if s == GCHK:
            for x in poll_check("M_pg", poll_p, [low, f"v_cmp_gt_u32 vcc, 4, v{V_PVAL}"]):
                e(x)
        mem = tail_dma(3) if s == 0 else []
        if s == CHKA:
            for x in range(7, s + 4):
                mem += tail_dma(x, "A")
        if s + 4 < n:
            mem += tail_dma(s + 4, "W" if 7 <= s + 4 < CHKA + 4 else "WA")
        if ost:
            side, ost = ost[:opace], ost[opace:]
        if s == 7:
            alu += pack("G", 1) + pack("G", 2) + pack("G", 3)
        if s >= 8 and gsend:
            assert not alu
            k = OPT.get("gpace", 2)
            side, gsend = gsend[:k], gsend[k:]
        if s == 19:
            side += xres
        if s >= GCHK:
            k = -(-len(late) // (n - 1 - s)) if s < n - 1 else 0
            side, late = side + late[:k], late[k:]
        mem = head + merge(mem, side)
        ds = tail_reads(s + 1) if s + 1 < n else []
        first = s in (0, 7)
        acc_of = ACC[TSTEPS[s]]

        def chain(nb, rb, flip):
            acc = vr(acc_of[nb] + rb * 4, 4)
            return [mfma(acc, ar(b + 32 + (nb * 2 + t) * 4, 4), ar(b + (rb * 2 + t) * 4, 4), "0" if first and i == 0 else acc)
                    for i, t in enumerate((1, 0) if flip else (0, 1))]

        if s + 1 < n:
            mf = [m for nb in range(5) for rb in range(4) for m in chain(nb, rb, rb % 2)]
            fixed = {(i // 3) * 4 + (0, 2, 3)[i % 3]: ([x], []) for i, x in enumerate(ds)}
            nvm = sum(x.startswith("buffer_") for x in mem)
            if nvm > 10:
                fixed = {2 * i: ([x], []) for i, x in enumerate(ds)}
            interleave(e, mf, fixed, [mem, alu], space=4 if nvm <= 10 else 2)
            drain(e, [mem])
        else:
            for rb in (1, 2, 3, 0):
                interleave(e, [m for nb in range(5) for m in chain(nb, rb, nb % 2)], {}, [mem])
                if rb:
                    mem += pack("S", rb) + send("S", rb)
            drain(e, [mem])
    stamp(e)
    e(f"s_mov_b32 s6, {fbits(-LOG2E)}")
    e("s_mov_b32 s7, s6")
    accumulate("G")
    for nb in range(5):
        g = ACC["G"][nb]
        t = g + 4
        for p in range(2):
            e.safe(f"v_pk_mul_f32 {vr(t+2*p,2)}, {vr(g+2*p,2)}, s[6:7]")
        for r in range(4):
            e(f"v_exp_f32 v{t+r}, v{t+r}")
        for p in range(2):
            e(f"v_lshlrev_b32 v{t+4+2*p}, 16, v{V_X+2*nb+p}")
            e(f"v_and_b32 v{t+5+2*p}, 0xffff0000, v{V_X+2*nb+p}")
        for p in range(2):
            e(f"v_pk_add_f32 {vr(t+2*p,2)}, {vr(t+2*p,2)}, 1.0 op_sel_hi:[1,0]")
        for r in range(4):
            e(f"v_rcp_f32 v{t+r}, v{t+r}")
        for p in range(2):
            e.safe(f"v_pk_mul_f32 {vr(t+2*p,2)}, {vr(t+2*p,2)}, {vr(g+2*p,2)}")
    e("s_waitcnt vmcnt(0)")
    e("s_barrier")
    e(atomic(V_C256, S_SIGP))
    e(poll_p)
    e("s_waitcnt vmcnt(0)")
    for x in poll_check("M_pp", poll_p, [f"v_cmp_gt_u32 vcc, 0x400, v{V_PVAL}"]):
        e(x)
    stamp(e)
    for x in recv("S"):
        e(x)
    accumulate("S")
    for nb in range(5):
        s = ACC["S"][nb]
        t = ACC["G"][nb] + 4
        for p in range(2):
            e.safe(f"v_pk_fma_f32 {vr(t+2*p,2)}, {vr(t+2*p,2)}, {vr(s+2*p,2)}, {vr(t+4+2*p,2)}")
        for p in range(2):
            e(f"v_cvt_pk_bf16_f32 v{t+4+p}, v{t+2*p}, v{t+2*p+1}")
        e(f"buffer_store_dwordx2 {vr(t+4,2)}, v{V_XO}, {sr(S_OUT)}, s{S_XO} offen offset:{nb*32}{['', ' sc1', ' nt', ' sc0 sc1'][OPT.get('outf', 0)]}")


def attention(e):
    m = V_M
    e.safe(f"v_and_b32 v{V_POFF}, 7, v0")
    e(f"v_lshlrev_b32 v{V_POFF}, 8, v{V_POFF}")
    e(f"v_add_u32 v{V_POFF}, {MISC_CNTA}, v{V_POFF}")
    repack_addr(e)
    for i in range(8):
        for qb in range(4):
            b = V_S0 + qb * 16
            if i == 0:
                e(f"v_max_f32 v{m+qb}, v{b}, v{b+1}")
            else:
                e(f"v_max3_f32 v{m+qb}, v{m+qb}, v{b+2*i}, v{b+2*i+1}")
    e(f"s_mov_b32 s7, {fbits(-float(OPT.get('bias', 90)))}")
    e("WAITVM K1")
    e("M_restart:")
    e("s_barrier")
    for n in range(LK):
        e(k_read(1, n // 4, n % 4))
    for n in range(LV):
        for v in range(2):
            e(v_read(0, n // 2, n % 2, v))
    e(f"s_mov_b32 m0, s{S_M0K+3}")
    e(f"s_mov_b32 s{S_OFF}, {3*16384}")
    e(k_dma(0))
    e(k_dma(1))
    row_max_finish(e)
    e(f"s_mov_b32 s{S_CNT}, 8")
    for qb in range(4):
        b = V_S0 + qb * 16
        for p in range(8):
            e(f"v_pk_add_f32 {vr(b+2*p,2)}, {vr(b+2*p,2)}, {vr(V_NM+qb*4,2)}")
        for r in range(16):
            e(f"v_exp_f32 v{b+r}, v{b+r}")
        for r in range(4):
            e(f"v_accvgpr_write_b32 a{A_L+qb*4+r}, 0")
        for p in range(8):
            e(f"v_cvt_pk_bf16_f32 v{V_P+qb*8+p}, v{b+2*p}, v{b+2*p+1}")
    e("s_waitcnt lgkmcnt(0)")
    stamp(e)
    attn_step(e, 0, first=True)
    e(".p2align 6")
    e("M_loop:")
    attn_step(e, 1)
    attn_step(e, 2)
    e(f"s_sub_u32 s{S_CNT}, s{S_CNT}, 1")
    e(f"s_cmp_eq_u32 s{S_CNT}, 0")
    e("s_cbranch_scc1 M_last")
    attn_step(e, 3)
    attn_step(e, 0)
    e("s_branch M_loop")
    e("M_last:")
    for x in poll_check("M_pa", POLL_A, [f"v_cmp_gt_u32 vcc, 32, v{V_PVAL}"]):
        e(x)
    e("s_waitcnt vmcnt(0)")
    e("s_barrier")
    T = 24
    mem = [f"v_add_u32 v{V_TW1}, 4096, v{V_L16}"] + tail_dma(0) + tail_dma(1) + tail_dma(2)
    alu, rng = [], []

    def extra(u):
        if u == 2:
            alu.extend(tail_vector_stream())
        if u == 7:
            for qb in range(4):
                alu.extend([f"v_accvgpr_read_b32 v{T+2*qb}, a{A_L+qb*4}", f"v_accvgpr_read_b32 v{T+2*qb+1}, a{A_L+qb*4+1}"])
            for qb in range(4):
                alu.append(f"v_add_f32 v{T+2*qb+1}, v{T+2*qb}, v{T+2*qb+1}")
            for qb in range(4):
                alu.append(f"v_rcp_f32 v{T+2*qb}, v{T+2*qb+1}")
        if u >= 1:
            magnitude(u - 1)
        return [mem, alu, rng]

    def magnitude(u):
        for qb in ((u % 2) * 2, (u % 2) * 2 + 1):
            a = o_reg(u // 2, qb)
            third = f"v{V_MX+qb}" if u >= 2 else f"|v{a+1}|"
            rng.append(f"v_maximum3_f32 v{V_MX+qb}, |v{a}|, |v{a+1}|, {third}")
            rng.append(f"v_maximum3_f32 v{V_MX+qb}, |v{a+2}|, |v{a+3}|, v{V_MX+qb}")

    attn_step(e, 3, qk=False, extra=extra)
    magnitude(15)
    drain(e, [mem, alu])
    stamp(e)

    ost = []
    e("s_mov_b32 s6, 8192")
    for jp in range(2):
        for qb in range(4):
            for t in range(2):
                j = 2 * jp + t
                d = V_P + ((jp * 4 + qb) * 2 + t) * 4
                if (jp, qb, t) == (0, 0, 0):
                    drain(e, [rng])
                    e(f"v_maximum3_f32 v58, v{V_MX}, v{V_MX+1}, v{V_MX+2}")
                    e(f"v_minimum3_f32 v59, v{V_MX}, v{V_MX+1}, v{V_MX+2}")
                    e(f"v_maximum3_f32 v58, v58, v{V_MX+3}, v{T+1}")
                    e(f"v_minimum3_f32 v59, v59, v{V_MX+3}, v{V_MX+3}")
                    e(f"v_maximum3_f32 v58, v58, v{T+3}, v{T+5}")
                    e(f"v_cmp_nle_f32 vcc, {fbits(O_LOW)}, v59")
                    e(f"v_maximum3_f32 v58, v58, v{T+7}, v{T+7}")
                    e("s_mov_b64 s[4:5], vcc")
                    e(f"v_cmp_nge_f32 vcc, {fbits(L_LIMIT)}, v58")
                    e(f"s_lshl_b32 s7, s{S_W}, 2")
                    e(f"s_add_u32 s7, s7, {LDS_FLAG}")
                    e("s_or_b64 s[4:5], s[4:5], vcc")
                    e("s_or_b32 s4, s4, s5")
                    e("v_mov_b32 v59, s7")
                    e("v_mov_b32 v58, s4")
                    e("ds_write_b32 v59, v58")
                    e(f"v_mov_b32 v59, {LDS_FLAG}")
                for u in range(2):
                    a = o_reg(2 * j + u, qb)
                    e(f"v_pk_mul_f32 {vr(a,2)}, {vr(a,2)}, {vr(T+2*qb,2)} op_sel_hi:[1,0]")
                    e(f"v_pk_mul_f32 {vr(a+2,2)}, {vr(a+2,2)}, {vr(T+2*qb,2)} op_sel_hi:[1,0]")
                for u in range(2):
                    a = o_reg(2 * j + u, qb)
                    e(f"v_cvt_pk_bf16_f32 v{d+2*u}, v{a}, v{a+1}")
                    e(f"v_cvt_pk_bf16_f32 v{d+2*u+1}, v{a+2}, v{a+3}")
                ost.append(f"buffer_store_dwordx4 {vr(d,4)}, v{V_L16 if qb < 2 else V_TW1}, {sr(S_ACT)}, {'s6' if jp else '0'} offen offset:{(qb%2)*2048+t*1024} sc1 ; @OST{jp}")
                if ((jp * 4 + qb) * 2 + t) % OPT.get("oearly", 5) == 0:
                    e(ost.pop(0))
        if jp == 0:
            e("s_waitcnt lgkmcnt(0)")
            e("WAITVM T0")
            e("s_barrier")
            e("ds_read_b128 v[60:63], v59 ; @FLG")
            for x in tail_reads(0):
                e(x)
    e("WAITLG FLG")
    e("v_or_b32 v60, v60, v61")
    e("v_or3_b32 v60, v60, v62, v63")
    e.safe("v_readfirstlane_b32 s4, v60")
    e(f"s_andn2_b32 s4, s4, s{S_RETRY}")
    e("s_cbranch_scc1 M_fallback")
    return ost


def fallback(e):
    m = V_M
    e("M_fallback:")
    e(f"s_mov_b32 s{S_RETRY}, -1")
    e(f"s_mov_b32 s{S_SIGA}, {OOB}")
    e(f"s_sub_u32 s{S_GA}, s{S_GA}, {3*8192}")
    e(f"s_sub_u32 s{S_GW}, s{S_GW}, {3*WP_PAIR}")
    for qb in range(4):
        e(f"v_mov_b32 v{m+qb}, 0xff800000")
    e(f"s_mov_b32 s{S_OFF}, 0")
    e("M_maxloop:")
    e("s_waitcnt vmcnt(0) lgkmcnt(0)")
    e("s_barrier")
    e(f"s_mov_b32 m0, s{S_M0K}")
    e("s_nop 0")
    for n in range(4):
        e(k_dma(n))
    e("s_waitcnt vmcnt(0)")
    e("s_barrier")
    for kb in range(4):
        for ks in range(4):
            e(k_read(0, kb, ks))
        e("s_waitcnt lgkmcnt(0)")
        for qb in range(4):
            d = vr(V_P + qb * 4, 4)
            for ks in range(4):
                e(mfma(d, ar(A_KF + (kb * 4 + ks) * 4, 4), ar(A_Q + (qb * 4 + ks) * 4, 4), "0" if ks == 0 else d))
        e("s_nop 7")
        for qb in range(4):
            b = V_P + qb * 4
            e(f"v_max3_f32 v{m+qb}, v{m+qb}, v{b}, v{b+1}")
            e(f"v_max3_f32 v{m+qb}, v{m+qb}, v{b+2}, v{b+3}")
    e(f"s_add_u32 s{S_OFF}, s{S_OFF}, 16384")
    e(f"s_cmp_lt_u32 s{S_OFF}, 524288")
    e("s_cbranch_scc1 M_maxloop")
    e("s_barrier")
    for w, t in (("K", 0), ("K", 1), ("K", 2), ("V", 0), ("V", 1)):
        for x in kv_tile(w, t):
            e(x)
    e("s_waitcnt vmcnt(0)")
    e("s_barrier")
    for kb in range(4):
        for ks in range(4):
            e(k_read(0, kb, ks))
    e("s_waitcnt lgkmcnt(0)")
    for x in first_scores():
        e(x)
    e("s_mov_b32 s7, 0")
    e("s_branch M_restart")


def build():
    e = Asm()
    for l in open(f"cdna_kernels/{NAME}.s.ref").read().split("\n"):
        if not l.startswith(";"):
            break
        if "@launch" not in l:
            e(l)
    e("; @launch grid=(256,1,1) block=(256,1,1) lds=163840")
    e('.amdgcn_target "amdgcn-amd-amdhsa--gfx950"')
    e(".text")
    e(f".globl {KERNEL}")
    e(".p2align 8")
    e(f".type {KERNEL},@function")
    e(f"{KERNEL}:")
    phase1(e, setup(e))
    proj_epilogue(e)
    stamp(e)
    ost = attention(e)
    stamp(e)
    tail(e, ost)
    stamp_flush(e)
    e("M_exit:")
    e("s_endpgm")
    fallback(e)
    emit_spins(e)
    e('.section .rodata,"a"')
    e(".p2align 6")
    e(f".amdhsa_kernel {KERNEL}")
    for d in ("next_free_vgpr 512", "next_free_sgpr 102", "accum_offset 256", "group_segment_fixed_size 0", "kernarg_size 88",
              "user_sgpr_count 2", "user_sgpr_kernarg_segment_ptr 1", "system_sgpr_workgroup_id_x 1"):
        e(f".amdhsa_{d}")
    e(".end_amdhsa_kernel")
    e.resolve()
    errs = []
    errs += check_trace(e.trace(KERNEL, {"M_last": [False, False, True]}), "fast")
    errs += check_trace(e.trace(KERNEL, {"M_last": [False, True, False, True], "M_fallback": [True, False], "M_maxloop": [True, False],
                                         "M_ps_spin": [True], "M_pa_spin": [True, True], "M_poa_spin": [True], "M_pob_spin": [True], "M_poa_back": [True], "M_pob_back": [True], "M_pp_spin": [True], "M_pp_back": [True], "M_pg_spin": [True], "M_pg_back": [True],
                                         "M_ps_back": [True], "M_pa_back": [True, True]}), "slow")
    return e.text(), errs


if __name__ == "__main__":
    if "--stamps" in sys.argv:
        sys.argv.remove("--stamps")
        STAMPS = True
    for a in [x for x in sys.argv if "=" in x]:
        sys.argv.remove(a)
        k, v = a.split("=")
        OPT[k] = int(v)
    text, errs = build()
    for x in errs[:6]:
        print(x)
    out = sys.argv[1] if len(sys.argv) > 1 else f"cdna_kernels/{NAME}.s"
    open(out, "w").write(text)
    print("wrote", out, len(text), "bytes;", len(errs), "check findings; stamps", nstamp[0])
```

```python
import sys, struct
from asm import Asm, check_trace

NAME = "recurrent_scan__gqa_block_cached__dense_activation_silu__prompt"
KERNEL = NAME + "_kernel"
WS_MISC = 0
MISC_CNTA, MISC_CNTO, MISC_CNTP, MISC_SIZE = 16384, 20480, 28672, 45056
WS_ACT = 4 << 20
WS_WP = 32 << 20
WS_STAMP = 64 << 20
WS_PART = 96 << 20
PART_SRC, PART_WAVE, PART_DST, PART_TILE = 2560, 16384, 65536, 262144
NPAIR = 91
ACT_RG = NPAIR * 8192
WP_PAIR = 81920
SRD3 = "0x00020000"
OOB = 0x1000000
LOG2E = 1.4426950408889634
L_LIMIT = 2.0 ** 120
O_LOW = 2.0 ** -110
STAMPS = False
OPT = {}

S_X, S_WQ, S_W1, S_K, S_V, S_ACT, S_ACTH, S_DBG, S_WS, S_R0, S_R1, S_WP, S_TA, S_TW, S_OUT = range(8, 68, 4)
S_M0K, S_M0V = 68, 72
S_W, S_HEAD, S_QT, S_W4K, S_OFF, S_CNT, S_RETRY = range(76, 83)
S_RSRC, S_RSRC2, S_RDST, S_M0R = 83, 84, 85, 86
S_GA, S_GW, S_SA, S_SW, S_XO = range(87, 92)
S_SIGS, S_SIGA, S_SIGO, S_POLLO = 92, 93, 94, 95
S_W2K, S_W8K = 100, 101
S_PART, S_KQ, S_SIGP, S_M0A, S_M0W, S_PS = 48, 12, 13, 14, 15, 16
V_L16 = 1
V_KRD, V_VRD, V_KDMA, V_VDMA = 2, 6, 14, 18
V_STAMP, V_IDX, V_ONES, V_NM, V_P, V_O = 34, 35, 36, 40, 64, 128
SBUF = [56, 60, 24, 28]
V_POFF, V_PVAL, V_ONE, V_SIG = 20, 21, 32, 33
V_XDMA, V_XRD = 20, 24
V_RDMA, V_RRD = 22, 23
V_WQRD, V_W1RD, V_WQDMA, V_W1DMA, V_ST = 40, 48, 52, 56, 52
A_Q, A_KF, A_VF, A_L = 0, 64, 128, 160
A_XF, A_WF, A_CS, A_RP = 64, 128, 160, 176
LDS_K, LDS_V, LDS_W1 = 0, 65536, 131072
LDS_CS = LDS_W1 + 3 * 8192
LDS_FLAG = 163840 - 16
WQ_SLOT = [LDS_V + 3 * 16384, LDS_V + 2 * 16384, LDS_K + 2 * 16384, LDS_K + 3 * 16384]
X_SLOT = [LDS_V, LDS_K]
LK = LV = 5


def fbits(x):
    return "0x%08x" % struct.unpack("<I", struct.pack("<f", x))[0]


def vr(b, n=1):
    return f"v{b}" if n == 1 else f"v[{b}:{b+n-1}]"


def ar(b, n=1):
    return f"a{b}" if n == 1 else f"a[{b}:{b+n-1}]"


def sr(b, n=4):
    return f"s[{b}:{b+n-1}]"


def srd(e, d, src, off, size):
    if off is not None:
        e(f"s_add_u32 s{d}, s{src}, {off}")
        e(f"s_addc_u32 s{d+1}, s{src+1}, 0")
    elif src != d:
        e(f"s_mov_b32 s{d}, s{src}")
        e(f"s_mov_b32 s{d+1}, s{src+1}")
    e(f"s_mov_b32 s{d+2}, {size}")
    e(f"s_mov_b32 s{d+3}, {SRD3}")


def mfma(d, a, b, c):
    return f"v_mfma_f32_16x16x32_bf16 {d}, {a}, {b}, {c}"


def smfmac(d, b):
    return f"v_smfmac_f32_16x16x64_bf16 {d}, {vr(V_ONES,4)}, {b}, v{V_IDX}"


nstamp = [0]


def stamp(e):
    if STAMPS:
        i = nstamp[0]
        nstamp[0] += 1
        e("s_memrealtime s[96:97]")
        e("s_memtime s[98:99]")
        e("s_waitcnt lgkmcnt(0)")
        e(f"v_writelane_b32 v{V_STAMP}, s96, {2*i}")
        e(f"v_writelane_b32 v{V_STAMP}, s98, {2*i+1}")


def stamp_flush(e):
    if not STAMPS:
        return
    e("s_waitcnt vmcnt(0) lgkmcnt(0)")
    stamp(e)
    srd(e, 8, S_WS, WS_STAMP - WS_MISC, 262144)
    e("s_lshl_b32 s12, s2, 2")
    e(f"s_add_u32 s12, s12, s{S_W}")
    e("s_lshl_b32 s12, s12, 8")
    e(f"v_lshrrev_b32 v2, 2, v{V_L16}")
    e(f"buffer_store_dword v{V_STAMP}, v2, s[8:11], s12 offen")
    if "ea" in OPT:
        k = OPT.get("ecyc", 0)
        e(f"v_readlane_b32 s4, v{V_STAMP}, {2*OPT['ea']+k}")
        e(f"v_readlane_b32 s5, v{V_STAMP}, {2*OPT['eb']+k}")
        e("s_nop 3")
        e("s_sub_u32 s5, s5, s4")
        if k:
            e("s_mul_i32 s5, s5, 3277")
            e("s_lshr_b32 s5, s5, 16")
        e("s_add_u32 s5, s5, s96")
        e("M_echo:")
        e("s_memrealtime s[6:7]")
        e("s_waitcnt lgkmcnt(0)")
        e("s_sub_u32 s4, s6, s5")
        e("s_cmp_lt_i32 s4, 0")
        e("s_cbranch_scc1 M_echo")


def kind_of(x):
    if x.startswith("buffer_"):
        return "vm"
    if x.startswith("ds_"):
        return "ds"
    if x.startswith(("v_exp", "v_rcp", "v_sqrt", "v_permlane")):
        return "slow"
    return "valu" if x.startswith("v_") else "scalar"


prev_valu = [False]


def interleave(e, mf, fixed, streams, cap=2, quota=99, space=0):
    last_vm = -space
    for i, m in enumerate(mf):
        e.safe(m)
        pre, post = fixed.get(i, ([], []))
        items = post + pre
        shadow, used, valu = True, 0, False

        def emit(x, safe=False):
            nonlocal shadow, used, valu
            k = kind_of(x)
            (e.safe if safe else e)(x)
            if not (k == "scalar" and shadow):
                used += 2 if k in ("vm", "slow") else 1
            shadow = False
            valu |= k in ("valu", "slow")

        if not (items and kind_of(items[0]) == "scalar"):
            for s in streams:
                if s and kind_of(s[0]) == "scalar" and e.hazard_free(s[0]):
                    emit(s.pop(0))
                    break
        for x in items:
            emit(x, True)
        want_vm = quota > 0 and i + 1 - last_vm >= space and any(
            s and "vm" in [kind_of(y) for y in s[:2]] for s in streams) and i + 1 not in fixed
        progress = True
        while used < cap and progress:
            progress = False
            for kinds in (("vm", "ds", "scalar"), ("valu", "slow")):
                for s in streams:
                    if not s or kind_of(s[0]) not in kinds:
                        continue
                    k = kind_of(s[0])
                    if used + (2 if k in ("vm", "slow") else 1) > cap or not e.hazard_free(s[0]):
                        continue
                    if k == "vm" and (valu or prev_valu[0] or quota == 0 or i - last_vm < space):
                        continue
                    if k == "ds" and valu:
                        continue
                    if k in ("valu", "slow") and want_vm and not valu:
                        continue
                    if k == "vm":
                        last_vm = i
                        quota -= 1
                        want_vm = want_vm and space <= 1 and quota > 0
                    emit(s.pop(0))
                    progress = True
                    break
                if progress:
                    break
        prev_valu[0] = valu


def drain(e, streams):
    for s in streams:
        while s:
            e.safe(s.pop(0))


def o_reg(db, qb):
    return V_O + (db * 4 + qb) * 4


KVF = ["", " sc1", " nt", " sc0", " sc0 sc1"]


def k_dma(n, tag=""):
    return f"buffer_load_dwordx4 v{V_KDMA+n}, {sr(S_K)}, s{S_OFF} offen offset:{n*1024}{KVF[OPT.get('kvf', 0)]} lds{tag}"


def v_dma(n, tag=""):
    return f"buffer_load_dwordx4 v{V_VDMA+(n&1)}, {sr(S_V)}, s{S_OFF} offen offset:{n*1024}{KVF[OPT.get('kvf', 0)]} lds{tag}"


def k_read(tile, kb, ks):
    return f"ds_read_b128 {ar(A_KF+(kb*4+ks)*4,4)}, v{V_KRD+ks} offset:{(tile%4)*16384+kb*4096}"


def v_read(tile, db, t, v):
    return f"ds_read_b64_tr_b16 {ar(A_VF+((db%4)*2+t)*4+2*v,2)}, v{V_VRD+db} offset:{(tile%4)*16384+t*8192+v*4096}"


def kv_tile(which, tile):
    tag = f" ; @{which}{tile}"
    out = [f"s_mov_b32 m0, s{(S_M0K if which == 'K' else S_M0V) + tile % 4}", f"s_mov_b32 s{S_OFF}, {tile*16384}"]
    return out + [(k_dma if which == "K" else v_dma)(n, tag) for n in range(4)]


spins = []


def poll_check(name, load, cond):
    spins.append((name, load, cond))
    return cond + [f"s_cbranch_vccnz {name}_spin\n{name}_back:"]


def emit_spins(e):
    for name, load, cond in spins:
        e(f"{name}_spin:")
        e("s_mov_b32 s3, 0x100000")
        e(f"{name}_loop:")
        e("s_sleep 2")
        e(load)
        e("s_waitcnt vmcnt(0)")
        for x in cond:
            e(x)
        e(f"s_cbranch_vccz {name}_back")
        e("s_sub_u32 s3, s3, 1")
        e("s_cmp_lg_u32 s3, 0")
        e(f"s_cbranch_scc1 {name}_loop")
        e(f"s_branch {name}_back")


POLL_A = f"buffer_load_dword v{V_PVAL}, v{V_POFF}, {sr(S_WS)}, 0 offen sc1"


def attn_step(e, j, qk=True, first=False, extra=None, late=None):
    pw = V_P + ((j + 1) % 2) * 32
    pr = V_P + (j % 2) * 32
    pv = True

    def pdst(x):
        on, base = (qk, pw) if x >= 0 else (not first, pr)
        x %= 16
        return on, base + (x % 4) * 8 + (x // 4) * 2, SBUF[x % 4]

    for u in range(16):
        kb, qb = u // 4, u % 4
        s_cur = SBUF[u % 4]
        M = []
        if qk:
            for ks in range(4):
                c = vr(V_NM + qb * 4, 4) if ks == 0 else vr(s_cur, 4)
                M.append(mfma(vr(s_cur, 4), ar(A_KF + (kb * 4 + ks) * 4, 4), ar(A_Q + (qb * 4 + ks) * 4, 4), c))
        else:
            M += [None] * 4
        if pv:
            db = u // 2
            for h in range(2):
                q2 = (u % 2) * 2 + h
                for t in ((0, 1) if h == 0 else (1, 0)):
                    o = vr(o_reg(db, q2), 4)
                    M.append(mfma(o, ar(A_VF + ((db % 4) * 2 + t) * 4, 4), vr(pr + q2 * 8 + t * 4, 4), "0" if first and t == h else o))
        else:
            M += [None] * 4
        F = [[] for _ in range(8)]
        sc = []
        nreads = 0
        n = u + LK
        if qk and not (j == 30 and n >= 16):
            F[2].append(k_read(j + 1 + n // 16, (n % 16) // 4, n % 4))
            nreads += 1
        n = u + LV
        if n < 16 or qk:
            F[5].append(v_read(j + n // 16, (n % 16) // 2, n % 2, 0))
            F[6].append(v_read(j + n // 16, (n % 16) // 2, n % 2, 1))
            nreads += 2
        on, p, sb = pdst(u - 1)
        if on:
            for r in range(4):
                F[(0, 1, 3, 4)[r]].append(f"v_exp_f32 v{sb+r}, v{sb+r}")
            F[5].append(f"v_cvt_pk_bf16_f32 v{p}, v{sb}, v{sb+1}")
        on, p, sb = pdst(u - 2)
        if on:
            F[2].append(f"v_cvt_pk_bf16_f32 v{p+1}, v{sb+2}, v{sb+3}")
        post = []
        if late:
            q, syncs = late
            while q and kind_of(q[0]) == "scalar" and len(sc) < 6:
                sc.append(q.pop(0))
            if q:
                F[7].append(q.pop(0))
            if u in syncs:
                wait, more = syncs[u]
                assert j != 29 or not any(kind_of(x) == "vm" for x in q)
                post += wait + ["s_barrier"]
                q.extend(more)
            elif u % 4 == 2 and q and kind_of(q[0]) == "vm":
                post.append(q.pop(0))
        elif qk:
            if u == 10:
                post += [f"s_waitcnt vmcnt({[9, 10, 9, 10][j % 4]})", "s_barrier"]
            if u == 12:
                sc.append(f"s_mov_b32 m0, s{S_M0K + j % 4}")
            if u in (12, 14):
                F[7].append(k_dma((u - 12) // 2))
            if u in (0, 2):
                F[7].append(k_dma(2 + u // 2))
            if u == 4:
                sc += [f"s_sub_u32 s{S_OFF}, s{S_OFF}, 16384", f"s_mov_b32 m0, s{S_M0V + (j + 2) % 4}"]
            if u in (4, 6, 8, 10):
                F[7].append(v_dma((u - 4) // 2))
            if u == 11:
                sc.append(f"s_add_u32 s{S_OFF}, s{S_OFF}, 32768")
            if j % 4 == 0:
                if u in (3, 11):
                    sc.append(f"s_mov_b32 m0, s{S_M0R}")
                if u == 3:
                    F[7].append(f"buffer_load_dwordx4 v{V_RDMA}, {sr(S_R0)}, s{S_RSRC} offen lds")
                if u == 11:
                    F[7].append(f"buffer_load_dwordx4 v{V_RDMA}, {sr(S_R0)}, s{S_RSRC2} offen offset:1024 lds")
                if u == 13:
                    sc += [f"s_add_u32 s{S_RSRC}, s{S_RSRC}, 256", f"s_add_u32 s{S_RSRC2}, s{S_RSRC2}, 256",
                           f"s_cmp_gt_u32 s{S_CNT}, 4", f"s_cselect_b32 s{S_R0+2}, s{S_R0+2}, 0"]
                if u == 14:
                    sc += [f"s_cmp_eq_u32 s{S_CNT}, 3", f"s_cselect_b32 s5, s{S_SIGA}, {OOB}"]
                    post.append(f"buffer_atomic_add v{V_ONE}, v{V_SIG}, {sr(S_WS)}, s5 offen")
                if u == 15 and not first:
                    sc.append(f"s_cmp_gt_u32 s{S_CNT}, 1")
            if j % 4 == 2:
                if u == 6:
                    post.append(POLL_A)
                if u >= 12:
                    k = u - 12
                    F[6].append(f"ds_read_b64_tr_b16 {ar(A_RP+2*k,2)}, v{V_RRD} offset:{(k//2)*32+(k%2)*4096}")
                    nreads += 1
                if u == 15:
                    sc.append(f"s_sub_u32 s{S_CNT}, s{S_CNT}, 1")
            if j % 4 == 3:
                if u in (2, 6):
                    post.append(f"buffer_store_dwordx4 {ar(A_RP+(u//4)*4,4)}, v{V_L16}, {sr(S_WP)}, s{S_RDST} offen offset:{(u//4)*2048} sc1")
                if u == 7:
                    sc.append(f"s_add_u32 s{S_RDST}, s{S_RDST}, 16384")
        for i, x in enumerate(sc):
            F[i].insert(0, x)
        if u % 2 == 1:
            F[7].insert(0, f"s_waitcnt lgkmcnt({nreads})")
        if qk and not late and not first:
            drop = tuple(p for k, p in (("nodma", "buffer_"), ("nobar", "s_barrier"), ("novm", "s_waitcnt vmcnt"), ("nolg", "s_waitcnt lgkm"), ("nods", "ds_")) if OPT.get(k))
            if drop:
                keep = lambda x: not x.startswith(drop) or "atomic" in x or x == POLL_A
                F = [[x for x in f if keep(x)] for f in F]
                post = [x for x in post if keep(x)]
        if qk:
            for i in range(8):
                e(M[i])
                for x in F[i]:
                    e(x)
        else:
            for x in F[0] + F[1] + F[2] + F[3] + F[4]:
                e.safe(x)
            fixed = {}
            if F[5]:
                fixed[0] = (F[5][:1] + F[6] + F[5][1:], [])
            if 2 <= u < 6:
                M.append(smfmac(ar(A_L + (u - 2) * 4, 4), vr(pr + (u - 2) * 8, 8)))
            interleave(e, M[4:], fixed, extra(u), cap=OPT.get("fcap", 2))
            for x in F[7]:
                e(x)
        if qk and u % 4 == 2:
            q2 = u // 4
            e(smfmac(ar(A_L + q2 * 4, 4), vr(pr + q2 * 8, 8)))
        for x in post:
            e(x)


V_M = 24


def row_max_finish(e):
    m, t = V_M, V_M + 4
    for swap in ("v_permlane32_swap_b32", "v_permlane16_swap_b32"):
        for qb in range(4):
            e(f"v_mov_b32 v{t+qb}, v{m+qb}")
        for qb in range(4):
            e(f"{swap} v{m+qb}, v{t+qb}")
        for qb in range(4):
            e(f"v_max_f32 v{m+qb}, v{m+qb}, v{t+qb}")
    for qb in range(4):
        for r in range(4):
            e(f"v_sub_f32 v{V_NM+qb*4+r}, s7, v{m+qb}")


def x_dma(c):
    out = []
    for h in range(2):
        out += [f"s_add_u32 m0, s{S_W8K}, {X_SLOT[c%2] + h*4096}", f"s_mov_b32 s4, {c*128 + h*40960}"]
        out += [f"buffer_load_dwordx4 v{V_XDMA+n}, {sr(S_X)}, s4 offen offset:{n*1024} lds ; @X{c}" for n in range(4)]
    return out


def w_dma(c):
    out = [f"s_add_u32 m0, s{S_W4K}, {WQ_SLOT[c%4]}", f"s_mov_b32 s4, {c*64*8192}"]
    out += [f"buffer_load_dwordx4 v{V_WQDMA+n}, {sr(S_WQ)}, s4 offen offset:{n*1024} lds ; @W{c}" for n in range(4)]
    out += [f"s_add_u32 m0, s{S_W2K}, {LDS_W1+(c%4)*8192}", f"s_mov_b32 s4, {c*64*3456}"]
    out += [f"buffer_load_dwordx4 v{V_W1DMA+n}, {sr(S_W1)}, s4 offen offset:{n*1024} lds ; @W{c}" for n in range(2)]
    return out


def x_read(c):
    out = [f"ds_read_b128 {ar(A_XF+(c%2)*32+(qb*2+t)*4,4)}, v{V_XRD+t} offset:{qb*2048} ; @XR{c}" for qb in range(4) for t in range(2)]
    return out + [f"v_xor_b32 v{V_XRD+t}, 0x10000, v{V_XRD+t}" for t in range(2)]


def setup(e):
    e("s_cmp_ge_u32 s2, 256")
    e("s_cbranch_scc1 M_exit")
    for reg, off in ((S_X, 0), (S_WQ, 24), (S_W1, 48), (S_K, 8), (S_V, 16), (S_R0, 32), (S_R1, 56), (S_OUT, 64), (S_DBG, 72), (S_WS, 80)):
        e(f"s_load_dwordx2 {sr(reg,2)}, s[0:1], {off}")
    e("v_lshrrev_b32 v31, 6, v0")
    e("v_mov_b32 v62, v0")
    e(f"v_readfirstlane_b32 s{S_W}, v31")
    e("v_and_b32 v0, 63, v0")
    e("s_and_b32 s3, s2, 7")
    e("s_lshr_b32 s4, s2, 3")
    e(f"s_lshr_b32 s{S_QT}, s4, 2")
    e("s_and_b32 s5, s4, 3")
    e(f"s_lshl_b32 s{S_HEAD}, s3, 2")
    e(f"s_add_u32 s{S_HEAD}, s{S_HEAD}, s5")
    e(f"s_lshl_b32 s{S_W2K}, s{S_W}, 11")
    e(f"s_lshl_b32 s{S_W4K}, s{S_W}, 12")
    e(f"s_lshl_b32 s{S_W8K}, s{S_W}, 13")
    e(f"s_lshl_b32 s5, s{S_QT}, 2")
    e(f"s_add_u32 s5, s5, s{S_W}")
    e("s_mul_i32 s6, s5, 81920")
    e("v_and_b32 v28, 15, v0")
    e("v_lshrrev_b32 v29, 4, v0")
    e("v_lshrrev_b32 v30, 3, v0")
    e("v_and_b32 v31, 7, v0")
    e("v_mul_u32_u24 v26, 1280, v30")
    e("v_add_u32 v26, s6, v26")
    e("v_xor_b32 v27, v31, v29")
    e(f"v_lshl_add_u32 v{V_XDMA}, v27, 4, v26")
    e(f"v_add_u32 v{V_XDMA+2}, {2*(10240-1024)}, v{V_XDMA}")
    e(f"v_xor_b32 v27, 64, v{V_XDMA}")
    e(f"v_add_u32 v{V_XDMA+1}, {10240-1024}, v27")
    e(f"v_add_u32 v{V_XDMA+3}, {3*(10240-1024)}, v27")
    e(f"s_lshl_b32 s6, s{S_W}, 17")
    e("v_lshlrev_b32 v26, 13, v29")
    e("v_add_u32 v26, s6, v26")
    e("v_lshlrev_b32 v27, 2, v29")
    e("v_xor_b32 v27, v27, v28")
    e(f"v_lshl_add_u32 v{V_WQDMA}, v27, 4, v26")
    for n in range(1, 4):
        e(f"v_add_u32 v{V_WQDMA+n}, {n*(32768-1024)}, v{V_WQDMA}")
    e(f"s_lshl_b32 s6, s{S_HEAD}, 8")
    e(f"s_mov_b32 s{S_X+2}, 2621440")
    e(f"s_mov_b32 s{S_X+3}, {SRD3}")
    e("s_waitcnt lgkmcnt(0)")
    stamp(e)
    for x in x_dma(0):
        e.safe(x)
    srd(e, S_WQ, S_WQ, "s6", 640 * 8192 - 31 * 256)
    e(f"s_lshl_b32 s6, s{S_HEAD}, 7")
    srd(e, S_W1, S_W1, "s6", 640 * 3456 - 26 * 128)
    e(f"s_cmp_lt_u32 s{S_HEAD}, 27")
    e(f"s_cselect_b32 s{S_W1+2}, s{S_W1+2}, 0")
    e(f"s_mul_i32 s6, s{S_W}, {16*3456}")
    e("v_mul_u32_u24 v26, 3456, v30")
    e("v_add_u32 v26, s6, v26")
    e("v_and_b32 v27, 2, v30")
    e("v_xor_b32 v27, v27, v31")
    e(f"v_lshl_add_u32 v{V_W1DMA}, v27, 4, v26")
    e(f"v_xor_b32 v27, 64, v{V_W1DMA}")
    e(f"v_add_u32 v{V_W1DMA+1}, {8*3456-1024}, v27")
    e(f"v_lshlrev_b32 v{V_L16}, 4, v0")
    e("v_bfe_u32 v30, v0, 2, 3")
    e("v_and_b32 v31, 3, v0")
    e("v_bfe_u32 v12, v0, 2, 2")
    e("v_lshl_add_u32 v26, v29, 3, v12")
    e("v_lshlrev_b32 v27, 8, v26")
    e("v_lshl_add_u32 v27, v31, 4, v27")
    e(f"v_xor_b32 v12, s{S_W}, v12")
    e(f"v_lshl_add_u32 v{V_WQRD}, v12, 6, v27")
    for j in range(1, 4):
        e(f"v_xor_b32 v{V_WQRD+j}, {j*64}, v{V_WQRD}")
    e("v_lshlrev_b32 v27, 7, v26")
    e("v_lshl_add_u32 v27, v31, 3, v27")
    e(f"v_add_u32 v27, {LDS_W1}, v27")
    e("v_lshrrev_b32 v12, 1, v30")
    e(f"s_and_b32 s6, s{S_W}, 2")
    e("v_xor_b32 v12, s6, v12")
    e(f"v_lshl_add_u32 v{V_W1RD}, v12, 5, v27")
    for nb in range(1, 4):
        e(f"v_xor_b32 v{V_W1RD+nb}, {nb*32}, v{V_W1RD}")
    e("v_lshrrev_b32 v12, 1, v28")
    e("v_xor_b32 v12, v12, v29")
    e("v_lshlrev_b32 v12, 4, v12")
    e("v_lshl_add_u32 v12, v28, 7, v12")
    e(f"s_add_u32 s6, s{S_W8K}, {X_SLOT[0]}")
    e(f"v_add_u32 v{V_XRD}, s6, v12")
    e(f"v_xor_b32 v{V_XRD+1}, 64, v{V_XRD}")
    e("v_and_b32 v26, 1, v0")
    e("v_cmp_eq_u32 vcc, 0, v26")
    e("v_mov_b32 v27, 0x44444444")
    e("v_mov_b32 v12, 0xeeeeeeee")
    e(f"v_cndmask_b32 v{V_IDX}, v12, v27, vcc")
    e("v_and_b32 v26, 2, v0")
    e("v_cmp_eq_u32 vcc, 0, v26")
    e("v_mov_b32 v27, 0x3f803f80")
    e("v_mov_b32 v12, 0")
    for r in range(4):
        e(f"v_cndmask_b32 v{V_ONES+r}, v12, v27, vcc")
    for r in range(16):
        e(f"v_accvgpr_write_b32 a{A_CS+r}, 0")
    e(f"s_lshl_b32 s6, s{S_QT}, 5")
    e(f"s_add_u32 s6, s6, s{S_HEAD}")
    e("s_lshl_b32 s6, s6, 2")
    e(f"s_add_u32 s6, s6, s{S_W}")
    e("s_lshl_b32 s6, s6, 1")
    e("v_lshrrev_b32 v26, 5, v0")
    e("v_add_u32 v26, s6, v26")
    e("v_mul_u32_u24 v27, 1280, v26")
    e("v_and_b32 v12, 31, v0")
    e("v_lshl_add_u32 v13, v12, 4, v27")
    e("v_lshl_add_u32 v14, v12, 3, v27")
    e("v_cmp_eq_u32 vcc, 0, v12")
    e("v_lshlrev_b32 v26, 3, v26")
    e(f"v_mov_b32 v19, {OOB}")
    e("v_cndmask_b32 v19, v19, v26, vcc")
    e("v_cmp_eq_u32 vcc, 0, v62")
    e(f"v_mov_b32 v{V_SIG}, {OOB}")
    e(f"v_mov_b32 v{V_ONE}, 0")
    e(f"v_cndmask_b32 v{V_SIG}, v{V_SIG}, v0, vcc")
    for x in w_dma(0):
        e.safe(x)
    late = Asm()
    late_setup(late)
    for x in late.lines:
        e.safe(x)
    mem = x_dma(1) + w_dma(1)
    for x in mem[:OPT.get("nearly", 10)]:
        e.safe(x)
    return mem[OPT.get("nearly", 10):]


SROW = [f"buffer_load_dwordx4 v[2:5], v13, {sr(S_X)}, 0 offen ; @SROW",
        f"buffer_load_dwordx4 v[6:9], v13, {sr(S_X)}, 0 offen offset:512 ; @SROW",
        f"buffer_load_dwordx2 v[10:11], v14, {sr(S_X)}, 0 offen offset:1024 ; @SROW"]


def tile_ids(e):
    e("s_bfe_u32 s4, s2, 0x20001")
    e("s_and_b32 s5, s2, 1")
    e("s_lshl_b32 s5, s5, 3")
    e("s_bfe_u32 s6, s2, 0x30003")
    e("s_add_u32 s5, s5, s6")
    e("s_lshr_b32 s6, s2, 6")


def late_setup(e):
    e(f"s_lshl_b32 s6, s{S_HEAD}, 19")
    srd(e, S_K, S_K, "s6", 524288)
    srd(e, S_V, S_V, "s6", 524288)
    e(f"s_mul_i32 s6, s5, {ACT_RG}")
    e(f"s_add_u32 s6, s6, {WS_ACT}")
    e(f"s_lshl_b32 s7, s{S_HEAD}, 14")
    e("s_add_u32 s7, s7, s6")
    srd(e, S_ACT, S_WS, "s7", 16384)
    e(f"s_lshl_b32 s7, s{S_HEAD}, 13")
    e(f"s_add_u32 s7, s7, {64*8192}")
    e("s_add_u32 s7, s7, s6")
    srd(e, S_ACTH, S_WS, "s7", 8192)
    e(f"s_cmp_lt_u32 s{S_HEAD}, 27")
    e(f"s_cselect_b32 s{S_ACTH+2}, s{S_ACTH+2}, 0")
    srd(e, S_DBG, S_DBG, None, 256)
    srd(e, S_OUT, S_OUT, None, 2621440)
    tile_ids(e)
    e("s_lshl_b32 s7, s5, 1")
    e(f"s_lshr_b32 s3, s{S_W}, 1")
    e("s_add_u32 s3, s7, s3")
    e(f"s_mul_i32 s7, s3, {ACT_RG}")
    e(f"s_add_u32 s7, s7, {WS_ACT}")
    e(f"s_and_b32 s{S_XO}, s{S_W4K}, 4096")
    e(f"s_add_u32 s7, s7, s{S_XO}")
    srd(e, S_TA, S_WS, "s7", (NPAIR - 1) * 8192 + 4096)
    e("s_lshl_b32 s7, s6, 2")
    e(f"s_add_u32 s7, s7, s{S_W}")
    e("s_mul_i32 s7, s7, 5120")
    e(f"s_add_u32 s7, s7, {WS_WP}")
    srd(e, S_TW, S_WS, "s7", (NPAIR - 1) * WP_PAIR + 5120)
    e("s_lshl_b32 s3, s3, 2")
    e("s_add_u32 s3, s3, s4")
    e(f"s_mul_i32 s{S_XO}, s3, 20480")
    e("s_lshl_b32 s7, s6, 1")
    e(f"s_and_b32 s3, s{S_W}, 1")
    e("s_add_u32 s7, s7, s3")
    e("s_mul_i32 s7, s7, 160")
    e(f"s_add_u32 s{S_XO}, s{S_XO}, s7")
    e("s_lshr_b32 s7, s5, 1")
    e("s_lshl_b32 s7, s7, 2")
    e("s_add_u32 s7, s7, s4")
    e("s_lshl_b32 s7, s7, 8")
    e(f"s_add_u32 s{S_POLLO}, s7, {MISC_CNTO}")
    e("s_mul_i32 s7, s4, 7")
    e("s_add_u32 s7, s7, 64")
    e(f"s_lshl_b32 s{S_GA}, s7, 13")
    e(f"s_mul_i32 s{S_GW}, s7, {WP_PAIR}")
    e(f"s_lshl_b32 s{S_SA}, s4, 17")
    e(f"s_mul_i32 s{S_SW}, s4, {16*WP_PAIR}")
    e("s_lshl_b32 s5, s5, 2")
    e("s_add_u32 s5, s5, s6")
    e("s_lshl_b32 s5, s5, 8")
    e(f"s_add_u32 s5, s5, {MISC_CNTP}")
    e("s_cmp_eq_u32 s4, 0")
    e(f"s_cselect_b32 s5, s5, {OOB}")
    e("s_sub_u32 s6, s2, 128")
    e("s_cmp_lt_u32 s2, 128")
    e(f"s_cselect_b64 {sr(S_R0,2)}, {sr(S_R0,2)}, {sr(S_R1,2)}")
    e("s_cselect_b32 s6, s2, s6")
    e("s_mul_i32 s6, s6, 40960")
    srd(e, S_R0, S_R0, "s6", 40960)
    e("s_lshr_b32 s6, s2, 1")
    e(f"s_mul_i32 s6, s6, {WP_PAIR}")
    e(f"s_add_u32 s6, s6, {WS_WP}")
    srd(e, S_WP, S_WS, "s6", WP_PAIR)
    e(f"s_cmp_lt_u32 s2, {2*NPAIR}")
    e(f"s_cselect_b32 s{S_R0+2}, s{S_R0+2}, 0")
    e(f"s_cselect_b32 s{S_WP+2}, s{S_WP+2}, 0")
    e("s_and_b32 s6, s2, 1")
    e("s_lshl_b32 s6, s6, 10")
    e(f"s_add_u32 s{S_RDST}, s6, s{S_W4K}")
    e(f"s_mov_b32 s{S_RSRC}, 0")
    e(f"s_mov_b32 s{S_RSRC2}, 4096")
    e(f"s_add_u32 s{S_M0R}, s{S_W2K}, {LDS_W1}")
    srd(e, S_WS, S_WS, WS_MISC if WS_MISC else None, MISC_SIZE)
    e(f"s_lshl_b32 s{S_SIGS}, s{S_QT}, 5")
    e(f"s_lshl_b32 s7, s{S_QT}, 8")
    e(f"s_add_u32 s{S_SIGA}, s7, {MISC_CNTA}")
    e(f"s_lshl_b32 s7, s{S_QT}, 2")
    e(f"s_lshr_b32 s6, s{S_HEAD}, 3")
    e("s_add_u32 s7, s7, s6")
    e("s_lshl_b32 s7, s7, 8")
    e(f"s_add_u32 s{S_SIGO}, s7, {MISC_CNTO}")
    for i in range(4):
        e(f"s_add_u32 s{S_M0K+i}, s{S_W4K}, {LDS_K + i*16384}")
        e(f"s_add_u32 s{S_M0V+i}, s{S_W4K}, {LDS_V + i*16384}")
    e(f"s_mov_b32 s{S_RETRY}, 0")
    e(f"s_cmp_eq_u32 s{S_HEAD}, 0")
    e(f"s_cselect_b32 s6, s{S_SIGA}, {OOB}")
    e(f"s_and_b32 s7, s{S_HEAD}, 7")
    e(f"s_cselect_b32 s7, {OOB}, s{S_SIGO}")
    if OPT.get("pf", 1):
        e("s_getpc_b64 s[48:49]")
        e("M_pc:")
        e("s_mov_b32 s50, M_exit-M_pc")
        e(f"s_mov_b32 s51, {SRD3}")
        e("s_lshr_b32 s3, s2, 3")
        e("s_lshl_b32 s3, s3, 11")
        e("v_cmp_gt_u32 vcc, 16, v62")
        e("v_lshl_add_u32 v62, v62, 7, s3")
        e(f"v_mov_b32 v63, {OOB}")
        e("v_cndmask_b32 v62, v63, v62, vcc")


def early_mem():
    out = [f"buffer_store_dword v{V_ONE}, v{V_SIG}, {sr(S_WS)}, s6 offen sc1",
           f"buffer_store_dword v{V_ONE}, v{V_SIG}, {sr(S_WS)}, s7 offen sc1",
           f"buffer_store_dword v{V_ONE}, v{V_SIG}, {sr(S_WS)}, s5 offen sc1"]
    if OPT.get("pf", 1):
        out += ["buffer_load_dword v63, v62, s[48:51], 0 offen ; nocheck"]
    return out + [f"v_mov_b32 v{V_ONE}, 1"]


def stats_stream():
    s = ["WAITVM SROW"]

    def unpack(i, dst):
        return f"v_lshlrev_b32 v{dst}, 16, v{2+i//2}" if i % 2 == 0 else f"v_and_b32 v{dst}, 0xffff0000, v{2+i//2}"

    def reduce32():
        out = ["v_add_f32 v12, v12, v13"]
        for rot in (8, 4, 2, 1):
            out.append(f"v_add_f32_dpp v12, v12, v12 row_ror:{rot} row_mask:0xf bank_mask:0xf")
        out += ["v_mov_b32 v13, v12", "v_permlane16_swap_b32 v12, v13", "v_add_f32 v12, v12, v13",
                f"v_mul_f32 v12, {fbits(1.0/640)}, v12"]
        return out

    s += [unpack(0, 12), unpack(1, 13)]
    for i in range(2, 20, 2):
        s += [unpack(i, 14), unpack(i + 1, 15), "v_add_f32 v12, v12, v14", "v_add_f32 v13, v13, v15"]
    s += reduce32() + ["v_mov_b32 v16, v12"]
    for i in range(0, 20, 2):
        s += [unpack(i, 14), unpack(i + 1, 15), "v_sub_f32 v14, v14, v16", "v_sub_f32 v15, v15, v16"]
        op = "v_mul_f32" if i == 0 else "v_fmac_f32"
        s += [f"{op} v12, v14, v14", f"{op} v13, v15, v15"]
    s += reduce32()
    s += ["v_cvt_pk_bf16_f32 v13, v12, v16", "v_and_b32 v16, 0xffff0000, v13", "v_lshlrev_b32 v12, 16, v13",
          "v_xor_b32 v16, 0x80000000, v16", f"v_add_f32 v12, {fbits(1e-5)}, v12", "v_cvt_pk_bf16_f32 v12, v12, v12",
          "v_lshlrev_b32 v12, 16, v12", "v_sqrt_f32 v12, v12", "v_cvt_pk_bf16_f32 v12, v12, v12",
          "v_lshlrev_b32 v12, 16, v12", "v_rcp_f32 v17, v12", "s_nop 0",
          f"buffer_store_dwordx2 v[16:17], v19, {sr(S_WS)}, 0 offen sc1 ; @SST"]
    return s


def kv_addr_stream():
    s = [f"s_lshl_b32 s5, s{S_W}, 2", "v_xor_b32 v26, v28, v29", "v_xor_b32 v27, s5, v26", "v_lshlrev_b32 v27, 4, v27",
         f"v_lshl_add_u32 v{V_KRD}, v28, 8, v27"]
    s += [f"v_xor_b32 v{V_KRD+ks}, {64*ks}, v{V_KRD}" for ks in range(1, 4)]
    s += ["v_lshlrev_b32 v27, 8, v29", f"v_add_u32 v27, s{S_W4K}, v27", f"v_lshl_add_u32 v{V_KDMA}, v26, 4, v27"]
    s += [f"v_xor_b32 v{V_KDMA+n}, {64*n}, v{V_KDMA}" for n in range(1, 4)]
    s += ["v_lshlrev_b32 v26, 1, v29", "v_xor_b32 v26, v26, v28", f"v_lshl_add_u32 v{V_VDMA}, v26, 4, v27",
          f"v_xor_b32 v{V_VDMA+1}, 128, v{V_VDMA}"]
    s += ["v_lshrrev_b32 v27, 2, v0", "v_lshlrev_b32 v27, 8, v27", "v_lshl_add_u32 v27, v31, 3, v27",
          f"v_add_u32 v27, {LDS_V}, v27", f"v_lshl_add_u32 v{V_VRD}, v30, 5, v27"]
    s += [f"v_xor_b32 v{V_VRD+db}, {32*db}, v{V_VRD}" for db in range(1, 8)]
    return s


def repack_addr(e):
    e(f"s_mul_i32 s5, s{S_W}, {8*1280}")
    e("v_lshrrev_b32 v56, 4, v0")
    e("v_mul_u32_u24 v57, 1280, v56")
    e("v_add_u32 v57, s5, v57")
    e("v_lshlrev_b32 v56, 6, v56")
    e(f"v_and_b32 v58, 255, v{V_L16}")
    e("v_xor_b32 v56, v56, v58")
    e(f"v_add_u32 v{V_RDMA}, v56, v57")
    e("v_lshrrev_b32 v56, 2, v0")
    e("v_and_b32 v57, 3, v56")
    e(f"v_xor_b32 v57, s{S_W}, v57")
    e("v_lshlrev_b32 v57, 6, v57")
    e("v_lshl_add_u32 v57, v56, 8, v57")
    e("v_and_b32 v56, 3, v0")
    e("v_lshl_add_u32 v57, v56, 3, v57")
    e(f"v_add_u32 v{V_RRD}, {LDS_W1}, v57")


CS_SITES = {0: 0, 1: 1, 8: 2, 9: 3}


XR_AT = 6


def phase1(e, carry):
    half = ["lo"] * 8

    def w_reads(c, nb):
        out = []
        if nb < 8:
            base = WQ_SLOT[c % 4]
            h = "hi" if base >= 65536 else "lo"
            if half[nb // 2] != h:
                out.append(f"v_xor_b32 v{V_WQRD+nb//2}, 0x10000, v{V_WQRD+nb//2}")
                half[nb // 2] = h
        for t in range(2):
            for v in range(2):
                d = ar(A_WF + ((nb % 4) * 2 + t) * 4 + 2 * v, 2)
                if nb < 8:
                    out.append(f"ds_read_b64_tr_b16 {d}, v{V_WQRD+nb//2} offset:{base%65536+t*8192+v*1024+(nb%2)*8} ; @WR{c}_{nb}")
                else:
                    out.append(f"ds_read_b64_tr_b16 {d}, v{V_W1RD+nb-8} offset:{(c%4)*8192+t*4096+v*512} ; @WR{c}_{nb}")
        return out

    e("WAITVM W0")
    e("s_barrier")
    stamp(e)
    for x in x_read(0) + w_reads(0, 0) + w_reads(0, 1):
        e(x)
    e("WAITLG WR0_0")
    poll_s = f"buffer_load_dword v63, v62, {sr(S_DBG)}, 0 offen sc1"
    mem, alu, xr = carry, [], []
    ramp = OPT.get("ramp", 36)
    srow = [int(x) for x in "%03d" % OPT.get("srow", 222)]
    SIG_AT = srow[2] + OPT.get("sigd", 3)
    for c in range(10):
        mem += [x for k, x in enumerate(SROW) if srow[k] == c]
        if c + 2 < 10:
            mem += x_dma(c + 2) + w_dma(c + 2)
        if c == 0:
            mem += early_mem()
        if c == srow[2] + 1:
            alu += stats_stream()
        if c == 7:
            alu += kv_addr_stream()
        if c == 8:
            assert not alu
            alu += tail_scalar_stream()
            mem += ["v_and_b32 v62, 7, v0", "v_lshlrev_b32 v62, 5, v62", poll_s + " ; @PS"]
            mem += kv_tile("V", 0) + kv_tile("V", 1)
        if c == 9:
            assert not alu
            pre9 = ["WAITVM PS"] + poll_check("M_ps", poll_s, ["v_cmp_gt_u32 vcc, 32, v63"])
            pre9 += [f"s_lshl_b32 s5, s{S_QT}, 2", f"s_add_u32 s5, s5, s{S_W}", "s_lshl_b32 s5, s5, 9", "v_lshlrev_b32 v62, 3, v28"]
            pre9 += [f"buffer_load_dwordx2 {vr(V_ST+2*qb,2)}, v62, {sr(S_WS)}, s5 offen offset:{qb*128} sc1 ; @STL" for qb in range(4)]
            mem += pre9 + kv_tile("K", 1) + kv_tile("K", 2)
        for nb in range(12):
            fixed = {}
            n2 = nb + 2
            reads = w_reads(c, n2) if n2 < 12 else (w_reads(c + 1, n2 - 12) if c < 9 else [])
            pre = []
            if nb == XR_AT and c < 9:
                xr += [f"WAITVM X{c+1}"] + x_read(c + 1)
            if nb == 10 and c < 9:
                assert not xr, (c, xr)
                pre = [f"WAITVM W{c+1}" + (" SST" if c == SIG_AT else ""), "s_barrier"]
                if c >= 7:
                    pre = [f"WAITLG XR{c+1}"] + pre
                if c == SIG_AT:
                    assert not alu
                    mem.insert(0, f"buffer_atomic_add v{V_ONE}, v{V_SIG}, {sr(S_DBG)}, s{S_SIGS} offen")
                if c == 8:
                    mem += kv_tile("K", 0)
            if c == 9 and nb == 10:
                assert not alu and not any("@STL" in x for x in mem), alu
                alu += [f"s_lshl_b32 s5, s{S_W}, 7", f"s_add_u32 s5, s5, {LDS_CS}", "v_lshl_add_u32 v60, v28, 2, s5",
                        f"s_and_b32 s5, s{S_W}, 2", "s_lshl_b32 s5, s5, 6", f"s_add_u32 s5, s5, {LDS_CS+512}", "v_lshl_add_u32 v61, v28, 2, s5"]
                for k in range(4):
                    alu += [f"v_accvgpr_read_b32 v62, a{A_CS+4*k}", f"v_accvgpr_read_b32 v63, a{A_CS+4*k+1}",
                            f"v_add_f32 v{20+k}, v62, v63", f"ds_write_b32 v{60+k//2}, v{20+k} offset:{(k%2)*64}"]
            slot = 0
            if pre:
                fixed[0] = (pre, [])
                slot = 1
            extra = len(reads) - 4
            for i, x in enumerate(reads):
                k = slot + max(0, i - max(extra, 0))
                fixed.setdefault(k, ([], []))[0].append(x)
            nxt = (c, nb + 1) if nb < 11 else (c + 1, 0)
            mf = []
            for qb in range(4):
                for t in ((0, 1) if qb % 2 == 0 else (1, 0)):
                    acc = vr(o_reg(nb, qb), 4) if nb < 8 else vr(V_P + ((nb - 8) * 4 + qb) * 4, 4)
                    first = c == 0 and len(mf) % 2 == 0
                    mf.append(mfma(acc, ar(A_WF + ((nb % 4) * 2 + t) * 4, 4), ar(A_XF + (c % 2) * 32 + (qb * 2 + t) * 4, 4), "0" if first else acc))
            if nb in CS_SITES:
                mf.append(smfmac(ar(A_CS + 4 * CS_SITES[nb], 4), ar(A_WF + (nb % 4) * 8, 8)))
            if nxt[0] < 10:
                fixed.setdefault(len(mf) - 1, ([], []))[1].append(f"WAITLG WR{nxt[0]}_{nxt[1]}")
            nvm = sum(x.startswith("buffer_") for x in mem)
            quota = min(-(-nvm // (12 - nb)), (nb + 1) * ramp // 12 - nb * ramp // 12)
            interleave(e, mf, fixed, [xr, mem, alu], quota=quota + any(x.startswith("buffer_") for x in alu[:12]))
        assert not mem or c in (0, 1, 2, 3, 4, 8), (c, mem)
        if OPT.get("p1st") and c < 9:
            stamp(e)
    drain(e, [mem, alu])
    stamp(e)
    e("s_waitcnt lgkmcnt(0)")
    e("s_barrier")


def proj_epilogue(e):
    CSR, T = 40, 20
    e(f"s_lshl_b32 s5, s{S_W}, 7")
    e(f"s_add_u32 s5, s5, {LDS_CS}")
    e("v_lshl_add_u32 v60, v29, 4, s5")
    e(f"s_and_b32 s5, s{S_W}, 2")
    e("s_lshl_b32 s6, s5, 6")
    e(f"s_add_u32 s6, s6, {LDS_CS+512}")
    e("v_lshl_add_u32 v61, v29, 4, s6")
    e("s_lshl_b32 s5, s5, 9")
    e(f"v_xor_b32 v30, s5, v{V_L16}")
    e("v_xor_b32 v31, 1024, v30")

    def cs_read(g):
        out = []
        src = 60 if g < 4 else 61
        k = g if g < 4 else g - 4
        if k:
            out.append(f"v_xor_b32 v{src}, {128*(k^(k-1))}, v{src}")
        for u in range(2):
            out.append(f"ds_read_b128 {vr(CSR+u*4,4)}, v{src} offset:{u*64} ; @CS{g}")
        return out

    for x in cs_read(0):
        e(x)
    e("WAITVM STL")
    e(f"s_mov_b32 s6, {fbits(LOG2E * 128 ** -0.5)}")
    for qb in range(4):
        e(f"v_mul_f32 v{48+qb}, s6, v{V_ST+2*qb+1}")

    def center(g, regs):
        e(f"WAITLG CS{g}")
        for qb in range(4):
            for u in range(2):
                a = regs(u, qb)
                for p in range(2):
                    e(f"v_pk_fma_f32 {vr(a+2*p,2)}, {vr(CSR+u*4+2*p,2)}, {vr(V_ST+2*qb,2)}, {vr(a+2*p,2)} op_sel_hi:[1,0,1]")
        if g < 5:
            for x in cs_read(g + 1):
                e(x)

    for j in range(4):
        center(j, lambda u, qb: o_reg(2 * j + u, qb))
        for q0 in (0, 2):
            pair = [(q0 + i, T + 4 * i) for i in range(2)]
            for qb, t in pair:
                sel = "op_sel_hi:[1,0]" if qb % 2 == 0 else "op_sel:[0,1] op_sel_hi:[1,1]"
                for u in range(2):
                    a = o_reg(2 * j + u, qb)
                    for p in range(2):
                        e(f"v_pk_mul_f32 {vr(a+2*p,2)}, {vr(a+2*p,2)}, {vr(48+q0,2)} {sel}")
            for qb, t in pair:
                for u in range(2):
                    a = o_reg(2 * j + u, qb)
                    e(f"v_cvt_pk_bf16_f32 v{t+2*u}, v{a}, v{a+1}")
                    e(f"v_cvt_pk_bf16_f32 v{t+2*u+1}, v{a+2}, v{a+3}")
            for qb, t in pair:
                for r in range(4):
                    e(f"v_accvgpr_write_b32 a{A_Q+(qb*4+j)*4+r}, v{t+r}")
    e(f"s_mov_b32 s6, {fbits(-LOG2E)}")
    for qb in range(4):
        e(f"v_mul_f32 v{48+qb}, s6, v{V_ST+2*qb+1}")
        e(f"v_rcp_f32 v{V_ST+2*qb+1}, v{V_ST+2*qb+1}")
    for jj in range(2):
        hreg = lambda u, qb: V_P + ((2 * jj + u) * 4 + qb) * 4
        center(4 + jj, hreg)
        if jj == 0:
            e("WAITVM K0")
            e("s_barrier")
            for kb in range(4):
                for ks in range(4):
                    e(k_read(0, kb, ks) + f" ; @K0R{kb}")
        for qb in range(4):
            sel = "op_sel_hi:[1,0]" if qb % 2 == 0 else "op_sel:[0,1] op_sel_hi:[1,1]"
            for u in range(2):
                for p in range(2):
                    a = hreg(u, qb) + 2 * p
                    e(f"v_pk_mul_f32 {vr(a+64,2)}, {vr(a,2)}, {vr(48+(qb//2)*2,2)} {sel}")
    e("WAITLG K0R3")
    for i, m in enumerate(first_scores()):
        e.safe(m)
        e(f"v_exp_f32 v{V_O+i}, v{V_O+i}")
    e("s_mov_b32 s5, 4096")
    for jj in range(2):
        for qb in range(4):
            regs = [V_P + ((2 * jj + u) * 4 + qb) * 4 + 2 * p for u in range(2) for p in range(2)]
            d = T + (qb % 2) * 4
            for a in regs:
                e(f"v_pk_fma_f32 {vr(a+64,2)}, {vr(a+64,2)}, {vr(V_ST+2*qb,2)}, {vr(V_ST+2*qb,2)} op_sel:[0,1,1] op_sel_hi:[1,1,1]")
            for a in regs:
                e(f"v_rcp_f32 v{a+64}, v{a+64}")
                e(f"v_rcp_f32 v{a+65}, v{a+65}")
            for a in regs:
                e(f"v_pk_mul_f32 {vr(a,2)}, {vr(a,2)}, {vr(a+64,2)}")
            for p, a in enumerate(regs):
                e(f"v_cvt_pk_bf16_f32 v{d+p}, v{a}, v{a+1}")
            e(f"buffer_store_dwordx4 {vr(d,4)}, v{30+jj}, {sr(S_ACTH)}, {'s5' if qb >= 2 else '0'} offen offset:{(qb%2)*2048} sc1 ; @HST")


V_S0 = V_O + 64


def first_scores():
    out = []
    for kb in range(4):
        for qb in range(4):
            d = vr(V_S0 + (qb * 4 + kb) * 4, 4)
            for ks in range(4):
                out.append(mfma(d, ar(A_KF + (kb * 4 + ks) * 4, 4), ar(A_Q + (qb * 4 + ks) * 4, 4), "0" if ks == 0 else d))
    return out


V_MX, V_L8, V_XO, V_C256, V_TRD, V_X = 40, 45, 46, 47, 48, 2
V_L4K = V_RDMA
ACC = {"G": [128, 144, 160, 176, 192], "S": [64, 80, 96, 112, 208]}
TSTEPS = ["G"] * 7 + ["S"] * 16
TW_SLOT = [LDS_W1 + 8192, 0, 20480, 40960]
PK = 224


def tail_scalar_stream():
    t = Asm()
    tile_ids(t)
    t("s_lshl_b32 s5, s5, 2")
    t("s_add_u32 s5, s5, s6")
    t(f"s_lshl_b32 s{S_SIGP}, s5, 8")
    t(f"s_add_u32 s{S_SIGP}, s{S_SIGP}, {MISC_CNTP}")
    t(f"s_mul_i32 s5, s5, {PART_TILE}")
    t(f"s_mul_i32 s6, s{S_W}, {PART_WAVE}")
    t("s_add_u32 s5, s5, s6")
    t(f"s_add_u32 s5, s5, {WS_PART - WS_MISC}")
    t(f"s_add_u32 s{S_PART}, s{S_WS}, s5|s_addc_u32 s{S_PART+1}, s{S_WS+1}, 0")
    t(f"s_mov_b32 s{S_PART+2}, {PART_TILE - 3 * PART_WAVE}")
    t(f"s_mov_b32 s{S_PART+3}, {SRD3}")
    t(f"s_mul_i32 s{S_M0W}, s{S_W}, 5120")
    for k in range(1, 4):
        t(f"s_xor_b32 s5, s4, {k}")
        t(f"s_mul_i32 s5, s5, {PART_DST}")
        t(f"s_add_u32 s{S_PS+k}, s5, {(k-1)*PART_SRC}")
    t(f"s_mul_i32 s{S_PS}, s4, {PART_DST}")
    t(f"s_add_u32 s{S_M0A}, s{S_PS}, {PART_SRC}")
    t(f"s_add_u32 s{S_KQ}, s{S_PS}, {2*PART_SRC}")
    return [x.replace("|", "\n") for x in t.lines]


def tail_vector_stream():
    t = Asm()
    t(f"s_lshr_b32 s5, s{S_W}, 1")
    t("s_lshl_b32 s5, s5, 2")
    t("s_bfe_u32 s4, s2, 0x20001")
    t("s_add_u32 s5, s5, s4")
    t("s_lshl_b32 s5, s5, 11")
    t(f"s_add_u32 s5, s5, {LDS_V}")
    t(f"v_add_u32 v{V_TRD}, s5, v{V_L16}")
    for k in range(1, 4):
        t(f"v_xor_b32 v{V_TRD+k}, {2048*k}, v{V_TRD}")
    t(f"s_and_b32 s5, s{S_W}, 1")
    t("s_mul_i32 s5, s5, 10240")
    t(f"v_add_u32 v{V_TRD+4}, s5, v{V_L16}")
    t(f"v_add_u32 v{V_TRD+5}, {TW_SLOT[0]}, v{V_TRD+4}")
    return t.lines


def tail_vector_late():
    t = Asm()
    t(f"v_and_b32 v12, 255, v{V_L16}")
    t("v_mul_u32_u24 v12, 80, v12")
    t(f"v_lshrrev_b32 v13, 8, v{V_L16}")
    t(f"v_lshl_add_u32 v{V_XO}, v13, 3, v12")
    t(f"v_lshrrev_b32 v{V_L8}, 1, v{V_L16}")
    t(f"v_add_u32 v14, 8192, v{V_L16}")
    t(f"v_add_u32 v15, 8192, v{V_L8}")
    t(f"v_mov_b32 v{V_C256}, 0x100")
    t("v_mov_b32 v12, 0x3f80")
    t("v_mov_b32 v13, 0x3f800000")
    return t.lines


def tail_dma(s, part="WA"):
    g = TSTEPS[s] == "G"
    sa, sw = (S_GA, S_GW) if g else (S_SA, S_SW)
    step = 1 if g else (2 if s != 14 else -13)
    op = "s_add_u32" if step > 0 else "s_sub_u32"
    out = []
    if "W" in part:
        base = TW_SLOT[s % 4]
        out += [f"s_add_u32 m0, s{S_M0W}, {base}"]
        out += [f"buffer_load_dwordx4 v{V_L16}, {sr(S_TW)}, s{sw} offen offset:{f*1024} sc1 lds ; @T{s}" for f in range(4)]
        out += [f"s_add_u32 m0, s{S_M0W}, {base+4096}", f"buffer_load_dwordx4 v{V_L4K}, {sr(S_TW)}, s{sw} offen sc1 lds ; @T{s}",
                f"{op} s{sw}, s{sw}, {abs(step)*WP_PAIR}"]
    if "A" in part:
        out += [f"s_mov_b32 m0, s{S_M0V + s % 4}"]
        out += [f"buffer_load_dwordx4 v{V_L16}, {sr(S_TA)}, s{sa} offen offset:{f*1024} sc1 lds ; @T{s}" for f in range(4)]
        out += [f"{op} s{sa}, s{sa}, {abs(step)*8192}"]
    return out


def tbuf(s):
    return ((s + 1) % 2) * 72


def tail_reads(s):
    b = tbuf(s)
    wr, wo = (V_TRD + 5, 0) if s % 4 == 0 else (V_TRD + 4, TW_SLOT[s % 4])
    wl = [f"ds_read_b128 {ar(b+32+f*4,4)}, v{wr} offset:{wo+f*1024} ; @TR{s}" for f in range(10)]
    al = [f"ds_read_b128 {ar(b+f*4,4)}, v{V_TRD+f//2} offset:{(s%4)*16384+(f%2)*1024} ; @TR{s}" for f in range(8)]
    return wl[:2] + al + wl[2:]


def merge(a, b):
    pos = [i for i, x in enumerate(a) if x.startswith("buffer_")]
    out = list(a)
    for k in range(len(b) - 1, -1, -1):
        out.insert(pos[k * len(pos) // len(b)] + 1 if pos else 0, b[k])
    return out


def tail(e, ost):
    rsoff = [S_PS, S_M0A, S_KQ]

    def xfer(op, kind, base, soff, tag):
        v16, v8 = (V_L16, V_L8) if kind == "S" else (14, 15)
        return [f"buffer_{op}_dwordx4 {vr(base,4)}, v{v16}, {sr(S_PART)}, s{soff} offen sc1 ; @{tag}",
                f"buffer_{op}_dwordx4 {vr(base+4,4)}, v{v16}, {sr(S_PART)}, s{soff} offen offset:1024 sc1 ; @{tag}",
                f"buffer_{op}_dwordx2 {vr(base+8,2)}, v{v8}, {sr(S_PART)}, s{soff} offen offset:2048 sc1 ; @{tag}"]

    def pack(kind, k):
        out = [f"v_cvt_pk_bf16_f32 v{PK+(k-1)*10+2*nb+p}, v{ACC[kind][nb]+4*k+2*p}, v{ACC[kind][nb]+4*k+2*p+1}"
               for nb in range(5) for p in range(2)]
        return out

    def send(kind, k):
        return xfer("store", kind, PK + (k - 1) * 10, S_PS + k, "SEND" + kind)

    RCV = {"G": [ACC["G"][k] + 4 for k in range(3)], "S": [ACC["S"][k] + 4 for k in range(3)]}

    def recv1(kind, k):
        return xfer("load", kind, RCV[kind][k], rsoff[k], f"R{kind}{k}")

    def recv(kind):
        return [x for k in range(3) for x in recv1(kind, k)]

    def accumulate(kind):
        for k in range(3):
            e(f"WAITVM R{kind}{k}")
            b = RCV[kind][k]
            for nb in range(5):
                for r in range(4):
                    a = ACC[kind][nb] + r
                    e.safe(f"v_dot2_f32_bf16 v{a}, v{b+2*nb+r//2}, v{12+r%2}, v{a}")

    def atomic(val, soff):
        return f"buffer_atomic_add v{val}, v{V_SIG}, {sr(S_WS)}, s{soff} offen"

    poll_o = f"buffer_load_dword v{V_PVAL}, off, {sr(S_WS)}, s{S_POLLO} sc1"
    poll_p = f"buffer_load_dword v{V_PVAL}, off, {sr(S_WS)}, s{S_SIGP} sc1"
    low = f"v_and_b32 v{V_PVAL}, 0xff, v{V_PVAL}"
    n = len(TSTEPS)
    SIGA, CHKA, SIGB, CHKB = OPT.get("siga", 3), OPT.get("chka", 5), OPT.get("sigb", 6), 11
    GSIG, GCHK = OPT.get("gsig", 14), OPT.get("gchk", 19)
    opace = OPT.get("opace", 3)
    gsend = [x for k in range(1, 4) for x in send("G", k)]
    xres = [f"buffer_load_dwordx2 {vr(V_X+2*nb,2)}, v{V_XO}, {sr(S_X)}, s{S_XO} offen offset:{nb*32}" for nb in range(5)]
    late = recv("G")
    alu = tail_vector_late()
    for s in range(n):
        b = tbuf(s)
        e(f"WAITLG TR{s}")
        if s + 1 < n:
            e(f"WAITVM T{s+1}" + {SIGA: " OST0", SIGB: " OST1", CHKA: " POA", CHKB: " POB", GSIG: " SENDG", GCHK: " PG"}.get(s, ""))
            e("s_barrier")
        if OPT.get("tst") and s != CHKA and s not in (9, 13, 15):
            stamp(e)
        head, side = [], []
        assert s != 1 or not alu
        assert s != 7 or not ost
        if s == SIGA:
            head.append(atomic(V_ONE, S_SIGO))
        if s == SIGB:
            head.append(atomic(V_C256, S_SIGO))
        if s == GSIG:
            head.append(atomic(V_ONE, S_SIGP))
        if s == CHKA - 1:
            head.append(poll_o + " ; @POA")
        if s == CHKB - 2:
            head.append(poll_o + " ; @POB")
        if s == GCHK - OPT.get("gpoll", 2):
            head.append(poll_p + " ; @PG")
        if s == CHKA:
            stamp(e)
            for x in poll_check("M_poa", poll_o, [low, f"v_cmp_gt_u32 vcc, 8, v{V_PVAL}"]):
                e(x)
            stamp(e)
        if s == CHKB:
            for x in poll_check("M_pob", poll_o, [f"v_cmp_gt_u32 vcc, 0x800, v{V_PVAL}"]):
                e(x)
        if s == GCHK:
            for x in poll_check("M_pg", poll_p, [low, f"v_cmp_gt_u32 vcc, 4, v{V_PVAL}"]):
                e(x)
        mem = tail_dma(3, "A") if s == 0 else []
        if s == CHKA:
            for x in range(7, s + 4):
                mem += tail_dma(x, "A")
        if s + 4 < n:
            mem += tail_dma(s + 4, "W" if 7 <= s + 4 < CHKA + 4 else "WA")
        if ost:
            side, ost = ost[:opace], ost[opace:]
        if s == 7:
            alu += pack("G", 1) + pack("G", 2) + pack("G", 3)
        if s >= 8 and gsend:
            assert not alu
            k = OPT.get("gpace", 2)
            side, gsend = gsend[:k], gsend[k:]
        if s == 19:
            side += xres
        if s >= GCHK:
            k = -(-len(late) // (n - 1 - s)) if s < n - 1 else 0
            side, late = side + late[:k], late[k:]
        mem = head + merge(mem, side)
        ds = tail_reads(s + 1) if s + 1 < n else []
        first = s in (0, 7)
        acc_of = ACC[TSTEPS[s]]

        def chain(nb, rb, flip):
            acc = vr(acc_of[nb] + rb * 4, 4)
            return [mfma(acc, ar(b + 32 + (nb * 2 + t) * 4, 4), ar(b + (rb * 2 + t) * 4, 4), "0" if first and i == 0 else acc)
                    for i, t in enumerate((1, 0) if flip else (0, 1))]

        if s + 1 < n:
            mf = [m for nb in range(5) for rb in range(4) for m in chain(nb, rb, rb % 2)]
            fixed = {(i // 3) * 4 + (0, 2, 3)[i % 3]: ([x], []) for i, x in enumerate(ds)}
            nvm = sum(x.startswith("buffer_") for x in mem)
            if nvm > 10:
                fixed = {2 * i: ([x], []) for i, x in enumerate(ds)}
            interleave(e, mf, fixed, [mem, alu], space=4 if nvm <= 10 else 2)
            drain(e, [mem])
        else:
            for rb in (1, 2, 3, 0):
                interleave(e, [m for nb in range(5) for m in chain(nb, rb, nb % 2)], {}, [mem])
                if rb:
                    mem += pack("S", rb) + send("S", rb)
            drain(e, [mem])
    stamp(e)
    e(f"s_mov_b32 s6, {fbits(-LOG2E)}")
    e("s_mov_b32 s7, s6")
    accumulate("G")
    for nb in range(5):
        g = ACC["G"][nb]
        t = g + 4
        for p in range(2):
            e.safe(f"v_pk_mul_f32 {vr(t+2*p,2)}, {vr(g+2*p,2)}, s[6:7]")
        for r in range(4):
            e(f"v_exp_f32 v{t+r}, v{t+r}")
        for p in range(2):
            e(f"v_lshlrev_b32 v{t+4+2*p}, 16, v{V_X+2*nb+p}")
            e(f"v_and_b32 v{t+5+2*p}, 0xffff0000, v{V_X+2*nb+p}")
        for p in range(2):
            e(f"v_pk_add_f32 {vr(t+2*p,2)}, {vr(t+2*p,2)}, 1.0 op_sel_hi:[1,0]")
        for r in range(4):
            e(f"v_rcp_f32 v{t+r}, v{t+r}")
        for p in range(2):
            e.safe(f"v_pk_mul_f32 {vr(t+2*p,2)}, {vr(t+2*p,2)}, {vr(g+2*p,2)}")
    e("s_waitcnt vmcnt(0)")
    e("s_barrier")
    e(atomic(V_C256, S_SIGP))
    e(poll_p)
    e("s_waitcnt vmcnt(0)")
    for x in poll_check("M_pp", poll_p, [f"v_cmp_gt_u32 vcc, 0x400, v{V_PVAL}"]):
        e(x)
    stamp(e)
    for x in recv("S"):
        e(x)
    accumulate("S")
    for nb in range(5):
        s = ACC["S"][nb]
        t = ACC["G"][nb] + 4
        for p in range(2):
            e.safe(f"v_pk_fma_f32 {vr(t+2*p,2)}, {vr(t+2*p,2)}, {vr(s+2*p,2)}, {vr(t+4+2*p,2)}")
        for p in range(2):
            e(f"v_cvt_pk_bf16_f32 v{t+4+p}, v{t+2*p}, v{t+2*p+1}")
        e(f"buffer_store_dwordx2 {vr(t+4,2)}, v{V_XO}, {sr(S_OUT)}, s{S_XO} offen offset:{nb*32}{['', ' sc1', ' nt', ' sc0 sc1'][OPT.get('outf', 0)]}")


def attention(e):
    m = V_M
    e.safe(f"v_and_b32 v{V_POFF}, 7, v0")
    e(f"v_lshlrev_b32 v{V_POFF}, 8, v{V_POFF}")
    e(f"v_add_u32 v{V_POFF}, {MISC_CNTA}, v{V_POFF}")
    repack_addr(e)
    for i in range(8):
        for qb in range(4):
            b = V_S0 + qb * 16
            if i == 0:
                e(f"v_max_f32 v{m+qb}, v{b}, v{b+1}")
            else:
                e(f"v_max3_f32 v{m+qb}, v{m+qb}, v{b+2*i}, v{b+2*i+1}")
    e(f"s_mov_b32 s7, {fbits(-float(OPT.get('bias', 100)))}")
    e("WAITVM K1")
    e("M_restart:")
    e("s_barrier")
    for n in range(LK):
        e(k_read(1, n // 4, n % 4))
    for n in range(LV):
        for v in range(2):
            e(v_read(0, n // 2, n % 2, v))
    e(f"s_mov_b32 m0, s{S_M0K+3}")
    e(f"s_mov_b32 s{S_OFF}, {3*16384}")
    e(k_dma(0))
    e(k_dma(1))
    row_max_finish(e)
    e(f"s_mov_b32 s{S_CNT}, 8")
    for qb in range(4):
        b = V_S0 + qb * 16
        for p in range(8):
            e(f"v_pk_add_f32 {vr(b+2*p,2)}, {vr(b+2*p,2)}, {vr(V_NM+qb*4,2)}")
        for r in range(16):
            e(f"v_exp_f32 v{b+r}, v{b+r}")
        for r in range(4):
            e(f"v_accvgpr_write_b32 a{A_L+qb*4+r}, 0")
        for p in range(8):
            e(f"v_cvt_pk_bf16_f32 v{V_P+qb*8+p}, v{b+2*p}, v{b+2*p+1}")
    e("s_waitcnt lgkmcnt(0)")
    stamp(e)
    attn_step(e, 0, first=True)
    if OPT.get("ast"):
        stamp(e)
    e(".p2align 6")
    e("M_loop:")
    for j in (1, 2, 3, 0):
        attn_step(e, j)
    e("s_cbranch_scc1 M_loop")
    if OPT.get("ast"):
        stamp(e)
    for x in poll_check("M_pa", POLL_A, [f"v_cmp_gt_u32 vcc, 32, v{V_PVAL}"]):
        e(x)
    mem = kv_tile("V", 31) + [f"v_add_u32 v{V_L4K}, 4096, v{V_L16}"] + tail_dma(0, "W")
    attn_step(e, 29, late=(mem, {10: (["s_waitcnt vmcnt(9)"], tail_dma(0, "A") + tail_dma(1, "W"))}))
    attn_step(e, 30, late=(mem, {10: (["WAITVM V31"], tail_dma(1, "A") + tail_dma(2, "W")),
                                 14: ([], tail_dma(2, "A") + tail_dma(3, "W"))}))
    if OPT.get("ast"):
        stamp(e)
    T = 24
    alu, rng = [], []

    def extra(u):
        if u == 2:
            alu.extend(tail_vector_stream())
        if u == 7:
            for qb in range(4):
                alu.extend([f"v_accvgpr_read_b32 v{T+2*qb}, a{A_L+qb*4}", f"v_accvgpr_read_b32 v{T+2*qb+1}, a{A_L+qb*4+1}"])
            for qb in range(4):
                alu.append(f"v_add_f32 v{T+2*qb+1}, v{T+2*qb}, v{T+2*qb+1}")
            for qb in range(4):
                alu.append(f"v_rcp_f32 v{T+2*qb}, v{T+2*qb+1}")
        if u >= 1:
            magnitude(u - 1)
        return [mem, alu, rng]

    def magnitude(u):
        for qb in ((u % 2) * 2, (u % 2) * 2 + 1):
            a = o_reg(u // 2, qb)
            third = f"v{V_MX+qb}" if u >= 2 else f"|v{a+1}|"
            rng.append(f"v_maximum3_f32 v{V_MX+qb}, |v{a}|, |v{a+1}|, {third}")
            rng.append(f"v_maximum3_f32 v{V_MX+qb}, |v{a+2}|, |v{a+3}|, v{V_MX+qb}")

    attn_step(e, 31, qk=False, extra=extra)
    magnitude(15)
    drain(e, [mem, alu])
    stamp(e)

    ost = []
    e("s_mov_b32 s6, 8192")
    for jp in range(2):
        for qb in range(4):
            for t in range(2):
                j = 2 * jp + t
                d = V_P + ((jp * 4 + qb) * 2 + t) * 4
                if (jp, qb, t) == (0, 0, 0):
                    drain(e, [rng])
                    e(f"v_maximum3_f32 v58, v{V_MX}, v{V_MX+1}, v{V_MX+2}")
                    e(f"v_minimum3_f32 v59, v{V_MX}, v{V_MX+1}, v{V_MX+2}")
                    e(f"v_maximum3_f32 v58, v58, v{V_MX+3}, v{T+1}")
                    e(f"v_minimum3_f32 v59, v59, v{V_MX+3}, v{V_MX+3}")
                    e(f"v_maximum3_f32 v58, v58, v{T+3}, v{T+5}")
                    e(f"v_cmp_nle_f32 vcc, {fbits(O_LOW)}, v59")
                    e(f"v_maximum3_f32 v58, v58, v{T+7}, v{T+7}")
                    e("s_mov_b64 s[4:5], vcc")
                    e(f"v_cmp_nge_f32 vcc, {fbits(L_LIMIT)}, v58")
                    e(f"s_lshl_b32 s7, s{S_W}, 2")
                    e(f"s_add_u32 s7, s7, {LDS_FLAG}")
                    e("s_or_b64 s[4:5], s[4:5], vcc")
                    e("s_or_b32 s4, s4, s5")
                    e("v_mov_b32 v59, s7")
                    e("v_mov_b32 v58, s4")
                    e("ds_write_b32 v59, v58")
                    e(f"v_mov_b32 v59, {LDS_FLAG}")
                for u in range(2):
                    a = o_reg(2 * j + u, qb)
                    e(f"v_pk_mul_f32 {vr(a,2)}, {vr(a,2)}, {vr(T+2*qb,2)} op_sel_hi:[1,0]")
                    e(f"v_pk_mul_f32 {vr(a+2,2)}, {vr(a+2,2)}, {vr(T+2*qb,2)} op_sel_hi:[1,0]")
                for u in range(2):
                    a = o_reg(2 * j + u, qb)
                    e(f"v_cvt_pk_bf16_f32 v{d+2*u}, v{a}, v{a+1}")
                    e(f"v_cvt_pk_bf16_f32 v{d+2*u+1}, v{a+2}, v{a+3}")
                ost.append(f"buffer_store_dwordx4 {vr(d,4)}, v{V_L16 if qb < 2 else V_L4K}, {sr(S_ACT)}, {'s6' if jp else '0'} offen offset:{(qb%2)*2048+t*1024} sc1 ; @OST{jp}")
                if ((jp * 4 + qb) * 2 + t) % OPT.get("oearly", 5) == 0:
                    e(ost.pop(0))
        if jp == 0:
            e("s_waitcnt lgkmcnt(0)")
            e("WAITVM T0")
            e("s_barrier")
            e("ds_read_b128 v[60:63], v59 ; @FLG")
            for x in tail_reads(0):
                e(x)
    e("WAITLG FLG")
    e("v_or_b32 v60, v60, v61")
    e("v_or3_b32 v60, v60, v62, v63")
    e.safe("v_readfirstlane_b32 s4, v60")
    e(f"s_andn2_b32 s4, s4, s{S_RETRY}")
    e("s_cbranch_scc1 M_fallback")
    return ost


def fallback(e):
    m = V_M
    e("M_fallback:")
    e(f"s_mov_b32 s{S_RETRY}, -1")
    e(f"s_mov_b32 s{S_SIGA}, {OOB}")
    e(f"s_sub_u32 s{S_GA}, s{S_GA}, {3*8192}")
    e(f"s_sub_u32 s{S_GW}, s{S_GW}, {4*WP_PAIR}")
    for qb in range(4):
        e(f"v_mov_b32 v{m+qb}, 0xff800000")
    e(f"s_mov_b32 s{S_OFF}, 0")
    e("M_maxloop:")
    e("s_waitcnt vmcnt(0) lgkmcnt(0)")
    e("s_barrier")
    e(f"s_mov_b32 m0, s{S_M0K}")
    e("s_nop 0")
    for n in range(4):
        e(k_dma(n))
    e("s_waitcnt vmcnt(0)")
    e("s_barrier")
    for kb in range(4):
        for ks in range(4):
            e(k_read(0, kb, ks))
        e("s_waitcnt lgkmcnt(0)")
        for qb in range(4):
            d = vr(V_P + qb * 4, 4)
            for ks in range(4):
                e(mfma(d, ar(A_KF + (kb * 4 + ks) * 4, 4), ar(A_Q + (qb * 4 + ks) * 4, 4), "0" if ks == 0 else d))
        e("s_nop 7")
        for qb in range(4):
            b = V_P + qb * 4
            e(f"v_max3_f32 v{m+qb}, v{m+qb}, v{b}, v{b+1}")
            e(f"v_max3_f32 v{m+qb}, v{m+qb}, v{b+2}, v{b+3}")
    e(f"s_add_u32 s{S_OFF}, s{S_OFF}, 16384")
    e(f"s_cmp_lt_u32 s{S_OFF}, 524288")
    e("s_cbranch_scc1 M_maxloop")
    e("s_barrier")
    for w, t in (("K", 0), ("K", 1), ("K", 2), ("V", 0), ("V", 1)):
        for x in kv_tile(w, t):
            e(x)
    e("s_waitcnt vmcnt(0)")
    e("s_barrier")
    for kb in range(4):
        for ks in range(4):
            e(k_read(0, kb, ks))
    e("s_waitcnt lgkmcnt(0)")
    for x in first_scores():
        e(x)
    e("s_mov_b32 s7, 0")
    e("s_branch M_restart")


def build():
    e = Asm()
    for l in open(f"cdna_kernels/{NAME}.s.ref").read().split("\n"):
        if not l.startswith(";"):
            break
        if "@launch" not in l:
            e(l)
    e("; @launch grid=(256,1,1) block=(256,1,1) lds=163840")
    e('.amdgcn_target "amdgcn-amd-amdhsa--gfx950"')
    e(".text")
    e(f".globl {KERNEL}")
    e(".p2align 8")
    e(f".type {KERNEL},@function")
    e(f"{KERNEL}:")
    phase1(e, setup(e))
    proj_epilogue(e)
    stamp(e)
    ost = attention(e)
    stamp(e)
    tail(e, ost)
    stamp_flush(e)
    e("M_exit:")
    e("s_endpgm")
    fallback(e)
    emit_spins(e)
    e('.section .rodata,"a"')
    e(".p2align 6")
    e(f".amdhsa_kernel {KERNEL}")
    for d in ("next_free_vgpr 512", "next_free_sgpr 102", "accum_offset 256", "group_segment_fixed_size 0", "kernarg_size 88",
              "user_sgpr_count 2", "user_sgpr_kernarg_segment_ptr 1", "system_sgpr_workgroup_id_x 1"):
        e(f".amdhsa_{d}")
    e(".end_amdhsa_kernel")
    e.resolve()
    if OPT.get("jitter"):
        import random
        rnd = random.Random(OPT["jitter"])
        out, n = [], 0
        for l in e.lines:
            site = l.startswith(("s_barrier", "buffer_atomic")) or (l.startswith("buffer_store") and rnd.random() < 0.2)
            if site and rnd.random() < 0.7:
                n += 1
                pre = ["s_cselect_b32 s99, 1, 0", f"s_mul_i32 s98, s2, {rnd.randrange(3, 1000, 2)}", f"s_add_u32 s98, s98, s{S_W}",
                       f"s_mul_i32 s98, s98, {rnd.randrange(3, 1000, 2)}", f"s_bitcmp1_b32 s98, {rnd.randrange(0, 4)}",
                       f"s_cbranch_scc0 J{n}", f"s_sleep {rnd.choice([1, 3, 10, 30, 60])}", f"J{n}:", "s_cmp_lg_u32 s99, 0"]
                out += pre + [l] if rnd.random() < 0.5 else [l] + pre
            else:
                out.append(l)
        e.lines = out
    errs = []
    errs += check_trace(e.trace(KERNEL, {"M_loop": [True, True, False]}), "fast")
    errs += check_trace(e.trace(KERNEL, {"M_loop": [True, False, True, False], "M_fallback": [True, False], "M_maxloop": [True, False],
                                         "M_ps_spin": [True], "M_pa_spin": [True, True], "M_poa_spin": [True], "M_pob_spin": [True], "M_poa_back": [True], "M_pob_back": [True], "M_pp_spin": [True], "M_pp_back": [True], "M_pg_spin": [True], "M_pg_back": [True],
                                         "M_ps_back": [True], "M_pa_back": [True, True]}), "slow")
    return e.text(), errs


if __name__ == "__main__":
    if "--stamps" in sys.argv:
        sys.argv.remove("--stamps")
        STAMPS = True
    for a in [x for x in sys.argv if "=" in x]:
        sys.argv.remove(a)
        k, v = a.split("=")
        OPT[k] = int(v)
    text, errs = build()
    for x in errs[:6]:
        print(x)
    out = sys.argv[1] if len(sys.argv) > 1 else f"cdna_kernels/{NAME}.s"
    open(out, "w").write(text)
    print("wrote", out, len(text), "bytes;", len(errs), "check findings; stamps", nstamp[0])
```

```python
import sys, struct
from asm import Asm, check_trace

NAME = "recurrent_scan__gqa_block_cached__dense_activation_silu__prompt"
KERNEL = NAME + "_kernel"
WS_MISC = 0
MISC_CNTA, MISC_CNTO, MISC_CNTP, MISC_SIZE = 16384, 20480, 28672, 45056
WS_ACT = 4 << 20
WS_WP = 32 << 20
WS_STAMP = 64 << 20
WS_PART = 96 << 20
PART_SRC, PART_WAVE, PART_DST, PART_TILE = 2560, 16384, 65536, 262144
NPAIR = 91
ACT_RG = NPAIR * 8192
WP_PAIR = 81920
SRD3 = "0x00020000"
OOB = 0x1000000
LOG2E = 1.4426950408889634
L_LIMIT = 2.0 ** 120
O_LOW = 2.0 ** -110
STAMPS = False
OPT = {}

S_X, S_WQ, S_W1, S_K, S_V, S_ACT, S_ACTH, S_DBG, S_WS, S_R0, S_R1, S_WP, S_TA, S_TW, S_OUT = range(8, 68, 4)
S_M0K, S_M0V = 68, 72
S_W, S_HEAD, S_QT, S_W4K, S_OFF, S_CNT, S_RETRY = range(76, 83)
S_RSRC, S_RSRC2, S_RDST, S_M0R = 83, 84, 85, 86
S_GA, S_GW, S_SA, S_SW, S_XO = range(87, 92)
S_SIGS, S_SIGA, S_SIGO, S_POLLO = 92, 93, 94, 95
S_W2K, S_W8K = 100, 101
P_IN = 52
S_PART, S_KQ, S_SIGP, S_M0A, S_M0W, S_PS = 48, 12, 13, 14, 15, 16
V_L16 = 1
V_KRD, V_VRD, V_KDMA, V_VDMA = 2, 6, 14, 18
V_STAMP, V_IDX, V_ONES, V_NM, V_P, V_O = 34, 35, 36, 40, 64, 128
SBUF = [56, 60, 24, 28]
V_POFF, V_PVAL, V_ONE, V_SIG = 20, 21, 32, 33
V_XDMA, V_XRD = 20, 24
V_RDMA, V_RRD = 22, 23
V_WQRD, V_W1RD, V_WQDMA, V_W1DMA, V_ST = 40, 48, 52, 56, 52
A_Q, A_KF, A_VF, A_L = 0, 64, 128, 160
A_XF, A_WF, A_CS, A_RP = 64, 128, 160, 176
LDS_K, LDS_V, LDS_W1 = 0, 65536, 131072
LDS_CS = LDS_W1 + 3 * 8192
LDS_FLAG = 163840 - 16
WQ_SLOT = [LDS_V + 3 * 16384, LDS_V + 2 * 16384, LDS_K + 2 * 16384, LDS_K + 3 * 16384]
X_SLOT = [LDS_V, LDS_K]
LK = LV = 5


def fbits(x):
    return "0x%08x" % struct.unpack("<I", struct.pack("<f", x))[0]


def vr(b, n=1):
    return f"v{b}" if n == 1 else f"v[{b}:{b+n-1}]"


def ar(b, n=1):
    return f"a{b}" if n == 1 else f"a[{b}:{b+n-1}]"


def sr(b, n=4):
    return f"s[{b}:{b+n-1}]"


def srd(e, d, src, off, size):
    if off is not None:
        e(f"s_add_u32 s{d}, s{src}, {off}")
        e(f"s_addc_u32 s{d+1}, s{src+1}, 0")
    elif src != d:
        e(f"s_mov_b32 s{d}, s{src}")
        e(f"s_mov_b32 s{d+1}, s{src+1}")
    e(f"s_mov_b32 s{d+2}, {size}")
    e(f"s_mov_b32 s{d+3}, {SRD3}")


def mfma(d, a, b, c):
    return f"v_mfma_f32_16x16x32_bf16 {d}, {a}, {b}, {c}"


def smfmac(d, b):
    return f"v_smfmac_f32_16x16x64_bf16 {d}, {vr(V_ONES,4)}, {b}, v{V_IDX}"


nstamp = [0]


def stamp(e):
    if STAMPS:
        i = nstamp[0]
        nstamp[0] += 1
        e("s_memrealtime s[96:97]")
        e("s_memtime s[98:99]")
        e("s_waitcnt lgkmcnt(0)")
        e(f"v_writelane_b32 v{V_STAMP}, s96, {2*i}")
        e(f"v_writelane_b32 v{V_STAMP}, s98, {2*i+1}")


def stamp_flush(e):
    if not STAMPS:
        return
    e("s_waitcnt vmcnt(0) lgkmcnt(0)")
    stamp(e)
    srd(e, 8, S_WS, WS_STAMP - WS_MISC, 262144)
    e("s_lshl_b32 s12, s2, 2")
    e(f"s_add_u32 s12, s12, s{S_W}")
    e("s_lshl_b32 s12, s12, 8")
    e(f"v_lshrrev_b32 v2, 2, v{V_L16}")
    e(f"buffer_store_dword v{V_STAMP}, v2, s[8:11], s12 offen")
    if "ea" in OPT:
        k = OPT.get("ecyc", 0)
        e(f"v_readlane_b32 s4, v{V_STAMP}, {2*OPT['ea']+k}")
        e(f"v_readlane_b32 s5, v{V_STAMP}, {2*OPT['eb']+k}")
        e("s_nop 3")
        e("s_sub_u32 s5, s5, s4")
        if k:
            e("s_mul_i32 s5, s5, 3277")
            e("s_lshr_b32 s5, s5, 16")
        e("s_add_u32 s5, s5, s96")
        e("M_echo:")
        e("s_memrealtime s[6:7]")
        e("s_waitcnt lgkmcnt(0)")
        e("s_sub_u32 s4, s6, s5")
        e("s_cmp_lt_i32 s4, 0")
        e("s_cbranch_scc1 M_echo")


def kind_of(x):
    if x.startswith("buffer_"):
        return "vm"
    if x.startswith("ds_"):
        return "ds"
    if x.startswith(("v_exp", "v_rcp", "v_sqrt", "v_permlane")):
        return "slow"
    return "valu" if x.startswith("v_") else "scalar"


prev_valu = [False]


def interleave(e, mf, fixed, streams, cap=2, quota=99, space=0):
    last_vm = -space
    for i, m in enumerate(mf):
        e.safe(m)
        pre, post = fixed.get(i, ([], []))
        items = post + pre
        shadow, used, valu = True, 0, False

        def emit(x, safe=False):
            nonlocal shadow, used, valu
            k = kind_of(x)
            (e.safe if safe else e)(x)
            if not (k == "scalar" and shadow):
                used += 2 if k in ("vm", "slow") else 1
            used += x.count("\ns_")
            shadow = False
            valu |= k in ("valu", "slow")

        if not (items and kind_of(items[0]) == "scalar"):
            for s in streams:
                if s and kind_of(s[0]) == "scalar" and e.hazard_free(s[0]):
                    emit(s.pop(0))
                    break
        for x in items:
            emit(x, True)
        want_vm = quota > 0 and i + 1 - last_vm >= space and any(
            s and "vm" in [kind_of(y) for y in s[:2]] for s in streams) and i + 1 not in fixed
        progress = True
        while used < cap and progress:
            progress = False
            for kinds in (("vm", "ds", "scalar"), ("valu", "slow"), ("scalar",)):
                for s in streams:
                    if not s or kind_of(s[0]) not in kinds:
                        continue
                    k = kind_of(s[0])
                    if k == "scalar" and len(kinds) > 1 and s is streams[-1]:
                        continue
                    if used + (2 if k in ("vm", "slow") else 1) > cap or not e.hazard_free(s[0]):
                        continue
                    if k == "vm" and (valu or prev_valu[0] or quota == 0 or i - last_vm < space):
                        continue
                    if k == "ds" and valu:
                        continue
                    if k in ("valu", "slow") and want_vm and not valu:
                        continue
                    if k == "vm":
                        last_vm = i
                        quota -= 1
                        want_vm = want_vm and space <= 1 and quota > 0
                    emit(s.pop(0))
                    progress = True
                    break
                if progress:
                    break
        prev_valu[0] = valu


def drain(e, streams):
    for s in streams:
        while s:
            e.safe(s.pop(0))


def o_reg(db, qb):
    return V_O + (db * 4 + qb) * 4


KVF = ["", " sc1", " nt", " sc0", " sc0 sc1"]


def k_dma(n, tag=""):
    return f"buffer_load_dwordx4 v{V_KDMA+n}, {sr(S_K)}, s{S_OFF} offen offset:{n*1024}{KVF[OPT.get('kvf', 0)]} lds{tag}"


def v_dma(n, tag=""):
    return f"buffer_load_dwordx4 v{V_VDMA+(n&1)}, {sr(S_V)}, s{S_OFF} offen offset:{n*1024}{KVF[OPT.get('kvf', 0)]} lds{tag}"


def k_read(tile, kb, ks):
    return f"ds_read_b128 {ar(A_KF+(kb*4+ks)*4,4)}, v{V_KRD+ks} offset:{(tile%4)*16384+kb*4096}"


def v_read(tile, db, t, v):
    return f"ds_read_b64_tr_b16 {ar(A_VF+((db%4)*2+t)*4+2*v,2)}, v{V_VRD+db} offset:{(tile%4)*16384+t*8192+v*4096}"


def kv_tile(which, tile):
    tag = f" ; @{which}{tile}"
    out = [f"s_mov_b32 m0, s{(S_M0K if which == 'K' else S_M0V) + tile % 4}", f"s_mov_b32 s{S_OFF}, {tile*16384}"]
    return out + [(k_dma if which == "K" else v_dma)(n, tag) for n in range(4)]


spins = []


def poll_check(name, load, cond):
    spins.append((name, load, cond))
    return cond + [f"s_cbranch_vccnz {name}_spin\n{name}_back:"]


def emit_spins(e):
    for name, load, cond in spins:
        e(f"{name}_spin:")
        e("s_mov_b32 s3, 0x100000")
        e(f"{name}_loop:")
        e(f"s_sleep {OPT.get('slp', 2)}")
        e(load)
        e("s_waitcnt vmcnt(0)")
        for x in cond:
            e(x)
        e(f"s_cbranch_vccz {name}_back")
        e("s_sub_u32 s3, s3, 1")
        e("s_cmp_lg_u32 s3, 0")
        e(f"s_cbranch_scc1 {name}_loop")
        e(f"s_branch {name}_back")


POLL_A = f"buffer_load_dword v{V_PVAL}, v{V_POFF}, {sr(S_WS)}, 0 offen sc1"


def attn_step(e, j, qk=True, first=False, extra=None, late=None):
    pw = V_P + ((j + 1) % 2) * 32
    pr = V_P + (j % 2) * 32
    pv = True

    def pdst(x):
        on, base = (qk, pw) if x >= 0 else (not first, pr)
        x %= 16
        return on, base + (x % 4) * 8 + (x // 4) * 2, SBUF[x % 4]

    for u in range(16):
        kb, qb = u // 4, u % 4
        s_cur = SBUF[u % 4]
        M = []
        if qk:
            for ks in range(4):
                c = vr(V_NM + qb * 4, 4) if ks == 0 else vr(s_cur, 4)
                M.append(mfma(vr(s_cur, 4), ar(A_KF + (kb * 4 + ks) * 4, 4), ar(A_Q + (qb * 4 + ks) * 4, 4), c))
        else:
            M += [None] * 4
        if pv:
            db = u // 2
            for h in range(2):
                q2 = (u % 2) * 2 + h
                for t in ((0, 1) if h == 0 else (1, 0)):
                    o = vr(o_reg(db, q2), 4)
                    M.append(mfma(o, ar(A_VF + ((db % 4) * 2 + t) * 4, 4), vr(pr + q2 * 8 + t * 4, 4), "0" if first and t == h else o))
        else:
            M += [None] * 4
        F = [[] for _ in range(8)]
        sc = []
        nreads = 0
        n = u + LK
        if qk and not (j == 30 and n >= 16):
            F[2].append(k_read(j + 1 + n // 16, (n % 16) // 4, n % 4))
            nreads += 1
        n = u + LV
        if n < 16 or qk:
            F[5].append(v_read(j + n // 16, (n % 16) // 2, n % 2, 0))
            F[6].append(v_read(j + n // 16, (n % 16) // 2, n % 2, 1))
            nreads += 2
        on, p, sb = pdst(u - 1)
        if on:
            for r in range(4):
                F[(0, 1, 3, 4)[r]].append(f"v_exp_f32 v{sb+r}, v{sb+r}")
            F[5].append(f"v_cvt_pk_bf16_f32 v{p}, v{sb}, v{sb+1}")
        on, p, sb = pdst(u - 2)
        if on:
            F[2].append(f"v_cvt_pk_bf16_f32 v{p+1}, v{sb+2}, v{sb+3}")
        post = []
        if late:
            q, syncs = late
            while q and kind_of(q[0]) == "scalar" and len(sc) < 6:
                sc.append(q.pop(0))
            if q:
                F[7].append(q.pop(0))
            if u in syncs:
                wait, more = syncs[u]
                assert j != 29 or not any(kind_of(x) == "vm" for x in q)
                post += wait + ["s_barrier"]
                q.extend(more)
            elif u % 4 == 2 and q and kind_of(q[0]) == "vm":
                post.append(q.pop(0))
        elif qk:
            if u == 10:
                post += [f"s_waitcnt vmcnt({[9, 10, 9, 10][j % 4]})", "s_barrier"]
            if u == 12:
                sc.append(f"s_mov_b32 m0, s{S_M0K + j % 4}")
            if u in (12, 14):
                F[7].append(k_dma((u - 12) // 2))
            if u in (0, 2):
                F[7].append(k_dma(2 + u // 2))
            if u == 4:
                sc += [f"s_sub_u32 s{S_OFF}, s{S_OFF}, 16384", f"s_mov_b32 m0, s{S_M0V + (j + 2) % 4}"]
            if u in (4, 6, 8, 10):
                F[7].append(v_dma((u - 4) // 2))
            if u == 11:
                sc.append(f"s_add_u32 s{S_OFF}, s{S_OFF}, 32768")
            if j % 4 == 0:
                if u in (3, 11):
                    sc.append(f"s_mov_b32 m0, s{S_M0R}")
                if u == 3:
                    F[7].append(f"buffer_load_dwordx4 v{V_RDMA}, {sr(S_R0)}, s{S_RSRC} offen lds")
                if u == 11:
                    F[7].append(f"buffer_load_dwordx4 v{V_RDMA}, {sr(S_R0)}, s{S_RSRC2} offen offset:1024 lds")
                if u == 13:
                    sc += [f"s_add_u32 s{S_RSRC}, s{S_RSRC}, 256", f"s_add_u32 s{S_RSRC2}, s{S_RSRC2}, 256",
                           f"s_cmp_gt_u32 s{S_CNT}, 4", f"s_cselect_b32 s{S_R0+2}, s{S_R0+2}, 0"]
                if u == 14:
                    sc += [f"s_cmp_eq_u32 s{S_CNT}, 3", f"s_cselect_b32 s5, s{S_SIGA}, {OOB}"]
                    post.append(f"buffer_atomic_add v{V_ONE}, v{V_SIG}, {sr(S_WS)}, s5 offen")
                if u == 15 and not first:
                    sc.append(f"s_cmp_gt_u32 s{S_CNT}, 1")
            if j % 4 == 2:
                if u == 6:
                    post.append(POLL_A)
                if u >= 12:
                    k = u - 12
                    F[6].append(f"ds_read_b64_tr_b16 {ar(A_RP+2*k,2)}, v{V_RRD} offset:{(k//2)*32+(k%2)*4096}")
                    nreads += 1
                if u == 15:
                    sc.append(f"s_sub_u32 s{S_CNT}, s{S_CNT}, 1")
            if j % 4 == 3:
                if u in (2, 6):
                    post.append(f"buffer_store_dwordx4 {ar(A_RP+(u//4)*4,4)}, v{V_L16}, {sr(S_WP)}, s{S_RDST} offen offset:{(u//4)*2048} sc1")
                if u == 7:
                    sc.append(f"s_add_u32 s{S_RDST}, s{S_RDST}, 16384")
        for i, x in enumerate(sc):
            F[i].insert(0, x)
        if u % 2 == 1:
            F[7].insert(0, f"s_waitcnt lgkmcnt({nreads})")
        if qk and not late and not first:
            drop = tuple(p for k, p in (("nodma", "buffer_"), ("nobar", "s_barrier"), ("novm", "s_waitcnt vmcnt"), ("nolg", "s_waitcnt lgkm"), ("nods", "ds_")) if OPT.get(k))
            if drop:
                keep = lambda x: not x.startswith(drop) or "atomic" in x or x == POLL_A
                F = [[x for x in f if keep(x)] for f in F]
                post = [x for x in post if keep(x)]
        if qk:
            for i in range(8):
                e(M[i])
                for x in F[i]:
                    e(x)
        else:
            for x in F[0] + F[1] + F[2] + F[3] + F[4]:
                e.safe(x)
            fixed = {}
            if F[5]:
                fixed[0] = (F[5][:1] + F[6] + F[5][1:], [])
            if 2 <= u < 6:
                M.append(smfmac(ar(A_L + (u - 2) * 4, 4), vr(pr + (u - 2) * 8, 8)))
            interleave(e, M[4:], fixed, extra(u), cap=OPT.get("fcap", 2))
            for x in F[7]:
                e(x)
        if qk and u % 4 == 2:
            q2 = u // 4
            e(smfmac(ar(A_L + q2 * 4, 4), vr(pr + q2 * 8, 8)))
        for x in post:
            e(x)


V_M = 24


def row_max_finish(e):
    m, t = V_M, V_M + 4
    for swap in ("v_permlane32_swap_b32", "v_permlane16_swap_b32"):
        for qb in range(4):
            e(f"v_mov_b32 v{t+qb}, v{m+qb}")
        for qb in range(4):
            e(f"{swap} v{m+qb}, v{t+qb}")
        for qb in range(4):
            e(f"v_max_f32 v{m+qb}, v{m+qb}, v{t+qb}")
    for qb in range(4):
        for r in range(4):
            e(f"v_sub_f32 v{V_NM+qb*4+r}, s7, v{m+qb}")


def x_dma(c):
    out = []
    for h in range(2):
        out += [f"s_add_u32 m0, s{S_W8K}, {X_SLOT[c%2] + h*4096}", f"s_mov_b32 s{S_OFF}, {c*128 + h*40960}"]
        out += [f"buffer_load_dwordx4 v{V_XDMA+n}, {sr(S_X)}, s{S_OFF} offen offset:{n*1024} lds ; @X{c}" for n in range(4)]
    return out


def w_dma(c):
    out = [f"s_add_u32 m0, s{S_W4K}, {WQ_SLOT[c%4]}", f"s_mov_b32 s{S_OFF}, {c*64*8192}"]
    out += [f"buffer_load_dwordx4 v{V_WQDMA+n}, {sr(S_WQ)}, s{S_OFF} offen offset:{n*1024} lds ; @W{c}" for n in range(4)]
    out += [f"s_add_u32 m0, s{S_W2K}, {LDS_W1+(c%4)*8192}", f"s_mov_b32 s{S_OFF}, {c*64*3456}"]
    out += [f"buffer_load_dwordx4 v{V_W1DMA+n}, {sr(S_W1)}, s{S_OFF} offen offset:{n*1024} lds ; @W{c}" for n in range(2)]
    return out


def x_read(c):
    out = [f"ds_read_b128 {ar(A_XF+(c%2)*32+(qb*2+t)*4,4)}, v{V_XRD+t} offset:{qb*2048} ; @XR{c}" for qb in range(4) for t in range(2)]
    return out + [f"v_xor_b32 v{V_XRD+t}, 0x10000, v{V_XRD+t}" for t in range(2)]


def setup(e):
    if STAMPS:
        e("s_memrealtime s[92:93]")
        e("s_memtime s[94:95]")
    e(f"s_load_dwordx16 {sr(P_IN,16)}, s[0:1], 0")
    e("s_cmp_ge_u32 s2, 256")
    e("s_cbranch_scc1 M_exit")
    e("v_lshrrev_b32 v31, 6, v0")
    e("v_mov_b32 v62, v0")
    e(f"v_readfirstlane_b32 s{S_W}, v31")
    e("v_and_b32 v0, 63, v0")
    e(f"s_lshr_b32 s{S_QT}, s2, 5")
    e("v_lshrrev_b32 v29, 4, v0")
    e("v_lshrrev_b32 v30, 3, v0")
    e("v_and_b32 v31, 7, v0")
    e(f"s_lshl_b32 s{S_W8K}, s{S_W}, 13")
    e(f"s_lshl_b32 s5, s{S_QT}, 2")
    e(f"s_add_u32 s5, s5, s{S_W}")
    e("s_mul_i32 s6, s5, 81920")
    e("v_mul_u32_u24 v26, 1280, v30")
    e("v_add_u32 v26, s6, v26")
    e("v_xor_b32 v27, v31, v29")
    e(f"v_lshl_add_u32 v{V_XDMA}, v27, 4, v26")
    e(f"v_add_u32 v{V_XDMA+2}, {2*(10240-1024)}, v{V_XDMA}")
    e(f"v_xor_b32 v27, 64, v{V_XDMA}")
    e(f"v_add_u32 v{V_XDMA+1}, {10240-1024}, v27")
    e(f"v_add_u32 v{V_XDMA+3}, {3*(10240-1024)}, v27")
    e(f"s_mov_b32 s{S_X+2}, 2621440")
    e(f"s_mov_b32 s{S_X+3}, {SRD3}")
    first = x_dma(0)
    pre = Asm()
    pre("s_and_b32 s3, s2, 7")
    pre("s_bfe_u32 s7, s2, 0x20003")
    pre(f"s_lshl_b32 s{S_HEAD}, s3, 2")
    pre(f"s_add_u32 s{S_HEAD}, s{S_HEAD}, s7")
    pre(f"s_lshl_b32 s{S_W2K}, s{S_W}, 11")
    pre(f"s_lshl_b32 s{S_W4K}, s{S_W}, 12")
    pre("v_and_b32 v28, 15, v0")
    pre(f"s_lshl_b32 s6, s{S_W}, 17")
    pre("v_lshlrev_b32 v26, 13, v29")
    pre("v_add_u32 v26, s6, v26")
    pre("v_lshlrev_b32 v27, 2, v29")
    pre("v_xor_b32 v27, v27, v28")
    pre(f"v_lshl_add_u32 v{V_WQDMA}, v27, 4, v26")
    for n in range(1, 4):
        pre(f"v_add_u32 v{V_WQDMA+n}, {n*(32768-1024)}, v{V_WQDMA}")
    pre(f"s_lshl_b32 s6, s{S_HEAD}, 8")
    early = OPT.get("early", 0)
    for x in first[:2] + (pre.lines if early else []):
        e(x)
    e("s_waitcnt lgkmcnt(0)")
    if STAMPS:
        e(f"v_writelane_b32 v{V_STAMP}, s92, 0")
        e(f"v_writelane_b32 v{V_STAMP}, s94, 1")
        nstamp[0] += 1
    if OPT.get("st0"):
        stamp(e)
    e(f"s_mov_b64 {sr(S_X,2)}, {sr(P_IN,2)}")
    for x in first[2:]:
        e.safe(x)
    if OPT.get("pf", 1):
        e(f"s_getpc_b64 {sr(S_ACT,2)}")
        e("M_pc:")
        e(f"s_mov_b32 s{S_ACT+2}, M_exit-M_pc")
        e(f"s_mov_b32 s{S_ACT+3}, {SRD3}")
        e("s_lshr_b32 s3, s2, 3")
        e("s_lshl_b32 s3, s3, 11")
        e("v_lshlrev_b32 v26, 7, v62")
        e("v_lshrrev_b32 v27, 4, v62")
        e("v_lshl_add_u32 v26, v27, 24, v26")
        e(f"buffer_load_dword v63, v26, {sr(S_ACT)}, s3 offen ; nocheck")
    for reg, off in ((S_R1, 64), (S_DBG, 72), (S_WS, 80)):
        e(f"s_load_dwordx2 {sr(reg,2)}, s[0:1], {off}")
    for x in ([] if early else pre.lines):
        e(x)
    srd(e, S_WQ, P_IN + 6, "s6", 640 * 8192 - 31 * 256)
    for x in w_dma(0)[:6]:
        e.safe(x)
    e(f"s_lshl_b32 s6, s{S_HEAD}, 7")
    srd(e, S_W1, P_IN + 12, "s6", 640 * 3456 - 26 * 128)
    e(f"s_cmp_lt_u32 s{S_HEAD}, 27")
    e(f"s_cselect_b32 s{S_W1+2}, s{S_W1+2}, 0")
    e(f"s_mul_i32 s6, s{S_W}, {16*3456}")
    e("v_mul_u32_u24 v26, 3456, v30")
    e("v_add_u32 v26, s6, v26")
    e("v_and_b32 v27, 2, v30")
    e("v_xor_b32 v27, v27, v31")
    e(f"v_lshl_add_u32 v{V_W1DMA}, v27, 4, v26")
    e(f"v_xor_b32 v27, 64, v{V_W1DMA}")
    e(f"v_add_u32 v{V_W1DMA+1}, {8*3456-1024}, v27")
    for x in w_dma(0)[6:]:
        e.safe(x)
    e(f"v_lshlrev_b32 v{V_L16}, 4, v0")
    e("v_bfe_u32 v30, v0, 2, 3")
    e("v_and_b32 v31, 3, v0")
    e("v_bfe_u32 v12, v0, 2, 2")
    e("v_lshl_add_u32 v26, v29, 3, v12")
    e("v_lshlrev_b32 v27, 8, v26")
    e("v_lshl_add_u32 v27, v31, 4, v27")
    e(f"v_xor_b32 v12, s{S_W}, v12")
    e(f"v_lshl_add_u32 v{V_WQRD}, v12, 6, v27")
    for j in range(1, 4):
        e(f"v_xor_b32 v{V_WQRD+j}, {j*64}, v{V_WQRD}")
    e("v_lshlrev_b32 v27, 7, v26")
    e("v_lshl_add_u32 v27, v31, 3, v27")
    e(f"v_add_u32 v27, {LDS_W1}, v27")
    e("v_lshrrev_b32 v12, 1, v30")
    e(f"s_and_b32 s6, s{S_W}, 2")
    e("v_xor_b32 v12, s6, v12")
    e(f"v_lshl_add_u32 v{V_W1RD}, v12, 5, v27")
    for nb in range(1, 4):
        e(f"v_xor_b32 v{V_W1RD+nb}, {nb*32}, v{V_W1RD}")
    e("v_lshrrev_b32 v12, 1, v28")
    e("v_xor_b32 v12, v12, v29")
    e("v_lshlrev_b32 v12, 4, v12")
    e("v_lshl_add_u32 v12, v28, 7, v12")
    e(f"s_add_u32 s6, s{S_W8K}, {X_SLOT[0]}")
    e(f"v_add_u32 v{V_XRD}, s6, v12")
    e(f"v_xor_b32 v{V_XRD+1}, 64, v{V_XRD}")
    e("v_and_b32 v26, 1, v0")
    e("v_cmp_eq_u32 vcc, 0, v26")
    e("v_mov_b32 v27, 0x44444444")
    e("v_mov_b32 v12, 0xeeeeeeee")
    e(f"v_cndmask_b32 v{V_IDX}, v12, v27, vcc")
    e("v_and_b32 v26, 2, v0")
    e("v_cmp_eq_u32 vcc, 0, v26")
    e("v_mov_b32 v27, 0x3f803f80")
    e("v_mov_b32 v12, 0")
    for r in range(4):
        e(f"v_cndmask_b32 v{V_ONES+r}, v12, v27, vcc")
    for r in range(16):
        e(f"v_accvgpr_write_b32 a{A_CS+r}, 0")
    e("s_waitcnt lgkmcnt(0)")
    if OPT.get("st0"):
        stamp(e)
    mem = x_dma(1) + w_dma(1)
    for x in mem[:OPT.get("nearly", 10)]:
        e.safe(x)
    return mem[OPT.get("nearly", 10):]


def glued(lines):
    out = []
    for x in lines:
        if x.startswith(("s_addc", "s_cselect")):
            out[-1] += "\n" + x
        else:
            out.append(x)
    return out


def late_stream():
    e = Asm()
    e(f"s_lshl_b32 s6, s{S_QT}, 5")
    e(f"s_add_u32 s6, s6, s{S_HEAD}")
    e("s_lshl_b32 s6, s6, 2")
    e(f"s_add_u32 s6, s6, s{S_W}")
    e("s_lshl_b32 s6, s6, 1")
    e("v_lshrrev_b32 v26, 5, v0")
    e("v_add_u32 v26, s6, v26")
    e("v_mul_u32_u24 v27, 1280, v26")
    e("v_and_b32 v12, 31, v0")
    e("v_lshl_add_u32 v13, v12, 4, v27")
    e("v_lshl_add_u32 v14, v12, 3, v27")
    e("v_lshlrev_b32 v26, 3, v26")
    e("v_lshl_add_u32 v19, v12, 24, v26")
    e("v_min_u32 v12, 1, v62")
    e(f"v_lshlrev_b32 v{V_SIG}, 24, v12")
    e(f"v_mov_b32 v{V_ONE}, 0")
    late_setup(e)
    return glued(e.lines) + early_mem()


SROW = [f"buffer_load_dwordx4 v[2:5], v13, {sr(S_X)}, 0 offen ; @SROW",
        f"buffer_load_dwordx4 v[6:9], v13, {sr(S_X)}, 0 offen offset:512 ; @SROW",
        f"buffer_load_dwordx2 v[10:11], v14, {sr(S_X)}, 0 offen offset:1024 ; @SROW"]


def tile_ids(e):
    e("s_bfe_u32 s4, s2, 0x20001")
    e("s_and_b32 s5, s2, 1")
    e("s_lshl_b32 s5, s5, 3")
    e("s_bfe_u32 s6, s2, 0x30003")
    e("s_add_u32 s5, s5, s6")
    e("s_lshr_b32 s6, s2, 6")


def late_setup(e):
    e(f"s_lshl_b32 s6, s{S_HEAD}, 19")
    srd(e, S_K, P_IN + 2, "s6", 524288)
    srd(e, S_V, P_IN + 4, "s6", 524288)
    e("s_cmp_lt_u32 s2, 128")
    e(f"s_cselect_b64 {sr(S_R0,2)}, {sr(P_IN+8,2)}, {sr(P_IN+14,2)}")
    e(f"s_mul_i32 s6, s5, {ACT_RG}")
    e(f"s_add_u32 s6, s6, {WS_ACT}")
    e(f"s_lshl_b32 s7, s{S_HEAD}, 14")
    e("s_add_u32 s7, s7, s6")
    srd(e, S_ACT, S_WS, "s7", 16384)
    e(f"s_lshl_b32 s7, s{S_HEAD}, 13")
    e(f"s_add_u32 s7, s7, {64*8192}")
    e("s_add_u32 s7, s7, s6")
    srd(e, S_ACTH, S_WS, "s7", 8192)
    e(f"s_cmp_lt_u32 s{S_HEAD}, 27")
    e(f"s_cselect_b32 s{S_ACTH+2}, s{S_ACTH+2}, 0")
    srd(e, S_DBG, S_DBG, None, 256)
    srd(e, S_OUT, S_R1, None, 2621440)
    tile_ids(e)
    e("s_lshl_b32 s7, s5, 1")
    e(f"s_lshr_b32 s3, s{S_W}, 1")
    e("s_add_u32 s3, s7, s3")
    e(f"s_mul_i32 s7, s3, {ACT_RG}")
    e(f"s_add_u32 s7, s7, {WS_ACT}")
    e(f"s_and_b32 s{S_XO}, s{S_W4K}, 4096")
    e(f"s_add_u32 s7, s7, s{S_XO}")
    srd(e, S_TA, S_WS, "s7", (NPAIR - 1) * 8192 + 4096)
    e("s_lshl_b32 s7, s6, 2")
    e(f"s_add_u32 s7, s7, s{S_W}")
    e("s_mul_i32 s7, s7, 5120")
    e(f"s_add_u32 s7, s7, {WS_WP}")
    srd(e, S_TW, S_WS, "s7", (NPAIR - 1) * WP_PAIR + 5120)
    e("s_lshl_b32 s3, s3, 2")
    e("s_add_u32 s3, s3, s4")
    e(f"s_mul_i32 s{S_XO}, s3, 20480")
    e("s_lshl_b32 s7, s6, 1")
    e(f"s_and_b32 s3, s{S_W}, 1")
    e("s_add_u32 s7, s7, s3")
    e("s_mul_i32 s7, s7, 160")
    e(f"s_add_u32 s{S_XO}, s{S_XO}, s7")
    e("s_lshr_b32 s7, s5, 1")
    e("s_lshl_b32 s7, s7, 2")
    e("s_add_u32 s7, s7, s4")
    e("s_lshl_b32 s7, s7, 8")
    e(f"s_add_u32 s{S_POLLO}, s7, {MISC_CNTO}")
    e("s_mul_i32 s7, s4, 7")
    e("s_add_u32 s7, s7, 64")
    e(f"s_lshl_b32 s{S_GA}, s7, 13")
    e(f"s_mul_i32 s{S_GW}, s7, {WP_PAIR}")
    e(f"s_lshl_b32 s{S_SA}, s4, 17")
    e(f"s_mul_i32 s{S_SW}, s4, {16*WP_PAIR}")
    e("s_lshl_b32 s5, s5, 2")
    e("s_add_u32 s5, s5, s6")
    e("s_lshl_b32 s5, s5, 8")
    e(f"s_add_u32 s5, s5, {MISC_CNTP}")
    e("s_cmp_eq_u32 s4, 0")
    e(f"s_cselect_b32 s5, s5, {OOB}")
    e("s_sub_u32 s6, s2, 128")
    e("s_cmp_lt_u32 s2, 128")
    e("s_cselect_b32 s6, s2, s6")
    e("s_mul_i32 s6, s6, 40960")
    srd(e, S_R0, S_R0, "s6", 40960)
    e("s_lshr_b32 s6, s2, 1")
    e(f"s_mul_i32 s6, s6, {WP_PAIR}")
    e(f"s_add_u32 s6, s6, {WS_WP}")
    srd(e, S_WP, S_WS, "s6", WP_PAIR)
    e(f"s_cmp_lt_u32 s2, {2*NPAIR}")
    e(f"s_cselect_b32 s{S_R0+2}, s{S_R0+2}, 0")
    e(f"s_cselect_b32 s{S_WP+2}, s{S_WP+2}, 0")
    e("s_and_b32 s6, s2, 1")
    e("s_lshl_b32 s6, s6, 10")
    e(f"s_add_u32 s{S_RDST}, s6, s{S_W4K}")
    e(f"s_mov_b32 s{S_RSRC}, 0")
    e(f"s_mov_b32 s{S_RSRC2}, 4096")
    e(f"s_add_u32 s{S_M0R}, s{S_W2K}, {LDS_W1}")
    srd(e, S_WS, S_WS, WS_MISC if WS_MISC else None, MISC_SIZE)
    e(f"s_lshl_b32 s{S_SIGS}, s{S_QT}, 5")
    e(f"s_lshl_b32 s7, s{S_QT}, 8")
    e(f"s_add_u32 s{S_SIGA}, s7, {MISC_CNTA}")
    e(f"s_lshl_b32 s7, s{S_QT}, 2")
    e(f"s_lshr_b32 s6, s{S_HEAD}, 3")
    e("s_add_u32 s7, s7, s6")
    e("s_lshl_b32 s7, s7, 8")
    e(f"s_add_u32 s{S_SIGO}, s7, {MISC_CNTO}")
    for i in range(4):
        e(f"s_add_u32 s{S_M0K+i}, s{S_W4K}, {LDS_K + i*16384}")
        e(f"s_add_u32 s{S_M0V+i}, s{S_W4K}, {LDS_V + i*16384}")
    e(f"s_mov_b32 s{S_RETRY}, 0")
    e(f"s_cmp_eq_u32 s{S_HEAD}, 0")
    e(f"s_cselect_b32 s6, s{S_SIGA}, {OOB}")
    e(f"s_and_b32 s7, s{S_HEAD}, 7")
    e(f"s_cselect_b32 s7, {OOB}, s{S_SIGO}")

def early_mem():
    out = [f"buffer_store_dword v{V_ONE}, v{V_SIG}, {sr(S_WS)}, s6 offen sc1",
           f"buffer_store_dword v{V_ONE}, v{V_SIG}, {sr(S_WS)}, s7 offen sc1",
           "v_lshrrev_b32 v12, 3, v62", "v_lshlrev_b32 v26, 2, v62", "v_lshl_add_u32 v12, v12, 24, v26",
           f"buffer_store_dword v{V_ONE}, v12, {sr(S_WS)}, s5 offen sc1"]
    return out + [f"v_mov_b32 v{V_ONE}, 1"]


def stats_stream():
    s = ["WAITVM SROW"]

    def unpack(i, dst):
        return f"v_lshlrev_b32 v{dst}, 16, v{2+i//2}" if i % 2 == 0 else f"v_and_b32 v{dst}, 0xffff0000, v{2+i//2}"

    def reduce32():
        out = ["v_add_f32 v12, v12, v13"]
        for rot in (8, 4, 2, 1):
            out.append(f"v_add_f32_dpp v12, v12, v12 row_ror:{rot} row_mask:0xf bank_mask:0xf")
        out += ["v_mov_b32 v13, v12", "v_permlane16_swap_b32 v12, v13", "v_add_f32 v12, v12, v13",
                f"v_mul_f32 v12, {fbits(1.0/640)}, v12"]
        return out

    s += [unpack(0, 12), unpack(1, 13)]
    for i in range(2, 20, 2):
        s += [unpack(i, 14), unpack(i + 1, 15), "v_add_f32 v12, v12, v14", "v_add_f32 v13, v13, v15"]
    s += reduce32() + ["v_mov_b32 v16, v12"]
    for i in range(0, 20, 2):
        s += [unpack(i, 14), unpack(i + 1, 15), "v_sub_f32 v14, v14, v16", "v_sub_f32 v15, v15, v16"]
        op = "v_mul_f32" if i == 0 else "v_fmac_f32"
        s += [f"{op} v12, v14, v14", f"{op} v13, v15, v15"]
    s += reduce32()
    s += ["v_cvt_pk_bf16_f32 v13, v12, v16", "v_and_b32 v16, 0xffff0000, v13", "v_lshlrev_b32 v12, 16, v13",
          "v_xor_b32 v16, 0x80000000, v16", f"v_add_f32 v12, {fbits(1e-5)}, v12", "v_cvt_pk_bf16_f32 v12, v12, v12",
          "v_lshlrev_b32 v12, 16, v12", "v_sqrt_f32 v12, v12", "v_cvt_pk_bf16_f32 v12, v12, v12",
          "v_lshlrev_b32 v12, 16, v12", "v_rcp_f32 v17, v12", "s_nop 0",
          f"buffer_store_dwordx2 v[16:17], v19, {sr(S_WS)}, 0 offen sc1 ; @SST"]
    return s


def kv_addr_stream():
    s = [f"s_lshl_b32 s5, s{S_W}, 2", "v_xor_b32 v26, v28, v29", "v_xor_b32 v27, s5, v26", "v_lshlrev_b32 v27, 4, v27",
         f"v_lshl_add_u32 v{V_KRD}, v28, 8, v27"]
    s += [f"v_xor_b32 v{V_KRD+ks}, {64*ks}, v{V_KRD}" for ks in range(1, 4)]
    s += ["v_lshlrev_b32 v27, 8, v29", f"v_add_u32 v27, s{S_W4K}, v27", f"v_lshl_add_u32 v{V_KDMA}, v26, 4, v27"]
    s += [f"v_xor_b32 v{V_KDMA+n}, {64*n}, v{V_KDMA}" for n in range(1, 4)]
    s += ["v_lshlrev_b32 v26, 1, v29", "v_xor_b32 v26, v26, v28", f"v_lshl_add_u32 v{V_VDMA}, v26, 4, v27",
          f"v_xor_b32 v{V_VDMA+1}, 128, v{V_VDMA}"]
    s += ["v_lshrrev_b32 v27, 2, v0", "v_lshlrev_b32 v27, 8, v27", "v_lshl_add_u32 v27, v31, 3, v27",
          f"v_add_u32 v27, {LDS_V}, v27", f"v_lshl_add_u32 v{V_VRD}, v30, 5, v27"]
    s += [f"v_xor_b32 v{V_VRD+db}, {32*db}, v{V_VRD}" for db in range(1, 8)]
    return s


def repack_addr(e):
    e(f"s_mul_i32 s5, s{S_W}, {8*1280}")
    e("v_lshrrev_b32 v56, 4, v0")
    e("v_mul_u32_u24 v57, 1280, v56")
    e("v_add_u32 v57, s5, v57")
    e("v_lshlrev_b32 v56, 6, v56")
    e(f"v_and_b32 v58, 255, v{V_L16}")
    e("v_xor_b32 v56, v56, v58")
    e(f"v_add_u32 v{V_RDMA}, v56, v57")
    e("v_lshrrev_b32 v56, 2, v0")
    e("v_and_b32 v57, 3, v56")
    e(f"v_xor_b32 v57, s{S_W}, v57")
    e("v_lshlrev_b32 v57, 6, v57")
    e("v_lshl_add_u32 v57, v56, 8, v57")
    e("v_and_b32 v56, 3, v0")
    e("v_lshl_add_u32 v57, v56, 3, v57")
    e(f"v_add_u32 v{V_RRD}, {LDS_W1}, v57")


CS_SITES = {0: 0, 1: 1, 8: 2, 9: 3}


XR_AT = 6


def phase1(e, carry):
    half = ["lo"] * 8

    def w_reads(c, nb):
        out = []
        if nb < 8:
            base = WQ_SLOT[c % 4]
            h = "hi" if base >= 65536 else "lo"
            if half[nb // 2] != h:
                out.append(f"v_xor_b32 v{V_WQRD+nb//2}, 0x10000, v{V_WQRD+nb//2}")
                half[nb // 2] = h
        for t in range(2):
            for v in range(2):
                d = ar(A_WF + ((nb % 4) * 2 + t) * 4 + 2 * v, 2)
                if nb < 8:
                    out.append(f"ds_read_b64_tr_b16 {d}, v{V_WQRD+nb//2} offset:{base%65536+t*8192+v*1024+(nb%2)*8} ; @WR{c}_{nb}")
                else:
                    out.append(f"ds_read_b64_tr_b16 {d}, v{V_W1RD+nb-8} offset:{(c%4)*8192+t*4096+v*512} ; @WR{c}_{nb}")
        return out

    e("WAITVM W0")
    e("s_barrier")
    stamp(e)
    for x in x_read(0) + w_reads(0, 0) + w_reads(0, 1):
        e(x)
    e("WAITLG WR0_0")
    poll_s = f"buffer_load_dword v63, v62, {sr(S_DBG)}, 0 offen sc1"
    mem, alu, xr = carry, [], []
    ramp = OPT.get("ramp", 36)
    srow = [int(x) for x in "%03d" % OPT.get("srow", 222)]
    SIG_AT = srow[2] + OPT.get("sigd", 3)
    for c in range(10):
        mem += [x for k, x in enumerate(SROW) if srow[k] == c]
        if c + 2 < 10:
            mem += x_dma(c + 2) + w_dma(c + 2)
        if c == 0:
            alu += late_stream()
        assert c != srow[0] or not alu, alu
        if c == srow[2] + 1:
            alu += stats_stream()
        if c == 7:
            alu += kv_addr_stream()
        if c == 8:
            assert not alu
            alu += tail_scalar_stream()
            mem += ["v_and_b32 v62, 7, v0", "v_lshlrev_b32 v62, 5, v62", poll_s + " ; @PS"]
            mem += kv_tile("V", 0) + kv_tile("V", 1)
        if c == 9:
            assert not alu
            pre9 = ["WAITVM PS"] + poll_check("M_ps", poll_s, ["v_cmp_gt_u32 vcc, 32, v63"])
            pre9 += [f"s_lshl_b32 s5, s{S_QT}, 2", f"s_add_u32 s5, s5, s{S_W}", "s_lshl_b32 s5, s5, 9", "v_lshlrev_b32 v62, 3, v28"]
            pre9 += [f"buffer_load_dwordx2 {vr(V_ST+2*qb,2)}, v62, {sr(S_WS)}, s5 offen offset:{qb*128} sc1 ; @STL" for qb in range(4)]
            mem += pre9 + kv_tile("K", 1) + kv_tile("K", 2)
        for nb in range(12):
            fixed = {}
            n2 = nb + 2
            reads = w_reads(c, n2) if n2 < 12 else (w_reads(c + 1, n2 - 12) if c < 9 else [])
            pre = []
            if nb == XR_AT and c < 9:
                xr += [f"WAITVM X{c+1}"] + x_read(c + 1)
            if nb == 10 and c < 9:
                assert not xr, (c, xr)
                pre = [f"WAITVM W{c+1}" + (" SST" if c == SIG_AT else ""), "s_barrier"]
                if c >= 7:
                    pre = [f"WAITLG XR{c+1}"] + pre
                if c == SIG_AT:
                    assert not alu
                    mem.insert(0, f"buffer_atomic_add v{V_ONE}, v{V_SIG}, {sr(S_DBG)}, s{S_SIGS} offen")
                if c == 8:
                    mem += kv_tile("K", 0)
            if c == 9 and nb == 10:
                assert not alu and not any("@STL" in x for x in mem), alu
                alu += [f"s_lshl_b32 s5, s{S_W}, 7", f"s_add_u32 s5, s5, {LDS_CS}", "v_lshl_add_u32 v60, v28, 2, s5",
                        f"s_and_b32 s5, s{S_W}, 2", "s_lshl_b32 s5, s5, 6", f"s_add_u32 s5, s5, {LDS_CS+512}", "v_lshl_add_u32 v61, v28, 2, s5"]
                for k in range(4):
                    alu += [f"v_accvgpr_read_b32 v62, a{A_CS+4*k}", f"v_accvgpr_read_b32 v63, a{A_CS+4*k+1}",
                            f"v_add_f32 v{20+k}, v62, v63", f"ds_write_b32 v{60+k//2}, v{20+k} offset:{(k%2)*64}"]
            slot = 0
            if pre:
                fixed[0] = (pre, [])
                slot = 1
            extra = len(reads) - 4
            for i, x in enumerate(reads):
                k = slot + max(0, i - max(extra, 0))
                fixed.setdefault(k, ([], []))[0].append(x)
            nxt = (c, nb + 1) if nb < 11 else (c + 1, 0)
            mf = []
            for qb in range(4):
                for t in ((0, 1) if qb % 2 == 0 else (1, 0)):
                    acc = vr(o_reg(nb, qb), 4) if nb < 8 else vr(V_P + ((nb - 8) * 4 + qb) * 4, 4)
                    first = c == 0 and len(mf) % 2 == 0
                    mf.append(mfma(acc, ar(A_WF + ((nb % 4) * 2 + t) * 4, 4), ar(A_XF + (c % 2) * 32 + (qb * 2 + t) * 4, 4), "0" if first else acc))
            if nb in CS_SITES:
                mf.append(smfmac(ar(A_CS + 4 * CS_SITES[nb], 4), ar(A_WF + (nb % 4) * 8, 8)))
            if nxt[0] < 10:
                fixed.setdefault(len(mf) - 1, ([], []))[1].append(f"WAITLG WR{nxt[0]}_{nxt[1]}")
            nvm = sum(x.startswith("buffer_") for x in mem)
            quota = min(-(-nvm // (12 - nb)), (nb + 1) * ramp // 12 - nb * ramp // 12)
            interleave(e, mf, fixed, [xr, mem, alu], quota=quota + any(x.startswith("buffer_") for x in alu[:12]))
        assert not mem or c in (0, 1, 2, 3, 4, 8), (c, mem)
        if OPT.get("p1st") and c < 9:
            stamp(e)
    drain(e, [mem, alu])
    stamp(e)
    e("s_waitcnt lgkmcnt(0)")
    e("s_barrier")


def proj_epilogue(e):
    CSR, T = 40, 20
    e(f"s_lshl_b32 s5, s{S_W}, 7")
    e(f"s_add_u32 s5, s5, {LDS_CS}")
    e("v_lshl_add_u32 v60, v29, 4, s5")
    e(f"s_and_b32 s5, s{S_W}, 2")
    e("s_lshl_b32 s6, s5, 6")
    e(f"s_add_u32 s6, s6, {LDS_CS+512}")
    e("v_lshl_add_u32 v61, v29, 4, s6")
    e("s_lshl_b32 s5, s5, 9")
    e(f"v_xor_b32 v30, s5, v{V_L16}")
    e("v_xor_b32 v31, 1024, v30")

    def cs_read(g):
        out = []
        src = 60 if g < 4 else 61
        k = g if g < 4 else g - 4
        if k:
            out.append(f"v_xor_b32 v{src}, {128*(k^(k-1))}, v{src}")
        for u in range(2):
            out.append(f"ds_read_b128 {vr(CSR+u*4,4)}, v{src} offset:{u*64} ; @CS{g}")
        return out

    for x in cs_read(0):
        e(x)
    e("WAITVM STL")
    e(f"s_mov_b32 s6, {fbits(LOG2E * 128 ** -0.5)}")
    for qb in range(4):
        e(f"v_mul_f32 v{48+qb}, s6, v{V_ST+2*qb+1}")

    def center(g, regs):
        e(f"WAITLG CS{g}")
        for qb in range(4):
            for u in range(2):
                a = regs(u, qb)
                for p in range(2):
                    e(f"v_pk_fma_f32 {vr(a+2*p,2)}, {vr(CSR+u*4+2*p,2)}, {vr(V_ST+2*qb,2)}, {vr(a+2*p,2)} op_sel_hi:[1,0,1]")
        if g < 5:
            for x in cs_read(g + 1):
                e(x)

    for j in range(4):
        center(j, lambda u, qb: o_reg(2 * j + u, qb))
        for q0 in (0, 2):
            pair = [(q0 + i, T + 4 * i) for i in range(2)]
            for qb, t in pair:
                sel = "op_sel_hi:[1,0]" if qb % 2 == 0 else "op_sel:[0,1] op_sel_hi:[1,1]"
                for u in range(2):
                    a = o_reg(2 * j + u, qb)
                    for p in range(2):
                        e(f"v_pk_mul_f32 {vr(a+2*p,2)}, {vr(a+2*p,2)}, {vr(48+q0,2)} {sel}")
            for qb, t in pair:
                for u in range(2):
                    a = o_reg(2 * j + u, qb)
                    e(f"v_cvt_pk_bf16_f32 v{t+2*u}, v{a}, v{a+1}")
                    e(f"v_cvt_pk_bf16_f32 v{t+2*u+1}, v{a+2}, v{a+3}")
            for qb, t in pair:
                for r in range(4):
                    e(f"v_accvgpr_write_b32 a{A_Q+(qb*4+j)*4+r}, v{t+r}")
    e(f"s_mov_b32 s6, {fbits(-LOG2E)}")
    for qb in range(4):
        e(f"v_mul_f32 v{48+qb}, s6, v{V_ST+2*qb+1}")
        e(f"v_rcp_f32 v{V_ST+2*qb+1}, v{V_ST+2*qb+1}")
    for jj in range(2):
        hreg = lambda u, qb: V_P + ((2 * jj + u) * 4 + qb) * 4
        center(4 + jj, hreg)
        if jj == 0:
            e("WAITVM K0")
            e("s_barrier")
            for kb in range(4):
                for ks in range(4):
                    e(k_read(0, kb, ks) + f" ; @K0R{kb}")
        for qb in range(4):
            sel = "op_sel_hi:[1,0]" if qb % 2 == 0 else "op_sel:[0,1] op_sel_hi:[1,1]"
            for u in range(2):
                for p in range(2):
                    a = hreg(u, qb) + 2 * p
                    e(f"v_pk_mul_f32 {vr(a+64,2)}, {vr(a,2)}, {vr(48+(qb//2)*2,2)} {sel}")
    e("WAITLG K0R3")
    for i, m in enumerate(first_scores()):
        e.safe(m)
        e(f"v_exp_f32 v{V_O+i}, v{V_O+i}")
    e("s_mov_b32 s5, 4096")
    for jj in range(2):
        for qb in range(4):
            regs = [V_P + ((2 * jj + u) * 4 + qb) * 4 + 2 * p for u in range(2) for p in range(2)]
            d = T + (qb % 2) * 4
            for a in regs:
                e(f"v_pk_fma_f32 {vr(a+64,2)}, {vr(a+64,2)}, {vr(V_ST+2*qb,2)}, {vr(V_ST+2*qb,2)} op_sel:[0,1,1] op_sel_hi:[1,1,1]")
            for a in regs:
                e(f"v_rcp_f32 v{a+64}, v{a+64}")
                e(f"v_rcp_f32 v{a+65}, v{a+65}")
            for a in regs:
                e(f"v_pk_mul_f32 {vr(a,2)}, {vr(a,2)}, {vr(a+64,2)}")
            for p, a in enumerate(regs):
                e(f"v_cvt_pk_bf16_f32 v{d+p}, v{a}, v{a+1}")
            e(f"buffer_store_dwordx4 {vr(d,4)}, v{30+jj}, {sr(S_ACTH)}, {'s5' if qb >= 2 else '0'} offen offset:{(qb%2)*2048} sc1 ; @HST")


V_S0 = V_O + 64


def first_scores():
    out = []
    for kb in range(4):
        for qb in range(4):
            d = vr(V_S0 + (qb * 4 + kb) * 4, 4)
            for ks in range(4):
                out.append(mfma(d, ar(A_KF + (kb * 4 + ks) * 4, 4), ar(A_Q + (qb * 4 + ks) * 4, 4), "0" if ks == 0 else d))
    return out


V_MX, V_L8, V_XO, V_C256, V_TRD, V_X = 40, 45, 46, 47, 48, 2
V_L4K = V_RDMA
ACC = {"G": [128, 144, 160, 176, 192], "S": [64, 80, 96, 112, 208]}
TSTEPS = ["G"] * 7 + ["S"] * 16
TW_SLOT = [LDS_W1 + 8192, 0, 20480, 40960]
PK = 224


def tail_scalar_stream():
    t = Asm()
    tile_ids(t)
    t("s_lshl_b32 s5, s5, 2")
    t("s_add_u32 s5, s5, s6")
    t(f"s_lshl_b32 s{S_SIGP}, s5, 8")
    t(f"s_add_u32 s{S_SIGP}, s{S_SIGP}, {MISC_CNTP}")
    t(f"s_mul_i32 s5, s5, {PART_TILE}")
    t(f"s_mul_i32 s6, s{S_W}, {PART_WAVE}")
    t("s_add_u32 s5, s5, s6")
    t(f"s_add_u32 s5, s5, {WS_PART - WS_MISC}")
    srd(t, S_PART, S_WS, "s5", PART_TILE - 3 * PART_WAVE)
    t(f"s_mul_i32 s{S_M0W}, s{S_W}, 5120")
    for k in range(1, 4):
        t(f"s_xor_b32 s5, s4, {k}")
        t(f"s_mul_i32 s5, s5, {PART_DST}")
        t(f"s_add_u32 s{S_PS+k}, s5, {(k-1)*PART_SRC}")
    t(f"s_mul_i32 s{S_PS}, s4, {PART_DST}")
    t(f"s_add_u32 s{S_M0A}, s{S_PS}, {PART_SRC}")
    t(f"s_add_u32 s{S_KQ}, s{S_PS}, {2*PART_SRC}")
    return glued(t.lines)


def tail_vector_stream():
    t = Asm()
    t(f"s_lshr_b32 s5, s{S_W}, 1")
    t("s_lshl_b32 s5, s5, 2")
    t("s_bfe_u32 s4, s2, 0x20001")
    t("s_add_u32 s5, s5, s4")
    t("s_lshl_b32 s5, s5, 11")
    t(f"s_add_u32 s5, s5, {LDS_V}")
    t(f"v_add_u32 v{V_TRD}, s5, v{V_L16}")
    for k in range(1, 4):
        t(f"v_xor_b32 v{V_TRD+k}, {2048*k}, v{V_TRD}")
    t(f"s_and_b32 s5, s{S_W}, 1")
    t("s_mul_i32 s5, s5, 10240")
    t(f"v_add_u32 v{V_TRD+4}, s5, v{V_L16}")
    t(f"v_add_u32 v{V_TRD+5}, {TW_SLOT[0]}, v{V_TRD+4}")
    return t.lines


def tail_vector_late():
    t = Asm()
    t(f"v_and_b32 v12, 255, v{V_L16}")
    t("v_mul_u32_u24 v12, 80, v12")
    t(f"v_lshrrev_b32 v13, 8, v{V_L16}")
    t(f"v_lshl_add_u32 v{V_XO}, v13, 3, v12")
    t(f"v_lshrrev_b32 v{V_L8}, 1, v{V_L16}")
    t(f"v_add_u32 v14, 8192, v{V_L16}")
    t(f"v_add_u32 v15, 8192, v{V_L8}")
    t(f"v_mov_b32 v{V_C256}, 0x100")
    t(f"v_and_b32 v12, 255, v{V_L16}")
    t("v_mul_u32_u24 v12, 11, v12")
    t("v_lshl_add_u32 v12, v13, 3, v12")
    t(f"v_add_u32 v24, s{S_M0K}, v12")
    t(f"v_lshrrev_b32 v18, 4, v{V_L16}")
    for n in range(3):
        if n:
            t("v_add_u32 v18, 64, v18")
        t("v_mul_u32_u24 v12, 6554, v18")
        t("v_lshrrev_b32 v12, 16, v12")
        t("v_lshlrev_b32 v13, 4, v18")
        t(f"v_lshl_add_u32 v{25+n}, v12, 4, v13")
        t(f"v_add_u32 v{25+n}, s{S_M0K}, v{25+n}")
        t("v_mul_u32_u24 v19, 1120, v12")
        t(f"v_add_u32 v{28+n}, v19, v13")
    t("v_lshrrev_b32 v12, 4, v12")
    t("v_lshl_add_u32 v30, v12, 24, v30")
    t("s_bfe_u32 s4, s2, 0x20001")
    t(f"v_lshrrev_b32 v12, 4, v{V_L16}")
    t("v_lshlrev_b32 v17, v12, 1".replace("v12, 1", f"v12, v{V_ONE}"))
    t("v_add_u32 v13, 1, v12")
    t("v_xor_b32 v16, s4, v13")
    t("v_lshl_add_u32 v16, v16, 2, 4")
    t("v_lshrrev_b32 v13, 2, v13")
    t(f"v_add_u32 v13, s{S_W}, v13")
    t("v_lshl_add_u32 v16, v13, 24, v16")
    t("s_lshl_b32 s4, s4, 2")
    t(f"s_add_u32 s{S_SIGS}, s4, s{S_SIGP}")
    t(f"s_add_u32 s{S_SIGS}, s{S_SIGS}, 4")
    t("v_mov_b32 v12, 0x3f80")
    t("v_mov_b32 v13, 0x3f800000")
    return t.lines


def tail_dma(s, part="WA"):
    g = TSTEPS[s] == "G"
    sa, sw = (S_GA, S_GW) if g else (S_SA, S_SW)
    step = 1 if g else (2 if s != 14 else -13)
    op = "s_add_u32" if step > 0 else "s_sub_u32"
    out = []
    if "W" in part:
        base = TW_SLOT[s % 4]
        out += [f"s_add_u32 m0, s{S_M0W}, {base}"]
        out += [f"buffer_load_dwordx4 v{V_L16}, {sr(S_TW)}, s{sw} offen offset:{f*1024} sc1 lds ; @T{s}" for f in range(4)]
        out += [f"s_add_u32 m0, s{S_M0W}, {base+4096}", f"buffer_load_dwordx4 v{V_L4K}, {sr(S_TW)}, s{sw} offen sc1 lds ; @T{s}",
                f"{op} s{sw}, s{sw}, {abs(step)*WP_PAIR}"]
    if "A" in part:
        out += [f"s_mov_b32 m0, s{S_M0V + s % 4}"]
        out += [f"buffer_load_dwordx4 v{V_L16}, {sr(S_TA)}, s{sa} offen offset:{f*1024} sc1 lds ; @T{s}" for f in range(4)]
        out += [f"{op} s{sa}, s{sa}, {abs(step)*8192}"]
    return out


def tbuf(s):
    return ((s + 1) % 2) * 72


def tail_reads(s):
    b = tbuf(s)
    wr, wo = (V_TRD + 5, 0) if s % 4 == 0 else (V_TRD + 4, TW_SLOT[s % 4])
    wl = [f"ds_read_b128 {ar(b+32+f*4,4)}, v{wr} offset:{wo+f*1024} ; @TR{s}" for f in range(10)]
    al = [f"ds_read_b128 {ar(b+f*4,4)}, v{V_TRD+f//2} offset:{(s%4)*16384+(f%2)*1024} ; @TR{s}" for f in range(8)]
    return wl[:2] + al + wl[2:]


def merge(a, b):
    pos = [i for i, x in enumerate(a) if x.startswith("buffer_")]
    out = list(a)
    for k in range(len(b) - 1, -1, -1):
        out.insert(pos[k * len(pos) // len(b)] + 1 if pos else 0, b[k])
    return out


def tail(e, ost):
    rsoff = [S_PS, S_M0A, S_KQ]

    def xfer(op, kind, base, soff, tag):
        v16, v8 = (V_L16, V_L8) if kind == "S" else (14, 15)
        return [f"buffer_{op}_dwordx4 {vr(base,4)}, v{v16}, {sr(S_PART)}, s{soff} offen sc1 ; @{tag}",
                f"buffer_{op}_dwordx4 {vr(base+4,4)}, v{v16}, {sr(S_PART)}, s{soff} offen offset:1024 sc1 ; @{tag}",
                f"buffer_{op}_dwordx2 {vr(base+8,2)}, v{v8}, {sr(S_PART)}, s{soff} offen offset:2048 sc1 ; @{tag}"]

    def pack(kind, k):
        out = [f"v_cvt_pk_bf16_f32 v{PK+(k-1)*10+2*nb+p}, v{ACC[kind][nb]+4*k+2*p}, v{ACC[kind][nb]+4*k+2*p+1}"
               for nb in range(5) for p in range(2)]
        return out

    def send(kind, k):
        return xfer("store", kind, PK + (k - 1) * 10, S_PS + k, "SEND" + kind)

    RCV = {"G": [ACC["G"][k] + 4 for k in range(3)], "S": [ACC["S"][k] + 4 for k in range(3)]}

    def recv1(kind, k):
        return xfer("load", kind, RCV[kind][k], rsoff[k], f"R{kind}{k}")

    def recv(kind):
        return [x for k in range(3) for x in recv1(kind, k)]

    def accumulate(kind):
        for k in range(3):
            if kind == "G":
                e(f"WAITVM R{kind}{k}")
            elif k == 0:
                e("s_waitcnt vmcnt(0)")
            b = RCV[kind][k]
            for nb in range(5):
                for r in range(4):
                    a = ACC[kind][nb] + r
                    e.safe(f"v_dot2_f32_bf16 v{a}, v{b+2*nb+r//2}, v{12+r%2}, v{a}")

    def atomic(val, soff):
        return f"buffer_atomic_add v{val}, v{V_SIG}, {sr(S_WS)}, s{soff} offen"

    poll_o = f"buffer_load_dword v{V_PVAL}, off, {sr(S_WS)}, s{S_POLLO} sc1"
    poll_p = f"buffer_load_dword v{V_PVAL}, off, {sr(S_WS)}, s{S_SIGP} sc1"
    poll_q = f"buffer_load_dword v{V_PVAL}, off, {sr(S_WS)}, s{S_SIGS} sc1"
    low = f"v_and_b32 v{V_PVAL}, 0xff, v{V_PVAL}"
    n = len(TSTEPS)
    SIGA, CHKA, SIGB, CHKB = OPT.get("siga", 3), OPT.get("chka", 5), OPT.get("sigb", 6), 11
    GSIG, GCHK = OPT.get("gsig", 14), OPT.get("gchk", 19)
    opace = OPT.get("opace", 3)
    gsend = [x for k in range(1, 4) for x in send("G", k)]
    xres = [f"buffer_load_dwordx2 {vr(V_X+2*nb,2)}, v{V_XO}, {sr(S_X)}, s{S_XO} offen offset:{nb*32}" for nb in range(5)]
    late = recv("G")
    alu = tail_vector_late()
    for s in range(n):
        b = tbuf(s)
        e(f"WAITLG TR{s}")
        if s + 1 < n:
            e(f"WAITVM T{s+1}" + {SIGA: " OST0", SIGB: " OST1", CHKA: " POA", CHKB: " POB", GSIG: " SENDG", GCHK: " PG"}.get(s, ""))
            e("s_barrier")
        if OPT.get("tst") and s != CHKA and s not in (9, 13, 15):
            stamp(e)
        head, side = [], []
        assert s != 6 or not alu
        assert s != 7 or not ost
        if s == SIGA:
            head.append(atomic(V_ONE, S_SIGO))
        if s == SIGB:
            head.append(atomic(V_C256, S_SIGO))
        if s == GSIG:
            head.append(atomic(V_ONE, S_SIGP))
        if s == CHKA - 1:
            head.append(poll_o + " ; @POA")
        if s == CHKB - 2:
            head.append(poll_o + " ; @POB")
        if s == GCHK - OPT.get("gpoll", 2):
            head.append(poll_p + " ; @PG")
        if s == CHKA:
            stamp(e)
            for x in poll_check("M_poa", poll_o, [low, f"v_cmp_gt_u32 vcc, 8, v{V_PVAL}"]):
                e(x)
            stamp(e)
        if s == CHKB:
            for x in poll_check("M_pob", poll_o, [f"v_cmp_gt_u32 vcc, 0x800, v{V_PVAL}"]):
                e(x)
        if s == GCHK:
            for x in poll_check("M_pg", poll_p, [f"v_cmp_gt_u32 vcc, 4, v{V_PVAL}"]):
                e(x)
        mem = tail_dma(3, "A") if s == 0 else []
        if s == CHKA:
            for x in range(7, s + 4):
                mem += tail_dma(x, "A")
        if s + 4 < n:
            mem += tail_dma(s + 4, "W" if 7 <= s + 4 < CHKA + 4 else "WA")
        if ost:
            side, ost = ost[:opace], ost[opace:]
        if s == 7:
            alu += pack("G", 1) + pack("G", 2) + pack("G", 3)
        if s >= 8 and gsend:
            assert not alu
            k = OPT.get("gpace", 2)
            side, gsend = gsend[:k], gsend[k:]
        if s == OPT.get("xat", 19):
            side += xres
        if s >= GCHK:
            k = -(-len(late) // (n - 1 - s)) if s < n - 1 else 0
            side, late = side + late[:k], late[k:]
        mem = head + merge(mem, side)
        ds = tail_reads(s + 1) if s + 1 < n else []
        first = s in (0, 7)
        acc_of = ACC[TSTEPS[s]]

        def chain(nb, rb, flip):
            acc = vr(acc_of[nb] + rb * 4, 4)
            return [mfma(acc, ar(b + 32 + (nb * 2 + t) * 4, 4), ar(b + (rb * 2 + t) * 4, 4), "0" if first and i == 0 else acc)
                    for i, t in enumerate((1, 0) if flip else (0, 1))]

        if s + 1 < n:
            mf = [m for nb in range(5) for rb in range(4) for m in chain(nb, rb, rb % 2)]
            fixed = {(i // 3) * 4 + (0, 2, 3)[i % 3]: ([x], []) for i, x in enumerate(ds)}
            nvm = sum(x.startswith("buffer_") for x in mem)
            if nvm > 10:
                fixed = {2 * i: ([x], []) for i, x in enumerate(ds)}
            interleave(e, mf, fixed, [mem, alu], space=4 if nvm <= 10 else 2)
            drain(e, [mem])
        else:
            for rb in (1, 2, 3, 0):
                interleave(e, [m for nb in range(5) for m in chain(nb, rb, nb % 2)], {}, [mem])
                if rb:
                    mem += pack("S", rb) + send("S", rb)
            drain(e, [mem])
            e(poll_q)
    assert not gsend
    stamp(e)
    e(f"s_mov_b32 s6, {fbits(-LOG2E)}")
    e("s_mov_b32 s7, s6")

    def gate():
        accumulate("G")
        for nb in range(5):
            g = ACC["G"][nb]
            t = g + 4
            for p in range(2):
                e.safe(f"v_pk_mul_f32 {vr(t+2*p,2)}, {vr(g+2*p,2)}, s[6:7]")
            for r in range(4):
                e(f"v_exp_f32 v{t+r}, v{t+r}")
            for p in range(2):
                e(f"v_lshlrev_b32 v{t+4+2*p}, 16, v{V_X+2*nb+p}")
                e(f"v_and_b32 v{t+5+2*p}, 0xffff0000, v{V_X+2*nb+p}")
            for p in range(2):
                e(f"v_pk_add_f32 {vr(t+2*p,2)}, {vr(t+2*p,2)}, 1.0 op_sel_hi:[1,0]")
            for r in range(4):
                e(f"v_rcp_f32 v{t+r}, v{t+r}")
            for p in range(2):
                e.safe(f"v_pk_mul_f32 {vr(t+2*p,2)}, {vr(t+2*p,2)}, {vr(g+2*p,2)}")

    gate()
    e("s_waitcnt vmcnt(0)")
    e("s_barrier")
    e(f"buffer_atomic_add v17, v16, {sr(S_WS)}, s{S_SIGP} offen")
    e("s_mov_b32 s4, 0")
    e("s_mov_b32 s3, 0x100000")
    e("M_gather:")
    e(f"v_readfirstlane_b32 s5, v{V_PVAL}")
    e("s_andn2_b32 s5, s5, s4")
    for k in range(3):
        e(f"s_bitcmp0_b32 s5, {k}")
        e(f"s_cbranch_scc1 M_skip{k}")
        for x in recv1("S", k):
            e(x)
        e(f"M_skip{k}:")
    e("s_or_b32 s4, s4, s5")
    e("s_cmp_eq_u32 s4, 7")
    e("s_cbranch_scc1 M_gathered")
    e(poll_q)
    e("s_sub_u32 s3, s3, 1")
    e("s_cmp_lg_u32 s3, 0")
    e("s_waitcnt vmcnt(0)")
    e("s_cbranch_scc1 M_gather")
    e("M_gathered:")
    stamp(e)
    accumulate("S")
    for nb in range(5):
        s = ACC["S"][nb]
        t = ACC["G"][nb] + 4
        for p in range(2):
            e.safe(f"v_pk_fma_f32 {vr(t+2*p,2)}, {vr(t+2*p,2)}, {vr(s+2*p,2)}, {vr(t+4+2*p,2)}")
        for p in range(2):
            e(f"v_cvt_pk_bf16_f32 v{t+4+p}, v{t+2*p}, v{t+2*p+1}")
        if OPT.get("olds", 1):
            e(f"ds_write_b64 v24, {vr(t+4,2)} offset:{nb*32}")
        else:
            e(f"buffer_store_dwordx2 {vr(t+4,2)}, v{V_XO}, {sr(S_OUT)}, s{S_XO} offen offset:{nb*32}")
    if OPT.get("olds", 1):
        for n in range(3):
            e(f"ds_read_b128 {vr(PK+4*n,4)}, v{25+n} ; @OUT{n}")
        for n in range(3):
            e(f"WAITLG OUT{n}")
            e(f"buffer_store_dwordx4 {vr(PK+4*n,4)}, v{28+n}, {sr(S_OUT)}, s{S_XO} offen{['', ' sc1', ' nt'][OPT.get('outf', 0)]}")


def attention(e):
    m = V_M
    e.safe(f"v_and_b32 v{V_POFF}, 7, v0")
    e(f"v_lshlrev_b32 v{V_POFF}, 8, v{V_POFF}")
    e(f"v_add_u32 v{V_POFF}, {MISC_CNTA}, v{V_POFF}")
    repack_addr(e)
    for i in range(8):
        for qb in range(4):
            b = V_S0 + qb * 16
            if i == 0:
                e(f"v_max_f32 v{m+qb}, v{b}, v{b+1}")
            else:
                e(f"v_max3_f32 v{m+qb}, v{m+qb}, v{b+2*i}, v{b+2*i+1}")
    e(f"s_mov_b32 s7, {fbits(-float(OPT.get('bias', 100)))}")
    e("WAITVM K1")
    e("M_restart:")
    e("s_barrier")
    for n in range(LK):
        e(k_read(1, n // 4, n % 4))
    for n in range(LV):
        for v in range(2):
            e(v_read(0, n // 2, n % 2, v))
    e(f"s_mov_b32 m0, s{S_M0K+3}")
    e(f"s_mov_b32 s{S_OFF}, {3*16384}")
    e(k_dma(0))
    e(k_dma(1))
    row_max_finish(e)
    e(f"s_mov_b32 s{S_CNT}, 8")
    for qb in range(4):
        b = V_S0 + qb * 16
        for p in range(8):
            e(f"v_pk_add_f32 {vr(b+2*p,2)}, {vr(b+2*p,2)}, {vr(V_NM+qb*4,2)}")
        for r in range(16):
            e(f"v_exp_f32 v{b+r}, v{b+r}")
        for r in range(4):
            e(f"v_accvgpr_write_b32 a{A_L+qb*4+r}, 0")
        for p in range(8):
            e(f"v_cvt_pk_bf16_f32 v{V_P+qb*8+p}, v{b+2*p}, v{b+2*p+1}")
    e("s_waitcnt lgkmcnt(0)")
    stamp(e)
    attn_step(e, 0, first=True)
    if OPT.get("ast"):
        stamp(e)
    e(".p2align 6")
    e("M_loop:")
    for j in (1, 2, 3, 0):
        attn_step(e, j)
    e("s_cbranch_scc1 M_loop")
    if OPT.get("ast"):
        stamp(e)
    for x in poll_check("M_pa", POLL_A, [f"v_cmp_gt_u32 vcc, 32, v{V_PVAL}"]):
        e(x)
    mem = kv_tile("V", 31) + [f"v_add_u32 v{V_L4K}, 4096, v{V_L16}"] + tail_dma(0, "W")
    attn_step(e, 29, late=(mem, {10: (["s_waitcnt vmcnt(9)"], tail_dma(0, "A") + tail_dma(1, "W"))}))
    attn_step(e, 30, late=(mem, {10: (["WAITVM V31"], tail_dma(1, "A") + tail_dma(2, "W")),
                                 14: ([], tail_dma(2, "A") + tail_dma(3, "W"))}))
    if OPT.get("ast"):
        stamp(e)
    T = 24
    alu, rng = [], []

    def extra(u):
        if u == 2:
            alu.extend(tail_vector_stream())
        if u == 7:
            for qb in range(4):
                alu.extend([f"v_accvgpr_read_b32 v{T+2*qb}, a{A_L+qb*4}", f"v_accvgpr_read_b32 v{T+2*qb+1}, a{A_L+qb*4+1}"])
            for qb in range(4):
                alu.append(f"v_add_f32 v{T+2*qb+1}, v{T+2*qb}, v{T+2*qb+1}")
            for qb in range(4):
                alu.append(f"v_rcp_f32 v{T+2*qb}, v{T+2*qb+1}")
        if u >= 1:
            magnitude(u - 1)
        return [mem, alu, rng]

    def magnitude(u):
        for qb in ((u % 2) * 2, (u % 2) * 2 + 1):
            a = o_reg(u // 2, qb)
            third = f"v{V_MX+qb}" if u >= 2 else f"|v{a+1}|"
            rng.append(f"v_maximum3_f32 v{V_MX+qb}, |v{a}|, |v{a+1}|, {third}")
            rng.append(f"v_maximum3_f32 v{V_MX+qb}, |v{a+2}|, |v{a+3}|, v{V_MX+qb}")

    attn_step(e, 31, qk=False, extra=extra)
    magnitude(15)
    drain(e, [mem, alu])
    stamp(e)

    ost = []
    e("s_mov_b32 s6, 8192")
    for jp in range(2):
        for qb in range(4):
            for t in range(2):
                j = 2 * jp + t
                d = V_P + ((jp * 4 + qb) * 2 + t) * 4
                if (jp, qb, t) == (0, 0, 0):
                    drain(e, [rng])
                    e(f"v_maximum3_f32 v58, v{V_MX}, v{V_MX+1}, v{V_MX+2}")
                    e(f"v_minimum3_f32 v59, v{V_MX}, v{V_MX+1}, v{V_MX+2}")
                    e(f"v_maximum3_f32 v58, v58, v{V_MX+3}, v{T+1}")
                    e(f"v_minimum3_f32 v59, v59, v{V_MX+3}, v{V_MX+3}")
                    e(f"v_maximum3_f32 v58, v58, v{T+3}, v{T+5}")
                    e(f"v_cmp_nle_f32 vcc, {fbits(O_LOW)}, v59")
                    e(f"v_maximum3_f32 v58, v58, v{T+7}, v{T+7}")
                    e("s_mov_b64 s[4:5], vcc")
                    e(f"v_cmp_nge_f32 vcc, {fbits(L_LIMIT)}, v58")
                    e(f"s_lshl_b32 s7, s{S_W}, 2")
                    e(f"s_add_u32 s7, s7, {LDS_FLAG}")
                    e("s_or_b64 s[4:5], s[4:5], vcc")
                    e("s_or_b32 s4, s4, s5")
                    e("v_mov_b32 v59, s7")
                    e("v_mov_b32 v58, s4")
                    e("ds_write_b32 v59, v58")
                    e(f"v_mov_b32 v59, {LDS_FLAG}")
                for u in range(2):
                    a = o_reg(2 * j + u, qb)
                    e(f"v_pk_mul_f32 {vr(a,2)}, {vr(a,2)}, {vr(T+2*qb,2)} op_sel_hi:[1,0]")
                    e(f"v_pk_mul_f32 {vr(a+2,2)}, {vr(a+2,2)}, {vr(T+2*qb,2)} op_sel_hi:[1,0]")
                for u in range(2):
                    a = o_reg(2 * j + u, qb)
                    e(f"v_cvt_pk_bf16_f32 v{d+2*u}, v{a}, v{a+1}")
                    e(f"v_cvt_pk_bf16_f32 v{d+2*u+1}, v{a+2}, v{a+3}")
                ost.append(f"buffer_store_dwordx4 {vr(d,4)}, v{V_L16 if qb < 2 else V_L4K}, {sr(S_ACT)}, {'s6' if jp else '0'} offen offset:{(qb%2)*2048+t*1024} sc1 ; @OST{jp}")
                if ((jp * 4 + qb) * 2 + t) % OPT.get("oearly", 5) == 0:
                    e(ost.pop(0))
        if jp == 0:
            e("s_waitcnt lgkmcnt(0)")
            e("WAITVM T0")
            e("s_barrier")
            e("ds_read_b128 v[60:63], v59 ; @FLG")
            for x in tail_reads(0):
                e(x)
    e("WAITLG FLG")
    e("v_or_b32 v60, v60, v61")
    e("v_or3_b32 v60, v60, v62, v63")
    e.safe("v_readfirstlane_b32 s4, v60")
    e(f"s_andn2_b32 s4, s4, s{S_RETRY}")
    e("s_cbranch_scc1 M_fallback")
    return ost


def fallback(e):
    m = V_M
    e("M_fallback:")
    e(f"s_mov_b32 s{S_RETRY}, -1")
    e(f"s_mov_b32 s{S_SIGA}, {OOB}")
    e(f"s_sub_u32 s{S_GA}, s{S_GA}, {3*8192}")
    e(f"s_sub_u32 s{S_GW}, s{S_GW}, {4*WP_PAIR}")
    for qb in range(4):
        e(f"v_mov_b32 v{m+qb}, 0xff800000")
    e(f"s_mov_b32 s{S_OFF}, 0")
    e("M_maxloop:")
    e("s_waitcnt vmcnt(0) lgkmcnt(0)")
    e("s_barrier")
    e(f"s_mov_b32 m0, s{S_M0K}")
    e("s_nop 0")
    for n in range(4):
        e(k_dma(n))
    e("s_waitcnt vmcnt(0)")
    e("s_barrier")
    for kb in range(4):
        for ks in range(4):
            e(k_read(0, kb, ks))
        e("s_waitcnt lgkmcnt(0)")
        for qb in range(4):
            d = vr(V_P + qb * 4, 4)
            for ks in range(4):
                e(mfma(d, ar(A_KF + (kb * 4 + ks) * 4, 4), ar(A_Q + (qb * 4 + ks) * 4, 4), "0" if ks == 0 else d))
        e("s_nop 7")
        for qb in range(4):
            b = V_P + qb * 4
            e(f"v_max3_f32 v{m+qb}, v{m+qb}, v{b}, v{b+1}")
            e(f"v_max3_f32 v{m+qb}, v{m+qb}, v{b+2}, v{b+3}")
    e(f"s_add_u32 s{S_OFF}, s{S_OFF}, 16384")
    e(f"s_cmp_lt_u32 s{S_OFF}, 524288")
    e("s_cbranch_scc1 M_maxloop")
    e("s_barrier")
    for w, t in (("K", 0), ("K", 1), ("K", 2), ("V", 0), ("V", 1)):
        for x in kv_tile(w, t):
            e(x)
    e("s_waitcnt vmcnt(0)")
    e("s_barrier")
    for kb in range(4):
        for ks in range(4):
            e(k_read(0, kb, ks))
    e("s_waitcnt lgkmcnt(0)")
    for x in first_scores():
        e(x)
    e("s_mov_b32 s7, 0")
    e("s_branch M_restart")


def build():
    e = Asm()
    for l in open(f"cdna_kernels/{NAME}.s.ref").read().split("\n"):
        if not l.startswith(";"):
            break
        if "@launch" not in l:
            e(l)
    e("; @launch grid=(256,1,1) block=(256,1,1) lds=163840")
    e('.amdgcn_target "amdgcn-amd-amdhsa--gfx950"')
    e(".text")
    e(f".globl {KERNEL}")
    e(".p2align 8")
    e(f".type {KERNEL},@function")
    e(f"{KERNEL}:")
    phase1(e, setup(e))
    proj_epilogue(e)
    stamp(e)
    ost = attention(e)
    stamp(e)
    tail(e, ost)
    stamp_flush(e)
    e("M_exit:")
    e("s_endpgm")
    fallback(e)
    emit_spins(e)
    e('.section .rodata,"a"')
    e(".p2align 6")
    e(f".amdhsa_kernel {KERNEL}")
    for d in ("next_free_vgpr 512", "next_free_sgpr 102", "accum_offset 256", "group_segment_fixed_size 0", "kernarg_size 88",
              "user_sgpr_count 2", "user_sgpr_kernarg_segment_ptr 1", "system_sgpr_workgroup_id_x 1"):
        e(f".amdhsa_{d}")
    e(".end_amdhsa_kernel")
    e.resolve()
    if OPT.get("jitter"):
        import random
        rnd = random.Random(OPT["jitter"])
        out, n = [], 0
        for l in e.lines:
            site = l.startswith(("s_barrier", "buffer_atomic")) or (l.startswith("buffer_store") and rnd.random() < 0.2)
            if site and rnd.random() < 0.7:
                n += 1
                pre = ["s_cselect_b32 s99, 1, 0", f"s_mul_i32 s98, s2, {rnd.randrange(3, 1000, 2)}", f"s_add_u32 s98, s98, s{S_W}",
                       f"s_mul_i32 s98, s98, {rnd.randrange(3, 1000, 2)}", f"s_bitcmp1_b32 s98, {rnd.randrange(0, 4)}",
                       f"s_cbranch_scc0 J{n}", f"s_sleep {rnd.choice([1, 3, 10, 30, 60])}", f"J{n}:", "s_cmp_lg_u32 s99, 0"]
                out += pre + [l] if rnd.random() < 0.5 else [l] + pre
            else:
                out.append(l)
        e.lines = out
    errs = []
    errs += check_trace(e.trace(KERNEL, {"M_loop": [True, True, False], "M_gathered": [True]}), "fast")
    errs += check_trace(e.trace(KERNEL, {"M_loop": [True, False, True, False], "M_fallback": [True, False], "M_maxloop": [True, False],
                                         "M_ps_spin": [True], "M_pa_spin": [True, True], "M_poa_spin": [True], "M_pob_spin": [True], "M_poa_back": [True], "M_pob_back": [True], "M_skip0": [True, False], "M_skip1": [False, True], "M_skip2": [False, True], "M_gather": [True], "M_gathered": [False, True], "M_pg_spin": [True], "M_pg_back": [True],
                                         "M_ps_back": [True], "M_pa_back": [True, True]}), "slow")
    return e.text(), errs


if __name__ == "__main__":
    if "--stamps" in sys.argv:
        sys.argv.remove("--stamps")
        STAMPS = True
    for a in [x for x in sys.argv if "=" in x]:
        sys.argv.remove(a)
        k, v = a.split("=")
        OPT[k] = int(v)
    text, errs = build()
    for x in errs[:6]:
        print(x)
    out = sys.argv[1] if len(sys.argv) > 1 else f"cdna_kernels/{NAME}.s"
    open(out, "w").write(text)
    print("wrote", out, len(text), "bytes;", len(errs), "check findings; stamps", nstamp[0])
```

```python
import sys, struct
from asm import Asm, check_trace

NAME = "recurrent_scan__gqa_block_cached__dense_activation_silu__prompt"
KERNEL = NAME + "_kernel"
WS_MISC = 0
MISC_CNTA, MISC_CNTO, MISC_CNTP, MISC_SIZE = 16384, 20480, 28672, 45056
WS_ACT = 4 << 20
WS_WP = 32 << 20
WS_STAMP = 64 << 20
WS_PART = 96 << 20
PART_SRC, PART_WAVE, PART_DST, PART_TILE = 2560, 16384, 65536, 262144
NPAIR = 91
ACT_RG = NPAIR * 8192
WP_PAIR = 81920
SRD3 = "0x00020000"
OOB = 0x1000000
LOG2E = 1.4426950408889634
L_LIMIT = 2.0 ** 120
O_LOW = 2.0 ** -110
STAMPS = False
OPT = {}

S_X, S_WQ, S_W1, S_K, S_V, S_ACT, S_ACTH, S_DBG, S_WS, S_R0, S_R1, S_WP, S_TA, S_TW, S_OUT = range(8, 68, 4)
S_M0K, S_M0V = 68, 72
S_W, S_HEAD, S_QT, S_W4K, S_OFF, S_CNT, S_RETRY = range(76, 83)
S_RSRC, S_RSRC2, S_RDST, S_M0R = 83, 84, 85, 86
S_GA, S_GW, S_SA, S_SW, S_XO = range(87, 92)
S_SIGS, S_SIGA, S_SIGO, S_POLLO = 92, 93, 94, 95
S_W2K, S_W8K = 100, 101
P_IN = 52
S_PART, S_KQ, S_SIGP, S_M0A, S_M0W, S_PS = 48, 12, 13, 14, 15, 16
V_L16 = 1
V_KRD, V_VRD, V_KDMA, V_VDMA = 2, 6, 14, 18
V_STAMP, V_IDX, V_ONES, V_NM, V_P, V_O = 34, 35, 36, 40, 64, 128
SBUF = [56, 60, 24, 28]
V_POFF, V_PVAL, V_ONE, V_SIG = 20, 21, 32, 33
V_XDMA, V_XRD = 20, 24
V_RDMA, V_RRD = 22, 23
V_WQRD, V_W1RD, V_WQDMA, V_W1DMA, V_ST = 40, 48, 52, 56, 52
A_Q, A_KF, A_VF, A_L = 0, 64, 128, 160
A_XF, A_WF, A_CS, A_RP = 64, 128, 192, 176
LDS_K, LDS_V, LDS_W1 = 0, 65536, 131072
LDS_CS = LDS_W1 + 3 * 8192
LDS_FLAG = 163840 - 16
WQ_SLOT = [LDS_V + 3 * 16384, LDS_V + 2 * 16384, LDS_K + 2 * 16384, LDS_K + 3 * 16384]
X_SLOT = [LDS_V, LDS_K]
LK = LV = 5


def fbits(x):
    return "0x%08x" % struct.unpack("<I", struct.pack("<f", x))[0]


def vr(b, n=1):
    return f"v{b}" if n == 1 else f"v[{b}:{b+n-1}]"


def ar(b, n=1):
    return f"a{b}" if n == 1 else f"a[{b}:{b+n-1}]"


def sr(b, n=4):
    return f"s[{b}:{b+n-1}]"


def srd(e, d, src, off, size):
    if off is not None:
        e(f"s_add_u32 s{d}, s{src}, {off}")
        e(f"s_addc_u32 s{d+1}, s{src+1}, 0")
    elif src != d:
        e(f"s_mov_b32 s{d}, s{src}")
        e(f"s_mov_b32 s{d+1}, s{src+1}")
    e(f"s_mov_b32 s{d+2}, {size}")
    e(f"s_mov_b32 s{d+3}, {SRD3}")


def mfma(d, a, b, c):
    return f"v_mfma_f32_16x16x32_bf16 {d}, {a}, {b}, {c}"


def smfmac(d, b):
    return f"v_smfmac_f32_16x16x64_bf16 {d}, {vr(V_ONES,4)}, {b}, v{V_IDX}"


nstamp = [0]


def stamp(e):
    if STAMPS:
        i = nstamp[0]
        nstamp[0] += 1
        e("s_memrealtime s[96:97]")
        e("s_memtime s[98:99]")
        e("s_waitcnt lgkmcnt(0)")
        e(f"v_writelane_b32 v{V_STAMP}, s96, {2*i}")
        e(f"v_writelane_b32 v{V_STAMP}, s98, {2*i+1}")


def stamp_flush(e):
    if not STAMPS:
        return
    e("s_waitcnt vmcnt(0) lgkmcnt(0)")
    stamp(e)
    srd(e, 8, S_WS, WS_STAMP - WS_MISC, 262144)
    e("s_lshl_b32 s12, s2, 2")
    e(f"s_add_u32 s12, s12, s{S_W}")
    e("s_lshl_b32 s12, s12, 8")
    e(f"v_lshrrev_b32 v2, 2, v{V_L16}")
    e(f"buffer_store_dword v{V_STAMP}, v2, s[8:11], s12 offen")
    if "ea" in OPT:
        k = OPT.get("ecyc", 0)
        e(f"v_readlane_b32 s4, v{V_STAMP}, {2*OPT['ea']+k}")
        e(f"v_readlane_b32 s5, v{V_STAMP}, {2*OPT['eb']+k}")
        e("s_nop 3")
        e("s_sub_u32 s5, s5, s4")
        if k:
            e("s_mul_i32 s5, s5, 3277")
            e("s_lshr_b32 s5, s5, 16")
        e("s_add_u32 s5, s5, s96")
        e("M_echo:")
        e("s_memrealtime s[6:7]")
        e("s_waitcnt lgkmcnt(0)")
        e("s_sub_u32 s4, s6, s5")
        e("s_cmp_lt_i32 s4, 0")
        e("s_cbranch_scc1 M_echo")


def kind_of(x):
    if x.startswith("buffer_"):
        return "vm"
    if x.startswith("ds_"):
        return "ds"
    if x.startswith(("v_exp", "v_rcp", "v_sqrt", "v_permlane")):
        return "slow"
    return "valu" if x.startswith("v_") else "scalar"


prev_valu = [False]


def interleave(e, mf, fixed, streams, cap=2, quota=99, space=0):
    last_vm = -space
    for i, m in enumerate(mf):
        e.safe(m)
        pre, post = fixed.get(i, ([], []))
        items = post + pre
        shadow, used, valu = True, 0, False

        def emit(x, safe=False):
            nonlocal shadow, used, valu
            k = kind_of(x)
            (e.safe if safe else e)(x)
            if not (k == "scalar" and shadow):
                used += 2 if k in ("vm", "slow") else 1
            used += x.count("\ns_")
            shadow = False
            valu |= k in ("valu", "slow")

        if not (items and kind_of(items[0]) == "scalar"):
            for s in streams:
                if s and kind_of(s[0]) == "scalar" and e.hazard_free(s[0]):
                    emit(s.pop(0))
                    break
        for x in items:
            emit(x, True)
        want_vm = quota > 0 and i + 1 - last_vm >= space and any(
            s and "vm" in [kind_of(y) for y in s[:2]] for s in streams) and i + 1 not in fixed
        progress = True
        while used < cap and progress:
            progress = False
            for kinds in (("vm", "ds", "scalar"), ("valu", "slow"), ("scalar",)):
                for s in streams:
                    if not s or kind_of(s[0]) not in kinds:
                        continue
                    k = kind_of(s[0])
                    if k == "scalar" and len(kinds) > 1 and s is streams[-1]:
                        continue
                    if used + (2 if k in ("vm", "slow") else 1) > cap or not e.hazard_free(s[0]):
                        continue
                    if k == "vm" and (valu or prev_valu[0] or quota == 0 or i - last_vm < space):
                        continue
                    if k == "ds" and valu:
                        continue
                    if k in ("valu", "slow") and want_vm and not valu:
                        continue
                    if k == "vm":
                        last_vm = i
                        quota -= 1
                        want_vm = want_vm and space <= 1 and quota > 0
                    emit(s.pop(0))
                    progress = True
                    break
                if progress:
                    break
        prev_valu[0] = valu


def drain(e, streams):
    for s in streams:
        while s:
            e.safe(s.pop(0))


def snake(k):
    return (3, 2, 1, 0) if k % 2 and OPT.get("snake", 1) else (0, 1, 2, 3)


def o_reg(db, qb):
    return V_O + (db * 4 + qb) * 4


KVF = ["", " sc1", " nt", " sc0", " sc0 sc1"]


def k_dma(n, tag=""):
    return f"buffer_load_dwordx4 v{V_KDMA+n}, {sr(S_K)}, s{S_OFF} offen offset:{n*1024}{KVF[OPT.get('kvf', 0)]} lds{tag}"


def v_dma(n, tag=""):
    return f"buffer_load_dwordx4 v{V_VDMA+(n&1)}, {sr(S_V)}, s{S_OFF} offen offset:{n*1024}{KVF[OPT.get('kvf', 0)]} lds{tag}"


def k_read(tile, kb, ks):
    return f"ds_read_b128 {ar(A_KF+(kb*4+ks)*4,4)}, v{V_KRD+ks} offset:{(tile%4)*16384+kb*4096}"


def v_read(tile, db, t, v):
    return f"ds_read_b64_tr_b16 {ar(A_VF+((db%4)*2+t)*4+2*v,2)}, v{V_VRD+db} offset:{(tile%4)*16384+t*8192+v*4096}"


def kv_tile(which, tile):
    tag = f" ; @{which}{tile}"
    out = [f"s_mov_b32 m0, s{(S_M0K if which == 'K' else S_M0V) + tile % 4}", f"s_mov_b32 s{S_OFF}, {tile*16384}"]
    return out + [(k_dma if which == "K" else v_dma)(n, tag) for n in range(4)]


spins = []


def poll_check(name, load, cond):
    spins.append((name, load, cond))
    return cond + [f"s_cbranch_vccnz {name}_spin\n{name}_back:"]


def emit_spins(e):
    for name, load, cond in spins:
        e(f"{name}_spin:")
        e("s_mov_b32 s3, 0x100000")
        e(f"{name}_loop:")
        e(f"s_sleep {OPT.get('slp', 2)}")
        e(load)
        e("s_waitcnt vmcnt(0)")
        for x in cond:
            e(x)
        e(f"s_cbranch_vccz {name}_back")
        e("s_sub_u32 s3, s3, 1")
        e("s_cmp_lg_u32 s3, 0")
        e(f"s_cbranch_scc1 {name}_loop")
        e(f"s_branch {name}_back")


POLL_A = f"buffer_load_dword v{V_PVAL}, v{V_POFF}, {sr(S_WS)}, 0 offen sc1"


def attn_step(e, j, qk=True, first=False, extra=None, late=None):
    pw = V_P + ((j + 1) % 2) * 32
    pr = V_P + (j % 2) * 32
    pv = True

    def pdst(x):
        on, base = (qk, pw) if x >= 0 else (not first, pr)
        x %= 16
        return on, base + (x % 4) * 8 + (x // 4) * 2, SBUF[x % 4]

    for u in range(16):
        def qk_chain(x, rev):
            kb, qb, d = x // 4, x % 4, vr(SBUF[x % 4], 4)
            return [mfma(d, ar(A_KF + (kb * 4 + ks) * 4, 4), ar(A_Q + (qb * 4 + ks) * 4, 4), d if i else vr(V_NM + qb * 4, 4))
                    for i, ks in enumerate((3, 2, 1, 0) if rev else (0, 1, 2, 3))]

        def pv_chains(x, rev=False):
            out, db = [], x // 2
            for h in range(2):
                q2 = (x % 2) * 2 + (1 - h if rev else h)
                o = vr(o_reg(db, q2), 4)
                for t in ((0, 1) if h == 0 else (1, 0)):
                    out.append(mfma(o, ar(A_VF + ((db % 4) * 2 + t) * 4, 4), vr(pr + q2 * 8 + t * 4, 4), "0" if first and t == h else o))
            return out

        if not qk:
            M = [None] * 4 + pv_chains(u)
        elif not OPT.get("sup", 1):
            M = qk_chain(u, False) + pv_chains(u)
        elif OPT.get("sup", 1) == 2:
            x = (u // 4) * 4 + (u % 2) * 2
            if u % 4 < 2:
                M = qk_chain(x, False) + qk_chain(x + 1, True)
            elif u % 4 == 2:
                M = pv_chains(x) + pv_chains(x + 1)
            else:
                M = pv_chains(x + 1, True) + pv_chains(x, True)
        elif u % 2 == 0:
            M = qk_chain(u, False) + qk_chain(u + 1, True)
        else:
            M = pv_chains(u - 1) + pv_chains(u)
        F = [[] for _ in range(8)]
        sc = []
        nreads = 0
        n = u + LK
        if qk and not (j == 30 and n >= 16):
            F[2].append(k_read(j + 1 + n // 16, (n % 16) // 4, n % 4))
            nreads += 1
        n = u + LV
        if n < 16 or qk:
            F[5].append(v_read(j + n // 16, (n % 16) // 2, n % 2, 0))
            F[6].append(v_read(j + n // 16, (n % 16) // 2, n % 2, 1))
            nreads += 2
        on, p, sb = pdst(u - 1)
        if on:
            for r in range(4):
                F[(0, 1, 3, 4)[r]].append(f"v_exp_f32 v{sb+r}, v{sb+r}")
            F[5].append(f"v_cvt_pk_bf16_f32 v{p}, v{sb}, v{sb+1}")
        on, p, sb = pdst(u - 2)
        if on:
            F[2].append(f"v_cvt_pk_bf16_f32 v{p+1}, v{sb+2}, v{sb+3}")
        post = []
        sh = OPT.get("sh", 0)
        ud, up = (u + 2 * sh) % 16, u + sh
        if late:
            q, syncs = late
            while q and kind_of(q[0]) == "scalar" and len(sc) < 6:
                sc.append(q.pop(0))
            if q:
                F[7].append(q.pop(0))
            if up in syncs:
                wait, more = syncs[up]
                assert j != 29 or not any(kind_of(x) == "vm" for x in q)
                post += wait + ["s_barrier"]
                q.extend(more)
            elif up % 4 == 2 and q and kind_of(q[0]) == "vm":
                post.append(q.pop(0))
        elif qk:
            if up == 10:
                post += [f"s_waitcnt vmcnt({[9 + sh, 10 - sh, 9, 10][j % 4]})", "s_barrier"]
            if ud == 12:
                sc += [f"s_add_u32 s{S_OFF}, s{S_OFF}, 32768", f"s_mov_b32 m0, s{S_M0K + j % 4}"]
            if ud in (12, 14):
                F[7].append(k_dma((ud - 12) // 2))
            if ud in (0, 2):
                F[7].append(k_dma(2 + ud // 2))
            if ud == 4:
                sc += [f"s_sub_u32 s{S_OFF}, s{S_OFF}, 16384", f"s_mov_b32 m0, s{S_M0V + (j + 2) % 4}"]
            if ud in (4, 6, 8, 10):
                F[7].append(v_dma((ud - 4) // 2))
            if j % 4 == 0:
                if ud in (3, 11):
                    sc.append(f"s_mov_b32 m0, s{S_M0R}")
                if ud == 3:
                    F[7].append(f"buffer_load_dwordx4 v{V_RDMA}, {sr(S_R0)}, s{S_RSRC} offen lds")
                if ud == 11:
                    F[7].append(f"buffer_load_dwordx4 v{V_RDMA}, {sr(S_R0)}, s{S_RSRC2} offen offset:1024 lds")
                if ud == 13:
                    sc += [f"s_add_u32 s{S_RSRC}, s{S_RSRC}, 256", f"s_add_u32 s{S_RSRC2}, s{S_RSRC2}, 256",
                           f"s_cmp_gt_u32 s{S_CNT}, 4", f"s_cselect_b32 s{S_R0+2}, s{S_R0+2}, 0"]
                if up == 14:
                    sc += [f"s_cmp_eq_u32 s{S_CNT}, 3", f"s_cselect_b32 s5, s{S_SIGA}, {OOB}"]
                    post.append(f"buffer_atomic_add v{V_ONE}, v{V_SIG}, {sr(S_WS)}, s5 offen")
                if u == 15 and not first:
                    sc.append(f"s_cmp_gt_u32 s{S_CNT}, 1")
            if j % 4 == 2:
                if up == 6:
                    post.append(POLL_A)
                if 11 <= u < 15:
                    k = u - 11
                    F[6].append(f"ds_read_b64_tr_b16 {ar(A_RP+2*k,2)}, v{V_RRD} offset:{(k//2)*32+(k%2)*4096}")
                    nreads += 1
                if u == 15:
                    sc.append(f"s_sub_u32 s{S_CNT}, s{S_CNT}, 1")
            if j % 4 == 3:
                if up in (2, 6):
                    post.append(f"buffer_store_dwordx4 {ar(A_RP+(up//4)*4,4)}, v{V_L16}, {sr(S_WP)}, s{S_RDST} offen offset:{(up//4)*2048} sc1")
                if u == 7:
                    sc.append(f"s_add_u32 s{S_RDST}, s{S_RDST}, 16384")
        for i, x in enumerate(sc):
            F[i].insert(0, x)
        if u % 2 == 1:
            F[7].insert(0, f"s_waitcnt lgkmcnt({nreads})")
        if qk and not late and not first:
            drop = tuple(p for k, p in (("nodma", "buffer_"), ("nobar", "s_barrier"), ("novm", "s_waitcnt vmcnt"), ("nolg", "s_waitcnt lgkm"), ("nods", "ds_")) if OPT.get(k))
            if drop:
                keep = lambda x: not x.startswith(drop) or "atomic" in x or x == POLL_A
                F = [[x for x in f if keep(x)] for f in F]
                post = [x for x in post if keep(x)]
        if qk:
            for i in range(8):
                e(M[i])
                for x in F[i]:
                    e(x)
        else:
            for x in F[0] + F[1] + F[2] + F[3] + F[4]:
                e.safe(x)
            fixed = {}
            if F[5]:
                fixed[0] = (F[5][:1] + F[6] + F[5][1:], [])
            if 2 <= u < 6:
                M.append(smfmac(ar(A_L + (u - 2) * 4, 4), vr(pr + (u - 2) * 8, 8)))
            interleave(e, M[4:], fixed, extra(u), cap=OPT.get("fcap", 3), quota=OPT.get("fq", 2))
            for x in F[7]:
                e(x)
        if qk and up % 4 == 2:
            q2 = u // 4
            e(smfmac(ar(A_L + q2 * 4, 4), vr(pr + q2 * 8, 8)))
        for x in post:
            e(x)


V_M = 24


def row_max_finish(e):
    m, t = V_M, V_M + 4
    for swap in ("v_permlane32_swap_b32", "v_permlane16_swap_b32"):
        for qb in range(4):
            e(f"v_mov_b32 v{t+qb}, v{m+qb}")
        for qb in range(4):
            e(f"{swap} v{m+qb}, v{t+qb}")
        for qb in range(4):
            e(f"v_max_f32 v{m+qb}, v{m+qb}, v{t+qb}")
    for qb in range(4):
        sel = "op_sel_hi:[0,0]" if qb % 2 == 0 else "op_sel:[0,1] op_sel_hi:[0,1]"
        for p in range(2):
            e(f"v_pk_add_f32 {vr(V_NM+qb*4+2*p,2)}, s[6:7], {vr(m+(qb//2)*2,2)} {sel} neg_lo:[0,1] neg_hi:[0,1]")


def x_dma(c):
    out = []
    for h in range(2):
        out += [f"s_add_u32 m0, s{S_W8K}, {X_SLOT[c%2] + h*4096}", f"s_mov_b32 s{S_OFF}, {c*128 + h*40960}"]
        out += [f"buffer_load_dwordx4 v{V_XDMA+n}, {sr(S_X)}, s{S_OFF} offen offset:{n*1024} lds ; @X{c}" for n in range(4)]
    return out


def w_dma(c):
    out = [f"s_add_u32 m0, s{S_W4K}, {WQ_SLOT[c%4]}", f"s_mov_b32 s{S_OFF}, {c*64*8192}"]
    out += [f"buffer_load_dwordx4 v{V_WQDMA+n}, {sr(S_WQ)}, s{S_OFF} offen offset:{n*1024} lds ; @W{c}" for n in range(4)]
    out += [f"s_add_u32 m0, s{S_W2K}, {LDS_W1+(c%4)*8192}", f"s_mov_b32 s{S_OFF}, {c*64*3456}"]
    out += [f"buffer_load_dwordx4 v{V_W1DMA+n}, {sr(S_W1)}, s{S_OFF} offen offset:{n*1024} lds ; @W{c}" for n in range(2)]
    return out


def x_read(c):
    out = [f"ds_read_b128 {ar(A_XF+(c%2)*32+(qb*2+t)*4,4)}, v{V_XRD+t} offset:{qb*2048} ; @XR{c}" for qb in range(4) for t in range(2)]
    return out + [f"v_xor_b32 v{V_XRD+t}, 0x10000, v{V_XRD+t}" for t in range(2)]


def setup(e):
    if STAMPS:
        e("s_memrealtime s[92:93]")
        e("s_memtime s[94:95]")
    e(f"s_load_dwordx16 {sr(P_IN,16)}, s[0:1], 0")
    e("s_cmp_ge_u32 s2, 256")
    e("s_cbranch_scc1 M_exit")
    e("v_lshrrev_b32 v31, 6, v0")
    e("v_mov_b32 v62, v0")
    e(f"v_readfirstlane_b32 s{S_W}, v31")
    e("v_and_b32 v0, 63, v0")
    e(f"s_lshr_b32 s{S_QT}, s2, 5")
    e("v_lshrrev_b32 v29, 4, v0")
    e("v_lshrrev_b32 v30, 3, v0")
    e("v_and_b32 v31, 7, v0")
    e(f"s_lshl_b32 s{S_W8K}, s{S_W}, 13")
    e(f"s_lshl_b32 s5, s{S_QT}, 2")
    e(f"s_add_u32 s5, s5, s{S_W}")
    e("s_mul_i32 s6, s5, 81920")
    e("v_mul_u32_u24 v26, 1280, v30")
    e("v_add_u32 v26, s6, v26")
    e("v_xor_b32 v27, v31, v29")
    e(f"v_lshl_add_u32 v{V_XDMA}, v27, 4, v26")
    e(f"v_add_u32 v{V_XDMA+2}, {2*(10240-1024)}, v{V_XDMA}")
    e(f"v_xor_b32 v27, 64, v{V_XDMA}")
    e(f"v_add_u32 v{V_XDMA+1}, {10240-1024}, v27")
    e(f"v_add_u32 v{V_XDMA+3}, {3*(10240-1024)}, v27")
    e(f"s_mov_b32 s{S_X+2}, 2621440")
    e(f"s_mov_b32 s{S_X+3}, {SRD3}")
    first = x_dma(0)
    pre = Asm()
    pre("s_and_b32 s3, s2, 7")
    pre("s_bfe_u32 s7, s2, 0x20003")
    pre(f"s_lshl_b32 s{S_HEAD}, s3, 2")
    pre(f"s_add_u32 s{S_HEAD}, s{S_HEAD}, s7")
    pre(f"s_lshl_b32 s{S_W2K}, s{S_W}, 11")
    pre(f"s_lshl_b32 s{S_W4K}, s{S_W}, 12")
    pre("v_and_b32 v28, 15, v0")
    pre(f"s_lshl_b32 s6, s{S_W}, 17")
    pre("v_lshlrev_b32 v26, 13, v29")
    pre("v_add_u32 v26, s6, v26")
    pre("v_lshlrev_b32 v27, 2, v29")
    pre("v_xor_b32 v27, v27, v28")
    pre(f"v_lshl_add_u32 v{V_WQDMA}, v27, 4, v26")
    for n in range(1, 4):
        pre(f"v_add_u32 v{V_WQDMA+n}, {n*(32768-1024)}, v{V_WQDMA}")
    pre(f"s_lshl_b32 s6, s{S_HEAD}, 8")
    early = OPT.get("early", 0)
    for x in first[:2] + (pre.lines if early else []):
        e(x)
    e("s_waitcnt lgkmcnt(0)")
    if STAMPS:
        e(f"v_writelane_b32 v{V_STAMP}, s92, 0")
        e(f"v_writelane_b32 v{V_STAMP}, s94, 1")
        nstamp[0] += 1
    if OPT.get("st0"):
        stamp(e)
    e(f"s_mov_b64 {sr(S_X,2)}, {sr(P_IN,2)}")
    for x in first[2:]:
        e.safe(x)
    if OPT.get("pf", 1):
        e(f"s_getpc_b64 {sr(S_ACT,2)}")
        e("M_pc:")
        e(f"s_mov_b32 s{S_ACT+2}, M_hot_end-M_pc")
        e(f"s_mov_b32 s{S_ACT+3}, {SRD3}")
        e("s_lshr_b32 s3, s2, 3")
        e("s_lshl_b32 s3, s3, 11")
        e("v_lshlrev_b32 v26, 7, v62")
        e("v_lshrrev_b32 v27, 4, v62")
        e("v_lshl_add_u32 v26, v27, 24, v26")
        e(f"buffer_load_dword v63, v26, {sr(S_ACT)}, s3 offen ; nocheck")
    for reg, off in ((S_R1, 64), (S_DBG, 72), (S_WS, 80)):
        e(f"s_load_dwordx2 {sr(reg,2)}, s[0:1], {off}")
    for x in ([] if early else pre.lines):
        e(x)
    srd(e, S_WQ, P_IN + 6, "s6", 640 * 8192 - 31 * 256)
    for x in w_dma(0)[:6]:
        e.safe(x)
    e(f"s_lshl_b32 s6, s{S_HEAD}, 7")
    srd(e, S_W1, P_IN + 12, "s6", 640 * 3456 - 26 * 128)
    e(f"s_cmp_lt_u32 s{S_HEAD}, 27")
    e(f"s_cselect_b32 s{S_W1+2}, s{S_W1+2}, 0")
    e(f"s_mul_i32 s6, s{S_W}, {16*3456}")
    e("v_mul_u32_u24 v26, 3456, v30")
    e("v_add_u32 v26, s6, v26")
    e("v_and_b32 v27, 2, v30")
    e("v_xor_b32 v27, v27, v31")
    e(f"v_lshl_add_u32 v{V_W1DMA}, v27, 4, v26")
    e(f"v_xor_b32 v27, 64, v{V_W1DMA}")
    e(f"v_add_u32 v{V_W1DMA+1}, {8*3456-1024}, v27")
    for x in w_dma(0)[6:]:
        e.safe(x)
    spf = OPT.get("spf", 0)
    if spf:
        e(f"s_lshl_b32 s3, s5, 1")
        e(f"s_add_u32 s3, s3, {64*OPT.get('spf0', 1)}")
        e("s_lshl_b32 s4, s3, 13")
        e(f"s_add_u32 s68, s{S_WQ}, s4")
        e(f"s_addc_u32 s69, s{S_WQ+1}, 0")
        e("s_mul_i32 s4, s3, 3456")
        e(f"s_add_u32 s70, s{S_W1}, s4")
        e(f"s_addc_u32 s71, s{S_W1+1}, 0")
        for c in range(spf):
            if c and c % 2 == 0:
                e("s_add_u32 s68, s68, 0x100000")
                e("s_addc_u32 s69, s69, 0")
            for off in (0, 128, 8192, 8320):
                for h in range(OPT.get("sph", 1)):
                    e(f"s_load_dword s72, s[68:69], {(c%2)*524288+off+64*h} ; nocheck")
            for off in (0, 3456):
                for h in range(OPT.get("sph", 1)):
                    e(f"s_load_dword s72, s[70:71], {c*64*3456+off+64*h} ; nocheck")
    e(f"v_lshlrev_b32 v{V_L16}, 4, v0")
    e("v_bfe_u32 v30, v0, 2, 3")
    e("v_and_b32 v31, 3, v0")
    e("v_bfe_u32 v12, v0, 2, 2")
    e("v_lshl_add_u32 v26, v29, 3, v12")
    e("v_lshlrev_b32 v27, 8, v26")
    e("v_lshl_add_u32 v27, v31, 4, v27")
    e(f"v_xor_b32 v12, s{S_W}, v12")
    e(f"v_lshl_add_u32 v{V_WQRD}, v12, 6, v27")
    for j in range(1, 4):
        e(f"v_xor_b32 v{V_WQRD+j}, {j*64}, v{V_WQRD}")
    e("v_lshlrev_b32 v27, 7, v26")
    e("v_lshl_add_u32 v27, v31, 3, v27")
    e(f"v_add_u32 v27, {LDS_W1}, v27")
    e("v_lshrrev_b32 v12, 1, v30")
    e(f"s_and_b32 s6, s{S_W}, 2")
    e("v_xor_b32 v12, s6, v12")
    e(f"v_lshl_add_u32 v{V_W1RD}, v12, 5, v27")
    for nb in range(1, 4):
        e(f"v_xor_b32 v{V_W1RD+nb}, {nb*32}, v{V_W1RD}")
    e("v_lshrrev_b32 v12, 1, v28")
    e("v_xor_b32 v12, v12, v29")
    e("v_lshlrev_b32 v12, 4, v12")
    e("v_lshl_add_u32 v12, v28, 7, v12")
    e(f"s_add_u32 s6, s{S_W8K}, {X_SLOT[0]}")
    e(f"v_add_u32 v{V_XRD}, s6, v12")
    e(f"v_xor_b32 v{V_XRD+1}, 64, v{V_XRD}")
    e("v_and_b32 v26, 1, v0")
    e("v_cmp_eq_u32 vcc, 0, v26")
    e("v_mov_b32 v27, 0x44444444")
    e("v_mov_b32 v12, 0xeeeeeeee")
    e(f"v_cndmask_b32 v{V_IDX}, v12, v27, vcc")
    e("v_and_b32 v26, 2, v0")
    e("v_cmp_eq_u32 vcc, 0, v26")
    e("v_mov_b32 v27, 0x3f803f80")
    e("v_mov_b32 v12, 0")
    for r in range(4):
        e(f"v_cndmask_b32 v{V_ONES+r}, v12, v27, vcc")
    for r in range(16):
        e(f"v_accvgpr_write_b32 a{A_CS+r}, 0")
    if OPT.get("st0"):
        stamp(e)
    mem = x_dma(1) + w_dma(1)
    for x in mem[:OPT.get("nearly", 10)]:
        e.safe(x)
    e("s_waitcnt lgkmcnt(0)")
    return mem[OPT.get("nearly", 10):]


def glued(lines):
    out = []
    for x in lines:
        if x.startswith(("s_addc", "s_cselect")):
            out[-1] += "\n" + x
        else:
            out.append(x)
    return out


def late_stream():
    e = Asm()
    e(f"s_lshl_b32 s6, s{S_QT}, 5")
    e(f"s_add_u32 s6, s6, s{S_HEAD}")
    e("s_lshl_b32 s6, s6, 2")
    e(f"s_add_u32 s6, s6, s{S_W}")
    e("s_lshl_b32 s6, s6, 1")
    e("v_lshrrev_b32 v26, 5, v0")
    e("v_add_u32 v26, s6, v26")
    e("v_mul_u32_u24 v27, 1280, v26")
    e("v_and_b32 v12, 31, v0")
    e("v_lshl_add_u32 v13, v12, 4, v27")
    e("v_lshl_add_u32 v14, v12, 3, v27")
    e("v_lshlrev_b32 v26, 3, v26")
    e("v_lshl_add_u32 v19, v12, 24, v26")
    e("v_min_u32 v12, 1, v62")
    e(f"v_lshlrev_b32 v{V_SIG}, 24, v12")
    e(f"v_mov_b32 v{V_ONE}, 0")
    late_setup(e)
    return glued(e.lines) + early_mem()


SROW = [f"buffer_load_dwordx4 v[2:5], v13, {sr(S_X)}, 0 offen ; @SROW",
        f"buffer_load_dwordx4 v[6:9], v13, {sr(S_X)}, 0 offen offset:512 ; @SROW",
        f"buffer_load_dwordx2 v[10:11], v14, {sr(S_X)}, 0 offen offset:1024 ; @SROW"]


def tile_ids(e):
    e("s_bfe_u32 s4, s2, 0x20001")
    e("s_and_b32 s5, s2, 1")
    e("s_lshl_b32 s5, s5, 3")
    e("s_bfe_u32 s6, s2, 0x30003")
    e("s_add_u32 s5, s5, s6")
    e("s_lshr_b32 s6, s2, 6")


def late_setup(e):
    e(f"s_lshl_b32 s6, s{S_HEAD}, 19")
    srd(e, S_K, P_IN + 2, "s6", 524288)
    srd(e, S_V, P_IN + 4, "s6", 524288)
    e("s_cmp_lt_u32 s2, 128")
    e(f"s_cselect_b64 {sr(S_R0,2)}, {sr(P_IN+8,2)}, {sr(P_IN+14,2)}")
    e(f"s_mul_i32 s6, s5, {ACT_RG}")
    e(f"s_add_u32 s6, s6, {WS_ACT}")
    e(f"s_lshl_b32 s7, s{S_HEAD}, 14")
    e("s_add_u32 s7, s7, s6")
    srd(e, S_ACT, S_WS, "s7", 16384)
    e(f"s_lshl_b32 s7, s{S_HEAD}, 13")
    e(f"s_add_u32 s7, s7, {64*8192}")
    e("s_add_u32 s7, s7, s6")
    srd(e, S_ACTH, S_WS, "s7", 8192)
    e(f"s_cmp_lt_u32 s{S_HEAD}, 27")
    e(f"s_cselect_b32 s{S_ACTH+2}, s{S_ACTH+2}, 0")
    srd(e, S_DBG, S_DBG, None, 256)
    srd(e, S_OUT, S_R1, None, 2621440)
    tile_ids(e)
    e("s_lshl_b32 s7, s5, 1")
    e(f"s_lshr_b32 s3, s{S_W}, 1")
    e("s_add_u32 s3, s7, s3")
    e(f"s_mul_i32 s7, s3, {ACT_RG}")
    e(f"s_add_u32 s7, s7, {WS_ACT}")
    e(f"s_and_b32 s{S_XO}, s{S_W4K}, 4096")
    e(f"s_add_u32 s7, s7, s{S_XO}")
    srd(e, S_TA, S_WS, "s7", (NPAIR - 1) * 8192 + 4096)
    e("s_lshl_b32 s7, s6, 2")
    e(f"s_add_u32 s7, s7, s{S_W}")
    e("s_mul_i32 s7, s7, 5120")
    e(f"s_add_u32 s7, s7, {WS_WP}")
    srd(e, S_TW, S_WS, "s7", (NPAIR - 1) * WP_PAIR + 5120)
    e("s_lshl_b32 s3, s3, 2")
    e("s_add_u32 s3, s3, s4")
    e(f"s_mul_i32 s{S_XO}, s3, 20480")
    e("s_lshl_b32 s7, s6, 1")
    e(f"s_and_b32 s3, s{S_W}, 1")
    e("s_add_u32 s7, s7, s3")
    e("s_mul_i32 s7, s7, 160")
    e(f"s_add_u32 s{S_XO}, s{S_XO}, s7")
    e("s_lshr_b32 s7, s5, 1")
    e("s_lshl_b32 s7, s7, 2")
    e("s_add_u32 s7, s7, s4")
    e("s_lshl_b32 s7, s7, 8")
    e(f"s_add_u32 s{S_POLLO}, s7, {MISC_CNTO}")
    e("s_mul_i32 s7, s4, 7")
    e("s_add_u32 s7, s7, 64")
    e(f"s_lshl_b32 s{S_GA}, s7, 13")
    e(f"s_mul_i32 s{S_GW}, s7, {WP_PAIR}")
    e(f"s_lshl_b32 s{S_SA}, s4, 17")
    e(f"s_mul_i32 s{S_SW}, s4, {16*WP_PAIR}")
    e("s_lshl_b32 s5, s5, 2")
    e("s_add_u32 s5, s5, s6")
    e("s_lshl_b32 s5, s5, 8")
    e(f"s_add_u32 s5, s5, {MISC_CNTP}")
    e("s_cmp_eq_u32 s4, 0")
    e(f"s_cselect_b32 s5, s5, {OOB}")
    e("s_sub_u32 s6, s2, 128")
    e("s_cmp_lt_u32 s2, 128")
    e("s_cselect_b32 s6, s2, s6")
    e("s_mul_i32 s6, s6, 40960")
    srd(e, S_R0, S_R0, "s6", 40960)
    e("s_lshr_b32 s6, s2, 1")
    e(f"s_mul_i32 s6, s6, {WP_PAIR}")
    e(f"s_add_u32 s6, s6, {WS_WP}")
    srd(e, S_WP, S_WS, "s6", WP_PAIR)
    e(f"s_cmp_lt_u32 s2, {2*NPAIR}")
    e(f"s_cselect_b32 s{S_R0+2}, s{S_R0+2}, 0")
    e(f"s_cselect_b32 s{S_WP+2}, s{S_WP+2}, 0")
    e("s_and_b32 s6, s2, 1")
    e("s_lshl_b32 s6, s6, 10")
    e(f"s_add_u32 s{S_RDST}, s6, s{S_W4K}")
    e(f"s_mov_b32 s{S_RSRC}, 0")
    e(f"s_mov_b32 s{S_RSRC2}, 4096")
    e(f"s_add_u32 s{S_M0R}, s{S_W2K}, {LDS_W1}")
    srd(e, S_WS, S_WS, WS_MISC if WS_MISC else None, MISC_SIZE)
    e(f"s_lshl_b32 s{S_SIGS}, s{S_QT}, 5")
    e(f"s_lshl_b32 s7, s{S_QT}, 8")
    e(f"s_add_u32 s{S_SIGA}, s7, {MISC_CNTA}")
    e(f"s_lshl_b32 s7, s{S_QT}, 2")
    e(f"s_lshr_b32 s6, s{S_HEAD}, 3")
    e("s_add_u32 s7, s7, s6")
    e("s_lshl_b32 s7, s7, 8")
    e(f"s_add_u32 s{S_SIGO}, s7, {MISC_CNTO}")
    for i in range(4):
        e(f"s_add_u32 s{S_M0K+i}, s{S_W4K}, {LDS_K + i*16384}")
        e(f"s_add_u32 s{S_M0V+i}, s{S_W4K}, {LDS_V + i*16384}")
    e(f"s_mov_b32 s{S_RETRY}, 0")
    e(f"s_cmp_eq_u32 s{S_HEAD}, 0")
    e(f"s_cselect_b32 s6, s{S_SIGA}, {OOB}")
    e(f"s_and_b32 s7, s{S_HEAD}, 7")
    e(f"s_cselect_b32 s7, {OOB}, s{S_SIGO}")

def early_mem():
    out = [f"buffer_store_dword v{V_ONE}, v{V_SIG}, {sr(S_WS)}, s6 offen sc1",
           f"buffer_store_dword v{V_ONE}, v{V_SIG}, {sr(S_WS)}, s7 offen sc1",
           "v_lshrrev_b32 v12, 3, v62", "v_lshlrev_b32 v26, 2, v62", "v_lshl_add_u32 v12, v12, 24, v26",
           f"buffer_store_dword v{V_ONE}, v12, {sr(S_WS)}, s5 offen sc1"]
    return out + [f"v_mov_b32 v{V_ONE}, 1"]


def stats_stream():
    s = ["WAITVM SROW"]

    def unpack(i, dst):
        return f"v_lshlrev_b32 v{dst}, 16, v{2+i//2}" if i % 2 == 0 else f"v_and_b32 v{dst}, 0xffff0000, v{2+i//2}"

    def reduce32():
        out = ["v_add_f32 v12, v12, v13"]
        for rot in (8, 4, 2, 1):
            out.append(f"v_add_f32_dpp v12, v12, v12 row_ror:{rot} row_mask:0xf bank_mask:0xf")
        out += ["v_mov_b32 v13, v12", "v_permlane16_swap_b32 v12, v13", "v_add_f32 v12, v12, v13",
                f"v_mul_f32 v12, {fbits(1.0/640)}, v12"]
        return out

    s += [unpack(0, 12), unpack(1, 13)]
    for i in range(2, 20, 2):
        s += [unpack(i, 14), unpack(i + 1, 15), "v_add_f32 v12, v12, v14", "v_add_f32 v13, v13, v15"]
    s += reduce32() + ["v_mov_b32 v16, v12"]
    for i in range(0, 20, 2):
        s += [unpack(i, 14), unpack(i + 1, 15), "v_sub_f32 v14, v14, v16", "v_sub_f32 v15, v15, v16"]
        op = "v_mul_f32" if i == 0 else "v_fmac_f32"
        s += [f"{op} v12, v14, v14", f"{op} v13, v15, v15"]
    s += reduce32()
    s += ["v_cvt_pk_bf16_f32 v13, v12, v16", "v_and_b32 v16, 0xffff0000, v13", "v_lshlrev_b32 v12, 16, v13",
          "v_xor_b32 v16, 0x80000000, v16", f"v_add_f32 v12, {fbits(1e-5)}, v12", "v_cvt_pk_bf16_f32 v12, v12, v12",
          "v_lshlrev_b32 v12, 16, v12", "v_sqrt_f32 v12, v12", "v_cvt_pk_bf16_f32 v12, v12, v12",
          "v_lshlrev_b32 v12, 16, v12", "v_rcp_f32 v17, v12", "s_nop 0",
          f"buffer_store_dwordx2 v[16:17], v19, {sr(S_WS)}, 0 offen sc1 ; @SST"]
    return s


def kv_addr_stream():
    s = [f"s_lshl_b32 s5, s{S_W}, 2", "v_xor_b32 v26, v28, v29", "v_xor_b32 v27, s5, v26", "v_lshlrev_b32 v27, 4, v27",
         f"v_lshl_add_u32 v{V_KRD}, v28, 8, v27"]
    s += [f"v_xor_b32 v{V_KRD+ks}, {64*ks}, v{V_KRD}" for ks in range(1, 4)]
    s += ["v_lshlrev_b32 v27, 8, v29", f"v_add_u32 v27, s{S_W4K}, v27", f"v_lshl_add_u32 v{V_KDMA}, v26, 4, v27"]
    s += [f"v_xor_b32 v{V_KDMA+n}, {64*n}, v{V_KDMA}" for n in range(1, 4)]
    s += ["v_lshlrev_b32 v26, 1, v29", "v_xor_b32 v26, v26, v28", f"v_lshl_add_u32 v{V_VDMA}, v26, 4, v27",
          f"v_xor_b32 v{V_VDMA+1}, 128, v{V_VDMA}"]
    s += ["v_lshrrev_b32 v27, 2, v0", "v_lshlrev_b32 v27, 8, v27", "v_lshl_add_u32 v27, v31, 3, v27",
          f"v_add_u32 v27, {LDS_V}, v27", f"v_lshl_add_u32 v{V_VRD}, v30, 5, v27"]
    s += [f"v_xor_b32 v{V_VRD+db}, {32*db}, v{V_VRD}" for db in range(1, 8)]
    return s


def repack_addr_stream():
    e = Asm()
    e(f"v_and_b32 v{V_POFF}, 7, v0")
    e(f"v_lshlrev_b32 v{V_POFF}, 8, v{V_POFF}")
    e(f"v_add_u32 v{V_POFF}, {MISC_CNTA}, v{V_POFF}")
    e(f"s_mul_i32 s5, s{S_W}, {8*1280}")
    e("v_mul_u32_u24 v27, 1280, v29")
    e("v_add_u32 v27, s5, v27")
    e("v_lshlrev_b32 v26, 2, v29")
    e("v_xor_b32 v26, v26, v28")
    e(f"v_lshl_add_u32 v{V_RDMA}, v26, 4, v27")
    e("v_lshrrev_b32 v26, 2, v0")
    e("v_and_b32 v27, 3, v26")
    e(f"v_xor_b32 v27, s{S_W}, v27")
    e("v_lshlrev_b32 v27, 6, v27")
    e("v_lshl_add_u32 v27, v26, 8, v27")
    e("v_lshl_add_u32 v27, v31, 3, v27")
    e(f"v_add_u32 v{V_RRD}, {LDS_W1}, v27")
    return e.lines


CS_SITES = {0: 0, 1: 1, 8: 2, 9: 3}


XR_AT = 6


def phase1(e, carry):
    half = ["lo"] * 8

    def w_reads(c, nb):
        out = []
        if nb < 8:
            base = WQ_SLOT[c % 4]
            h = "hi" if base >= 65536 else "lo"
            if half[nb // 2] != h:
                out.append(f"v_xor_b32 v{V_WQRD+nb//2}, 0x10000, v{V_WQRD+nb//2}")
                half[nb // 2] = h
        for t in range(2):
            for v in range(2):
                d = ar(A_WF + ((nb % 4) * 2 + t) * 4 + 2 * v, 2)
                if nb < 8:
                    out.append(f"ds_read_b64_tr_b16 {d}, v{V_WQRD+nb//2} offset:{base%65536+t*8192+v*1024+(nb%2)*8} ; @WR{c}_{nb}")
                else:
                    out.append(f"ds_read_b64_tr_b16 {d}, v{V_W1RD+nb-8} offset:{(c%4)*8192+t*4096+v*512} ; @WR{c}_{nb}")
        return out

    e("WAITVM W0")
    e("s_barrier")
    stamp(e)
    for x in x_read(0) + w_reads(0, 0) + w_reads(0, 1):
        e(x)
    e("WAITLG WR0_0")
    poll_s = f"buffer_load_dword v63, v62, {sr(S_DBG)}, 0 offen sc1"
    mem, alu, xr = carry, [], []
    ramp = OPT.get("ramp", 36)
    srow = [int(x) for x in "%03d" % OPT.get("srow", 222)]
    SIG_AT = srow[2] + OPT.get("sigd", 3)
    for c in range(10):
        mem += [x for k, x in enumerate(SROW) if srow[k] == c]
        if c + 2 < 10:
            mem += x_dma(c + 2) + w_dma(c + 2)
        if c == 0:
            alu += late_stream()
        assert c != srow[0] or not alu, alu
        if c == srow[2] + 1:
            alu += stats_stream()
        if c == 6:
            alu += [f"v_accvgpr_write_b32 a{A_L+r}, 0" for r in range(16)]
        if c == 7:
            alu += kv_addr_stream()
        if c == 8:
            assert not alu
            alu += tail_scalar_stream() + repack_addr_stream()
            mem += ["v_and_b32 v62, 7, v0", "v_lshlrev_b32 v62, 5, v62", poll_s + " ; @PS"]
            mem += kv_tile("V", 0) + kv_tile("V", 1)
        if c == 9:
            assert not alu
            pre9 = ["WAITVM PS"] + poll_check("M_ps", poll_s, ["v_cmp_gt_u32 vcc, 32, v63"])
            pre9 += [f"s_lshl_b32 s5, s{S_QT}, 2", f"s_add_u32 s5, s5, s{S_W}", "s_lshl_b32 s5, s5, 9", "v_lshlrev_b32 v62, 3, v28"]
            pre9 += [f"buffer_load_dwordx2 {vr(V_ST+2*qb,2)}, v62, {sr(S_WS)}, s5 offen offset:{qb*128} sc1 ; @STL" for qb in range(4)]
            mem += pre9 + kv_tile("K", 1) + kv_tile("K", 2)
        for nb in range(12):
            fixed = {}
            n2 = nb + 2
            reads = w_reads(c, n2) if n2 < 12 else (w_reads(c + 1, n2 - 12) if c < 9 else [])
            pre = []
            if nb == XR_AT and c < 9:
                xr += [f"WAITVM X{c+1}"] + x_read(c + 1)
            if nb == 10 and c < 9:
                assert not xr, (c, xr)
                pre = [f"WAITVM W{c+1}" + (" SST" if c == SIG_AT else ""), "s_barrier"]
                if c >= 7:
                    pre = [f"WAITLG XR{c+1}"] + pre
                if c == SIG_AT:
                    assert not alu
                    mem.insert(0, f"buffer_atomic_add v{V_ONE}, v{V_SIG}, {sr(S_DBG)}, s{S_SIGS} offen")
                if c == 8:
                    mem += kv_tile("K", 0)
            if c == 9 and nb == 10:
                assert not alu and not any("@STL" in x for x in mem), alu
                alu += [f"s_lshl_b32 s5, s{S_W}, 7", f"s_add_u32 s5, s5, {LDS_CS}", "v_lshl_add_u32 v60, v28, 2, s5",
                        f"s_and_b32 s5, s{S_W}, 2", "s_lshl_b32 s5, s5, 6", f"s_add_u32 s5, s5, {LDS_CS+512}", "v_lshl_add_u32 v61, v28, 2, s5"]
                for k in range(4):
                    alu += [f"v_accvgpr_read_b32 v62, a{A_CS+4*k}", f"v_accvgpr_read_b32 v63, a{A_CS+4*k+1}",
                            f"v_add_f32 v{24+k}, v62, v63", f"ds_write_b32 v{60+k//2}, v{24+k} offset:{(k%2)*64}"]
            slot = 0
            if pre:
                fixed[0] = (pre, [])
                slot = 1
            extra = len(reads) - 4
            for i, x in enumerate(reads):
                k = slot + max(0, i - max(extra, 0))
                fixed.setdefault(k, ([], []))[0].append(x)
            nxt = (c, nb + 1) if nb < 11 else (c + 1, 0)
            mf = []
            for i, qb in enumerate(snake(nb)):
                for t in ((0, 1) if i % 2 == 0 else (1, 0)):
                    acc = vr(o_reg(nb, qb), 4) if nb < 8 else vr(V_P + ((nb - 8) * 4 + qb) * 4, 4)
                    first = c == 0 and len(mf) % 2 == 0
                    mf.append(mfma(acc, ar(A_WF + ((nb % 4) * 2 + t) * 4, 4), ar(A_XF + (c % 2) * 32 + (qb * 2 + t) * 4, 4), "0" if first else acc))
            if nb in CS_SITES:
                mf.append(smfmac(ar(A_CS + 4 * CS_SITES[nb], 4), ar(A_WF + (nb % 4) * 8, 8)))
            if nxt[0] < 10:
                fixed.setdefault(len(mf) - 1, ([], []))[1].append(f"WAITLG WR{nxt[0]}_{nxt[1]}")
            nvm = sum(x.startswith("buffer_") for x in mem)
            quota = min(-(-nvm // (12 - nb)), (nb + 1) * ramp // 12 - nb * ramp // 12)
            interleave(e, mf, fixed, [xr, mem, alu], quota=quota + any(x.startswith("buffer_") for x in alu[:12]))
        assert not mem or c in (0, 1, 2, 3, 4, 8), (c, mem)
        if OPT.get("p1st") and c < 9:
            stamp(e)
    drain(e, [mem, alu])
    stamp(e)
    e("s_waitcnt lgkmcnt(0)")
    e("s_barrier")


def proj_epilogue(e):
    CSR = 40
    e(f"s_lshl_b32 s5, s{S_W}, 7")
    e(f"s_add_u32 s5, s5, {LDS_CS}")
    e("v_lshl_add_u32 v60, v29, 4, s5")
    e(f"s_and_b32 s5, s{S_W}, 2")
    e("s_lshl_b32 s6, s5, 6")
    e(f"s_add_u32 s6, s6, {LDS_CS+512}")
    e("v_lshl_add_u32 v61, v29, 4, s6")
    e("s_lshl_b32 s5, s5, 9")
    e(f"v_xor_b32 v30, s5, v{V_L16}")
    e("v_xor_b32 v31, 1024, v30")

    def cs_read(g):
        out = []
        src = 60 if g < 4 else 61
        k = g if g < 4 else g - 4
        if k:
            out.append(f"v_xor_b32 v{src}, {128*(k^(k-1))}, v{src}")
        for u in range(2):
            out.append(f"ds_read_b128 {vr(CSR+u*4,4)}, v{src} offset:{u*64} ; @CS{g}")
        return out

    for x in cs_read(0):
        e(x)
    e("WAITVM STL")
    e(f"s_mov_b32 s6, {fbits(LOG2E * 128 ** -0.5)}")
    for qb in range(4):
        e(f"v_mul_f32 v{48+qb}, s6, v{V_ST+2*qb+1}")

    def center(g, regs):
        e(f"WAITLG CS{g}")
        for qb in range(4):
            for u in range(2):
                a = regs(u, qb)
                for p in range(2):
                    e(f"v_pk_fma_f32 {vr(a+2*p,2)}, {vr(CSR+u*4+2*p,2)}, {vr(V_ST+2*qb,2)}, {vr(a+2*p,2)} op_sel_hi:[1,0,1]")
        if g < 5:
            for x in cs_read(g + 1):
                e(x)

    for j in range(4):
        center(j, lambda u, qb: o_reg(2 * j + u, qb))
        for qb in range(4):
            sel = "op_sel_hi:[1,0]" if qb % 2 == 0 else "op_sel:[0,1] op_sel_hi:[1,1]"
            regs = [o_reg(2 * j + u, qb) + 2 * p for u in range(2) for p in range(2)]
            for a in regs:
                e(f"v_pk_mul_f32 {vr(a,2)}, {vr(a,2)}, {vr(48+(qb//2)*2,2)} {sel}")
            for a in regs:
                e(f"v_cvt_pk_bf16_f32 v{a}, v{a}, v{a+1}")
            for r, a in enumerate(regs):
                e(f"v_accvgpr_write_b32 a{A_Q+(qb*4+j)*4+r}, v{a}")
    e(f"s_mov_b32 s6, {fbits(-LOG2E)}")
    for qb in range(4):
        e(f"v_mul_f32 v{48+qb}, s6, v{V_ST+2*qb+1}")
        e(f"v_rcp_f32 v{V_ST+2*qb+1}, v{V_ST+2*qb+1}")
    for jj in range(2):
        hreg = lambda u, qb: V_P + ((2 * jj + u) * 4 + qb) * 4
        center(4 + jj, hreg)
        if jj == 0:
            e("WAITVM K0")
            e("s_barrier")
            for kb in range(4):
                for ks in range(4):
                    e(k_read(0, kb, ks) + f" ; @K0R{kb}")
        for qb in range(4):
            sel = "op_sel_hi:[1,0]" if qb % 2 == 0 else "op_sel:[0,1] op_sel_hi:[1,1]"
            for u in range(2):
                for p in range(2):
                    a = hreg(u, qb) + 2 * p
                    e(f"v_pk_mul_f32 {vr(a+64,2)}, {vr(a,2)}, {vr(48+(qb//2)*2,2)} {sel}")
    e("WAITLG K0R3")
    for i, m in enumerate(first_scores()):
        e.safe(m)
        e(f"v_exp_f32 v{V_O+i}, v{V_O+i}")
    e("s_mov_b32 s5, 4096")
    for jj in range(2):
        for qb in range(4):
            regs = [V_P + ((2 * jj + u) * 4 + qb) * 4 + 2 * p for u in range(2) for p in range(2)]
            d = CSR + (qb % 2) * 4
            for a in regs:
                e(f"v_pk_fma_f32 {vr(a+64,2)}, {vr(a+64,2)}, {vr(V_ST+2*qb,2)}, {vr(V_ST+2*qb,2)} op_sel:[0,1,1] op_sel_hi:[1,1,1]")
            for a in regs:
                e(f"v_rcp_f32 v{a+64}, v{a+64}")
                e(f"v_rcp_f32 v{a+65}, v{a+65}")
            for a in regs:
                e(f"v_pk_mul_f32 {vr(a,2)}, {vr(a,2)}, {vr(a+64,2)}")
            for p, a in enumerate(regs):
                e(f"v_cvt_pk_bf16_f32 v{d+p}, v{a}, v{a+1}")
            e(f"buffer_store_dwordx4 {vr(d,4)}, v{30+jj}, {sr(S_ACTH)}, {'s5' if qb >= 2 else '0'} offen offset:{(qb%2)*2048} sc1 ; @HST")


V_S0 = V_O + 64


def first_scores():
    out = []
    for kb in range(4):
        for n, qb in enumerate(snake(kb)):
            d = vr(V_S0 + (qb * 4 + kb) * 4, 4)
            for i, ks in enumerate(snake(n)):
                out.append(mfma(d, ar(A_KF + (kb * 4 + ks) * 4, 4), ar(A_Q + (qb * 4 + ks) * 4, 4), "0" if i == 0 else d))
    return out


V_MX, V_L8, V_XO, V_C256, V_TRD, V_X = 40, 45, 46, 47, 48, 2
V_L4K = V_RDMA
ACC = {"G": [128, 144, 160, 176, 192], "S": [64, 80, 96, 112, 208]}
TSTEPS = ["G"] * 7 + ["S"] * 16
TW_SLOT = [LDS_W1 + 8192, 0, 20480, 40960]
PK = 224


def tail_scalar_stream():
    t = Asm()
    tile_ids(t)
    t("s_lshl_b32 s5, s5, 2")
    t("s_add_u32 s5, s5, s6")
    t(f"s_lshl_b32 s{S_SIGP}, s5, 8")
    t(f"s_add_u32 s{S_SIGP}, s{S_SIGP}, {MISC_CNTP}")
    t(f"s_mul_i32 s5, s5, {PART_TILE}")
    t(f"s_mul_i32 s6, s{S_W}, {PART_WAVE}")
    t("s_add_u32 s5, s5, s6")
    t(f"s_add_u32 s5, s5, {WS_PART - WS_MISC}")
    srd(t, S_PART, S_WS, "s5", PART_TILE - 3 * PART_WAVE)
    t(f"s_mul_i32 s{S_M0W}, s{S_W}, 5120")
    for k in range(1, 4):
        t(f"s_xor_b32 s5, s4, {k}")
        t(f"s_mul_i32 s5, s5, {PART_DST}")
        t(f"s_add_u32 s{S_PS+k}, s5, {(k-1)*PART_SRC}")
    t(f"s_mul_i32 s{S_PS}, s4, {PART_DST}")
    t(f"s_add_u32 s{S_M0A}, s{S_PS}, {PART_SRC}")
    t(f"s_add_u32 s{S_KQ}, s{S_PS}, {2*PART_SRC}")
    return glued(t.lines)


def tail_vector_stream():
    t = Asm()
    t(f"s_lshr_b32 s5, s{S_W}, 1")
    t("s_lshl_b32 s5, s5, 2")
    t("s_bfe_u32 s4, s2, 0x20001")
    t("s_add_u32 s5, s5, s4")
    t("s_lshl_b32 s5, s5, 11")
    t(f"s_add_u32 s5, s5, {LDS_V}")
    t(f"v_add_u32 v{V_TRD}, s5, v{V_L16}")
    for k in range(1, 4):
        t(f"v_xor_b32 v{V_TRD+k}, {2048*k}, v{V_TRD}")
    t(f"s_and_b32 s5, s{S_W}, 1")
    t("s_mul_i32 s5, s5, 10240")
    t(f"v_add_u32 v{V_TRD+4}, s5, v{V_L16}")
    t(f"v_add_u32 v{V_TRD+5}, {TW_SLOT[0]}, v{V_TRD+4}")
    return t.lines


def tail_vector_late():
    t = Asm()
    t(f"v_and_b32 v12, 255, v{V_L16}")
    t("v_mul_u32_u24 v12, 80, v12")
    t(f"v_lshrrev_b32 v13, 8, v{V_L16}")
    t(f"v_lshl_add_u32 v{V_XO}, v13, 3, v12")
    t(f"v_lshrrev_b32 v{V_L8}, 1, v{V_L16}")
    t(f"v_add_u32 v14, 8192, v{V_L16}")
    t(f"v_add_u32 v15, 8192, v{V_L8}")
    t(f"v_mov_b32 v{V_C256}, 0x100")
    t(f"v_and_b32 v12, 255, v{V_L16}")
    t("v_mul_u32_u24 v12, 11, v12")
    t("v_lshl_add_u32 v12, v13, 3, v12")
    t(f"v_add_u32 v24, s{S_M0K}, v12")
    t(f"v_lshrrev_b32 v18, 4, v{V_L16}")
    for n in range(3):
        if n:
            t("v_add_u32 v18, 64, v18")
        t("v_mul_u32_u24 v12, 6554, v18")
        t("v_lshrrev_b32 v12, 16, v12")
        t("v_lshlrev_b32 v13, 4, v18")
        t(f"v_lshl_add_u32 v{25+n}, v12, 4, v13")
        t(f"v_add_u32 v{25+n}, s{S_M0K}, v{25+n}")
        t("v_mul_u32_u24 v19, 1120, v12")
        t(f"v_add_u32 v{28+n}, v19, v13")
    t("v_lshrrev_b32 v12, 4, v12")
    t("v_lshl_add_u32 v30, v12, 24, v30")
    t("s_bfe_u32 s4, s2, 0x20001")
    t(f"v_lshrrev_b32 v12, 4, v{V_L16}")
    t("v_lshlrev_b32 v17, v12, 1".replace("v12, 1", f"v12, v{V_ONE}"))
    t("v_add_u32 v13, 1, v12")
    t("v_xor_b32 v16, s4, v13")
    t("v_lshl_add_u32 v16, v16, 2, 4")
    t("v_lshrrev_b32 v13, 2, v13")
    t(f"v_add_u32 v13, s{S_W}, v13")
    t("v_lshl_add_u32 v16, v13, 24, v16")
    t("s_lshl_b32 s4, s4, 2")
    t(f"s_add_u32 s{S_SIGS}, s4, s{S_SIGP}")
    t(f"s_add_u32 s{S_SIGS}, s{S_SIGS}, 4")
    t("v_mov_b32 v12, 0x3f80")
    t("v_mov_b32 v13, 0x3f800000")
    return t.lines


def tail_dma(s, part="WA"):
    g = TSTEPS[s] == "G"
    sa, sw = (S_GA, S_GW) if g else (S_SA, S_SW)
    step = 1 if g else (2 if s != 14 else -13)
    op = "s_add_u32" if step > 0 else "s_sub_u32"
    out = []
    if "W" in part:
        base = TW_SLOT[s % 4]
        out += [f"s_add_u32 m0, s{S_M0W}, {base}"]
        out += [f"buffer_load_dwordx4 v{V_L16}, {sr(S_TW)}, s{sw} offen offset:{f*1024} sc1 lds ; @T{s}" for f in range(4)]
        out += [f"s_add_u32 m0, s{S_M0W}, {base+4096}", f"buffer_load_dwordx4 v{V_L4K}, {sr(S_TW)}, s{sw} offen sc1 lds ; @T{s}",
                f"{op} s{sw}, s{sw}, {abs(step)*WP_PAIR}"]
    if "A" in part:
        out += [f"s_mov_b32 m0, s{S_M0V + s % 4}"]
        out += [f"buffer_load_dwordx4 v{V_L16}, {sr(S_TA)}, s{sa} offen offset:{f*1024} sc1 lds ; @T{s}" for f in range(4)]
        out += [f"{op} s{sa}, s{sa}, {abs(step)*8192}"]
    return out


def tbuf(s):
    return ((s + 1) % 2) * 72


def tail_reads(s):
    b = tbuf(s)
    wr, wo = (V_TRD + 5, 0) if s % 4 == 0 else (V_TRD + 4, TW_SLOT[s % 4])
    wl = [f"ds_read_b128 {ar(b+32+f*4,4)}, v{wr} offset:{wo+f*1024} ; @TR{s}" for f in range(10)]
    al = [f"ds_read_b128 {ar(b+f*4,4)}, v{V_TRD+f//2} offset:{(s%4)*16384+(f%2)*1024} ; @TR{s}" for f in range(8)]
    return wl[:2] + al + wl[2:]


def merge(a, b):
    pos = [i for i, x in enumerate(a) if x.startswith("buffer_")]
    out = list(a)
    for k in range(len(b) - 1, -1, -1):
        out.insert(pos[k * len(pos) // len(b)] + 1 if pos else 0, b[k])
    return out


def tail(e, ost):
    rsoff = [S_PS, S_M0A, S_KQ]

    def xfer(op, kind, base, soff, tag):
        v16, v8 = (V_L16, V_L8) if kind == "S" else (14, 15)
        return [f"buffer_{op}_dwordx4 {vr(base,4)}, v{v16}, {sr(S_PART)}, s{soff} offen sc1 ; @{tag}",
                f"buffer_{op}_dwordx4 {vr(base+4,4)}, v{v16}, {sr(S_PART)}, s{soff} offen offset:1024 sc1 ; @{tag}",
                f"buffer_{op}_dwordx2 {vr(base+8,2)}, v{v8}, {sr(S_PART)}, s{soff} offen offset:2048 sc1 ; @{tag}"]

    def pack(kind, k):
        out = [f"v_cvt_pk_bf16_f32 v{PK+(k-1)*10+2*nb+p}, v{ACC[kind][nb]+4*k+2*p}, v{ACC[kind][nb]+4*k+2*p+1}"
               for nb in range(5) for p in range(2)]
        return out

    def send(kind, k):
        return xfer("store", kind, PK + (k - 1) * 10, S_PS + k, "SEND" + kind)

    RCV = {"G": [ACC["G"][k] + 4 for k in range(3)], "S": [ACC["S"][k] + 4 for k in range(3)]}

    def recv1(kind, k):
        return xfer("load", kind, RCV[kind][k], rsoff[k], f"R{kind}{k}")

    def recv(kind):
        return [x for k in range(3) for x in recv1(kind, k)]

    def accumulate(kind):
        for k in range(3):
            if kind == "G":
                e(f"WAITVM R{kind}{k}")
            elif k == 0:
                e("s_waitcnt vmcnt(0)")
            b = RCV[kind][k]
            for nb in range(5):
                for r in range(4):
                    a = ACC[kind][nb] + r
                    e.safe(f"v_dot2_f32_bf16 v{a}, v{b+2*nb+r//2}, v{12+r%2}, v{a}")

    def atomic(val, soff):
        return f"buffer_atomic_add v{val}, v{V_SIG}, {sr(S_WS)}, s{soff} offen"

    poll_o = f"buffer_load_dword v{V_PVAL}, off, {sr(S_WS)}, s{S_POLLO} sc1"
    poll_p = f"buffer_load_dword v{V_PVAL}, off, {sr(S_WS)}, s{S_SIGP} sc1"
    poll_q = f"buffer_load_dword v{V_PVAL}, off, {sr(S_WS)}, s{S_SIGS} sc1"
    low = f"v_and_b32 v{V_PVAL}, 0xff, v{V_PVAL}"
    n = len(TSTEPS)
    SIGA, CHKA, SIGB, CHKB = OPT.get("siga", 1), OPT.get("chka", 3), OPT.get("sigb", 5), 11
    GSIG, GCHK = OPT.get("gsig", 14), OPT.get("gchk", 19)
    opace = OPT.get("opace", 2)
    gsend = [x for k in range(1, 4) for x in send("G", k)]
    xres = [f"buffer_load_dwordx2 {vr(V_X+2*nb,2)}, v{V_XO}, {sr(S_X)}, s{S_XO} offen offset:{nb*32}" for nb in range(5)]
    late = recv("G")
    alu = tail_vector_late()
    for s in range(n):
        b = tbuf(s)
        e(f"WAITLG TR{s}")
        if s + 1 < n:
            e(f"WAITVM T{s+1}" + {SIGA: " OST0", SIGB: " OST1", CHKA: " POA", CHKB: " POB", GSIG: " SENDG", GCHK: " PG"}.get(s, ""))
            e("s_barrier")
        if OPT.get("tst") and s != CHKA and s not in (9, 13, 15):
            stamp(e)
        head, side = [], []
        assert s != 6 or not alu
        assert s != 7 or not ost
        if s == SIGA:
            head.append(atomic(V_ONE, S_SIGO))
        if s == SIGB:
            head.append(atomic(V_C256, S_SIGO))
        if s == GSIG:
            head.append(atomic(V_ONE, S_SIGP))
        if s == CHKA - 1:
            head.append(poll_o + " ; @POA")
        if s == CHKB - 2:
            head.append(poll_o + " ; @POB")
        if s == GCHK - OPT.get("gpoll", 2):
            head.append(poll_p + " ; @PG")
        if s == CHKA:
            stamp(e)
            for x in poll_check("M_poa", poll_o, [low, f"v_cmp_gt_u32 vcc, 8, v{V_PVAL}"]):
                e(x)
            stamp(e)
        if s == CHKB:
            for x in poll_check("M_pob", poll_o, [f"v_cmp_gt_u32 vcc, 0x800, v{V_PVAL}"]):
                e(x)
        if s == GCHK:
            for x in poll_check("M_pg", poll_p, [f"v_cmp_gt_u32 vcc, 4, v{V_PVAL}"]):
                e(x)
        mem = tail_dma(3, "A") if s == 0 else []
        if s == CHKA:
            for x in range(7, s + 4):
                mem += tail_dma(x, "A")
        if s + 4 < n:
            mem += tail_dma(s + 4, "W" if 7 <= s + 4 < CHKA + 4 else "WA")
        if ost:
            side, ost = ost[:opace], ost[opace:]
        if s == 7:
            alu += pack("G", 1) + pack("G", 2) + pack("G", 3)
        if s >= 8 and gsend:
            assert not alu
            k = OPT.get("gpace", 2)
            side, gsend = gsend[:k], gsend[k:]
        if s == OPT.get("xat", 19):
            side += xres
        if s >= GCHK:
            k = -(-len(late) // (n - 1 - s)) if s < n - 1 else 0
            side, late = side + late[:k], late[k:]
        mem = head + merge(mem, side)
        ds = tail_reads(s + 1) if s + 1 < n else []
        first = s in (0, 7)
        acc_of = ACC[TSTEPS[s]]

        def chain(nb, rb, flip):
            acc = vr(acc_of[nb] + rb * 4, 4)
            return [mfma(acc, ar(b + 32 + (nb * 2 + t) * 4, 4), ar(b + (rb * 2 + t) * 4, 4), "0" if first and i == 0 else acc)
                    for i, t in enumerate((1, 0) if flip else (0, 1))]

        if s + 1 < n:
            mf = [m for nb in range(5) for i, rb in enumerate(snake(nb)) for m in chain(nb, rb, i % 2)]
            fixed = {(i // 3) * 4 + (0, 2, 3)[i % 3]: ([x], []) for i, x in enumerate(ds)}
            nvm = sum(x.startswith("buffer_") for x in mem)
            if nvm > 10:
                fixed = {2 * i: ([x], []) for i, x in enumerate(ds)}
            interleave(e, mf, fixed, [mem, alu], space=4 if nvm <= 10 else 2)
            drain(e, [mem])
        else:
            for rb in (1, 2, 3, 0):
                interleave(e, [m for nb in range(5) for m in chain(nb, rb, nb % 2)], {}, [mem])
                if rb:
                    mem += pack("S", rb) + send("S", rb)
            drain(e, [mem])
            e(poll_q)
    assert not gsend
    stamp(e)
    e(f"s_mov_b32 s6, {fbits(-LOG2E)}")
    e("s_mov_b32 s7, s6")

    def gate():
        accumulate("G")
        for nb in range(5):
            g = ACC["G"][nb]
            t = g + 4
            for p in range(2):
                e.safe(f"v_pk_mul_f32 {vr(t+2*p,2)}, {vr(g+2*p,2)}, s[6:7]")
            for r in range(4):
                e(f"v_exp_f32 v{t+r}, v{t+r}")
            for p in range(2):
                e(f"v_lshlrev_b32 v{t+4+2*p}, 16, v{V_X+2*nb+p}")
                e(f"v_and_b32 v{t+5+2*p}, 0xffff0000, v{V_X+2*nb+p}")
            for p in range(2):
                e(f"v_pk_add_f32 {vr(t+2*p,2)}, {vr(t+2*p,2)}, 1.0 op_sel_hi:[1,0]")
            for r in range(4):
                e(f"v_rcp_f32 v{t+r}, v{t+r}")
            for p in range(2):
                e.safe(f"v_pk_mul_f32 {vr(t+2*p,2)}, {vr(t+2*p,2)}, {vr(g+2*p,2)}")

    gate()
    e("s_waitcnt vmcnt(0)")
    e("s_barrier")
    e(f"buffer_atomic_add v17, v16, {sr(S_WS)}, s{S_SIGP} offen")
    e("s_mov_b32 s4, 0")
    e("s_mov_b32 s3, 0x100000")
    e("M_gather:")
    e(f"v_readfirstlane_b32 s5, v{V_PVAL}")
    e("s_andn2_b32 s5, s5, s4")
    for k in range(3):
        e(f"s_bitcmp0_b32 s5, {k}")
        e(f"s_cbranch_scc1 M_skip{k}")
        for x in recv1("S", k):
            e(x)
        e(f"M_skip{k}:")
    e("s_or_b32 s4, s4, s5")
    e("s_cmp_eq_u32 s4, 7")
    e("s_cbranch_scc1 M_gathered")
    e(poll_q)
    e("s_sub_u32 s3, s3, 1")
    e("s_cmp_lg_u32 s3, 0")
    e("s_waitcnt vmcnt(0)")
    e("s_cbranch_scc1 M_gather")
    e("M_gathered:")
    stamp(e)
    accumulate("S")
    for nb in range(5):
        s = ACC["S"][nb]
        t = ACC["G"][nb] + 4
        for p in range(2):
            e.safe(f"v_pk_fma_f32 {vr(t+2*p,2)}, {vr(t+2*p,2)}, {vr(s+2*p,2)}, {vr(t+4+2*p,2)}")
        for p in range(2):
            e(f"v_cvt_pk_bf16_f32 v{t+4+p}, v{t+2*p}, v{t+2*p+1}")
        if OPT.get("olds", 1):
            e(f"ds_write_b64 v24, {vr(t+4,2)} offset:{nb*32}")
        else:
            e(f"buffer_store_dwordx2 {vr(t+4,2)}, v{V_XO}, {sr(S_OUT)}, s{S_XO} offen offset:{nb*32}")
    if OPT.get("olds", 1):
        for n in range(3):
            e(f"ds_read_b128 {vr(PK+4*n,4)}, v{25+n} ; @OUT{n}")
        for n in range(3):
            e(f"WAITLG OUT{n}")
            e(f"buffer_store_dwordx4 {vr(PK+4*n,4)}, v{28+n}, {sr(S_OUT)}, s{S_XO} offen{['', ' sc1', ' nt'][OPT.get('outf', 0)]}")


def attention(e):
    m = V_M
    for i in range(8):
        for qb in range(4):
            b = V_S0 + qb * 16
            if i == 0:
                e(f"v_max_f32 v{m+qb}, v{b}, v{b+1}")
            else:
                e(f"v_max3_f32 v{m+qb}, v{m+qb}, v{b+2*i}, v{b+2*i+1}")
    e(f"s_mov_b32 s6, {fbits(-float(OPT.get('bias', 100)))}")
    e("WAITVM K1")
    e("M_restart:")
    e("s_barrier")
    for n in range(LK):
        e(k_read(1, n // 4, n % 4))
    for n in range(LV):
        for v in range(2):
            e(v_read(0, n // 2, n % 2, v))
    e(f"s_mov_b32 m0, s{S_M0K+3}")
    e(f"s_mov_b32 s{S_OFF}, {3*16384}")
    for n in range(2 + OPT.get("sh", 0)):
        e(k_dma(n))
    row_max_finish(e)
    e(f"s_mov_b32 s{S_CNT}, 8")
    for qb in range(4):
        b = V_S0 + qb * 16
        for p in range(8):
            e(f"v_pk_add_f32 {vr(b+2*p,2)}, {vr(b+2*p,2)}, {vr(V_NM+qb*4,2)}")
        for r in range(16):
            e(f"v_exp_f32 v{b+r}, v{b+r}")
        for p in range(8):
            e(f"v_cvt_pk_bf16_f32 v{V_P+qb*8+p}, v{b+2*p}, v{b+2*p+1}")
    e("s_waitcnt lgkmcnt(0)")
    stamp(e)
    attn_step(e, 0, first=True)
    if OPT.get("ast"):
        stamp(e)
    e(".p2align 6")
    e("M_loop:")
    for j in (1, 2, 3, 0):
        attn_step(e, j)
    e("s_cbranch_scc1 M_loop")
    if OPT.get("ast"):
        stamp(e)
    for x in poll_check("M_pa", POLL_A, [f"v_cmp_gt_u32 vcc, 32, v{V_PVAL}"]):
        e(x)
    mem = kv_tile("V", 31) + [f"v_add_u32 v{V_L4K}, 4096, v{V_L16}"] + tail_dma(0, "W")
    attn_step(e, 29, late=(mem, {10: (["s_waitcnt vmcnt(9)"], tail_dma(0, "A") + tail_dma(1, "W"))}))
    attn_step(e, 30, late=(mem, {10: (["WAITVM V31"], tail_dma(1, "A") + tail_dma(2, "W")),
                                 14: ([], tail_dma(2, "A") + tail_dma(3, "W"))}))
    if OPT.get("ast"):
        stamp(e)
    T = 24
    alu, rng, ost = [], [], []
    e("s_mov_b32 s6, 8192")

    def normalise(jp, every):
        for qb in range(4):
            for t in range(2):
                j = 2 * jp + t
                d = V_P + ((jp * 4 + qb) * 2 + t) * 4
                for u in range(2):
                    a = o_reg(2 * j + u, qb)
                    e.safe(f"v_pk_mul_f32 {vr(a,2)}, {vr(a,2)}, {vr(T+2*qb,2)} op_sel_hi:[1,0]")
                    e.safe(f"v_pk_mul_f32 {vr(a+2,2)}, {vr(a+2,2)}, {vr(T+2*qb,2)} op_sel_hi:[1,0]")
                for u in range(2):
                    a = o_reg(2 * j + u, qb)
                    e(f"v_cvt_pk_bf16_f32 v{d+2*u}, v{a}, v{a+1}")
                    e(f"v_cvt_pk_bf16_f32 v{d+2*u+1}, v{a+2}, v{a+3}")
                ost.append(f"buffer_store_dwordx4 {vr(d,4)}, v{V_L16 if qb < 2 else V_L4K}, {sr(S_ACT)}, {'s6' if jp else '0'} offen offset:{(qb%2)*2048+t*1024} sc1 ; @OST{jp}")
                if (qb * 2 + t) % every == 0:
                    e(ost.pop(0))

    mid = OPT.get("mid", 9)

    def extra(u):
        if u == 2:
            alu.extend(tail_vector_stream())
        if u == 6:
            for qb in range(4):
                alu.extend([f"v_accvgpr_read_b32 v{T+2*qb}, a{A_L+qb*4}", f"v_accvgpr_read_b32 v{T+2*qb+1}, a{A_L+qb*4+1}"])
            for qb in range(4):
                alu.append(f"v_add_f32 v{T+2*qb+1}, v{T+2*qb}, v{T+2*qb+1}")
            for qb in range(4):
                alu.append(f"v_rcp_f32 v{T+2*qb}, v{T+2*qb+1}")
        if u == mid:
            drain(e, [mem, alu, rng])
            normalise(0, OPT.get("oe0", 5))
        if u > mid and (u - mid) % OPT.get("oe1", 2) == 0:
            mem.append(ost.pop(0))
        if u >= 1:
            magnitude(u - 1)
        return [mem, alu, rng]

    def magnitude(u):
        for qb in ((u % 2) * 2, (u % 2) * 2 + 1):
            a = o_reg(u // 2, qb)
            third = f"v{V_MX+qb}" if u >= 2 else f"|v{a+1}|"
            rng.append(f"v_maximum3_f32 v{V_MX+qb}, |v{a}|, |v{a+1}|, {third}")
            rng.append(f"v_maximum3_f32 v{V_MX+qb}, |v{a+2}|, |v{a+3}|, v{V_MX+qb}")

    attn_step(e, 31, qk=False, extra=extra)
    magnitude(15)
    drain(e, [mem, alu, rng])
    stamp(e)

    e(f"v_maximum3_f32 v58, v{V_MX}, v{V_MX+1}, v{V_MX+2}")
    e(f"v_minimum3_f32 v59, v{V_MX}, v{V_MX+1}, v{V_MX+2}")
    e(f"v_maximum3_f32 v58, v58, v{V_MX+3}, v{T+1}")
    e(f"v_minimum3_f32 v59, v59, v{V_MX+3}, v{V_MX+3}")
    e(f"v_maximum3_f32 v58, v58, v{T+3}, v{T+5}")
    e(f"v_cmp_nle_f32 vcc, {fbits(O_LOW)}, v59")
    e(f"v_maximum3_f32 v58, v58, v{T+7}, v{T+7}")
    e("s_mov_b64 s[4:5], vcc")
    e(f"v_cmp_nge_f32 vcc, {fbits(L_LIMIT)}, v58")
    e(f"s_lshl_b32 s7, s{S_W}, 2")
    e(f"s_add_u32 s7, s7, {LDS_FLAG}")
    e("s_or_b64 s[4:5], s[4:5], vcc")
    e("s_or_b32 s4, s4, s5")
    e("v_mov_b32 v59, s7")
    e("v_mov_b32 v58, s4")
    e("ds_write_b32 v59, v58")
    e(f"v_mov_b32 v59, {LDS_FLAG}")
    if mid > 15:
        normalise(0, OPT.get("oe0", 5))
    e("s_waitcnt lgkmcnt(0)")
    e("WAITVM T0")
    e("s_barrier")
    e("ds_read_b128 v[60:63], v59 ; @FLG")
    for x in tail_reads(0):
        e(x)
    normalise(1, OPT.get("oe2", 3))
    e("WAITLG FLG")
    e("v_or_b32 v60, v60, v61")
    e("v_or3_b32 v60, v60, v62, v63")
    e.safe("v_readfirstlane_b32 s4, v60")
    e(f"s_andn2_b32 s4, s4, s{S_RETRY}")
    e("s_cbranch_scc1 M_fallback")
    return ost


def fallback(e):
    m = V_M
    e("M_fallback:")
    e(f"s_mov_b32 s{S_RETRY}, -1")
    e(f"s_mov_b32 s{S_SIGA}, {OOB}")
    e(f"s_sub_u32 s{S_GA}, s{S_GA}, {3*8192}")
    e(f"s_sub_u32 s{S_GW}, s{S_GW}, {4*WP_PAIR}")
    for qb in range(4):
        e(f"v_mov_b32 v{m+qb}, 0xff800000")
    e(f"s_mov_b32 s{S_OFF}, 0")
    e("M_maxloop:")
    e("s_waitcnt vmcnt(0) lgkmcnt(0)")
    e("s_barrier")
    e(f"s_mov_b32 m0, s{S_M0K}")
    e("s_nop 0")
    for n in range(4):
        e(k_dma(n))
    e("s_waitcnt vmcnt(0)")
    e("s_barrier")
    for kb in range(4):
        for ks in range(4):
            e(k_read(0, kb, ks))
        e("s_waitcnt lgkmcnt(0)")
        for qb in range(4):
            d = vr(V_P + qb * 4, 4)
            for ks in range(4):
                e(mfma(d, ar(A_KF + (kb * 4 + ks) * 4, 4), ar(A_Q + (qb * 4 + ks) * 4, 4), "0" if ks == 0 else d))
        e("s_nop 7")
        for qb in range(4):
            b = V_P + qb * 4
            e(f"v_max3_f32 v{m+qb}, v{m+qb}, v{b}, v{b+1}")
            e(f"v_max3_f32 v{m+qb}, v{m+qb}, v{b+2}, v{b+3}")
    e(f"s_add_u32 s{S_OFF}, s{S_OFF}, 16384")
    e(f"s_cmp_lt_u32 s{S_OFF}, 524288")
    e("s_cbranch_scc1 M_maxloop")
    e("s_barrier")
    for w, t in (("K", 0), ("K", 1), ("K", 2), ("V", 0), ("V", 1)):
        for x in kv_tile(w, t):
            e(x)
    e("s_waitcnt vmcnt(0)")
    e("s_barrier")
    for kb in range(4):
        for ks in range(4):
            e(k_read(0, kb, ks))
    e("s_waitcnt lgkmcnt(0)")
    for x in first_scores():
        e(x)
    for r in range(16):
        e(f"v_accvgpr_write_b32 a{A_L+r}, 0")
    e("s_mov_b32 s6, 0")
    e("s_branch M_restart")


def build():
    e = Asm()
    for l in open(f"cdna_kernels/{NAME}.s.ref").read().split("\n"):
        if not l.startswith(";"):
            break
        if "@launch" not in l:
            e(l)
    e("; @launch grid=(256,1,1) block=(256,1,1) lds=163840")
    e('.amdgcn_target "amdgcn-amd-amdhsa--gfx950"')
    e(".text")
    e(f".globl {KERNEL}")
    e(".p2align 8")
    e(f".type {KERNEL},@function")
    e(f"{KERNEL}:")
    phase1(e, setup(e))
    proj_epilogue(e)
    stamp(e)
    ost = attention(e)
    stamp(e)
    tail(e, ost)
    stamp_flush(e)
    e("M_exit:")
    e("s_endpgm")
    emit_spins(e)
    e("M_hot_end:")
    fallback(e)
    e('.section .rodata,"a"')
    e(".p2align 6")
    e(f".amdhsa_kernel {KERNEL}")
    for d in ("next_free_vgpr 512", "next_free_sgpr 102", "accum_offset 256", "group_segment_fixed_size 0", "kernarg_size 88",
              "user_sgpr_count 2", "user_sgpr_kernarg_segment_ptr 1", "system_sgpr_workgroup_id_x 1"):
        e(f".amdhsa_{d}")
    e(".end_amdhsa_kernel")
    e.resolve()
    if OPT.get("jitter"):
        import random
        rnd = random.Random(OPT["jitter"])
        out, n = [], 0
        for l in e.lines:
            site = l.startswith(("s_barrier", "buffer_atomic")) or (l.startswith("buffer_store") and rnd.random() < 0.2)
            if site and rnd.random() < 0.7:
                n += 1
                pre = ["s_cselect_b32 s99, 1, 0", f"s_mul_i32 s98, s2, {rnd.randrange(3, 1000, 2)}", f"s_add_u32 s98, s98, s{S_W}",
                       f"s_mul_i32 s98, s98, {rnd.randrange(3, 1000, 2)}", f"s_bitcmp1_b32 s98, {rnd.randrange(0, 4)}",
                       f"s_cbranch_scc0 J{n}", f"s_sleep {rnd.choice([1, 3, 10, 30, 60])}", f"J{n}:", "s_cmp_lg_u32 s99, 0"]
                out += pre + [l] if rnd.random() < 0.5 else [l] + pre
            else:
                out.append(l)
        e.lines = out
    errs = []
    errs += check_trace(e.trace(KERNEL, {"M_loop": [True, True, False], "M_gathered": [True]}), "fast")
    errs += check_trace(e.trace(KERNEL, {"M_loop": [True, False, True, False], "M_fallback": [True, False], "M_maxloop": [True, False],
                                         "M_ps_spin": [True], "M_pa_spin": [True, True], "M_poa_spin": [True], "M_pob_spin": [True], "M_poa_back": [True], "M_pob_back": [True], "M_skip0": [True, False], "M_skip1": [False, True], "M_skip2": [False, True], "M_gather": [True], "M_gathered": [False, True], "M_pg_spin": [True], "M_pg_back": [True],
                                         "M_ps_back": [True], "M_pa_back": [True, True]}), "slow")
    return e.text(), errs


if __name__ == "__main__":
    if "--stamps" in sys.argv:
        sys.argv.remove("--stamps")
        STAMPS = True
    for a in [x for x in sys.argv if "=" in x]:
        sys.argv.remove(a)
        k, v = a.split("=")
        OPT[k] = int(v)
    text, errs = build()
    for x in errs[:6]:
        print(x)
    out = sys.argv[1] if len(sys.argv) > 1 else f"cdna_kernels/{NAME}.s"
    open(out, "w").write(text)
    print("wrote", out, len(text), "bytes;", len(errs), "check findings; stamps", nstamp[0])
```

```python
import sys, struct
from asm import Asm, check_trace

NAME = "recurrent_scan__gqa_block_cached__dense_activation_silu__prompt"
KERNEL = NAME + "_kernel"
WS_MISC = 0
MISC_CNTA, MISC_CNTO, MISC_CNTP, MISC_SIZE = 16384, 20480, 28672, 45056
WS_ACT = 4 << 20
WS_WP = 32 << 20
WS_STAMP = 64 << 20
WS_PART = 96 << 20
PART_SRC, PART_WAVE, PART_DST, PART_TILE = 2560, 16384, 65536, 262144
NPAIR = 91
ACT_RG = NPAIR * 8192
WP_PAIR = 81920
SRD3 = "0x00020000"
OOB = 0x1000000
LOG2E = 1.4426950408889634
L_LIMIT = 2.0 ** 120
O_LOW = 2.0 ** -110
STAMPS = False
OPT = {}

S_X, S_WQ, S_W1, S_K, S_V, S_ACT, S_ACTH, S_DBG, S_WS, S_R0, S_R1, S_WP, S_TA, S_TW, S_OUT = range(8, 68, 4)
S_M0K, S_M0V = 68, 72
S_W, S_HEAD, S_QT, S_W4K, S_OFF, S_CNT, S_RETRY = range(76, 83)
S_RSRC, S_RSRC2, S_RDST, S_M0R = 83, 84, 85, 86
S_GA, S_GW, S_SA, S_SW, S_XO = range(87, 92)
S_SIGS, S_SIGA, S_SIGO, S_POLLO = 92, 93, 94, 95
S_W2K, S_W8K = 100, 101
P_IN = 52
S_PART, S_KQ, S_SIGP, S_M0A, S_M0W, S_PS = 48, 12, 13, 14, 15, 16
V_L16 = 1
V_KRD, V_VRD, V_KDMA, V_VDMA = 2, 6, 14, 18
V_STAMP, V_IDX, V_ONES, V_NM, V_P, V_O = 34, 35, 36, 40, 64, 128
SBUF = [56, 60, 24, 28]
V_POFF, V_PVAL, V_ONE, V_SIG = 20, 21, 32, 33
V_XDMA, V_XRD = 20, 24
V_RDMA, V_RRD = 22, 23
V_WQRD, V_W1RD, V_WQDMA, V_W1DMA, V_ST = 40, 48, 52, 56, 52
A_Q, A_KF, A_VF, A_L = 0, 64, 128, 160
A_XF, A_WF, A_CS, A_RP = 64, 128, 192, 176
LDS_K, LDS_V, LDS_W1 = 0, 65536, 131072
LDS_CS = LDS_W1 + 3 * 8192
LDS_FLAG = 163840 - 16
WQ_SLOT = [LDS_V + 3 * 16384, LDS_V + 2 * 16384, LDS_K + 2 * 16384, LDS_K + 3 * 16384]
X_SLOT = [LDS_V, LDS_K]
LK = LV = 5


def fbits(x):
    return "0x%08x" % struct.unpack("<I", struct.pack("<f", x))[0]


def vr(b, n=1):
    return f"v{b}" if n == 1 else f"v[{b}:{b+n-1}]"


def ar(b, n=1):
    return f"a{b}" if n == 1 else f"a[{b}:{b+n-1}]"


def sr(b, n=4):
    return f"s[{b}:{b+n-1}]"


def srd(e, d, src, off, size):
    if off is not None:
        e(f"s_add_u32 s{d}, s{src}, {off}")
        e(f"s_addc_u32 s{d+1}, s{src+1}, 0")
    elif src != d:
        e(f"s_mov_b32 s{d}, s{src}")
        e(f"s_mov_b32 s{d+1}, s{src+1}")
    e(f"s_mov_b32 s{d+2}, {size}")
    e(f"s_mov_b32 s{d+3}, {SRD3}")


def mfma(d, a, b, c):
    return f"v_mfma_f32_16x16x32_bf16 {d}, {a}, {b}, {c}"


def smfmac(d, b):
    return f"v_smfmac_f32_16x16x64_bf16 {d}, {vr(V_ONES,4)}, {b}, v{V_IDX}"


nstamp = [0]


def stamp(e):
    if STAMPS:
        i = nstamp[0]
        nstamp[0] += 1
        e("s_memrealtime s[96:97]")
        e("s_memtime s[98:99]")
        e("s_waitcnt lgkmcnt(0)")
        e(f"v_writelane_b32 v{V_STAMP}, s96, {2*i}")
        e(f"v_writelane_b32 v{V_STAMP}, s98, {2*i+1}")


def stamp_flush(e):
    if not STAMPS:
        return
    e("s_waitcnt vmcnt(0) lgkmcnt(0)")
    stamp(e)
    srd(e, 8, S_WS, WS_STAMP - WS_MISC, 262144)
    e("s_lshl_b32 s12, s2, 2")
    e(f"s_add_u32 s12, s12, s{S_W}")
    e("s_lshl_b32 s12, s12, 8")
    e(f"v_lshrrev_b32 v2, 2, v{V_L16}")
    e(f"buffer_store_dword v{V_STAMP}, v2, s[8:11], s12 offen")
    if "ea" in OPT:
        k = OPT.get("ecyc", 0)
        e(f"v_readlane_b32 s4, v{V_STAMP}, {2*OPT['ea']+k}")
        e(f"v_readlane_b32 s5, v{V_STAMP}, {2*OPT['eb']+k}")
        e("s_nop 3")
        e("s_sub_u32 s5, s5, s4")
        if k:
            e("s_mul_i32 s5, s5, 3277")
            e("s_lshr_b32 s5, s5, 16")
        e("s_add_u32 s5, s5, s96")
        e("M_echo:")
        e("s_memrealtime s[6:7]")
        e("s_waitcnt lgkmcnt(0)")
        e("s_sub_u32 s4, s6, s5")
        e("s_cmp_lt_i32 s4, 0")
        e("s_cbranch_scc1 M_echo")


def kind_of(x):
    if x.startswith("buffer_"):
        return "vm"
    if x.startswith("ds_"):
        return "ds"
    if x.startswith(("v_exp", "v_rcp", "v_sqrt", "v_permlane")):
        return "slow"
    return "valu" if x.startswith("v_") else "scalar"


prev_valu = [False]


def interleave(e, mf, fixed, streams, cap=2, quota=99, space=0):
    last_vm = -space
    for i, m in enumerate(mf):
        e.safe(m)
        pre, post = fixed.get(i, ([], []))
        items = post + pre
        shadow, used, valu = True, 0, False

        def emit(x, safe=False):
            nonlocal shadow, used, valu
            k = kind_of(x)
            (e.safe if safe else e)(x)
            if not (k == "scalar" and shadow):
                used += 2 if k in ("vm", "slow") else 1
            used += x.count("\ns_")
            shadow = False
            valu |= k in ("valu", "slow")

        if not (items and kind_of(items[0]) == "scalar"):
            for s in streams:
                if s and kind_of(s[0]) == "scalar" and e.hazard_free(s[0]):
                    emit(s.pop(0))
                    break
        for x in items:
            emit(x, True)
        want_vm = quota > 0 and i + 1 - last_vm >= space and any(
            s and "vm" in [kind_of(y) for y in s[:2]] for s in streams) and i + 1 not in fixed
        progress = True
        while used < cap and progress:
            progress = False
            for kinds in (("vm", "ds", "scalar"), ("valu", "slow"), ("scalar",)):
                for s in streams:
                    if not s or kind_of(s[0]) not in kinds:
                        continue
                    k = kind_of(s[0])
                    if k == "scalar" and len(kinds) > 1 and s is streams[-1]:
                        continue
                    if used + (2 if k in ("vm", "slow") else 1) > cap or not e.hazard_free(s[0]):
                        continue
                    if k == "vm" and (valu or prev_valu[0] or quota == 0 or i - last_vm < space):
                        continue
                    if k == "ds" and valu:
                        continue
                    if k in ("valu", "slow") and want_vm and not valu:
                        continue
                    if k == "vm":
                        last_vm = i
                        quota -= 1
                        want_vm = want_vm and space <= 1 and quota > 0
                    emit(s.pop(0))
                    progress = True
                    break
                if progress:
                    break
        prev_valu[0] = valu


def drain(e, streams):
    for s in streams:
        while s:
            e.safe(s.pop(0))


def snake(k):
    return (3, 2, 1, 0) if k % 2 and OPT.get("snake", 1) else (0, 1, 2, 3)


def o_reg(db, qb):
    return V_O + (db * 4 + qb) * 4


KVF = ["", " sc1", " nt", " sc0", " sc0 sc1"]


def k_dma(n, tag=""):
    return f"buffer_load_dwordx4 v{V_KDMA+n}, {sr(S_K)}, s{S_OFF} offen offset:{n*1024}{KVF[OPT.get('kvf', 0)]} lds{tag}"


def v_dma(n, tag=""):
    return f"buffer_load_dwordx4 v{V_VDMA+(n&1)}, {sr(S_V)}, s{S_OFF} offen offset:{n*1024}{KVF[OPT.get('kvf', 0)]} lds{tag}"


def k_read(tile, kb, ks):
    return f"ds_read_b128 {ar(A_KF+(kb*4+ks)*4,4)}, v{V_KRD+ks} offset:{(tile%4)*16384+kb*4096}"


def v_read(tile, db, t, v):
    return f"ds_read_b64_tr_b16 {ar(A_VF+((db%4)*2+t)*4+2*v,2)}, v{V_VRD+db} offset:{(tile%4)*16384+t*8192+v*4096}"


def kv_tile(which, tile):
    tag = f" ; @{which}{tile}"
    out = [f"s_mov_b32 m0, s{(S_M0K if which == 'K' else S_M0V) + tile % 4}", f"s_mov_b32 s{S_OFF}, {tile*16384}"]
    return out + [(k_dma if which == "K" else v_dma)(n, tag) for n in range(4)]


spins = []


def poll_check(name, load, cond):
    spins.append((name, load, cond))
    return cond + [f"s_cbranch_vccnz {name}_spin\n{name}_back:"]


def emit_spins(e):
    for name, load, cond in spins:
        e(f"{name}_spin:")
        e("s_mov_b32 s3, 0x100000")
        e(f"{name}_loop:")
        e(f"s_sleep {OPT.get('slp', 2)}")
        e(load)
        e("s_waitcnt vmcnt(0)")
        for x in cond:
            e(x)
        e(f"s_cbranch_vccz {name}_back")
        e("s_sub_u32 s3, s3, 1")
        e("s_cmp_lg_u32 s3, 0")
        e(f"s_cbranch_scc1 {name}_loop")
        e(f"s_branch {name}_back")


POLL_A = f"buffer_load_dword v{V_PVAL}, v{V_POFF}, {sr(S_WS)}, 0 offen sc1"


def attn_step(e, j, qk=True, first=False, extra=None, late=None):
    pw = V_P + ((j + 1) % 2) * 32
    pr = V_P + (j % 2) * 32
    pv = True

    def pdst(x):
        on, base = (qk, pw) if x >= 0 else (not first, pr)
        x %= 16
        return on, base + (x % 4) * 8 + (x // 4) * 2, SBUF[x % 4]

    for u in range(16):
        def qk_chain(x, rev):
            kb, qb, d = x // 4, x % 4, vr(SBUF[x % 4], 4)
            return [mfma(d, ar(A_KF + (kb * 4 + ks) * 4, 4), ar(A_Q + (qb * 4 + ks) * 4, 4), d if i else vr(V_NM + qb * 4, 4))
                    for i, ks in enumerate((3, 2, 1, 0) if rev else (0, 1, 2, 3))]

        def pv_chains(x, rev=False):
            out, db = [], x // 2
            for h in range(2):
                q2 = (x % 2) * 2 + (1 - h if rev else h)
                o = vr(o_reg(db, q2), 4)
                for t in ((0, 1) if h == 0 else (1, 0)):
                    out.append(mfma(o, ar(A_VF + ((db % 4) * 2 + t) * 4, 4), vr(pr + q2 * 8 + t * 4, 4), "0" if first and t == h else o))
            return out

        if not qk:
            M = [None] * 4 + pv_chains(u)
        elif not OPT.get("sup", 1):
            M = qk_chain(u, False) + pv_chains(u)
        elif OPT.get("sup", 1) == 2:
            x = (u // 4) * 4 + (u % 2) * 2
            if u % 4 < 2:
                M = qk_chain(x, False) + qk_chain(x + 1, True)
            elif u % 4 == 2:
                M = pv_chains(x) + pv_chains(x + 1)
            else:
                M = pv_chains(x + 1, True) + pv_chains(x, True)
        elif u % 2 == 0:
            M = qk_chain(u, False) + qk_chain(u + 1, True)
        else:
            M = pv_chains(u - 1) + pv_chains(u)
        F = [[] for _ in range(8)]
        sc = []
        nreads = 0
        n = u + LK
        if qk and not (j == 30 and n >= 16):
            F[2].append(k_read(j + 1 + n // 16, (n % 16) // 4, n % 4))
            nreads += 1
        n = u + LV
        if n < 16 or qk:
            F[5].append(v_read(j + n // 16, (n % 16) // 2, n % 2, 0))
            F[6].append(v_read(j + n // 16, (n % 16) // 2, n % 2, 1))
            nreads += 2
        on, p, sb = pdst(u - 1)
        if on:
            for r in range(4):
                F[(0, 1, 3, 4)[r]].append(f"v_exp_f32 v{sb+r}, v{sb+r}")
            F[5].append(f"v_cvt_pk_bf16_f32 v{p}, v{sb}, v{sb+1}")
        on, p, sb = pdst(u - 2)
        if on:
            F[2].append(f"v_cvt_pk_bf16_f32 v{p+1}, v{sb+2}, v{sb+3}")
        post = []
        sh = OPT.get("sh", 0)
        ud, up = (u + 2 * sh) % 16, u + sh
        if late:
            q, syncs = late
            while q and kind_of(q[0]) == "scalar" and len(sc) < 6:
                sc.append(q.pop(0))
            if q:
                F[7].append(q.pop(0))
            if up in syncs:
                wait, more = syncs[up]
                assert j != 29 or not any(kind_of(x) == "vm" for x in q)
                post += wait + ["s_barrier"]
                q.extend(more)
            elif up % 4 == 2 and q and kind_of(q[0]) == "vm":
                post.append(q.pop(0))
        elif qk:
            if up == 10:
                post += [f"s_waitcnt vmcnt({[9 + sh, 10 - sh, 9, 10][j % 4]})", "s_barrier"]
            if ud == 12:
                sc += [f"s_add_u32 s{S_OFF}, s{S_OFF}, 32768", f"s_mov_b32 m0, s{S_M0K + j % 4}"]
            if ud in (12, 14):
                F[7].append(k_dma((ud - 12) // 2))
            if ud in (0, 2):
                F[7].append(k_dma(2 + ud // 2))
            if ud == 4:
                sc += [f"s_sub_u32 s{S_OFF}, s{S_OFF}, 16384", f"s_mov_b32 m0, s{S_M0V + (j + 2) % 4}"]
            if ud in (4, 6, 8, 10):
                F[7].append(v_dma((ud - 4) // 2))
            if j % 4 == 0:
                if ud in (3, 11):
                    sc.append(f"s_mov_b32 m0, s{S_M0R}")
                if ud == 3:
                    F[7].append(f"buffer_load_dwordx4 v{V_RDMA}, {sr(S_R0)}, s{S_RSRC} offen lds")
                if ud == 11:
                    F[7].append(f"buffer_load_dwordx4 v{V_RDMA}, {sr(S_R0)}, s{S_RSRC2} offen offset:1024 lds")
                if ud == 13:
                    sc += [f"s_add_u32 s{S_RSRC}, s{S_RSRC}, 256", f"s_add_u32 s{S_RSRC2}, s{S_RSRC2}, 256",
                           f"s_cmp_gt_u32 s{S_CNT}, 4", f"s_cselect_b32 s{S_R0+2}, s{S_R0+2}, 0"]
                if up == 14:
                    sc += [f"s_cmp_eq_u32 s{S_CNT}, 3", f"s_cselect_b32 s5, s{S_SIGA}, {OOB}"]
                    post.append(f"buffer_atomic_add v{V_ONE}, v{V_SIG}, {sr(S_WS)}, s5 offen")
                if u == 15 and not first:
                    sc.append(f"s_cmp_gt_u32 s{S_CNT}, 1")
            if j % 4 == 2:
                if up == 6:
                    post.append(POLL_A)
                if 11 <= u < 15:
                    k = u - 11
                    F[6].append(f"ds_read_b64_tr_b16 {ar(A_RP+2*k,2)}, v{V_RRD} offset:{(k//2)*32+(k%2)*4096}")
                    nreads += 1
            if j % 4 == 3 and u == 0:
                sc.append(f"s_sub_u32 s{S_CNT}, s{S_CNT}, 1")
            if j % 4 in (1, 2) and u == 15 and OPT.get("rmask", 160):
                sc.append(f"s_bitcmp1_b32 s7, s{S_CNT}")
            if j % 4 == 3:
                if up in (2, 6):
                    post.append(f"buffer_store_dwordx4 {ar(A_RP+(up//4)*4,4)}, v{V_L16}, {sr(S_WP)}, s{S_RDST} offen offset:{(up//4)*2048} sc1")
                if u == 7:
                    sc.append(f"s_add_u32 s{S_RDST}, s{S_RDST}, 16384")
        for i, x in enumerate(sc):
            F[i].insert(0, x)
        if u % 2 == 1:
            F[7].insert(0, f"s_waitcnt lgkmcnt({nreads})")
        if qk and not late and not first:
            drop = tuple(p for k, p in (("nodma", "buffer_"), ("nobar", "s_barrier"), ("novm", "s_waitcnt vmcnt"), ("nolg", "s_waitcnt lgkm"), ("nods", "ds_")) if OPT.get(k))
            if drop:
                keep = lambda x: not x.startswith(drop) or "atomic" in x or x == POLL_A
                F = [[x for x in f if keep(x)] for f in F]
                post = [x for x in post if keep(x)]
        if qk:
            for i in range(8):
                e(M[i])
                for x in F[i]:
                    e(x)
        else:
            for x in F[0] + F[1] + F[2] + F[3] + F[4]:
                e.safe(x)
            fixed = {}
            if F[5]:
                fixed[0] = (F[5][:1] + F[6] + F[5][1:], [])
            if 2 <= u < 6:
                M.append(smfmac(ar(A_L + (u - 2) * 4, 4), vr(pr + (u - 2) * 8, 8)))
            interleave(e, M[4:], fixed, extra(u), cap=OPT.get("fcap", 3), quota=OPT.get("fq", 2))
            for x in F[7]:
                e(x)
        if qk and up % 4 == 2:
            q2 = u // 4
            e(smfmac(ar(A_L + q2 * 4, 4), vr(pr + q2 * 8, 8)))
        for x in post:
            e(x)


V_M = 24


def row_max_finish(e):
    m, t = V_M, V_M + 4
    for swap in ("v_permlane32_swap_b32", "v_permlane16_swap_b32"):
        for qb in range(4):
            e(f"v_mov_b32 v{t+qb}, v{m+qb}")
        for qb in range(4):
            e(f"{swap} v{m+qb}, v{t+qb}")
        for qb in range(4):
            e(f"v_max_f32 v{m+qb}, v{m+qb}, v{t+qb}")
    for qb in range(4):
        sel = "op_sel_hi:[0,0]" if qb % 2 == 0 else "op_sel:[0,1] op_sel_hi:[0,1]"
        for p in range(2):
            e(f"v_pk_add_f32 {vr(V_NM+qb*4+2*p,2)}, s[6:7], {vr(m+(qb//2)*2,2)} {sel} neg_lo:[0,1] neg_hi:[0,1]")


def x_dma(c):
    out = []
    for h in range(2):
        out += [f"s_add_u32 m0, s{S_W8K}, {X_SLOT[c%2] + h*4096}", f"s_mov_b32 s{S_OFF}, {c*128 + h*40960}"]
        out += [f"buffer_load_dwordx4 v{V_XDMA+n}, {sr(S_X)}, s{S_OFF} offen offset:{n*1024} lds ; @X{c}" for n in range(4)]
    return out


def w_dma(c):
    out = [f"s_add_u32 m0, s{S_W4K}, {WQ_SLOT[c%4]}", f"s_mov_b32 s{S_OFF}, {c*64*8192}"]
    out += [f"buffer_load_dwordx4 v{V_WQDMA+n}, {sr(S_WQ)}, s{S_OFF} offen offset:{n*1024} lds ; @W{c}" for n in range(4)]
    out += [f"s_add_u32 m0, s{S_W2K}, {LDS_W1+(c%4)*8192}", f"s_mov_b32 s{S_OFF}, {c*64*3456}"]
    out += [f"buffer_load_dwordx4 v{V_W1DMA+n}, {sr(S_W1)}, s{S_OFF} offen offset:{n*1024} lds ; @W{c}" for n in range(2)]
    return out


def x_read(c):
    out = [f"ds_read_b128 {ar(A_XF+(c%2)*32+(qb*2+t)*4,4)}, v{V_XRD+t} offset:{qb*2048} ; @XR{c}" for qb in range(4) for t in range(2)]
    return out + [f"v_xor_b32 v{V_XRD+t}, 0x10000, v{V_XRD+t}" for t in range(2)]


def code_prefetch(e):
    e("s_getpc_b64 s[6:7]")
    e("M_pc:")
    e("s_lshr_b32 s3, s2, 3")
    e("s_lshl_b32 s3, s3, 11")
    e("v_lshl_add_u32 v60, v62, 3, s3")
    e("v_min_u32 v60, M_hot_end-M_pc-4, v60")
    e("v_mov_b32 v61, 0")
    e("v_lshl_add_u64 v[60:61], v[60:61], 0, s[6:7]")
    e("global_load_dword v63, v[60:61], off ; nocheck")


def setup(e):
    if STAMPS:
        e("s_memrealtime s[92:93]")
        e("s_memtime s[94:95]")
    e(f"s_load_dwordx16 {sr(P_IN,16)}, s[0:1], 0")
    e("s_cmp_ge_u32 s2, 256")
    e("s_cbranch_scc1 M_exit")
    e("v_lshrrev_b32 v31, 6, v0")
    e("v_mov_b32 v62, v0")
    e(f"v_readfirstlane_b32 s{S_W}, v31")
    if OPT.get("pf", 2) == 1:
        code_prefetch(e)
    e("v_and_b32 v0, 63, v0")
    e(f"s_lshr_b32 s{S_QT}, s2, 5")
    e("v_lshrrev_b32 v29, 4, v0")
    e("v_lshrrev_b32 v30, 3, v0")
    e("v_and_b32 v31, 7, v0")
    e(f"s_lshl_b32 s{S_W8K}, s{S_W}, 13")
    e(f"s_lshl_b32 s5, s{S_QT}, 2")
    e(f"s_add_u32 s5, s5, s{S_W}")
    e("s_mul_i32 s6, s5, 81920")
    e("v_mul_u32_u24 v26, 1280, v30")
    e("v_add_u32 v26, s6, v26")
    e("v_xor_b32 v27, v31, v29")
    e(f"v_lshl_add_u32 v{V_XDMA}, v27, 4, v26")
    e(f"v_add_u32 v{V_XDMA+2}, {2*(10240-1024)}, v{V_XDMA}")
    e(f"v_xor_b32 v27, 64, v{V_XDMA}")
    e(f"v_add_u32 v{V_XDMA+1}, {10240-1024}, v27")
    e(f"v_add_u32 v{V_XDMA+3}, {3*(10240-1024)}, v27")
    e(f"s_mov_b32 s{S_X+2}, 2621440")
    e(f"s_mov_b32 s{S_X+3}, {SRD3}")
    first = x_dma(0)
    pre = Asm()
    pre("s_and_b32 s3, s2, 7")
    pre("s_bfe_u32 s7, s2, 0x20003")
    pre(f"s_lshl_b32 s{S_HEAD}, s3, 2")
    pre(f"s_add_u32 s{S_HEAD}, s{S_HEAD}, s7")
    pre(f"s_lshl_b32 s{S_W2K}, s{S_W}, 11")
    pre(f"s_lshl_b32 s{S_W4K}, s{S_W}, 12")
    pre("v_and_b32 v28, 15, v0")
    pre(f"s_lshl_b32 s6, s{S_W}, 17")
    pre("v_lshlrev_b32 v26, 13, v29")
    pre("v_add_u32 v26, s6, v26")
    pre("v_lshlrev_b32 v27, 2, v29")
    pre("v_xor_b32 v27, v27, v28")
    pre(f"v_lshl_add_u32 v{V_WQDMA}, v27, 4, v26")
    for n in range(1, 4):
        pre(f"v_add_u32 v{V_WQDMA+n}, {n*(32768-1024)}, v{V_WQDMA}")
    pre(f"s_lshl_b32 s6, s{S_HEAD}, 8")
    early = OPT.get("early", 0)
    for x in first[:2] + (pre.lines if early else []):
        e(x)
    e("s_waitcnt lgkmcnt(0)")
    if STAMPS:
        e(f"v_writelane_b32 v{V_STAMP}, s92, 0")
        e(f"v_writelane_b32 v{V_STAMP}, s94, 1")
        nstamp[0] += 1
    if OPT.get("st0"):
        stamp(e)
    e(f"s_mov_b64 {sr(S_X,2)}, {sr(P_IN,2)}")
    for x in first[2:]:
        e.safe(x)
    if OPT.get("pf", 2) == 2:
        code_prefetch(e)
    for reg, off in ((S_R1, 64), (S_DBG, 72), (S_WS, 80)):
        e(f"s_load_dwordx2 {sr(reg,2)}, s[0:1], {off}")
    for x in ([] if early else pre.lines):
        e(x)
    srd(e, S_WQ, P_IN + 6, "s6", 640 * 8192 - 31 * 256)
    for x in w_dma(0)[:6]:
        e.safe(x)
    if OPT.get("spread", 1):
        e("s_min_u32 s4, s3, 5")
        e(f"s_sub_u32 s{S_CNT}, s{S_HEAD}, s4")
        e("s_cmp_lt_u32 s3, 5")
        e("s_cselect_b32 s4, s7, 0")
        e("s_cmp_eq_u32 s4, 3")
        e(f"s_cselect_b32 s{S_CNT}, 27, s{S_CNT}")
    else:
        e(f"s_mov_b32 s{S_CNT}, s{S_HEAD}")
    e(f"s_lshl_b32 s6, s{S_CNT}, 7")
    srd(e, S_W1, P_IN + 12, "s6", 640 * 3456 - 26 * 128)
    e(f"s_cmp_lt_u32 s{S_CNT}, 27")
    e(f"s_cselect_b32 s{S_W1+2}, s{S_W1+2}, 0")
    e(f"s_mul_i32 s6, s{S_W}, {16*3456}")
    e("v_mul_u32_u24 v26, 3456, v30")
    e("v_add_u32 v26, s6, v26")
    e("v_and_b32 v27, 2, v30")
    e("v_xor_b32 v27, v27, v31")
    e(f"v_lshl_add_u32 v{V_W1DMA}, v27, 4, v26")
    e(f"v_xor_b32 v27, 64, v{V_W1DMA}")
    e(f"v_add_u32 v{V_W1DMA+1}, {8*3456-1024}, v27")
    for x in w_dma(0)[6:]:
        e.safe(x)
    e(f"v_lshlrev_b32 v{V_L16}, 4, v0")
    e("v_bfe_u32 v30, v0, 2, 3")
    e("v_and_b32 v31, 3, v0")
    e("v_bfe_u32 v12, v0, 2, 2")
    e("v_lshl_add_u32 v26, v29, 3, v12")
    e("v_lshlrev_b32 v27, 8, v26")
    e("v_lshl_add_u32 v27, v31, 4, v27")
    e(f"v_xor_b32 v12, s{S_W}, v12")
    e(f"v_lshl_add_u32 v{V_WQRD}, v12, 6, v27")
    for j in range(1, 4):
        e(f"v_xor_b32 v{V_WQRD+j}, {j*64}, v{V_WQRD}")
    e("v_lshlrev_b32 v27, 7, v26")
    e("v_lshl_add_u32 v27, v31, 3, v27")
    e(f"v_add_u32 v27, {LDS_W1}, v27")
    e("v_lshrrev_b32 v12, 1, v30")
    e(f"s_and_b32 s6, s{S_W}, 2")
    e("v_xor_b32 v12, s6, v12")
    e(f"v_lshl_add_u32 v{V_W1RD}, v12, 5, v27")
    for nb in range(1, 4):
        e(f"v_xor_b32 v{V_W1RD+nb}, {nb*32}, v{V_W1RD}")
    e("v_lshrrev_b32 v12, 1, v28")
    e("v_xor_b32 v12, v12, v29")
    e("v_lshlrev_b32 v12, 4, v12")
    e("v_lshl_add_u32 v12, v28, 7, v12")
    e(f"s_add_u32 s6, s{S_W8K}, {X_SLOT[0]}")
    e(f"v_add_u32 v{V_XRD}, s6, v12")
    e(f"v_xor_b32 v{V_XRD+1}, 64, v{V_XRD}")
    e("v_and_b32 v26, 1, v0")
    e("v_cmp_eq_u32 vcc, 0, v26")
    e("v_mov_b32 v27, 0x44444444")
    e("v_mov_b32 v12, 0xeeeeeeee")
    e(f"v_cndmask_b32 v{V_IDX}, v12, v27, vcc")
    e("v_and_b32 v26, 2, v0")
    e("v_cmp_eq_u32 vcc, 0, v26")
    e("v_mov_b32 v27, 0x3f803f80")
    e("v_mov_b32 v12, 0")
    for r in range(4):
        e(f"v_cndmask_b32 v{V_ONES+r}, v12, v27, vcc")
    for r in range(16):
        e(f"v_accvgpr_write_b32 a{A_CS+r}, 0")
    if OPT.get("st0"):
        stamp(e)
    mem = x_dma(1) + w_dma(1)
    for x in mem[:OPT.get("nearly", 10)]:
        e.safe(x)
    e("s_waitcnt lgkmcnt(0)")
    return mem[OPT.get("nearly", 10):]


def glued(lines):
    out = []
    for x in lines:
        if x.startswith(("s_addc", "s_cselect")):
            out[-1] += "\n" + x
        else:
            out.append(x)
    return out


def late_stream():
    e = Asm()
    e(f"s_lshl_b32 s6, s{S_QT}, 5")
    e(f"s_add_u32 s6, s6, s{S_HEAD}")
    e("s_lshl_b32 s6, s6, 2")
    e(f"s_add_u32 s6, s6, s{S_W}")
    e("s_lshl_b32 s6, s6, 1")
    e("v_lshrrev_b32 v26, 5, v0")
    e("v_add_u32 v26, s6, v26")
    e("v_mul_u32_u24 v27, 1280, v26")
    e("v_and_b32 v12, 31, v0")
    e("v_lshl_add_u32 v13, v12, 4, v27")
    e("v_lshl_add_u32 v14, v12, 3, v27")
    e("v_lshlrev_b32 v26, 3, v26")
    e("v_lshl_add_u32 v19, v12, 24, v26")
    e("v_min_u32 v12, 1, v62")
    e(f"v_lshlrev_b32 v{V_SIG}, 24, v12")
    e(f"v_mov_b32 v{V_ONE}, 0")
    late_setup(e)
    return glued(e.lines) + early_mem()


SROW = [f"buffer_load_dwordx4 v[2:5], v13, {sr(S_X)}, 0 offen ; @SROW",
        f"buffer_load_dwordx4 v[6:9], v13, {sr(S_X)}, 0 offen offset:512 ; @SROW",
        f"buffer_load_dwordx2 v[10:11], v14, {sr(S_X)}, 0 offen offset:1024 ; @SROW"]


def tile_ids(e):
    e("s_bfe_u32 s4, s2, 0x20001")
    e("s_and_b32 s5, s2, 1")
    e("s_lshl_b32 s5, s5, 3")
    e("s_bfe_u32 s6, s2, 0x30003")
    e("s_add_u32 s5, s5, s6")
    e("s_lshr_b32 s6, s2, 6")


def late_setup(e):
    e(f"s_lshl_b32 s6, s{S_HEAD}, 19")
    srd(e, S_K, P_IN + 2, "s6", 524288)
    srd(e, S_V, P_IN + 4, "s6", 524288)
    e("s_cmp_lt_u32 s2, 128")
    e(f"s_cselect_b64 {sr(S_R0,2)}, {sr(P_IN+8,2)}, {sr(P_IN+14,2)}")
    e(f"s_mul_i32 s6, s5, {ACT_RG}")
    e(f"s_add_u32 s6, s6, {WS_ACT}")
    e(f"s_lshl_b32 s7, s{S_HEAD}, 14")
    e("s_add_u32 s7, s7, s6")
    srd(e, S_ACT, S_WS, "s7", 16384)
    e(f"s_lshl_b32 s7, s{S_CNT}, 13")
    e(f"s_add_u32 s7, s7, {64*8192}")
    e("s_add_u32 s7, s7, s6")
    srd(e, S_ACTH, S_WS, "s7", 8192)
    e(f"s_cmp_lt_u32 s{S_CNT}, 27")
    e(f"s_cselect_b32 s{S_ACTH+2}, s{S_ACTH+2}, 0")
    srd(e, S_DBG, S_DBG, None, 256)
    srd(e, S_OUT, S_R1, None, 2621440)
    tile_ids(e)
    e("s_lshl_b32 s7, s5, 1")
    e(f"s_lshr_b32 s3, s{S_W}, 1")
    e("s_add_u32 s3, s7, s3")
    e(f"s_mul_i32 s7, s3, {ACT_RG}")
    e(f"s_add_u32 s7, s7, {WS_ACT}")
    e(f"s_and_b32 s{S_XO}, s{S_W4K}, 4096")
    e(f"s_add_u32 s7, s7, s{S_XO}")
    srd(e, S_TA, S_WS, "s7", (NPAIR - 1) * 8192 + 4096)
    e("s_lshl_b32 s7, s6, 2")
    e(f"s_add_u32 s7, s7, s{S_W}")
    e("s_mul_i32 s7, s7, 5120")
    e(f"s_add_u32 s7, s7, {WS_WP}")
    srd(e, S_TW, S_WS, "s7", (NPAIR - 1) * WP_PAIR + 5120)
    e("s_lshl_b32 s3, s3, 2")
    e("s_add_u32 s3, s3, s4")
    e(f"s_mul_i32 s{S_XO}, s3, 20480")
    e("s_lshl_b32 s7, s6, 1")
    e(f"s_and_b32 s3, s{S_W}, 1")
    e("s_add_u32 s7, s7, s3")
    e("s_mul_i32 s7, s7, 160")
    e(f"s_add_u32 s{S_XO}, s{S_XO}, s7")
    e("s_lshr_b32 s7, s5, 1")
    e("s_lshl_b32 s7, s7, 2")
    e("s_add_u32 s7, s7, s4")
    e("s_lshl_b32 s7, s7, 8")
    e(f"s_add_u32 s{S_POLLO}, s7, {MISC_CNTO}")
    e("s_mul_i32 s7, s4, 7")
    e("s_add_u32 s7, s7, 64")
    e(f"s_lshl_b32 s{S_GA}, s7, 13")
    e(f"s_mul_i32 s{S_GW}, s7, {WP_PAIR}")
    e(f"s_lshl_b32 s{S_SA}, s4, 17")
    e(f"s_mul_i32 s{S_SW}, s4, {16*WP_PAIR}")
    e("s_lshl_b32 s5, s5, 2")
    e("s_add_u32 s5, s5, s6")
    e("s_lshl_b32 s5, s5, 8")
    e(f"s_add_u32 s5, s5, {MISC_CNTP}")
    e("s_cmp_eq_u32 s4, 0")
    e(f"s_cselect_b32 s5, s5, {OOB}")
    e("s_sub_u32 s6, s2, 128")
    e("s_cmp_lt_u32 s2, 128")
    e("s_cselect_b32 s6, s2, s6")
    e("s_mul_i32 s6, s6, 40960")
    srd(e, S_R0, S_R0, "s6", 40960)
    e("s_lshr_b32 s6, s2, 1")
    e(f"s_mul_i32 s6, s6, {WP_PAIR}")
    e(f"s_add_u32 s6, s6, {WS_WP}")
    srd(e, S_WP, S_WS, "s6", WP_PAIR)
    e(f"s_cmp_lt_u32 s2, {2*NPAIR}")
    e(f"s_cselect_b32 s{S_R0+2}, s{S_R0+2}, 0")
    e(f"s_cselect_b32 s{S_WP+2}, s{S_WP+2}, 0")
    e("s_and_b32 s6, s2, 1")
    e("s_lshl_b32 s6, s6, 10")
    e(f"s_add_u32 s{S_RDST}, s6, s{S_W4K}")
    e(f"s_mov_b32 s{S_RSRC}, 0")
    e(f"s_mov_b32 s{S_RSRC2}, 4096")
    e(f"s_add_u32 s{S_M0R}, s{S_W2K}, {LDS_W1}")
    srd(e, S_WS, S_WS, WS_MISC if WS_MISC else None, MISC_SIZE)
    e(f"s_lshl_b32 s{S_SIGS}, s{S_QT}, 5")
    e(f"s_lshl_b32 s7, s{S_QT}, 8")
    e(f"s_add_u32 s{S_SIGA}, s7, {MISC_CNTA}")
    e(f"s_lshl_b32 s7, s{S_QT}, 2")
    e(f"s_lshr_b32 s6, s{S_HEAD}, 3")
    e("s_add_u32 s7, s7, s6")
    e("s_lshl_b32 s7, s7, 8")
    e(f"s_add_u32 s{S_SIGO}, s7, {MISC_CNTO}")
    for i in range(4):
        e(f"s_add_u32 s{S_M0K+i}, s{S_W4K}, {LDS_K + i*16384}")
        e(f"s_add_u32 s{S_M0V+i}, s{S_W4K}, {LDS_V + i*16384}")
    e(f"s_mov_b32 s{S_RETRY}, 0")
    e(f"s_cmp_eq_u32 s{S_HEAD}, 0")
    e(f"s_cselect_b32 s6, s{S_SIGA}, {OOB}")
    e(f"s_and_b32 s7, s{S_HEAD}, 7")
    e(f"s_cselect_b32 s7, {OOB}, s{S_SIGO}")

def early_mem():
    out = [f"buffer_store_dword v{V_ONE}, v{V_SIG}, {sr(S_WS)}, s6 offen sc1",
           f"buffer_store_dword v{V_ONE}, v{V_SIG}, {sr(S_WS)}, s7 offen sc1",
           "v_lshrrev_b32 v12, 3, v62", "v_lshlrev_b32 v26, 2, v62", "v_lshl_add_u32 v12, v12, 24, v26",
           f"buffer_store_dword v{V_ONE}, v12, {sr(S_WS)}, s5 offen sc1"]
    return out + [f"v_mov_b32 v{V_ONE}, 1"]


def stats_stream():
    s = ["WAITVM SROW"]

    def unpack(i, dst):
        return f"v_lshlrev_b32 v{dst}, 16, v{2+i//2}" if i % 2 == 0 else f"v_and_b32 v{dst}, 0xffff0000, v{2+i//2}"

    def reduce32():
        out = ["v_add_f32 v12, v12, v13"]
        for rot in (8, 4, 2, 1):
            out.append(f"v_add_f32_dpp v12, v12, v12 row_ror:{rot} row_mask:0xf bank_mask:0xf")
        out += ["v_mov_b32 v13, v12", "v_permlane16_swap_b32 v12, v13", "v_add_f32 v12, v12, v13",
                f"v_mul_f32 v12, {fbits(1.0/640)}, v12"]
        return out

    s += [unpack(0, 12), unpack(1, 13)]
    for i in range(2, 20, 2):
        s += [unpack(i, 14), unpack(i + 1, 15), "v_add_f32 v12, v12, v14", "v_add_f32 v13, v13, v15"]
    s += reduce32() + ["v_mov_b32 v16, v12"]
    for i in range(0, 20, 2):
        s += [unpack(i, 14), unpack(i + 1, 15), "v_sub_f32 v14, v14, v16", "v_sub_f32 v15, v15, v16"]
        op = "v_mul_f32" if i == 0 else "v_fmac_f32"
        s += [f"{op} v12, v14, v14", f"{op} v13, v15, v15"]
    s += reduce32()
    s += ["v_cvt_pk_bf16_f32 v13, v12, v16", "v_and_b32 v16, 0xffff0000, v13", "v_lshlrev_b32 v12, 16, v13",
          "v_xor_b32 v16, 0x80000000, v16", f"v_add_f32 v12, {fbits(1e-5)}, v12", "v_cvt_pk_bf16_f32 v12, v12, v12",
          "v_lshlrev_b32 v12, 16, v12", "v_sqrt_f32 v12, v12", "v_cvt_pk_bf16_f32 v12, v12, v12",
          "v_lshlrev_b32 v12, 16, v12", "v_rcp_f32 v17, v12", "s_nop 0",
          f"buffer_store_dwordx2 v[16:17], v19, {sr(S_WS)}, 0 offen sc1 ; @SST"]
    return s


def kv_addr_stream():
    s = [f"s_lshl_b32 s5, s{S_W}, 2", "v_xor_b32 v26, v28, v29", "v_xor_b32 v27, s5, v26", "v_lshlrev_b32 v27, 4, v27",
         f"v_lshl_add_u32 v{V_KRD}, v28, 8, v27"]
    s += [f"v_xor_b32 v{V_KRD+ks}, {64*ks}, v{V_KRD}" for ks in range(1, 4)]
    s += ["v_lshlrev_b32 v27, 8, v29", f"v_add_u32 v27, s{S_W4K}, v27", f"v_lshl_add_u32 v{V_KDMA}, v26, 4, v27"]
    s += [f"v_xor_b32 v{V_KDMA+n}, {64*n}, v{V_KDMA}" for n in range(1, 4)]
    s += ["v_lshlrev_b32 v26, 1, v29", "v_xor_b32 v26, v26, v28", f"v_lshl_add_u32 v{V_VDMA}, v26, 4, v27",
          f"v_xor_b32 v{V_VDMA+1}, 128, v{V_VDMA}"]
    s += ["v_lshrrev_b32 v27, 2, v0", "v_lshlrev_b32 v27, 8, v27", "v_lshl_add_u32 v27, v31, 3, v27",
          f"v_add_u32 v27, {LDS_V}, v27", f"v_lshl_add_u32 v{V_VRD}, v30, 5, v27"]
    s += [f"v_xor_b32 v{V_VRD+db}, {32*db}, v{V_VRD}" for db in range(1, 8)]
    return s


def repack_addr_stream():
    e = Asm()
    e(f"v_and_b32 v{V_POFF}, 7, v0")
    e(f"v_lshlrev_b32 v{V_POFF}, 8, v{V_POFF}")
    e(f"v_add_u32 v{V_POFF}, {MISC_CNTA}, v{V_POFF}")
    e(f"s_mul_i32 s5, s{S_W}, {8*1280}")
    e("v_mul_u32_u24 v27, 1280, v29")
    e("v_add_u32 v27, s5, v27")
    e("v_lshlrev_b32 v26, 2, v29")
    e("v_xor_b32 v26, v26, v28")
    e(f"v_lshl_add_u32 v{V_RDMA}, v26, 4, v27")
    e("v_lshrrev_b32 v26, 2, v0")
    e("v_and_b32 v27, 3, v26")
    e(f"v_xor_b32 v27, s{S_W}, v27")
    e("v_lshlrev_b32 v27, 6, v27")
    e("v_lshl_add_u32 v27, v26, 8, v27")
    e("v_lshl_add_u32 v27, v31, 3, v27")
    e(f"v_add_u32 v{V_RRD}, {LDS_W1}, v27")
    return e.lines


CS_SITES = {0: 0, 1: 1, 8: 2, 9: 3}


XR_AT = 6


def phase1(e, carry):
    half = ["lo"] * 8

    def w_reads(c, nb):
        out = []
        if nb < 8:
            base = WQ_SLOT[c % 4]
            h = "hi" if base >= 65536 else "lo"
            if half[nb // 2] != h:
                out.append(f"v_xor_b32 v{V_WQRD+nb//2}, 0x10000, v{V_WQRD+nb//2}")
                half[nb // 2] = h
        for t in range(2):
            for v in range(2):
                d = ar(A_WF + ((nb % 4) * 2 + t) * 4 + 2 * v, 2)
                if nb < 8:
                    out.append(f"ds_read_b64_tr_b16 {d}, v{V_WQRD+nb//2} offset:{base%65536+t*8192+v*1024+(nb%2)*8} ; @WR{c}_{nb}")
                else:
                    out.append(f"ds_read_b64_tr_b16 {d}, v{V_W1RD+nb-8} offset:{(c%4)*8192+t*4096+v*512} ; @WR{c}_{nb}")
        return out

    e("WAITVM W0")
    e("s_barrier")
    stamp(e)
    for x in x_read(0) + w_reads(0, 0) + w_reads(0, 1):
        e(x)
    e("WAITLG WR0_0")
    poll_s = f"buffer_load_dword v63, v62, {sr(S_DBG)}, 0 offen sc1"
    mem, alu, xr = carry, [], []
    ramp = OPT.get("ramp", 36)
    srow = [int(x) for x in "%03d" % OPT.get("srow", 222)]
    SIG_AT = srow[2] + OPT.get("sigd", 3)
    for c in range(10):
        mem += [x for k, x in enumerate(SROW) if srow[k] == c]
        if c + 2 < 10:
            mem += x_dma(c + 2) + w_dma(c + 2)
        if c == 0:
            alu += late_stream()
        assert c != srow[0] or not alu, alu
        if c == srow[2] + 1:
            alu += stats_stream()
        if c == 6:
            alu += [f"v_accvgpr_write_b32 a{A_L+r}, 0" for r in range(16)]
        if c == 7:
            alu += kv_addr_stream()
        if c == 8:
            assert not alu
            alu += tail_scalar_stream() + repack_addr_stream()
            mem += ["v_and_b32 v62, 7, v0", "v_lshlrev_b32 v62, 5, v62", poll_s + " ; @PS"]
            mem += kv_tile("V", 0) + kv_tile("V", 1)
        if c == 9:
            assert not alu
            pre9 = ["WAITVM PS"] + poll_check("M_ps", poll_s, ["v_cmp_gt_u32 vcc, 32, v63"])
            pre9 += [f"s_lshl_b32 s5, s{S_QT}, 2", f"s_add_u32 s5, s5, s{S_W}", "s_lshl_b32 s5, s5, 9", "v_lshlrev_b32 v62, 3, v28"]
            pre9 += [f"buffer_load_dwordx2 {vr(V_ST+2*qb,2)}, v62, {sr(S_WS)}, s5 offen offset:{qb*128} sc1 ; @STL" for qb in range(4)]
            mem += pre9 + kv_tile("K", 1) + kv_tile("K", 2)
        for nb in range(12):
            fixed = {}
            n2 = nb + 2
            reads = w_reads(c, n2) if n2 < 12 else (w_reads(c + 1, n2 - 12) if c < 9 else [])
            pre = []
            if nb == XR_AT and c < 9:
                xr += [f"WAITVM X{c+1}"] + x_read(c + 1)
            if nb == 10 and c < 9:
                assert not xr, (c, xr)
                pre = [f"WAITVM W{c+1}" + (" SST" if c == SIG_AT else ""), "s_barrier"]
                if c >= 7:
                    pre = [f"WAITLG XR{c+1}"] + pre
                if c == SIG_AT:
                    assert not alu
                    mem.insert(0, f"buffer_atomic_add v{V_ONE}, v{V_SIG}, {sr(S_DBG)}, s{S_SIGS} offen")
                if c == 8:
                    mem += kv_tile("K", 0)
            if c == 9 and nb == 10:
                assert not alu and not any("@STL" in x for x in mem), alu
                alu += [f"s_lshl_b32 s5, s{S_W}, 7", f"s_add_u32 s5, s5, {LDS_CS}", "v_lshl_add_u32 v60, v28, 2, s5",
                        f"s_and_b32 s5, s{S_W}, 2", "s_lshl_b32 s5, s5, 6", f"s_add_u32 s5, s5, {LDS_CS+512}", "v_lshl_add_u32 v61, v28, 2, s5"]
                for k in range(4):
                    alu += [f"v_accvgpr_read_b32 v62, a{A_CS+4*k}", f"v_accvgpr_read_b32 v63, a{A_CS+4*k+1}",
                            f"v_add_f32 v{24+k}, v62, v63", f"ds_write_b32 v{60+k//2}, v{24+k} offset:{(k%2)*64}"]
            slot = 0
            if pre:
                fixed[0] = (pre, [])
                slot = 1
            extra = len(reads) - 4
            for i, x in enumerate(reads):
                k = slot + max(0, i - max(extra, 0))
                fixed.setdefault(k, ([], []))[0].append(x)
            nxt = (c, nb + 1) if nb < 11 else (c + 1, 0)
            mf = []
            for i, qb in enumerate(snake(nb)):
                for t in ((0, 1) if i % 2 == 0 else (1, 0)):
                    acc = vr(o_reg(nb, qb), 4) if nb < 8 else vr(V_P + ((nb - 8) * 4 + qb) * 4, 4)
                    first = c == 0 and len(mf) % 2 == 0
                    mf.append(mfma(acc, ar(A_WF + ((nb % 4) * 2 + t) * 4, 4), ar(A_XF + (c % 2) * 32 + (qb * 2 + t) * 4, 4), "0" if first else acc))
            if nb in CS_SITES:
                mf.append(smfmac(ar(A_CS + 4 * CS_SITES[nb], 4), ar(A_WF + (nb % 4) * 8, 8)))
            if nxt[0] < 10:
                fixed.setdefault(len(mf) - 1, ([], []))[1].append(f"WAITLG WR{nxt[0]}_{nxt[1]}")
            nvm = sum(x.startswith("buffer_") for x in mem)
            quota = min(-(-nvm // (12 - nb)), (nb + 1) * ramp // 12 - nb * ramp // 12)
            interleave(e, mf, fixed, [xr, mem, alu], quota=quota + any(x.startswith("buffer_") for x in alu[:12]))
        assert not mem or c in (0, 1, 2, 3, 4, 8), (c, mem)
        if OPT.get("p1st") and c < 9:
            stamp(e)
    drain(e, [mem, alu])
    stamp(e)
    e("s_waitcnt lgkmcnt(0)")
    e("s_barrier")


def proj_epilogue(e):
    CSR = 40
    e(f"s_lshl_b32 s5, s{S_W}, 7")
    e(f"s_add_u32 s5, s5, {LDS_CS}")
    e("v_lshl_add_u32 v60, v29, 4, s5")
    e(f"s_and_b32 s5, s{S_W}, 2")
    e("s_lshl_b32 s6, s5, 6")
    e(f"s_add_u32 s6, s6, {LDS_CS+512}")
    e("v_lshl_add_u32 v61, v29, 4, s6")
    e("s_lshl_b32 s5, s5, 9")
    e(f"v_xor_b32 v30, s5, v{V_L16}")
    e("v_xor_b32 v31, 1024, v30")

    def cs_read(g):
        out = []
        src = 60 if g < 4 else 61
        k = g if g < 4 else g - 4
        if k:
            out.append(f"v_xor_b32 v{src}, {128*(k^(k-1))}, v{src}")
        for u in range(2):
            out.append(f"ds_read_b128 {vr(CSR+u*4,4)}, v{src} offset:{u*64} ; @CS{g}")
        return out

    for x in cs_read(0):
        e(x)
    e("WAITVM STL")
    e(f"s_mov_b32 s6, {fbits(LOG2E * 128 ** -0.5)}")
    for qb in range(4):
        e(f"v_mul_f32 v{48+qb}, s6, v{V_ST+2*qb+1}")

    def center(g, regs):
        e(f"WAITLG CS{g}")
        for qb in range(4):
            for u in range(2):
                a = regs(u, qb)
                for p in range(2):
                    e(f"v_pk_fma_f32 {vr(a+2*p,2)}, {vr(CSR+u*4+2*p,2)}, {vr(V_ST+2*qb,2)}, {vr(a+2*p,2)} op_sel_hi:[1,0,1]")
        if g < 5:
            for x in cs_read(g + 1):
                e(x)

    for j in range(4):
        center(j, lambda u, qb: o_reg(2 * j + u, qb))
        for qb in range(4):
            sel = "op_sel_hi:[1,0]" if qb % 2 == 0 else "op_sel:[0,1] op_sel_hi:[1,1]"
            regs = [o_reg(2 * j + u, qb) + 2 * p for u in range(2) for p in range(2)]
            for a in regs:
                e(f"v_pk_mul_f32 {vr(a,2)}, {vr(a,2)}, {vr(48+(qb//2)*2,2)} {sel}")
            for a in regs:
                e(f"v_cvt_pk_bf16_f32 v{a}, v{a}, v{a+1}")
            for r, a in enumerate(regs):
                e(f"v_accvgpr_write_b32 a{A_Q+(qb*4+j)*4+r}, v{a}")
    e(f"s_mov_b32 s6, {fbits(-LOG2E)}")
    for qb in range(4):
        e(f"v_mul_f32 v{48+qb}, s6, v{V_ST+2*qb+1}")
        e(f"v_rcp_f32 v{V_ST+2*qb+1}, v{V_ST+2*qb+1}")
    for jj in range(2):
        hreg = lambda u, qb: V_P + ((2 * jj + u) * 4 + qb) * 4
        center(4 + jj, hreg)
        if jj == 0:
            e("WAITVM K0")
            e("s_barrier")
            for kb in range(4):
                for ks in range(4):
                    e(k_read(0, kb, ks) + f" ; @K0R{kb}")
        for qb in range(4):
            sel = "op_sel_hi:[1,0]" if qb % 2 == 0 else "op_sel:[0,1] op_sel_hi:[1,1]"
            for u in range(2):
                for p in range(2):
                    a = hreg(u, qb) + 2 * p
                    e(f"v_pk_mul_f32 {vr(a+64,2)}, {vr(a,2)}, {vr(48+(qb//2)*2,2)} {sel}")
    e("WAITLG K0R3")
    for i, m in enumerate(first_scores()):
        e.safe(m)
        e(f"v_exp_f32 v{V_O+i}, v{V_O+i}")
    e("s_mov_b32 s5, 4096")
    for jj in range(2):
        for qb in range(4):
            regs = [V_P + ((2 * jj + u) * 4 + qb) * 4 + 2 * p for u in range(2) for p in range(2)]
            d = CSR + (qb % 2) * 4
            for a in regs:
                e(f"v_pk_fma_f32 {vr(a+64,2)}, {vr(a+64,2)}, {vr(V_ST+2*qb,2)}, {vr(V_ST+2*qb,2)} op_sel:[0,1,1] op_sel_hi:[1,1,1]")
            for a in regs:
                e(f"v_rcp_f32 v{a+64}, v{a+64}")
                e(f"v_rcp_f32 v{a+65}, v{a+65}")
            for a in regs:
                e(f"v_pk_mul_f32 {vr(a,2)}, {vr(a,2)}, {vr(a+64,2)}")
            for p, a in enumerate(regs):
                e(f"v_cvt_pk_bf16_f32 v{d+p}, v{a}, v{a+1}")
            e(f"buffer_store_dwordx4 {vr(d,4)}, v{30+jj}, {sr(S_ACTH)}, {'s5' if qb >= 2 else '0'} offen offset:{(qb%2)*2048} sc1 ; @HST")


V_S0 = V_O + 64


def first_scores():
    out = []
    for kb in range(4):
        for n, qb in enumerate(snake(kb)):
            d = vr(V_S0 + (qb * 4 + kb) * 4, 4)
            for i, ks in enumerate(snake(n)):
                out.append(mfma(d, ar(A_KF + (kb * 4 + ks) * 4, 4), ar(A_Q + (qb * 4 + ks) * 4, 4), "0" if i == 0 else d))
    return out


V_MX, V_L8, V_XO, V_C256, V_TRD, V_X = 40, 45, 46, 47, 48, 2
V_L4K = V_RDMA
ACC = {"G": [128, 144, 160, 176, 192], "S": [64, 80, 96, 112, 208]}
TSTEPS = ["G"] * 7 + ["S"] * 16
TW_SLOT = [LDS_W1 + 8192, 0, 20480, 40960]
PK = 224


def tail_scalar_stream():
    t = Asm()
    tile_ids(t)
    t("s_lshl_b32 s5, s5, 2")
    t("s_add_u32 s5, s5, s6")
    t(f"s_lshl_b32 s{S_SIGP}, s5, 8")
    t(f"s_add_u32 s{S_SIGP}, s{S_SIGP}, {MISC_CNTP}")
    t(f"s_mul_i32 s5, s5, {PART_TILE}")
    t(f"s_mul_i32 s6, s{S_W}, {PART_WAVE}")
    t("s_add_u32 s5, s5, s6")
    t(f"s_add_u32 s5, s5, {WS_PART - WS_MISC}")
    srd(t, S_PART, S_WS, "s5", PART_TILE - 3 * PART_WAVE)
    t(f"s_mul_i32 s{S_M0W}, s{S_W}, 5120")
    for k in range(1, 4):
        t(f"s_xor_b32 s5, s4, {k}")
        t(f"s_mul_i32 s5, s5, {PART_DST}")
        t(f"s_add_u32 s{S_PS+k}, s5, {(k-1)*PART_SRC}")
    t(f"s_mul_i32 s{S_PS}, s4, {PART_DST}")
    t(f"s_add_u32 s{S_M0A}, s{S_PS}, {PART_SRC}")
    t(f"s_add_u32 s{S_KQ}, s{S_PS}, {2*PART_SRC}")
    return glued(t.lines)


def tail_vector_stream():
    t = Asm()
    t(f"s_lshr_b32 s5, s{S_W}, 1")
    t("s_lshl_b32 s5, s5, 2")
    t("s_bfe_u32 s4, s2, 0x20001")
    t("s_add_u32 s5, s5, s4")
    t("s_lshl_b32 s5, s5, 11")
    t(f"s_add_u32 s5, s5, {LDS_V}")
    t(f"v_add_u32 v{V_TRD}, s5, v{V_L16}")
    for k in range(1, 4):
        t(f"v_xor_b32 v{V_TRD+k}, {2048*k}, v{V_TRD}")
    t(f"s_and_b32 s5, s{S_W}, 1")
    t("s_mul_i32 s5, s5, 10240")
    t(f"v_add_u32 v{V_TRD+4}, s5, v{V_L16}")
    t(f"v_add_u32 v{V_TRD+5}, {TW_SLOT[0]}, v{V_TRD+4}")
    return t.lines


def tail_vector_late():
    t = Asm()
    t(f"v_and_b32 v12, 255, v{V_L16}")
    t("v_mul_u32_u24 v12, 80, v12")
    t(f"v_lshrrev_b32 v13, 8, v{V_L16}")
    t(f"v_lshl_add_u32 v{V_XO}, v13, 3, v12")
    t(f"v_lshrrev_b32 v{V_L8}, 1, v{V_L16}")
    t(f"v_add_u32 v14, 8192, v{V_L16}")
    t(f"v_add_u32 v15, 8192, v{V_L8}")
    t(f"v_mov_b32 v{V_C256}, 0x100")
    t(f"v_and_b32 v12, 255, v{V_L16}")
    t("v_mul_u32_u24 v12, 11, v12")
    t("v_lshl_add_u32 v12, v13, 3, v12")
    t(f"v_add_u32 v24, s{S_M0K}, v12")
    t(f"v_lshrrev_b32 v18, 4, v{V_L16}")
    for n in range(3):
        if n:
            t("v_add_u32 v18, 64, v18")
        t("v_mul_u32_u24 v12, 6554, v18")
        t("v_lshrrev_b32 v12, 16, v12")
        t("v_lshlrev_b32 v13, 4, v18")
        t(f"v_lshl_add_u32 v{25+n}, v12, 4, v13")
        t(f"v_add_u32 v{25+n}, s{S_M0K}, v{25+n}")
        t("v_mul_u32_u24 v19, 1120, v12")
        t(f"v_add_u32 v{28+n}, v19, v13")
    t("v_lshrrev_b32 v12, 4, v12")
    t("v_lshl_add_u32 v30, v12, 24, v30")
    t("s_bfe_u32 s4, s2, 0x20001")
    t(f"v_lshrrev_b32 v12, 4, v{V_L16}")
    t("v_lshlrev_b32 v17, v12, 1".replace("v12, 1", f"v12, v{V_ONE}"))
    t("v_add_u32 v13, 1, v12")
    t("v_xor_b32 v16, s4, v13")
    t("v_lshl_add_u32 v16, v16, 2, 4")
    t("v_lshrrev_b32 v13, 2, v13")
    t(f"v_add_u32 v13, s{S_W}, v13")
    t("v_lshl_add_u32 v16, v13, 24, v16")
    t("s_lshl_b32 s4, s4, 2")
    t(f"s_add_u32 s{S_SIGS}, s4, s{S_SIGP}")
    t(f"s_add_u32 s{S_SIGS}, s{S_SIGS}, 4")
    t("v_mov_b32 v12, 0x3f80")
    t("v_mov_b32 v13, 0x3f800000")
    return t.lines


def tail_dma(s, part="WA"):
    g = TSTEPS[s] == "G"
    sa, sw = (S_GA, S_GW) if g else (S_SA, S_SW)
    step = 1 if g else (2 if s != 14 else -13)
    op = "s_add_u32" if step > 0 else "s_sub_u32"
    out = []
    if "W" in part:
        base = TW_SLOT[s % 4]
        out += [f"s_add_u32 m0, s{S_M0W}, {base}"]
        out += [f"buffer_load_dwordx4 v{V_L16}, {sr(S_TW)}, s{sw} offen offset:{f*1024} sc1 lds ; @T{s}" for f in range(4)]
        out += [f"s_add_u32 m0, s{S_M0W}, {base+4096}", f"buffer_load_dwordx4 v{V_L4K}, {sr(S_TW)}, s{sw} offen sc1 lds ; @T{s}",
                f"{op} s{sw}, s{sw}, {abs(step)*WP_PAIR}"]
    if "A" in part:
        out += [f"s_mov_b32 m0, s{S_M0V + s % 4}"]
        out += [f"buffer_load_dwordx4 v{V_L16}, {sr(S_TA)}, s{sa} offen offset:{f*1024} sc1 lds ; @T{s}" for f in range(4)]
        out += [f"{op} s{sa}, s{sa}, {abs(step)*8192}"]
    return out


def tbuf(s):
    return ((s + 1) % 2) * 72


def tail_reads(s):
    b = tbuf(s)
    wr, wo = (V_TRD + 5, 0) if s % 4 == 0 else (V_TRD + 4, TW_SLOT[s % 4])
    wl = [f"ds_read_b128 {ar(b+32+f*4,4)}, v{wr} offset:{wo+f*1024} ; @TR{s}" for f in range(10)]
    al = [f"ds_read_b128 {ar(b+f*4,4)}, v{V_TRD+f//2} offset:{(s%4)*16384+(f%2)*1024} ; @TR{s}" for f in range(8)]
    return wl[:2] + al + wl[2:]


def merge(a, b):
    pos = [i for i, x in enumerate(a) if x.startswith("buffer_")]
    out = list(a)
    for k in range(len(b) - 1, -1, -1):
        out.insert(pos[k * len(pos) // len(b)] + 1 if pos else 0, b[k])
    return out


def tail(e, ost):
    rsoff = [S_PS, S_M0A, S_KQ]

    def xfer(op, kind, base, soff, tag):
        v16, v8 = (V_L16, V_L8) if kind == "S" else (14, 15)
        return [f"buffer_{op}_dwordx4 {vr(base,4)}, v{v16}, {sr(S_PART)}, s{soff} offen sc1 ; @{tag}",
                f"buffer_{op}_dwordx4 {vr(base+4,4)}, v{v16}, {sr(S_PART)}, s{soff} offen offset:1024 sc1 ; @{tag}",
                f"buffer_{op}_dwordx2 {vr(base+8,2)}, v{v8}, {sr(S_PART)}, s{soff} offen offset:2048 sc1 ; @{tag}"]

    def pack(kind, k):
        out = [f"v_cvt_pk_bf16_f32 v{PK+(k-1)*10+2*nb+p}, v{ACC[kind][nb]+4*k+2*p}, v{ACC[kind][nb]+4*k+2*p+1}"
               for nb in range(5) for p in range(2)]
        return out

    def send(kind, k):
        return xfer("store", kind, PK + (k - 1) * 10, S_PS + k, "SEND" + kind)

    RCV = {"G": [ACC["G"][k] + 4 for k in range(3)], "S": [ACC["S"][k] + 4 for k in range(3)]}

    def recv1(kind, k):
        return xfer("load", kind, RCV[kind][k], rsoff[k], f"R{kind}{k}")

    def recv(kind):
        return [x for k in range(3) for x in recv1(kind, k)]

    def accumulate(kind):
        for k in range(3):
            if kind == "G":
                e(f"WAITVM R{kind}{k}")
            elif k == 0:
                e("s_waitcnt vmcnt(0)")
            b = RCV[kind][k]
            for nb in range(5):
                for r in range(4):
                    a = ACC[kind][nb] + r
                    e.safe(f"v_dot2_f32_bf16 v{a}, v{b+2*nb+r//2}, v{12+r%2}, v{a}")

    def atomic(val, soff):
        return f"buffer_atomic_add v{val}, v{V_SIG}, {sr(S_WS)}, s{soff} offen"

    poll_o = f"buffer_load_dword v{V_PVAL}, off, {sr(S_WS)}, s{S_POLLO} sc1"
    poll_p = f"buffer_load_dword v{V_PVAL}, off, {sr(S_WS)}, s{S_SIGP} sc1"
    poll_q = f"buffer_load_dword v{V_PVAL}, off, {sr(S_WS)}, s{S_SIGS} sc1"
    low = f"v_and_b32 v{V_PVAL}, 0xff, v{V_PVAL}"
    n = len(TSTEPS)
    SIGA, CHKA, SIGB, CHKB = OPT.get("siga", 1), OPT.get("chka", 3), OPT.get("sigb", 5), 11
    GSIG, GCHK = OPT.get("gsig", 14), OPT.get("gchk", 19)
    opace = OPT.get("opace", 2)
    gsend = [x for k in range(1, 4) for x in send("G", k)]
    xres = [f"buffer_load_dwordx2 {vr(V_X+2*nb,2)}, v{V_XO}, {sr(S_X)}, s{S_XO} offen offset:{nb*32}" for nb in range(5)]
    late = recv("G")
    alu = tail_vector_late()
    for s in range(n):
        b = tbuf(s)
        e(f"WAITLG TR{s}")
        if s + 1 < n:
            e(f"WAITVM T{s+1}" + {SIGA: " OST0", SIGB: " OST1", CHKA: " POA", CHKB: " POB", GSIG: " SENDG", GCHK: " PG"}.get(s, ""))
            e("s_barrier")
        if OPT.get("tst") and s != CHKA and s not in (9, 13, 15):
            stamp(e)
        head, side = [], []
        assert s != 6 or not alu
        assert s != 7 or not ost
        if s == SIGA:
            head.append(atomic(V_ONE, S_SIGO))
        if s == SIGB:
            head.append(atomic(V_C256, S_SIGO))
        if s == GSIG:
            head.append(atomic(V_ONE, S_SIGP))
        if s == CHKA - 1:
            head.append(poll_o + " ; @POA")
        if s == CHKB - 2:
            head.append(poll_o + " ; @POB")
        if s == GCHK - OPT.get("gpoll", 2):
            head.append(poll_p + " ; @PG")
        if s == CHKA:
            stamp(e)
            for x in poll_check("M_poa", poll_o, [low, f"v_cmp_gt_u32 vcc, 8, v{V_PVAL}"]):
                e(x)
            stamp(e)
        if s == CHKB:
            for x in poll_check("M_pob", poll_o, [f"v_cmp_gt_u32 vcc, 0x800, v{V_PVAL}"]):
                e(x)
        if s == GCHK:
            for x in poll_check("M_pg", poll_p, [f"v_cmp_gt_u32 vcc, 4, v{V_PVAL}"]):
                e(x)
        mem = tail_dma(3, "A") if s == 0 else []
        if s == CHKA:
            for x in range(7, s + 4):
                mem += tail_dma(x, "A")
        if s + 4 < n:
            mem += tail_dma(s + 4, "W" if 7 <= s + 4 < CHKA + 4 else "WA")
        if ost:
            side, ost = ost[:opace], ost[opace:]
        if s == 7:
            alu += pack("G", 1) + pack("G", 2) + pack("G", 3)
        if s >= 8 and gsend:
            assert not alu
            k = OPT.get("gpace", 2)
            side, gsend = gsend[:k], gsend[k:]
        if s == OPT.get("xat", 19):
            side += xres
        if s >= GCHK:
            k = -(-len(late) // (n - 1 - s)) if s < n - 1 else 0
            side, late = side + late[:k], late[k:]
        mem = head + merge(mem, side)
        ds = tail_reads(s + 1) if s + 1 < n else []
        first = s in (0, 7)
        acc_of = ACC[TSTEPS[s]]

        def chain(nb, rb, flip):
            acc = vr(acc_of[nb] + rb * 4, 4)
            return [mfma(acc, ar(b + 32 + (nb * 2 + t) * 4, 4), ar(b + (rb * 2 + t) * 4, 4), "0" if first and i == 0 else acc)
                    for i, t in enumerate((1, 0) if flip else (0, 1))]

        if s + 1 < n:
            mf = [m for nb in range(5) for i, rb in enumerate(snake(nb)) for m in chain(nb, rb, i % 2)]
            fixed = {(i // 3) * 4 + (0, 2, 3)[i % 3]: ([x], []) for i, x in enumerate(ds)}
            nvm = sum(x.startswith("buffer_") for x in mem)
            if nvm > 10:
                fixed = {2 * i: ([x], []) for i, x in enumerate(ds)}
            interleave(e, mf, fixed, [mem, alu], space=4 if nvm <= 10 else 2)
            drain(e, [mem])
        else:
            for rb in (1, 2, 3, 0):
                interleave(e, [m for nb in range(5) for m in chain(nb, rb, nb % 2)], {}, [mem])
                if rb:
                    mem += pack("S", rb) + send("S", rb)
            drain(e, [mem])
            e(poll_q)
    assert not gsend
    stamp(e)
    e(f"s_mov_b32 s6, {fbits(-LOG2E)}")
    e("s_mov_b32 s7, s6")

    def gate():
        accumulate("G")
        for nb in range(5):
            g = ACC["G"][nb]
            t = g + 4
            for p in range(2):
                e.safe(f"v_pk_mul_f32 {vr(t+2*p,2)}, {vr(g+2*p,2)}, s[6:7]")
            for r in range(4):
                e(f"v_exp_f32 v{t+r}, v{t+r}")
            for p in range(2):
                e(f"v_lshlrev_b32 v{t+4+2*p}, 16, v{V_X+2*nb+p}")
                e(f"v_and_b32 v{t+5+2*p}, 0xffff0000, v{V_X+2*nb+p}")
            for p in range(2):
                e(f"v_pk_add_f32 {vr(t+2*p,2)}, {vr(t+2*p,2)}, 1.0 op_sel_hi:[1,0]")
            for r in range(4):
                e(f"v_rcp_f32 v{t+r}, v{t+r}")
            for p in range(2):
                e.safe(f"v_pk_mul_f32 {vr(t+2*p,2)}, {vr(t+2*p,2)}, {vr(g+2*p,2)}")

    gate()
    e("s_waitcnt vmcnt(0)")
    e("s_barrier")
    e(f"buffer_atomic_add v17, v16, {sr(S_WS)}, s{S_SIGP} offen")
    e("s_mov_b32 s4, 0")
    e("s_mov_b32 s3, 0x100000")
    e("M_gather:")
    e(f"v_readfirstlane_b32 s5, v{V_PVAL}")
    e("s_andn2_b32 s5, s5, s4")
    for k in range(3):
        e(f"s_bitcmp0_b32 s5, {k}")
        e(f"s_cbranch_scc1 M_skip{k}")
        for x in recv1("S", k):
            e(x)
        e(f"M_skip{k}:")
    e("s_or_b32 s4, s4, s5")
    e("s_cmp_eq_u32 s4, 7")
    e("s_cbranch_scc1 M_gathered")
    e(poll_q)
    e("s_sub_u32 s3, s3, 1")
    e("s_cmp_lg_u32 s3, 0")
    e("s_waitcnt vmcnt(0)")
    e("s_cbranch_scc1 M_gather")
    e("M_gathered:")
    stamp(e)
    accumulate("S")
    for nb in range(5):
        s = ACC["S"][nb]
        t = ACC["G"][nb] + 4
        for p in range(2):
            e.safe(f"v_pk_fma_f32 {vr(t+2*p,2)}, {vr(t+2*p,2)}, {vr(s+2*p,2)}, {vr(t+4+2*p,2)}")
        for p in range(2):
            e(f"v_cvt_pk_bf16_f32 v{t+4+p}, v{t+2*p}, v{t+2*p+1}")
        if OPT.get("olds", 1):
            e(f"ds_write_b64 v24, {vr(t+4,2)} offset:{nb*32}")
        else:
            e(f"buffer_store_dwordx2 {vr(t+4,2)}, v{V_XO}, {sr(S_OUT)}, s{S_XO} offen offset:{nb*32}")
    if OPT.get("olds", 1):
        for n in range(3):
            e(f"ds_read_b128 {vr(PK+4*n,4)}, v{25+n} ; @OUT{n}")
        for n in range(3):
            e(f"WAITLG OUT{n}")
            e(f"buffer_store_dwordx4 {vr(PK+4*n,4)}, v{28+n}, {sr(S_OUT)}, s{S_XO} offen{['', ' sc1', ' nt'][OPT.get('outf', 0)]}")


def attention(e):
    m = V_M
    for i in range(8):
        for qb in range(4):
            b = V_S0 + qb * 16
            if i == 0:
                e(f"v_max_f32 v{m+qb}, v{b}, v{b+1}")
            else:
                e(f"v_max3_f32 v{m+qb}, v{m+qb}, v{b+2*i}, v{b+2*i+1}")
    e(f"s_mov_b32 s6, {fbits(-float(OPT.get('bias', 102)))}")
    e("WAITVM K1")
    e("M_restart:")
    e("s_barrier")
    for n in range(LK):
        e(k_read(1, n // 4, n % 4))
    for n in range(LV):
        for v in range(2):
            e(v_read(0, n // 2, n % 2, v))
    e(f"s_mov_b32 m0, s{S_M0K+3}")
    e(f"s_mov_b32 s{S_OFF}, {3*16384}")
    for n in range(2 + OPT.get("sh", 0)):
        e(k_dma(n))
    row_max_finish(e)
    e(f"s_mov_b32 s{S_CNT}, 8")
    if OPT.get("rmask", 160):
        e(f"s_andn2_b32 s7, {OPT.get('rmask', 160)}, s{S_RETRY}")
    for qb in range(4):
        b = V_S0 + qb * 16
        for p in range(8):
            e(f"v_pk_add_f32 {vr(b+2*p,2)}, {vr(b+2*p,2)}, {vr(V_NM+qb*4,2)}")
        for r in range(16):
            e(f"v_exp_f32 v{b+r}, v{b+r}")
        for p in range(8):
            e(f"v_cvt_pk_bf16_f32 v{V_P+qb*8+p}, v{b+2*p}, v{b+2*p+1}")
    e("s_waitcnt lgkmcnt(0)")
    stamp(e)
    attn_step(e, 0, first=True)
    if OPT.get("ast"):
        stamp(e)
    e(".p2align 6")
    e("M_loop:")
    ra = OPT.get("rpos", 1)
    for j in (1, 2, 3, 0):
        attn_step(e, j)
        if OPT.get("rmask", 160) and j in (ra, (ra + 1) % 4):
            name = "M_shift" if j == ra else "M_rescale"
            e(f"s_cbranch_scc1 {name}")
            e(f"{name}_back:")
    e("s_cbranch_scc1 M_loop")
    if OPT.get("ast"):
        stamp(e)
    for x in poll_check("M_pa", POLL_A, [f"v_cmp_gt_u32 vcc, 32, v{V_PVAL}"]):
        e(x)
    mem = kv_tile("V", 31) + [f"v_add_u32 v{V_L4K}, 4096, v{V_L16}"] + tail_dma(0, "W")
    attn_step(e, 29, late=(mem, {10: (["s_waitcnt vmcnt(9)"], tail_dma(0, "A") + tail_dma(1, "W"))}))
    attn_step(e, 30, late=(mem, {10: (["WAITVM V31"], tail_dma(1, "A") + tail_dma(2, "W")),
                                 14: ([], tail_dma(2, "A") + tail_dma(3, "W"))}))
    if OPT.get("ast"):
        stamp(e)
    T = 24
    alu, rng, ost = [], [], []
    e("s_mov_b32 s6, 8192")

    def normalise(jp, every):
        for qb in range(4):
            for t in range(2):
                j = 2 * jp + t
                d = V_P + ((jp * 4 + qb) * 2 + t) * 4
                for u in range(2):
                    a = o_reg(2 * j + u, qb)
                    e.safe(f"v_pk_mul_f32 {vr(a,2)}, {vr(a,2)}, {vr(T+2*qb,2)} op_sel_hi:[1,0]")
                    e.safe(f"v_pk_mul_f32 {vr(a+2,2)}, {vr(a+2,2)}, {vr(T+2*qb,2)} op_sel_hi:[1,0]")
                for u in range(2):
                    a = o_reg(2 * j + u, qb)
                    e(f"v_cvt_pk_bf16_f32 v{d+2*u}, v{a}, v{a+1}")
                    e(f"v_cvt_pk_bf16_f32 v{d+2*u+1}, v{a+2}, v{a+3}")
                ost.append(f"buffer_store_dwordx4 {vr(d,4)}, v{V_L16 if qb < 2 else V_L4K}, {sr(S_ACT)}, {'s6' if jp else '0'} offen offset:{(qb%2)*2048+t*1024} sc1 ; @OST{jp}")
                if (qb * 2 + t) % every == 0:
                    e(ost.pop(0))

    mid = OPT.get("mid", 9)

    def extra(u):
        if u == 2:
            alu.extend(tail_vector_stream())
        if u == 6:
            for qb in range(4):
                alu.extend([f"v_accvgpr_read_b32 v{T+2*qb}, a{A_L+qb*4}", f"v_accvgpr_read_b32 v{T+2*qb+1}, a{A_L+qb*4+1}"])
            for qb in range(4):
                alu.append(f"v_add_f32 v{T+2*qb+1}, v{T+2*qb}, v{T+2*qb+1}")
            for qb in range(4):
                alu.append(f"v_rcp_f32 v{T+2*qb}, v{T+2*qb+1}")
        if u == mid:
            drain(e, [mem, alu, rng])
            normalise(0, OPT.get("oe0", 5))
        if u > mid and (u - mid) % OPT.get("oe1", 2) == 0:
            mem.append(ost.pop(0))
        if u >= 1:
            magnitude(u - 1)
        return [mem, alu, rng]

    def magnitude(u):
        for qb in ((u % 2) * 2, (u % 2) * 2 + 1):
            a = o_reg(u // 2, qb)
            third = f"v{V_MX+qb}" if u >= 2 else f"|v{a+1}|"
            rng.append(f"v_maximum3_f32 v{V_MX+qb}, |v{a}|, |v{a+1}|, {third}")
            rng.append(f"v_maximum3_f32 v{V_MX+qb}, |v{a+2}|, |v{a+3}|, v{V_MX+qb}")

    attn_step(e, 31, qk=False, extra=extra)
    magnitude(15)
    drain(e, [mem, alu, rng])
    stamp(e)

    e(f"v_maximum3_f32 v58, v{V_MX}, v{V_MX+1}, v{V_MX+2}")
    e(f"v_minimum3_f32 v59, v{V_MX}, v{V_MX+1}, v{V_MX+2}")
    e(f"v_maximum3_f32 v58, v58, v{V_MX+3}, v{T+1}")
    e(f"v_minimum3_f32 v59, v59, v{V_MX+3}, v{V_MX+3}")
    e(f"v_maximum3_f32 v58, v58, v{T+3}, v{T+5}")
    e(f"v_cmp_nle_f32 vcc, {fbits(O_LOW)}, v59")
    e(f"v_maximum3_f32 v58, v58, v{T+7}, v{T+7}")
    e("s_mov_b64 s[4:5], vcc")
    e(f"v_cmp_nge_f32 vcc, {fbits(L_LIMIT)}, v58")
    e(f"s_lshl_b32 s7, s{S_W}, 2")
    e(f"s_add_u32 s7, s7, {LDS_FLAG}")
    e("s_or_b64 s[4:5], s[4:5], vcc")
    e("s_or_b32 s4, s4, s5")
    e("v_mov_b32 v59, s7")
    e("v_mov_b32 v58, s4")
    e("ds_write_b32 v59, v58")
    e(f"v_mov_b32 v59, {LDS_FLAG}")
    if mid > 15:
        normalise(0, OPT.get("oe0", 5))
    e("s_waitcnt lgkmcnt(0)")
    e("WAITVM T0")
    e("s_barrier")
    e("ds_read_b128 v[60:63], v59 ; @FLG")
    for x in tail_reads(0):
        e(x)
    normalise(1, OPT.get("oe2", 3))
    e("WAITLG FLG")
    e("v_or_b32 v60, v60, v61")
    e("v_or3_b32 v60, v60, v62, v63")
    e.safe("v_readfirstlane_b32 s4, v60")
    e(f"s_andn2_b32 s4, s4, s{S_RETRY}")
    e("s_cbranch_scc1 M_fallback")
    return ost


def recentre(e):
    t, A_F = SBUF[0], A_RP + 8
    e("M_shift:")
    e("s_nop 1")
    for qb in range(4):
        e(f"v_accvgpr_read_b32 v{t+qb}, a{A_L+qb*4}")
        e(f"v_accvgpr_read_b32 v{t+4+qb}, a{A_L+qb*4+1}")
    steps = ["v_add_f32 v{a}, v{a}, v{b}", "v_frexp_exp_i32_f32 v{a}, v{a}", f"v_sub_u32 v{{a}}, {1 - OPT.get('bias', 102)}, v{{a}}",
             "v_min_i32 v{a}, 0, v{a}", "v_max_i32 v{a}, -126, v{a}", "v_ldexp_f32 v{b}, 1.0, v{a}", "v_cvt_f32_i32 v{a}, v{a}",
             "v_accvgpr_write_b32 a{f}, v{b}"]
    for x in steps:
        for qb in range(4):
            e(x.format(a=t + qb, b=t + 4 + qb, f=A_F + qb))
    for qb in range(4):
        sel = "op_sel_hi:[1,0]" if qb % 2 == 0 else "op_sel:[0,1] op_sel_hi:[1,1]"
        for p in range(2):
            e(f"v_pk_add_f32 {vr(V_NM+qb*4+2*p,2)}, {vr(V_NM+qb*4+2*p,2)}, {vr(t+(qb//2)*2,2)} {sel}")
    e("s_nop 0")
    e("s_branch M_shift_back")
    e("M_rescale:")
    for qb in range(4):
        e(f"v_accvgpr_read_b32 v{t+qb}, a{A_F+qb}")
    for q0 in (0, 2):
        for i in range(4):
            e(f"v_accvgpr_read_b32 v{t+4+i}, a{A_L+(q0+i//2)*4+i%2}")
        for i in range(4):
            e(f"v_mul_f32 v{t+4+i}, v{t+4+i}, v{t+q0+i//2}")
        for i in range(4):
            e(f"v_accvgpr_write_b32 a{A_L+(q0+i//2)*4+i%2}, v{t+4+i}")
    for db in range(8):
        for qb in range(4):
            sel = "op_sel_hi:[1,0]" if qb % 2 == 0 else "op_sel:[0,1] op_sel_hi:[1,1]"
            for p in range(2):
                a = o_reg(db, qb) + 2 * p
                e(f"v_pk_mul_f32 {vr(a,2)}, {vr(a,2)}, {vr(t+(qb//2)*2,2)} {sel}")
    e("s_branch M_rescale_back")


def fallback(e):
    m = V_M
    e("M_fallback:")
    e(f"s_mov_b32 s{S_RETRY}, -1")
    e(f"s_mov_b32 s{S_SIGA}, {OOB}")
    e(f"s_sub_u32 s{S_GA}, s{S_GA}, {3*8192}")
    e(f"s_sub_u32 s{S_GW}, s{S_GW}, {4*WP_PAIR}")
    for qb in range(4):
        e(f"v_mov_b32 v{m+qb}, 0xff800000")
    e(f"s_mov_b32 s{S_OFF}, 0")
    e("M_maxloop:")
    e("s_waitcnt vmcnt(0) lgkmcnt(0)")
    e("s_barrier")
    e(f"s_mov_b32 m0, s{S_M0K}")
    e("s_nop 0")
    for n in range(4):
        e(k_dma(n))
    e("s_waitcnt vmcnt(0)")
    e("s_barrier")
    for kb in range(4):
        for ks in range(4):
            e(k_read(0, kb, ks))
        e("s_waitcnt lgkmcnt(0)")
        for qb in range(4):
            d = vr(V_P + qb * 4, 4)
            for ks in range(4):
                e(mfma(d, ar(A_KF + (kb * 4 + ks) * 4, 4), ar(A_Q + (qb * 4 + ks) * 4, 4), "0" if ks == 0 else d))
        e("s_nop 7")
        for qb in range(4):
            b = V_P + qb * 4
            e(f"v_max3_f32 v{m+qb}, v{m+qb}, v{b}, v{b+1}")
            e(f"v_max3_f32 v{m+qb}, v{m+qb}, v{b+2}, v{b+3}")
    e(f"s_add_u32 s{S_OFF}, s{S_OFF}, 16384")
    e(f"s_cmp_lt_u32 s{S_OFF}, 524288")
    e("s_cbranch_scc1 M_maxloop")
    e("s_barrier")
    for w, t in (("K", 0), ("K", 1), ("K", 2), ("V", 0), ("V", 1)):
        for x in kv_tile(w, t):
            e(x)
    e("s_waitcnt vmcnt(0)")
    e("s_barrier")
    for kb in range(4):
        for ks in range(4):
            e(k_read(0, kb, ks))
    e("s_waitcnt lgkmcnt(0)")
    for x in first_scores():
        e(x)
    for r in range(16):
        e(f"v_accvgpr_write_b32 a{A_L+r}, 0")
    e("s_mov_b32 s6, 0")
    e("s_branch M_restart")


HEADER = """
; One persistent launch, 256 workgroups x 4 waves, one workgroup per CU; workgroup = (head, 256 query rows).
;  1. Projection: [Q_head | 64 columns of FFN1] = x @ [wq | w1] on raw x. LayerNorm is applied to the accumulators,
;     (acc - mean * colsum(W)) / std; row statistics are computed once (8 rows per workgroup) and handed over in d_ws.
;     accumulators came near the underflow limit, the workgroup computes the true maximum over all keys and redoes
; Hand-offs: write-through stores, vmcnt wait, barrier, atomic counter; consumers poll, then use sc1 loads.
"""


def build():
    e = Asm()
    for l in open(f"cdna_kernels/{NAME}.s.ref").read().split("\n"):
        if not l.startswith(";"):
            break
        if "@launch" not in l:
            e(l)
    e("; @launch grid=(256,1,1) block=(256,1,1) lds=163840")
    e(HEADER)
    e('.amdgcn_target "amdgcn-amd-amdhsa--gfx950"')
    e(".text")
    e(f".globl {KERNEL}")
    e(".p2align 8")
    e(f".type {KERNEL},@function")
    e(f"{KERNEL}:")
    e("; ---- setup and first loads")
    carry = setup(e)
    phase1(e, carry)
    proj_epilogue(e)
    stamp(e)
    e("; ---- attention")
    ost = attention(e)
    stamp(e)
    tail(e, ost)
    stamp_flush(e)
    e("M_exit:")
    e("s_endpgm")
    emit_spins(e)
    if OPT.get("rmask", 160):
        recentre(e)
    e("M_hot_end:")
    e("; ---- exact row maximum over all keys, then repeat the attention pass")
    fallback(e)
    e('.section .rodata,"a"')
    e(".p2align 6")
    e(f".amdhsa_kernel {KERNEL}")
    for d in ("next_free_vgpr 512", "next_free_sgpr 102", "accum_offset 256", "group_segment_fixed_size 0", "kernarg_size 88",
              "user_sgpr_count 2", "user_sgpr_kernarg_segment_ptr 1", "system_sgpr_workgroup_id_x 1"):
        e(f".amdhsa_{d}")
    e(".end_amdhsa_kernel")
    e.resolve()
    if OPT.get("jitter"):
        import random
        rnd = random.Random(OPT["jitter"])
        out, n = [], 0
        for l in e.lines:
            site = l.startswith(("s_barrier", "buffer_atomic")) or (l.startswith("buffer_store") and rnd.random() < 0.2)
            if site and rnd.random() < 0.7:
                n += 1
                pre = ["s_cselect_b32 s99, 1, 0", f"s_mul_i32 s98, s2, {rnd.randrange(3, 1000, 2)}", f"s_add_u32 s98, s98, s{S_W}",
                       f"s_mul_i32 s98, s98, {rnd.randrange(3, 1000, 2)}", f"s_bitcmp1_b32 s98, {rnd.randrange(0, 4)}",
                       f"s_cbranch_scc0 J{n}", f"s_sleep {rnd.choice([1, 3, 10, 30, 60])}", f"J{n}:", "s_cmp_lg_u32 s99, 0"]
                out += pre + [l] if rnd.random() < 0.5 else [l] + pre
            else:
                out.append(l)
        e.lines = out
    errs = []
    errs += check_trace(e.trace(KERNEL, {"M_loop": [True, True, False], "M_gathered": [True], "M_shift": [False, True], "M_rescale": [False, True]}), "fast")
    errs += check_trace(e.trace(KERNEL, {"M_loop": [True, False, True, False], "M_fallback": [True, False], "M_maxloop": [True, False],
                                         "M_ps_spin": [True], "M_pa_spin": [True, True], "M_poa_spin": [True], "M_pob_spin": [True], "M_poa_back": [True], "M_pob_back": [True], "M_skip0": [True, False], "M_skip1": [False, True], "M_skip2": [False, True], "M_gather": [True], "M_gathered": [False, True], "M_pg_spin": [True], "M_pg_back": [True],
                                         "M_ps_back": [True], "M_pa_back": [True, True]}), "slow")
    return e.text(), errs


if __name__ == "__main__":
    if "--stamps" in sys.argv:
        sys.argv.remove("--stamps")
        STAMPS = True
    for a in [x for x in sys.argv if "=" in x]:
        sys.argv.remove(a)
        k, v = a.split("=")
        OPT[k] = int(v)
    text, errs = build()
    for x in errs[:6]:
        print(x)
    out = sys.argv[1] if len(sys.argv) > 1 else f"cdna_kernels/{NAME}.s"
    open(out, "w").write(text)
    print("wrote", out, len(text), "bytes;", len(errs), "check findings; stamps", nstamp[0])
```

```python
import sys, struct
from asm import Asm, check_trace

NAME = "recurrent_scan__gqa_block_cached__dense_activation_silu__prompt"
KERNEL = NAME + "_kernel"
WS_MISC = 0
MISC_CNTA, MISC_CNTO, MISC_CNTP, MISC_SIZE = 16384, 20480, 28672, 45056
WS_ACT = 4 << 20
WS_WP = 32 << 20
WS_STAMP = 64 << 20
WS_PART = 96 << 20
PART_SRC, PART_WAVE, PART_DST, PART_TILE = 2560, 16384, 65536, 262144
NPAIR = 91
ACT_RG = NPAIR * 8192
WP_PAIR = 81920
SRD3 = "0x00020000"
OOB = 0x1000000
LOG2E = 1.4426950408889634
L_LIMIT = 2.0 ** 120
O_LOW = 2.0 ** -110
STAMPS = False
OPT = {}

S_X, S_WQ, S_W1, S_K, S_V, S_ACT, S_ACTH, S_DBG, S_WS, S_R0, S_R1, S_WP, S_TA, S_TW, S_OUT = range(8, 68, 4)
S_M0K, S_M0V = 68, 72
S_W, S_HEAD, S_QT, S_W4K, S_OFF, S_CNT, S_RETRY = range(76, 83)
S_RSRC, S_RSRC2, S_RDST, S_M0R = 83, 84, 85, 86
S_GA, S_GW, S_SA, S_SW, S_XO = range(87, 92)
S_SIGS, S_SIGA, S_SIGO, S_POLLO = 92, 93, 94, 95
S_W2K, S_W8K = 100, 101
P_IN = 52
S_PART, S_KQ, S_SIGP, S_M0A, S_M0W, S_PS = 48, 12, 13, 14, 15, 16
V_L16 = 1
V_KRD, V_VRD, V_KDMA, V_VDMA = 2, 6, 14, 18
V_STAMP, V_IDX, V_ONES, V_NM, V_P, V_O = 34, 35, 36, 40, 64, 128
SBUF = [56, 60, 24, 28]
V_POFF, V_PVAL, V_ONE, V_SIG = 20, 21, 32, 33
V_XDMA, V_XRD = 20, 24
V_RDMA, V_RRD = 22, 23
V_WQRD, V_W1RD, V_WQDMA, V_W1DMA, V_ST = 40, 48, 52, 56, 52
A_Q, A_KF, A_VF, A_L = 0, 64, 128, 160
A_XF, A_WF, A_CS, A_RP = 64, 128, 192, 176
LDS_K, LDS_V, LDS_W1 = 0, 65536, 131072
LDS_CS = LDS_W1 + 3 * 8192
LDS_FLAG = 163840 - 16
WQ_SLOT = [LDS_V + 3 * 16384, LDS_V + 2 * 16384, LDS_K + 2 * 16384, LDS_K + 3 * 16384]
X_SLOT = [LDS_V, LDS_K]
LK = LV = 5


def fbits(x):
    return "0x%08x" % struct.unpack("<I", struct.pack("<f", x))[0]


def vr(b, n=1):
    return f"v{b}" if n == 1 else f"v[{b}:{b+n-1}]"


def ar(b, n=1):
    return f"a{b}" if n == 1 else f"a[{b}:{b+n-1}]"


def sr(b, n=4):
    return f"s[{b}:{b+n-1}]"


def srd(e, d, src, off, size):
    if off is not None:
        e(f"s_add_u32 s{d}, s{src}, {off}")
        e(f"s_addc_u32 s{d+1}, s{src+1}, 0")
    elif src != d:
        e(f"s_mov_b32 s{d}, s{src}")
        e(f"s_mov_b32 s{d+1}, s{src+1}")
    e(f"s_mov_b32 s{d+2}, {size}")
    e(f"s_mov_b32 s{d+3}, {SRD3}")


def mfma(d, a, b, c):
    return f"v_mfma_f32_16x16x32_bf16 {d}, {a}, {b}, {c}"


def smfmac(d, b):
    return f"v_smfmac_f32_16x16x64_bf16 {d}, {vr(V_ONES,4)}, {b}, v{V_IDX}"


nstamp = [0]


def stamp(e):
    if STAMPS:
        i = nstamp[0]
        nstamp[0] += 1
        e("s_memrealtime s[96:97]")
        e("s_memtime s[98:99]")
        e("s_waitcnt lgkmcnt(0)")
        e(f"v_writelane_b32 v{V_STAMP}, s96, {2*i}")
        e(f"v_writelane_b32 v{V_STAMP}, s98, {2*i+1}")


def stamp_flush(e):
    if not STAMPS:
        return
    e("s_waitcnt vmcnt(0) lgkmcnt(0)")
    stamp(e)
    srd(e, 8, S_WS, WS_STAMP - WS_MISC, 262144)
    e("s_lshl_b32 s12, s2, 2")
    e(f"s_add_u32 s12, s12, s{S_W}")
    e("s_lshl_b32 s12, s12, 8")
    e(f"v_lshrrev_b32 v2, 2, v{V_L16}")
    e(f"buffer_store_dword v{V_STAMP}, v2, s[8:11], s12 offen")
    if "ea" in OPT:
        k = OPT.get("ecyc", 0)
        e(f"v_readlane_b32 s4, v{V_STAMP}, {2*OPT['ea']+k}")
        e(f"v_readlane_b32 s5, v{V_STAMP}, {2*OPT['eb']+k}")
        e("s_nop 3")
        e("s_sub_u32 s5, s5, s4")
        if k:
            e("s_mul_i32 s5, s5, 3277")
            e("s_lshr_b32 s5, s5, 16")
        e("s_add_u32 s5, s5, s96")
        e("M_echo:")
        e("s_memrealtime s[6:7]")
        e("s_waitcnt lgkmcnt(0)")
        e("s_sub_u32 s4, s6, s5")
        e("s_cmp_lt_i32 s4, 0")
        e("s_cbranch_scc1 M_echo")


def kind_of(x):
    if x.startswith("buffer_"):
        return "vm"
    if x.startswith("ds_"):
        return "ds"
    if x.startswith(("v_exp", "v_rcp", "v_sqrt", "v_permlane")):
        return "slow"
    return "valu" if x.startswith("v_") else "scalar"


prev_valu = [False]


def interleave(e, mf, fixed, streams, cap=2, quota=99, space=0):
    last_vm = -space
    for i, m in enumerate(mf):
        e.safe(m)
        pre, post = fixed.get(i, ([], []))
        items = post + pre
        shadow, used, valu = True, 0, False

        def emit(x, safe=False):
            nonlocal shadow, used, valu
            k = kind_of(x)
            (e.safe if safe else e)(x)
            if not (k == "scalar" and shadow):
                used += 2 if k in ("vm", "slow") else 1
            used += x.count("\ns_")
            shadow = False
            valu |= k in ("valu", "slow")

        if not (items and kind_of(items[0]) == "scalar"):
            for s in streams:
                if s and kind_of(s[0]) == "scalar" and e.hazard_free(s[0]):
                    emit(s.pop(0))
                    break
        for x in items:
            emit(x, True)
        want_vm = quota > 0 and i + 1 - last_vm >= space and any(
            s and "vm" in [kind_of(y) for y in s[:2]] for s in streams) and i + 1 not in fixed
        progress = True
        while used < cap and progress:
            progress = False
            for kinds in (("vm", "ds", "scalar"), ("valu", "slow"), ("scalar",)):
                for s in streams:
                    if not s or kind_of(s[0]) not in kinds:
                        continue
                    k = kind_of(s[0])
                    if k == "scalar" and len(kinds) > 1 and s is streams[-1]:
                        continue
                    if used + (2 if k in ("vm", "slow") else 1) > cap or not e.hazard_free(s[0]):
                        continue
                    if k == "vm" and (valu or prev_valu[0] or quota == 0 or i - last_vm < space):
                        continue
                    if k == "ds" and valu:
                        continue
                    if k in ("valu", "slow") and want_vm and not valu:
                        continue
                    if k == "vm":
                        last_vm = i
                        quota -= 1
                        want_vm = want_vm and space <= 1 and quota > 0
                    emit(s.pop(0))
                    progress = True
                    break
                if progress:
                    break
        prev_valu[0] = valu


def drain(e, streams):
    for s in streams:
        while s:
            e.safe(s.pop(0))


def snake(k):
    return (3, 2, 1, 0) if k % 2 and OPT.get("snake", 1) else (0, 1, 2, 3)


def o_reg(db, qb):
    return V_O + (db * 4 + qb) * 4


KVF = ["", " sc1", " nt", " sc0", " sc0 sc1"]


def k_dma(n, tag=""):
    return f"buffer_load_dwordx4 v{V_KDMA+n}, {sr(S_K)}, s{S_OFF} offen offset:{n*1024}{KVF[OPT.get('kvf', 0)]} lds{tag}"


def v_dma(n, tag=""):
    return f"buffer_load_dwordx4 v{V_VDMA+(n&1)}, {sr(S_V)}, s{S_OFF} offen offset:{n*1024}{KVF[OPT.get('kvf', 0)]} lds{tag}"


def k_read(tile, kb, ks):
    return f"ds_read_b128 {ar(A_KF+(kb*4+ks)*4,4)}, v{V_KRD+ks} offset:{(tile%4)*16384+kb*4096}"


def v_read(tile, db, t, v):
    return f"ds_read_b64_tr_b16 {ar(A_VF+((db%4)*2+t)*4+2*v,2)}, v{V_VRD+db} offset:{(tile%4)*16384+t*8192+v*4096}"


def kv_tile(which, tile):
    tag = f" ; @{which}{tile}"
    out = [f"s_mov_b32 m0, s{(S_M0K if which == 'K' else S_M0V) + tile % 4}", f"s_mov_b32 s{S_OFF}, {tile*16384}"]
    return out + [(k_dma if which == "K" else v_dma)(n, tag) for n in range(4)]


spins = []


def poll_check(name, load, cond):
    spins.append((name, load, cond))
    return cond + [f"s_cbranch_vccnz {name}_spin\n{name}_back:"]


def emit_spins(e):
    for name, load, cond in spins:
        e(f"{name}_spin:")
        e("s_mov_b32 s3, 0x100000")
        e(f"{name}_loop:")
        e(f"s_sleep {OPT.get('slp', 2)}")
        e(load)
        e("s_waitcnt vmcnt(0)")
        for x in cond:
            e(x)
        e(f"s_cbranch_vccz {name}_back")
        e("s_sub_u32 s3, s3, 1")
        e("s_cmp_lg_u32 s3, 0")
        e(f"s_cbranch_scc1 {name}_loop")
        e(f"s_branch {name}_back")


POLL_A = f"buffer_load_dword v{V_PVAL}, v{V_POFF}, {sr(S_WS)}, 0 offen sc1"


S_RB = S_DBG


def repack_offsets():
    return [f"s_mul_i32 s3, s{S_RB}, 52429", "s_lshr_b32 s3, s3, 18", f"s_mul_i32 s{S_RSRC}, s3, 39680", f"s_lshl_b32 s4, s{S_RB}, 8",
            f"s_add_u32 s{S_RSRC}, s{S_RSRC}, s4", f"s_add_u32 s{S_RSRC2}, s{S_RSRC}, 4096", f"s_lshl_b32 s{S_RDST}, s{S_RB}, 14",
            "s_mul_i32 s4, s3, 40960", f"s_sub_u32 s{S_RDST}, s{S_RDST}, s4", "s_and_b32 s3, s3, 1", "s_mul_i32 s3, s3, 39936",
            f"s_sub_u32 s{S_RDST}, s{S_RDST}, s3", f"s_add_u32 s{S_RDST}, s{S_RDST}, s{S_W4K}"]


def attn_step(e, j, qk=True, first=False, extra=None, late=None):
    pw = V_P + ((j + 1) % 2) * 32
    pr = V_P + (j % 2) * 32
    pv = True

    def pdst(x):
        on, base = (qk, pw) if x >= 0 else (not first, pr)
        x %= 16
        return on, base + (x % 4) * 8 + (x // 4) * 2, SBUF[x % 4]

    for u in range(16):
        def qk_chain(x, rev):
            kb, qb, d = x // 4, x % 4, vr(SBUF[x % 4], 4)
            return [mfma(d, ar(A_KF + (kb * 4 + ks) * 4, 4), ar(A_Q + (qb * 4 + ks) * 4, 4), d if i else vr(V_NM + qb * 4, 4))
                    for i, ks in enumerate((3, 2, 1, 0) if rev else (0, 1, 2, 3))]

        def pv_chains(x, rev=False):
            out, db = [], x // 2
            for h in range(2):
                q2 = (x % 2) * 2 + (1 - h if rev else h)
                o = vr(o_reg(db, q2), 4)
                for t in ((0, 1) if h == 0 else (1, 0)):
                    out.append(mfma(o, ar(A_VF + ((db % 4) * 2 + t) * 4, 4), vr(pr + q2 * 8 + t * 4, 4), "0" if first and t == h else o))
            return out

        if not qk:
            M = [None] * 4 + pv_chains(u)
        elif not OPT.get("sup", 2):
            M = qk_chain(u, False) + pv_chains(u)
        elif OPT.get("sup", 2) == 2:
            x = (u // 4) * 4 + (u % 2) * 2
            if u % 4 < 2:
                M = qk_chain(x, False) + qk_chain(x + 1, True)
            elif u % 4 == 2:
                M = pv_chains(x) + pv_chains(x + 1)
            else:
                M = pv_chains(x + 1, True) + pv_chains(x, True)
        elif u % 2 == 0:
            M = qk_chain(u, False) + qk_chain(u + 1, True)
        else:
            M = pv_chains(u - 1) + pv_chains(u)
        F = [[] for _ in range(8)]
        sc = []
        nreads = 0
        n = u + LK
        if qk and not (j == 30 and n >= 16):
            F[2].append(k_read(j + 1 + n // 16, (n % 16) // 4, n % 4))
            nreads += 1
        n = u + LV
        if n < 16 or qk:
            F[5].append(v_read(j + n // 16, (n % 16) // 2, n % 2, 0))
            F[6].append(v_read(j + n // 16, (n % 16) // 2, n % 2, 1))
            nreads += 2
        on, p, sb = pdst(u - 1)
        if on:
            for r in range(4):
                F[(0, 1, 3, 4)[r]].append(f"v_exp_f32 v{sb+r}, v{sb+r}")
            F[5].append(f"v_cvt_pk_bf16_f32 v{p}, v{sb}, v{sb+1}")
        on, p, sb = pdst(u - 2)
        if on:
            F[2].append(f"v_cvt_pk_bf16_f32 v{p+1}, v{sb+2}, v{sb+3}")
        post = []
        sh = OPT.get("sh", 1)
        ud, up = (u + 2 * sh) % 16, u + sh
        if late:
            q, syncs = late
            while q and kind_of(q[0]) == "scalar" and len(sc) < 6:
                sc.append(q.pop(0))
            if q:
                F[7].append(q.pop(0))
            if up in syncs:
                wait, more = syncs[up]
                assert j != 29 or not any(kind_of(x) == "vm" for x in q)
                post += wait + ["s_barrier"]
                q.extend(more)
            elif up % 4 == 2 and q and kind_of(q[0]) == "vm":
                post.append(q.pop(0))
        elif qk:
            if up == 10:
                post += ["WAITVM K2" if first else f"s_waitcnt vmcnt({[9 + sh, 10 - sh, 9, 8 if OPT.get('skip', 1) else 10][j % 4]})", "s_barrier"]
            if ud == 12:
                sc += [f"s_add_u32 s{S_OFF}, s{S_OFF}, 32768", f"s_mov_b32 m0, s{S_M0K + j % 4}"]
            if ud in (12, 14):
                F[7].append(k_dma((ud - 12) // 2))
            if ud in (0, 2):
                F[7].append(k_dma(2 + ud // 2))
            if ud == 4:
                sc += [f"s_sub_u32 s{S_OFF}, s{S_OFF}, 16384", f"s_mov_b32 m0, s{S_M0V + (j + 2) % 4}"]
            if ud in (4, 6, 8, 10):
                F[7].append(v_dma((ud - 4) // 2))
            if j % 4 == 0:
                if ud in (3, 11):
                    sc.append(f"s_mov_b32 m0, s{S_M0R}")
                if ud == 3:
                    F[7].append(f"buffer_load_dwordx4 v{V_RDMA}, {sr(S_R0)}, s{S_RSRC} offen lds")
                if ud == 11:
                    F[7].append(f"buffer_load_dwordx4 v{V_RDMA}, {sr(S_R0)}, s{S_RSRC2} offen offset:1024 lds")
                if ud == 13:
                    sc += [f"s_cmp_gt_u32 s{S_CNT}, 5", f"s_cselect_b32 s{S_R0+2}, s{S_R0+2}, 0"]
                if up == 14:
                    sc += [f"s_cmp_eq_u32 s{S_CNT}, 4", f"s_cselect_b32 s5, s{S_SIGA}, {OOB}"]
                    post.append(f"buffer_atomic_add v{V_ONE}, v{V_SIG}, {sr(S_WS)}, s5 offen")
                if u == 15 and not first:
                    sc.append(f"s_cmp_gt_u32 s{S_CNT}, 1")
            if j % 4 == 2:
                if up == 6:
                    post.append(POLL_A)
                if 11 <= u < 15:
                    k = u - 11
                    F[6].append(f"ds_read_b64_tr_b16 {ar(A_RP+2*k,2)}, v{V_RRD} offset:{(k//2)*32+(k%2)*4096}")
                    nreads += 1
            if j % 4 == 3 and u == 0:
                sc.append(f"s_sub_u32 s{S_CNT}, s{S_CNT}, 1")
            if j % 4 in (1, 2) and u == 15 and OPT.get("rmask", 128):
                sc.append(f"s_bitcmp1_b32 s7, s{S_CNT}")
            if j % 4 == 3:
                if up in (2, 6):
                    st = f"buffer_store_dwordx4 {ar(A_RP+(up//4)*4,4)}, v{V_L16}, {sr(S_WP)}, s{S_RDST} offen offset:{(up//4)*2048} sc1"
                    if OPT.get("skip", 1):
                        sc.append(f"s_cmp_eq_u32 s{S_WP+2}, 0")
                        post += [f"s_cbranch_scc1 M_nost{up}", st, f"M_nost{up}:"]
                    else:
                        post.append(st)
                if u == 7:
                    sc += [f"s_cmp_gt_u32 s{S_CNT}, 4", f"s_cselect_b32 s{S_WP+2}, s{S_WP+2}, 0", f"s_add_u32 s{S_RB}, s{S_RB}, 1"]
                if u in (11, 13):
                    sc += repack_offsets()[(u - 11) // 2 * 7:][:7]
        for i, x in enumerate(sc):
            F[i].insert(0, x)
        if u % 2 == 1:
            F[7].insert(0, f"s_waitcnt lgkmcnt({nreads})")
        if qk and not late and not first:
            drop = tuple(p for k, p in (("nodma", "buffer_"), ("nobar", "s_barrier"), ("novm", "s_waitcnt vmcnt"), ("nolg", "s_waitcnt lgkm"), ("nods", "ds_"), ("nost", "buffer_store"), ("norp", "buffer_load_dwordx4 v22")) if OPT.get(k))
            if drop:
                keep = lambda x: not x.startswith(drop) or "atomic" in x or x == POLL_A
                F = [[x for x in f if keep(x)] for f in F]
                post = [x for x in post if keep(x)]
        if qk:
            for i in range(8):
                e(M[i])
                for x in F[i]:
                    e.safe(x)
        else:
            for x in F[0] + F[1] + F[2] + F[3] + F[4]:
                e.safe(x)
            fixed = {}
            if F[5]:
                fixed[0] = (F[5][:1] + F[6] + F[5][1:], [])
            if 2 <= u < 6:
                M.append(smfmac(ar(A_L + (u - 2) * 4, 4), vr(pr + (u - 2) * 8, 8)))
            interleave(e, M[4:], fixed, extra(u), cap=OPT.get("fcap", 3), quota=OPT.get("fq", 2))
            for x in F[7]:
                e(x)
        if qk and up % 4 == 2:
            q2 = u // 4
            e(smfmac(ar(A_L + q2 * 4, 4), vr(pr + q2 * 8, 8)))
        for x in post:
            e(x)


V_M = 24


def row_max_finish(e):
    m, t = V_M, V_M + 4
    for swap in ("v_permlane32_swap_b32", "v_permlane16_swap_b32"):
        for qb in range(4):
            e(f"v_mov_b32 v{t+qb}, v{m+qb}")
        for qb in range(4):
            e(f"{swap} v{m+qb}, v{t+qb}")
        for qb in range(4):
            e(f"v_max_f32 v{m+qb}, v{m+qb}, v{t+qb}")
    for qb in range(4):
        sel = "op_sel_hi:[0,0]" if qb % 2 == 0 else "op_sel:[0,1] op_sel_hi:[0,1]"
        for p in range(2):
            e(f"v_pk_add_f32 {vr(V_NM+qb*4+2*p,2)}, s[6:7], {vr(m+(qb//2)*2,2)} {sel} neg_lo:[0,1] neg_hi:[0,1]")


def x_dma(c):
    out = []
    for h in range(2):
        out += [f"s_add_u32 m0, s{S_W8K}, {X_SLOT[c%2] + h*4096}", f"s_mov_b32 s{S_OFF}, {c*128 + h*40960}"]
        out += [f"buffer_load_dwordx4 v{V_XDMA+n}, {sr(S_X)}, s{S_OFF} offen offset:{n*1024} lds ; @X{c}" for n in range(4)]
    return out


def w_dma(c):
    out = [f"s_add_u32 m0, s{S_W4K}, {WQ_SLOT[c%4]}", f"s_mov_b32 s{S_OFF}, {c*64*8192}"]
    out += [f"buffer_load_dwordx4 v{V_WQDMA+n}, {sr(S_WQ)}, s{S_OFF} offen offset:{n*1024} lds ; @W{c}" for n in range(4)]
    out += [f"s_add_u32 m0, s{S_W2K}, {LDS_W1+(c%4)*8192}", f"s_mov_b32 s{S_OFF}, {c*64*3456}"]
    out += [f"buffer_load_dwordx4 v{V_W1DMA+n}, {sr(S_W1)}, s{S_OFF} offen offset:{n*1024} lds ; @W{c}" for n in range(2)]
    return out


def x_read(c):
    out = [f"ds_read_b128 {ar(A_XF+(c%2)*32+(qb*2+t)*4,4)}, v{V_XRD+t} offset:{qb*2048} ; @XR{c}" for qb in range(4) for t in range(2)]
    return out + [f"v_xor_b32 v{V_XRD+t}, 0x10000, v{V_XRD+t}" for t in range(2)]


def code_prefetch(e):
    e("s_getpc_b64 s[6:7]")
    e("M_pc:")
    e("s_lshr_b32 s3, s2, 3")
    e("s_lshl_b32 s3, s3, 11")
    e("v_lshl_add_u32 v60, v62, 3, s3")
    e("v_min_u32 v60, M_hot_end-M_pc-4, v60")
    e("v_mov_b32 v61, 0")
    e("v_lshl_add_u64 v[60:61], v[60:61], 0, s[6:7]")
    e("global_load_dword v63, v[60:61], off ; nocheck")


def setup(e):
    if STAMPS:
        e("s_memrealtime s[92:93]")
        e("s_memtime s[94:95]")
    e(f"s_load_dwordx16 {sr(P_IN,16)}, s[0:1], 0")
    e("s_cmp_ge_u32 s2, 256")
    e("s_cbranch_scc1 M_exit")
    e("v_lshrrev_b32 v31, 6, v0")
    e("v_mov_b32 v62, v0")
    e(f"v_readfirstlane_b32 s{S_W}, v31")
    if OPT.get("pf", 2) == 1:
        code_prefetch(e)
    e("v_and_b32 v0, 63, v0")
    e(f"s_lshr_b32 s{S_QT}, s2, 5")
    e("v_lshrrev_b32 v29, 4, v0")
    e("v_lshrrev_b32 v30, 3, v0")
    e("v_and_b32 v31, 7, v0")
    e(f"s_lshl_b32 s{S_W8K}, s{S_W}, 13")
    e(f"s_lshl_b32 s5, s{S_QT}, 2")
    e(f"s_add_u32 s5, s5, s{S_W}")
    e("s_mul_i32 s6, s5, 81920")
    e("v_mul_u32_u24 v26, 1280, v30")
    e("v_add_u32 v26, s6, v26")
    e("v_xor_b32 v27, v31, v29")
    e(f"v_lshl_add_u32 v{V_XDMA}, v27, 4, v26")
    e(f"v_add_u32 v{V_XDMA+2}, {2*(10240-1024)}, v{V_XDMA}")
    e(f"v_xor_b32 v27, 64, v{V_XDMA}")
    e(f"v_add_u32 v{V_XDMA+1}, {10240-1024}, v27")
    e(f"v_add_u32 v{V_XDMA+3}, {3*(10240-1024)}, v27")
    e(f"s_mov_b32 s{S_X+2}, 2621440")
    e(f"s_mov_b32 s{S_X+3}, {SRD3}")
    first = x_dma(0)
    pre = Asm()
    pre("s_and_b32 s3, s2, 7")
    pre("s_bfe_u32 s7, s2, 0x20003")
    pre(f"s_lshl_b32 s{S_HEAD}, s3, 2")
    pre(f"s_add_u32 s{S_HEAD}, s{S_HEAD}, s7")
    pre(f"s_lshl_b32 s{S_W2K}, s{S_W}, 11")
    pre(f"s_lshl_b32 s{S_W4K}, s{S_W}, 12")
    pre("v_and_b32 v28, 15, v0")
    pre(f"s_lshl_b32 s6, s{S_W}, 17")
    pre("v_lshlrev_b32 v26, 13, v29")
    pre("v_add_u32 v26, s6, v26")
    pre("v_lshlrev_b32 v27, 2, v29")
    pre("v_xor_b32 v27, v27, v28")
    pre(f"v_lshl_add_u32 v{V_WQDMA}, v27, 4, v26")
    for n in range(1, 4):
        pre(f"v_add_u32 v{V_WQDMA+n}, {n*(32768-1024)}, v{V_WQDMA}")
    pre(f"s_lshl_b32 s6, s{S_HEAD}, 8")
    early = OPT.get("early", 0)
    for x in first[:2] + (pre.lines if early else []):
        e(x)
    e("s_waitcnt lgkmcnt(0)")
    if STAMPS:
        e(f"v_writelane_b32 v{V_STAMP}, s92, 0")
        e(f"v_writelane_b32 v{V_STAMP}, s94, 1")
        nstamp[0] += 1
    if OPT.get("st0"):
        stamp(e)
    e(f"s_mov_b64 {sr(S_X,2)}, {sr(P_IN,2)}")
    for x in first[2:]:
        e.safe(x)
    if OPT.get("pf", 2) == 2:
        code_prefetch(e)
    for reg, off in ((S_R1, 64), (S_DBG, 72), (S_WS, 80)):
        e(f"s_load_dwordx2 {sr(reg,2)}, s[0:1], {off}")
    for x in ([] if early else pre.lines):
        e(x)
    srd(e, S_WQ, P_IN + 6, "s6", 640 * 8192 - 31 * 256)
    for x in w_dma(0)[:6]:
        e.safe(x)
    if OPT.get("spread", 1):
        e("s_min_u32 s4, s3, 5")
        e(f"s_sub_u32 s{S_CNT}, s{S_HEAD}, s4")
        e("s_cmp_lt_u32 s3, 5")
        e("s_cselect_b32 s4, s7, 0")
        e("s_cmp_eq_u32 s4, 3")
        e(f"s_cselect_b32 s{S_CNT}, 27, s{S_CNT}")
    else:
        e(f"s_mov_b32 s{S_CNT}, s{S_HEAD}")
    e(f"s_lshl_b32 s6, s{S_CNT}, 7")
    srd(e, S_W1, P_IN + 12, "s6", 640 * 3456 - 26 * 128)
    e(f"s_cmp_lt_u32 s{S_CNT}, 27")
    e(f"s_cselect_b32 s{S_W1+2}, s{S_W1+2}, 0")
    e(f"s_mul_i32 s6, s{S_W}, {16*3456}")
    e("v_mul_u32_u24 v26, 3456, v30")
    e("v_add_u32 v26, s6, v26")
    e("v_and_b32 v27, 2, v30")
    e("v_xor_b32 v27, v27, v31")
    e(f"v_lshl_add_u32 v{V_W1DMA}, v27, 4, v26")
    e(f"v_xor_b32 v27, 64, v{V_W1DMA}")
    e(f"v_add_u32 v{V_W1DMA+1}, {8*3456-1024}, v27")
    for x in w_dma(0)[6:]:
        e.safe(x)
    e(f"v_lshlrev_b32 v{V_L16}, 4, v0")
    e("v_bfe_u32 v30, v0, 2, 3")
    e("v_and_b32 v31, 3, v0")
    e("v_bfe_u32 v12, v0, 2, 2")
    e("v_lshl_add_u32 v26, v29, 3, v12")
    e("v_lshlrev_b32 v27, 8, v26")
    e("v_lshl_add_u32 v27, v31, 4, v27")
    e(f"v_xor_b32 v12, s{S_W}, v12")
    e(f"v_lshl_add_u32 v{V_WQRD}, v12, 6, v27")
    for j in range(1, 4):
        e(f"v_xor_b32 v{V_WQRD+j}, {j*64}, v{V_WQRD}")
    e("v_lshlrev_b32 v27, 7, v26")
    e("v_lshl_add_u32 v27, v31, 3, v27")
    e(f"v_add_u32 v27, {LDS_W1}, v27")
    e("v_lshrrev_b32 v12, 1, v30")
    e(f"s_and_b32 s6, s{S_W}, 2")
    e("v_xor_b32 v12, s6, v12")
    e(f"v_lshl_add_u32 v{V_W1RD}, v12, 5, v27")
    for nb in range(1, 4):
        e(f"v_xor_b32 v{V_W1RD+nb}, {nb*32}, v{V_W1RD}")
    e("v_lshrrev_b32 v12, 1, v28")
    e("v_xor_b32 v12, v12, v29")
    e("v_lshlrev_b32 v12, 4, v12")
    e("v_lshl_add_u32 v12, v28, 7, v12")
    e(f"s_add_u32 s6, s{S_W8K}, {X_SLOT[0]}")
    e(f"v_add_u32 v{V_XRD}, s6, v12")
    e(f"v_xor_b32 v{V_XRD+1}, 64, v{V_XRD}")
    e("v_and_b32 v26, 1, v0")
    e("v_cmp_eq_u32 vcc, 0, v26")
    e("v_mov_b32 v27, 0x44444444")
    e("v_mov_b32 v12, 0xeeeeeeee")
    e(f"v_cndmask_b32 v{V_IDX}, v12, v27, vcc")
    e("v_and_b32 v26, 2, v0")
    e("v_cmp_eq_u32 vcc, 0, v26")
    e("v_mov_b32 v27, 0x3f803f80")
    e("v_mov_b32 v12, 0")
    for r in range(4):
        e(f"v_cndmask_b32 v{V_ONES+r}, v12, v27, vcc")
    for r in range(16):
        e(f"v_accvgpr_write_b32 a{A_CS+r}, 0")
    if OPT.get("st0"):
        stamp(e)
    mem = x_dma(1) + w_dma(1)
    for x in mem[:OPT.get("nearly", 10)]:
        e.safe(x)
    e("s_waitcnt lgkmcnt(0)")
    return mem[OPT.get("nearly", 10):]


def glued(lines):
    out = []
    for x in lines:
        if x.startswith(("s_addc", "s_subb", "s_cselect")):
            out[-1] += "\n" + x
        else:
            out.append(x)
    return out


def late_stream():
    e = Asm()
    e(f"s_lshl_b32 s6, s{S_QT}, 5")
    e(f"s_add_u32 s6, s6, s{S_HEAD}")
    e("s_lshl_b32 s6, s6, 2")
    e(f"s_add_u32 s6, s6, s{S_W}")
    e("s_lshl_b32 s6, s6, 1")
    e("v_lshrrev_b32 v26, 5, v0")
    e("v_add_u32 v26, s6, v26")
    e("v_mul_u32_u24 v27, 1280, v26")
    e("v_and_b32 v12, 31, v0")
    e("v_lshl_add_u32 v13, v12, 4, v27")
    e("v_lshl_add_u32 v14, v12, 3, v27")
    e("v_lshlrev_b32 v26, 3, v26")
    e("v_lshl_add_u32 v19, v12, 24, v26")
    e("v_min_u32 v12, 1, v62")
    e(f"v_lshlrev_b32 v{V_SIG}, 24, v12")
    e(f"v_mov_b32 v{V_ONE}, 0")
    late_setup(e)
    return glued(e.lines) + early_mem()


SROW = [f"buffer_load_dwordx4 v[2:5], v13, {sr(S_X)}, 0 offen ; @SROW",
        f"buffer_load_dwordx4 v[6:9], v13, {sr(S_X)}, 0 offen offset:512 ; @SROW",
        f"buffer_load_dwordx2 v[10:11], v14, {sr(S_X)}, 0 offen offset:1024 ; @SROW"]


def tile_ids(e):
    e("s_bfe_u32 s4, s2, 0x20001")
    e("s_and_b32 s5, s2, 1")
    e("s_lshl_b32 s5, s5, 3")
    e("s_bfe_u32 s6, s2, 0x30003")
    e("s_add_u32 s5, s5, s6")
    e("s_lshr_b32 s6, s2, 6")


def late_setup(e):
    e(f"s_lshl_b32 s6, s{S_HEAD}, 19")
    srd(e, S_K, P_IN + 2, "s6", 524288)
    srd(e, S_V, P_IN + 4, "s6", 524288)
    e(f"s_sub_u32 s{P_IN+14}, s{P_IN+14}, {128*40960}")
    e(f"s_subb_u32 s{P_IN+15}, s{P_IN+15}, 0")
    e("s_cmp_lt_u32 s2, 160")
    e(f"s_cselect_b64 {sr(S_R0,2)}, {sr(P_IN+8,2)}, {sr(P_IN+14,2)}")
    e(f"s_cselect_b32 s7, 64, {NPAIR}")
    e(f"s_mul_i32 s{S_R0+2}, s7, 81920")
    e(f"s_mov_b32 s{S_R0+3}, {SRD3}")
    e(f"s_mul_i32 s6, s5, {ACT_RG}")
    e(f"s_add_u32 s6, s6, {WS_ACT}")
    e(f"s_lshl_b32 s7, s{S_HEAD}, 14")
    e("s_add_u32 s7, s7, s6")
    srd(e, S_ACT, S_WS, "s7", 16384)
    e(f"s_lshl_b32 s7, s{S_CNT}, 13")
    e(f"s_add_u32 s7, s7, {64*8192}")
    e("s_add_u32 s7, s7, s6")
    srd(e, S_ACTH, S_WS, "s7", 8192)
    e(f"s_cmp_lt_u32 s{S_CNT}, 27")
    e(f"s_cselect_b32 s{S_ACTH+2}, s{S_ACTH+2}, 0")
    srd(e, S_DBG, S_DBG, None, 256)
    srd(e, S_OUT, S_R1, None, 2621440)
    tile_ids(e)
    e("s_lshl_b32 s7, s5, 1")
    e(f"s_lshr_b32 s3, s{S_W}, 1")
    e("s_add_u32 s3, s7, s3")
    e(f"s_mul_i32 s7, s3, {ACT_RG}")
    e(f"s_add_u32 s7, s7, {WS_ACT}")
    e(f"s_and_b32 s{S_XO}, s{S_W4K}, 4096")
    e(f"s_add_u32 s7, s7, s{S_XO}")
    srd(e, S_TA, S_WS, "s7", (NPAIR - 1) * 8192 + 4096)
    e("s_lshl_b32 s7, s6, 2")
    e(f"s_add_u32 s7, s7, s{S_W}")
    e("s_mul_i32 s7, s7, 5120")
    e(f"s_add_u32 s7, s7, {WS_WP}")
    srd(e, S_TW, S_WS, "s7", (NPAIR - 1) * WP_PAIR + 5120)
    e("s_lshl_b32 s3, s3, 2")
    e("s_add_u32 s3, s3, s4")
    e(f"s_mul_i32 s{S_XO}, s3, 20480")
    e("s_lshl_b32 s7, s6, 1")
    e(f"s_and_b32 s3, s{S_W}, 1")
    e("s_add_u32 s7, s7, s3")
    e("s_mul_i32 s7, s7, 160")
    e(f"s_add_u32 s{S_XO}, s{S_XO}, s7")
    e("s_lshr_b32 s7, s5, 1")
    e("s_lshl_b32 s7, s7, 2")
    e("s_add_u32 s7, s7, s4")
    e("s_lshl_b32 s7, s7, 8")
    e(f"s_add_u32 s{S_POLLO}, s7, {MISC_CNTO}")
    e("s_mul_i32 s7, s4, 7")
    e("s_add_u32 s7, s7, 64")
    e(f"s_lshl_b32 s{S_GA}, s7, 13")
    e(f"s_mul_i32 s{S_GW}, s7, {WP_PAIR}")
    e(f"s_lshl_b32 s{S_SA}, s4, 17")
    e(f"s_mul_i32 s{S_SW}, s4, {16*WP_PAIR}")
    e("s_lshl_b32 s5, s5, 2")
    e("s_add_u32 s5, s5, s6")
    e("s_lshl_b32 s5, s5, 8")
    e(f"s_add_u32 s5, s5, {MISC_CNTP}")
    e("s_cmp_eq_u32 s4, 0")
    e(f"s_cselect_b32 s5, s5, {OOB}")
    srd(e, S_WP, S_WS, WS_WP, NPAIR * WP_PAIR)
    e(f"s_add_u32 s{S_M0R}, s{S_W2K}, {LDS_W1}")
    srd(e, S_WS, S_WS, WS_MISC if WS_MISC else None, MISC_SIZE)
    e(f"s_lshl_b32 s{S_SIGS}, s{S_QT}, 5")
    e(f"s_lshl_b32 s7, s{S_QT}, 8")
    e(f"s_add_u32 s{S_SIGA}, s7, {MISC_CNTA}")
    e(f"s_lshl_b32 s7, s{S_QT}, 2")
    e(f"s_lshr_b32 s6, s{S_HEAD}, 3")
    e("s_add_u32 s7, s7, s6")
    e("s_lshl_b32 s7, s7, 8")
    e(f"s_add_u32 s{S_SIGO}, s7, {MISC_CNTO}")
    for i in range(4):
        e(f"s_add_u32 s{S_M0K+i}, s{S_W4K}, {LDS_K + i*16384}")
        e(f"s_add_u32 s{S_M0V+i}, s{S_W4K}, {LDS_V + i*16384}")
    e(f"s_mov_b32 s{S_RETRY}, 0")
    e(f"s_cmp_eq_u32 s{S_HEAD}, 0")
    e(f"s_cselect_b32 s6, s{S_SIGA}, {OOB}")
    e(f"s_and_b32 s7, s{S_HEAD}, 7")
    e(f"s_cselect_b32 s7, {OOB}, s{S_SIGO}")

def early_mem():
    out = [f"buffer_store_dword v{V_ONE}, v{V_SIG}, {sr(S_WS)}, s6 offen sc1",
           f"buffer_store_dword v{V_ONE}, v{V_SIG}, {sr(S_WS)}, s7 offen sc1",
           "v_lshrrev_b32 v12, 3, v62", "v_lshlrev_b32 v26, 2, v62", "v_lshl_add_u32 v12, v12, 24, v26",
           f"buffer_store_dword v{V_ONE}, v12, {sr(S_WS)}, s5 offen sc1"]
    return out + [f"v_mov_b32 v{V_ONE}, 1"]


def stats_stream():
    s = ["WAITVM SROW"]

    def unpack(i, dst):
        return f"v_lshlrev_b32 v{dst}, 16, v{2+i//2}" if i % 2 == 0 else f"v_and_b32 v{dst}, 0xffff0000, v{2+i//2}"

    def reduce32():
        out = ["v_add_f32 v12, v12, v13"]
        for rot in (8, 4, 2, 1):
            out.append(f"v_add_f32_dpp v12, v12, v12 row_ror:{rot} row_mask:0xf bank_mask:0xf")
        out += ["v_mov_b32 v13, v12", "v_permlane16_swap_b32 v12, v13", "v_add_f32 v12, v12, v13",
                f"v_mul_f32 v12, {fbits(1.0/640)}, v12"]
        return out

    s += [unpack(0, 12), unpack(1, 13)]
    for i in range(2, 20, 2):
        s += [unpack(i, 14), unpack(i + 1, 15), "v_add_f32 v12, v12, v14", "v_add_f32 v13, v13, v15"]
    s += reduce32() + ["v_mov_b32 v16, v12"]
    for i in range(0, 20, 2):
        s += [unpack(i, 14), unpack(i + 1, 15), "v_sub_f32 v14, v14, v16", "v_sub_f32 v15, v15, v16"]
        op = "v_mul_f32" if i == 0 else "v_fmac_f32"
        s += [f"{op} v12, v14, v14", f"{op} v13, v15, v15"]
    s += reduce32()
    s += ["v_cvt_pk_bf16_f32 v13, v12, v16", "v_and_b32 v16, 0xffff0000, v13", "v_lshlrev_b32 v12, 16, v13",
          "v_xor_b32 v16, 0x80000000, v16", f"v_add_f32 v12, {fbits(1e-5)}, v12", "v_cvt_pk_bf16_f32 v12, v12, v12",
          "v_lshlrev_b32 v12, 16, v12", "v_sqrt_f32 v12, v12", "v_cvt_pk_bf16_f32 v12, v12, v12",
          "v_lshlrev_b32 v12, 16, v12", "v_rcp_f32 v17, v12", "s_nop 0",
          f"buffer_store_dwordx2 v[16:17], v19, {sr(S_WS)}, 0 offen sc1 ; @SST"]
    return s


def kv_addr_stream():
    s = [f"s_lshl_b32 s5, s{S_W}, 2", "v_xor_b32 v26, v28, v29", "v_xor_b32 v27, s5, v26", "v_lshlrev_b32 v27, 4, v27",
         f"v_lshl_add_u32 v{V_KRD}, v28, 8, v27"]
    s += [f"v_xor_b32 v{V_KRD+ks}, {64*ks}, v{V_KRD}" for ks in range(1, 4)]
    s += ["v_lshlrev_b32 v27, 8, v29", f"v_add_u32 v27, s{S_W4K}, v27", f"v_lshl_add_u32 v{V_KDMA}, v26, 4, v27"]
    s += [f"v_xor_b32 v{V_KDMA+n}, {64*n}, v{V_KDMA}" for n in range(1, 4)]
    s += ["v_lshlrev_b32 v26, 1, v29", "v_xor_b32 v26, v26, v28", f"v_lshl_add_u32 v{V_VDMA}, v26, 4, v27",
          f"v_xor_b32 v{V_VDMA+1}, 128, v{V_VDMA}"]
    s += ["v_lshrrev_b32 v27, 2, v0", "v_lshlrev_b32 v27, 8, v27", "v_lshl_add_u32 v27, v31, 3, v27",
          f"v_add_u32 v27, {LDS_V}, v27", f"v_lshl_add_u32 v{V_VRD}, v30, 5, v27"]
    s += [f"v_xor_b32 v{V_VRD+db}, {32*db}, v{V_VRD}" for db in range(1, 8)]
    return s


def repack_addr_stream():
    e = Asm()
    e(f"v_and_b32 v{V_POFF}, 7, v0")
    e(f"v_lshlrev_b32 v{V_POFF}, 8, v{V_POFF}")
    e(f"v_add_u32 v{V_POFF}, {MISC_CNTA}, v{V_POFF}")
    e(f"s_mul_i32 s5, s{S_W}, {8*1280}")
    e("v_mul_u32_u24 v27, 1280, v29")
    e("v_add_u32 v27, s5, v27")
    e("v_lshlrev_b32 v26, 2, v29")
    e("v_xor_b32 v26, v26, v28")
    e(f"v_lshl_add_u32 v{V_RDMA}, v26, 4, v27")
    e("v_lshrrev_b32 v26, 2, v0")
    e("v_and_b32 v27, 3, v26")
    e(f"v_xor_b32 v27, s{S_W}, v27")
    e("v_lshlrev_b32 v27, 6, v27")
    e("v_lshl_add_u32 v27, v26, 8, v27")
    e("v_lshl_add_u32 v27, v31, 3, v27")
    e(f"v_add_u32 v{V_RRD}, {LDS_W1}, v27")
    return e.lines


CS_SITES = {0: 0, 1: 1, 8: 2, 9: 3}


XR_AT = 6


def phase1(e, carry):
    half = ["lo"] * 8

    def w_reads(c, nb):
        out = []
        if nb < 8:
            base = WQ_SLOT[c % 4]
            h = "hi" if base >= 65536 else "lo"
            if half[nb // 2] != h:
                out.append(f"v_xor_b32 v{V_WQRD+nb//2}, 0x10000, v{V_WQRD+nb//2}")
                half[nb // 2] = h
        for t in range(2):
            for v in range(2):
                d = ar(A_WF + ((nb % 4) * 2 + t) * 4 + 2 * v, 2)
                if nb < 8:
                    out.append(f"ds_read_b64_tr_b16 {d}, v{V_WQRD+nb//2} offset:{base%65536+t*8192+v*1024+(nb%2)*8} ; @WR{c}_{nb}")
                else:
                    out.append(f"ds_read_b64_tr_b16 {d}, v{V_W1RD+nb-8} offset:{(c%4)*8192+t*4096+v*512} ; @WR{c}_{nb}")
        return out

    e("WAITVM W0")
    e("s_barrier")
    stamp(e)
    for x in x_read(0) + w_reads(0, 0) + w_reads(0, 1):
        e(x)
    e("WAITLG WR0_0")
    poll_s = f"buffer_load_dword v63, v62, {sr(S_DBG)}, 0 offen sc1"
    mem, alu, xr = carry, [], []
    ramp = OPT.get("ramp", 36)
    srow = [int(x) for x in "%03d" % OPT.get("srow", 222)]
    SIG_AT = srow[2] + OPT.get("sigd", 3)
    for c in range(10):
        mem += [x for k, x in enumerate(SROW) if srow[k] == c]
        if c + 2 < 10:
            mem += x_dma(c + 2) + w_dma(c + 2)
        if c == 0:
            alu += late_stream()
        assert c != srow[0] or not any("v14" in x for x in alu), alu
        if c == srow[2] + 1:
            alu += stats_stream()
        if c == 6:
            alu += [f"v_accvgpr_write_b32 a{A_L+r}, 0" for r in range(16)]
        if c == 7:
            alu += kv_addr_stream()
        if c == 8:
            assert not alu
            alu += tail_scalar_stream() + repack_addr_stream()
            mem += ["v_and_b32 v62, 7, v0", "v_lshlrev_b32 v62, 5, v62", poll_s + " ; @PS"]
            mem += kv_tile("V", 0) + kv_tile("V", 1)
        if c == 9:
            assert not alu
            pre9 = ["WAITVM PS"] + poll_check("M_ps", poll_s, ["v_cmp_gt_u32 vcc, 32, v63"])
            pre9 += [f"s_lshl_b32 s5, s{S_QT}, 2", f"s_add_u32 s5, s5, s{S_W}", "s_lshl_b32 s5, s5, 9", "v_lshlrev_b32 v62, 3, v28"]
            pre9 += [f"buffer_load_dwordx2 {vr(V_ST+2*qb,2)}, v62, {sr(S_WS)}, s5 offen offset:{qb*128} sc1 ; @STL" for qb in range(4)]
            mem += pre9 + kv_tile("K", 1) + kv_tile("K", 2)
        for nb in range(12):
            fixed = {}
            n2 = nb + 2
            reads = w_reads(c, n2) if n2 < 12 else (w_reads(c + 1, n2 - 12) if c < 9 else [])
            pre = []
            if nb == XR_AT and c < 9:
                xr += [f"WAITVM X{c+1}"] + x_read(c + 1)
            if nb == 10 and c < 9:
                assert not xr, (c, xr)
                pre = [f"WAITVM W{c+1}" + (" SST" if c == SIG_AT else ""), "s_barrier"]
                if c >= 7:
                    pre = [f"WAITLG XR{c+1}"] + pre
                if c == SIG_AT:
                    assert not alu
                    mem.insert(0, f"buffer_atomic_add v{V_ONE}, v{V_SIG}, {sr(S_DBG)}, s{S_SIGS} offen")
                if c == 8:
                    mem += kv_tile("K", 0)
            if c == 9 and nb == 10:
                assert not alu and not any("@STL" in x for x in mem), alu
                alu += [f"s_lshl_b32 s5, s{S_W}, 7", f"s_add_u32 s5, s5, {LDS_CS}", "v_lshl_add_u32 v60, v28, 2, s5",
                        f"s_and_b32 s5, s{S_W}, 2", "s_lshl_b32 s5, s5, 6", f"s_add_u32 s5, s5, {LDS_CS+512}", "v_lshl_add_u32 v61, v28, 2, s5"]
                for k in range(4):
                    alu += [f"v_accvgpr_read_b32 v62, a{A_CS+4*k}", f"v_accvgpr_read_b32 v63, a{A_CS+4*k+1}",
                            f"v_add_f32 v{24+k}, v62, v63", f"ds_write_b32 v{60+k//2}, v{24+k} offset:{(k%2)*64}"]
            slot = 0
            if pre:
                fixed[0] = (pre, [])
                slot = 1
            extra = len(reads) - 4
            for i, x in enumerate(reads):
                k = slot + max(0, i - max(extra, 0))
                fixed.setdefault(k, ([], []))[0].append(x)
            nxt = (c, nb + 1) if nb < 11 else (c + 1, 0)
            mf = []
            for i, qb in enumerate(snake(nb)):
                for t in ((0, 1) if i % 2 == 0 else (1, 0)):
                    acc = vr(o_reg(nb, qb), 4) if nb < 8 else vr(V_P + ((nb - 8) * 4 + qb) * 4, 4)
                    first = c == 0 and len(mf) % 2 == 0
                    mf.append(mfma(acc, ar(A_WF + ((nb % 4) * 2 + t) * 4, 4), ar(A_XF + (c % 2) * 32 + (qb * 2 + t) * 4, 4), "0" if first else acc))
            if nb in CS_SITES:
                mf.append(smfmac(ar(A_CS + 4 * CS_SITES[nb], 4), ar(A_WF + (nb % 4) * 8, 8)))
            if nxt[0] < 10:
                fixed.setdefault(len(mf) - 1, ([], []))[1].append(f"WAITLG WR{nxt[0]}_{nxt[1]}")
            nvm = sum(x.startswith("buffer_") for x in mem)
            quota = min(-(-nvm // (12 - nb)), (nb + 1) * ramp // 12 - nb * ramp // 12)
            interleave(e, mf, fixed, [xr, mem, alu], quota=quota + any(x.startswith("buffer_") for x in alu[:12]))
        assert not mem or c in (0, 1, 2, 3, 4, 8), (c, mem)
        if OPT.get("p1st") and c < 9:
            stamp(e)
    drain(e, [mem, alu])
    stamp(e)
    e("s_waitcnt lgkmcnt(0)")
    e("s_barrier")


def proj_epilogue(e):
    CSR = 40
    e(f"s_lshl_b32 s5, s{S_W}, 7")
    e(f"s_add_u32 s5, s5, {LDS_CS}")
    e("v_lshl_add_u32 v60, v29, 4, s5")
    e(f"s_and_b32 s5, s{S_W}, 2")
    e("s_lshl_b32 s6, s5, 6")
    e(f"s_add_u32 s6, s6, {LDS_CS+512}")
    e("v_lshl_add_u32 v61, v29, 4, s6")
    e("s_lshl_b32 s5, s5, 9")
    e(f"v_xor_b32 v62, s5, v{V_L16}")
    e("v_xor_b32 v63, 1024, v62")

    def cs_read(g):
        out = []
        src = 60 if g < 4 else 61
        k = g if g < 4 else g - 4
        if k:
            out.append(f"v_xor_b32 v{src}, {128*(k^(k-1))}, v{src}")
        for u in range(2):
            out.append(f"ds_read_b128 {vr(CSR+u*4,4)}, v{src} offset:{u*64} ; @CS{g}")
        return out

    for x in cs_read(0):
        e(x)
    e("WAITVM STL")
    e(f"s_mov_b32 s6, {fbits(LOG2E * 128 ** -0.5)}")
    for qb in range(4):
        e(f"v_mul_f32 v{48+qb}, s6, v{V_ST+2*qb+1}")

    def center(g, regs):
        e(f"WAITLG CS{g}")
        for qb in range(4):
            for u in range(2):
                a = regs(u, qb)
                for p in range(2):
                    e(f"v_pk_fma_f32 {vr(a+2*p,2)}, {vr(CSR+u*4+2*p,2)}, {vr(V_ST+2*qb,2)}, {vr(a+2*p,2)} op_sel_hi:[1,0,1]")
        if g < 5:
            for x in cs_read(g + 1):
                e(x)

    for j in range(4):
        center(j, lambda u, qb: o_reg(2 * j + u, qb))
        for qb in range(4):
            sel = "op_sel_hi:[1,0]" if qb % 2 == 0 else "op_sel:[0,1] op_sel_hi:[1,1]"
            regs = [o_reg(2 * j + u, qb) + 2 * p for u in range(2) for p in range(2)]
            for a in regs:
                e(f"v_pk_mul_f32 {vr(a,2)}, {vr(a,2)}, {vr(48+(qb//2)*2,2)} {sel}")
            for a in regs:
                e(f"v_cvt_pk_bf16_f32 v{a}, v{a}, v{a+1}")
            for r, a in enumerate(regs):
                e(f"v_accvgpr_write_b32 a{A_Q+(qb*4+j)*4+r}, v{a}")
    e(f"s_mov_b32 s6, {fbits(-LOG2E)}")
    for qb in range(4):
        e(f"v_mul_f32 v{48+qb}, s6, v{V_ST+2*qb+1}")
        e(f"v_rcp_f32 v{V_ST+2*qb+1}, v{V_ST+2*qb+1}")
    for jj in range(2):
        hreg = lambda u, qb: V_P + ((2 * jj + u) * 4 + qb) * 4
        center(4 + jj, hreg)
        if jj == 0:
            e("WAITVM K0")
            e("s_barrier")
            for kb in range(4):
                for ks in range(4):
                    e(k_read(0, kb, ks) + f" ; @K0R{kb}")
        for qb in range(4):
            sel = "op_sel_hi:[1,0]" if qb % 2 == 0 else "op_sel:[0,1] op_sel_hi:[1,1]"
            for u in range(2):
                for p in range(2):
                    a = hreg(u, qb) + 2 * p
                    e(f"v_pk_mul_f32 {vr(a+64,2)}, {vr(a,2)}, {vr(48+(qb//2)*2,2)} {sel}")
    e("WAITLG K0R3")
    scalars = [f"s_lshl_b32 s{S_RB}, s2, 2"] + repack_offsets()
    for i, m in enumerate(first_scores()):
        e.safe(m)
        if scalars:
            e(scalars.pop(0))
        e(f"v_exp_f32 v{V_O+i}, v{V_O+i}")
    e("s_mov_b32 s5, 4096")
    hst = []
    for jj in range(2):
        for qb in range(4):
            regs = [V_P + ((2 * jj + u) * 4 + qb) * 4 + 2 * p for u in range(2) for p in range(2)]
            d = regs[0] + 64
            for a in regs:
                e(f"v_pk_fma_f32 {vr(a+64,2)}, {vr(a+64,2)}, {vr(V_ST+2*qb,2)}, {vr(V_ST+2*qb,2)} op_sel:[0,1,1] op_sel_hi:[1,1,1]")
            for a in regs:
                e(f"v_rcp_f32 v{a+64}, v{a+64}")
                e(f"v_rcp_f32 v{a+65}, v{a+65}")
            for a in regs:
                e(f"v_pk_mul_f32 {vr(a,2)}, {vr(a,2)}, {vr(a+64,2)}")
            for p, a in enumerate(regs):
                e(f"v_cvt_pk_bf16_f32 v{d+p}, v{a}, v{a+1}")
            hst.append(f"buffer_store_dwordx4 {vr(d,4)}, v{62+jj}, {sr(S_ACTH)}, {'s5' if qb >= 2 else '0'} offen offset:{(qb%2)*2048} sc1 ; @HST")
            if (jj * 4 + qb) % OPT.get("he", 1) == 0:
                e(hst.pop(0))
    return hst


V_S0 = V_O + 64


def first_scores():
    out = []
    for kb in range(4):
        for n, qb in enumerate(snake(kb)):
            d = vr(V_S0 + (qb * 4 + kb) * 4, 4)
            for i, ks in enumerate(snake(n)):
                out.append(mfma(d, ar(A_KF + (kb * 4 + ks) * 4, 4), ar(A_Q + (qb * 4 + ks) * 4, 4), "0" if i == 0 else d))
    return out


V_MX, V_L8, V_XO, V_C256, V_TRD, V_X = 40, 45, 46, 47, 48, 2
V_L4K = V_RDMA
ACC = {"G": [128, 144, 160, 176, 192], "S": [64, 80, 96, 112, 208]}
TSTEPS = ["G"] * 7 + ["S"] * 16
TW_SLOT = [LDS_W1 + 8192, 0, 20480, 40960]
PK = 224


def tail_scalar_stream():
    t = Asm()
    tile_ids(t)
    t("s_lshl_b32 s5, s5, 2")
    t("s_add_u32 s5, s5, s6")
    t(f"s_lshl_b32 s{S_SIGP}, s5, 8")
    t(f"s_add_u32 s{S_SIGP}, s{S_SIGP}, {MISC_CNTP}")
    t(f"s_mul_i32 s5, s5, {PART_TILE}")
    t(f"s_mul_i32 s6, s{S_W}, {PART_WAVE}")
    t("s_add_u32 s5, s5, s6")
    t(f"s_add_u32 s5, s5, {WS_PART - WS_MISC}")
    srd(t, S_PART, S_WS, "s5", PART_TILE - 3 * PART_WAVE)
    t(f"s_mul_i32 s{S_M0W}, s{S_W}, 5120")
    for k in range(1, 4):
        t(f"s_xor_b32 s5, s4, {k}")
        t(f"s_mul_i32 s5, s5, {PART_DST}")
        t(f"s_add_u32 s{S_PS+k}, s5, {(k-1)*PART_SRC}")
    t(f"s_mul_i32 s{S_PS}, s4, {PART_DST}")
    t(f"s_add_u32 s{S_M0A}, s{S_PS}, {PART_SRC}")
    t(f"s_add_u32 s{S_KQ}, s{S_PS}, {2*PART_SRC}")
    return glued(t.lines)


def tail_vector_stream():
    t = Asm()
    t(f"s_lshr_b32 s5, s{S_W}, 1")
    t("s_lshl_b32 s5, s5, 2")
    t("s_bfe_u32 s4, s2, 0x20001")
    t("s_add_u32 s5, s5, s4")
    t("s_lshl_b32 s5, s5, 11")
    t(f"s_add_u32 s5, s5, {LDS_V}")
    t(f"v_add_u32 v{V_TRD}, s5, v{V_L16}")
    for k in range(1, 4):
        t(f"v_xor_b32 v{V_TRD+k}, {2048*k}, v{V_TRD}")
    t(f"s_and_b32 s5, s{S_W}, 1")
    t("s_mul_i32 s5, s5, 10240")
    t(f"v_add_u32 v{V_TRD+4}, s5, v{V_L16}")
    t(f"v_add_u32 v{V_TRD+5}, {TW_SLOT[0]}, v{V_TRD+4}")
    return t.lines


def tail_vector_late():
    t = Asm()
    t(f"v_and_b32 v12, 255, v{V_L16}")
    t("v_mul_u32_u24 v12, 10, v12")
    t(f"v_lshrrev_b32 v13, 8, v{V_L16}")
    t("v_lshl_add_u32 v12, v13, 3, v12")
    t(f"v_add_u32 v{V_XO}, s{S_M0V+3}, v12")
    t(f"v_lshrrev_b32 v{V_L8}, 1, v{V_L16}")
    t(f"v_add_u32 v14, 8192, v{V_L16}")
    t(f"v_add_u32 v15, 8192, v{V_L8}")
    t(f"v_mov_b32 v{V_C256}, 0x100")
    t(f"v_and_b32 v12, 255, v{V_L16}")
    t("v_mul_u32_u24 v12, 11, v12")
    t("v_lshl_add_u32 v12, v13, 3, v12")
    t(f"v_add_u32 v24, s{S_M0K}, v12")
    t(f"v_lshrrev_b32 v18, 4, v{V_L16}")
    for n in range(3):
        if n:
            t("v_add_u32 v18, 64, v18")
        t("v_mul_u32_u24 v12, 6554, v18")
        t("v_lshrrev_b32 v12, 16, v12")
        t("v_lshlrev_b32 v13, 4, v18")
        t(f"v_lshl_add_u32 v{25+n}, v12, 4, v13")
        t(f"v_add_u32 v{25+n}, s{S_M0K}, v{25+n}")
        t("v_mul_u32_u24 v19, 1120, v12")
        t(f"v_add_u32 v{28+n}, v19, v13")
    t("v_lshrrev_b32 v12, 4, v12")
    t("v_lshl_add_u32 v30, v12, 24, v30")
    t("s_bfe_u32 s4, s2, 0x20001")
    t(f"v_lshrrev_b32 v12, 4, v{V_L16}")
    t("v_lshlrev_b32 v17, v12, 1".replace("v12, 1", f"v12, v{V_ONE}"))
    t("v_add_u32 v13, 1, v12")
    t("v_xor_b32 v16, s4, v13")
    t("v_lshl_add_u32 v16, v16, 2, 4")
    t("v_lshrrev_b32 v13, 2, v13")
    t(f"v_add_u32 v13, s{S_W}, v13")
    t("v_lshl_add_u32 v16, v13, 24, v16")
    t("s_lshl_b32 s4, s4, 2")
    t(f"s_add_u32 s{S_SIGS}, s4, s{S_SIGP}")
    t(f"s_add_u32 s{S_SIGS}, s{S_SIGS}, 4")
    t("v_mov_b32 v12, 0x3f80")
    t("v_mov_b32 v13, 0x3f800000")
    return t.lines


def tail_dma(s, part="WA"):
    g = TSTEPS[s] == "G"
    sa, sw = (S_GA, S_GW) if g else (S_SA, S_SW)
    step = 1 if g else (2 if s != 14 else -13)
    op = "s_add_u32" if step > 0 else "s_sub_u32"
    out = []
    if "W" in part:
        base = TW_SLOT[s % 4]
        out += [f"s_add_u32 m0, s{S_M0W}, {base}"]
        out += [f"buffer_load_dwordx4 v{V_L16}, {sr(S_TW)}, s{sw} offen offset:{f*1024} sc1 lds ; @T{s}" for f in range(4)]
        out += [f"s_add_u32 m0, s{S_M0W}, {base+4096}", f"buffer_load_dwordx4 v{V_L4K}, {sr(S_TW)}, s{sw} offen sc1 lds ; @T{s}",
                f"{op} s{sw}, s{sw}, {abs(step)*WP_PAIR}"]
    if "A" in part:
        out += [f"s_mov_b32 m0, s{S_M0V + s % 4}"]
        out += [f"buffer_load_dwordx4 v{V_L16}, {sr(S_TA)}, s{sa} offen offset:{f*1024} sc1 lds ; @T{s}" for f in range(4)]
        out += [f"{op} s{sa}, s{sa}, {abs(step)*8192}"]
    return out


def tbuf(s):
    return 144 if s == 22 and OPT.get("merge", 1) else ((s + 1) % 2) * 72


def tail_reads(s):
    b = tbuf(s)
    wr, wo = (V_TRD + 5, 0) if s % 4 == 0 else (V_TRD + 4, TW_SLOT[s % 4])
    wl = [f"ds_read_b128 {ar(b+32+f*4,4)}, v{wr} offset:{wo+f*1024} ; @TR{s}" for f in range(10)]
    al = [f"ds_read_b128 {ar(b+f*4,4)}, v{V_TRD+f//2} offset:{(s%4)*16384+(f%2)*1024} ; @TR{s}" for f in range(8)]
    return wl[:2] + al + wl[2:]


def merge(a, b):
    pos = [i for i, x in enumerate(a) if x.startswith("buffer_")]
    out = list(a)
    for k in range(len(b) - 1, -1, -1):
        out.insert(pos[k * len(pos) // len(b)] + 1 if pos else 0, b[k])
    return out


def tail(e, ost):
    rsoff = [S_PS, S_M0A, S_KQ]

    def xfer(op, kind, base, soff, tag):
        v16, v8 = (V_L16, V_L8) if kind == "S" else (14, 15)
        return [f"buffer_{op}_dwordx4 {vr(base,4)}, v{v16}, {sr(S_PART)}, s{soff} offen sc1 ; @{tag}",
                f"buffer_{op}_dwordx4 {vr(base+4,4)}, v{v16}, {sr(S_PART)}, s{soff} offen offset:1024 sc1 ; @{tag}",
                f"buffer_{op}_dwordx2 {vr(base+8,2)}, v{v8}, {sr(S_PART)}, s{soff} offen offset:2048 sc1 ; @{tag}"]

    def pack(kind, k):
        out = [f"v_cvt_pk_bf16_f32 v{PK+(k-1)*10+2*nb+p}, v{ACC[kind][nb]+4*k+2*p}, v{ACC[kind][nb]+4*k+2*p+1}"
               for nb in range(5) for p in range(2)]
        return out

    def send(kind, k):
        return xfer("store", kind, PK + (k - 1) * 10, S_PS + k, "SEND" + kind)

    RCV = {"G": [ACC["G"][k] + 4 for k in range(3)], "S": [ACC["S"][k] + 4 for k in range(3)]}

    def recv1(kind, k):
        return xfer("load", kind, RCV[kind][k], rsoff[k], f"R{kind}{k}")

    def recv(kind):
        return [x for k in range(3) for x in recv1(kind, k)]

    def accumulate(kind):
        for k in range(3):
            if kind == "G":
                e(f"WAITVM R{kind}{k}")
            elif k == 0:
                e("s_waitcnt vmcnt(0)")
            b = RCV[kind][k]
            for nb in range(5):
                for r in range(4):
                    a = ACC[kind][nb] + r
                    e.safe(f"v_dot2_f32_bf16 v{a}, v{b+2*nb+r//2}, v{12+r%2}, v{a}")

    def atomic(val, soff):
        return f"buffer_atomic_add v{val}, v{V_SIG}, {sr(S_WS)}, s{soff} offen"

    poll_o = f"buffer_load_dword v{V_PVAL}, off, {sr(S_WS)}, s{S_POLLO} sc1"
    poll_p = f"buffer_load_dword v{V_PVAL}, off, {sr(S_WS)}, s{S_SIGP} sc1"
    poll_q = f"buffer_load_dword v{V_PVAL}, off, {sr(S_WS)}, s{S_SIGS} sc1"
    low = f"v_and_b32 v{V_PVAL}, 0xff, v{V_PVAL}"
    n = len(TSTEPS)
    SIGA, CHKA, SIGB, CHKB = OPT.get("siga", 1), OPT.get("chka", 3), OPT.get("sigb", 5), 11
    GSIG, GCHK = OPT.get("gsig", 14), OPT.get("gchk", 19)
    opace = OPT.get("opace", 2)
    gsend = [x for k in range(1, 4) for x in send("G", k)]
    xres = [x for k in range(3) for x in (f"s_add_u32 m0, s{S_M0V+3}, {k*1024}", f"buffer_load_dwordx4 v{28+k}, {sr(S_X)}, s{S_XO} offen lds ; @XRES")]
    late = recv("G")
    alu = tail_vector_late()
    last = n - 1 - OPT.get("merge", 1)
    for s in range(last + 1):
        b = tbuf(s)
        e(f"WAITLG TR{s if s < last else n - 1}")
        if s < last:
            e(f"WAITVM T{s+1 if s + 1 < last else n - 1}" + {SIGA: " OST0", SIGB: " OST1", CHKA: " POA", CHKB: " POB", GSIG: " SENDG", GCHK: " PG"}.get(s, ""))
            e("s_barrier")
        if OPT.get("tst") and s != CHKA and s not in (9, 13, 15):
            stamp(e)
        head, side = [], []
        assert s != 6 or not alu
        assert s != 7 or not ost
        if s == SIGA:
            head.append(atomic(V_ONE, S_SIGO))
        if s == SIGB:
            head.append(atomic(V_C256, S_SIGO))
        if s == GSIG:
            head.append(atomic(V_ONE, S_SIGP))
        if s == CHKA - 1:
            head.append(poll_o + " ; @POA")
        if s == CHKB - 2:
            head.append(poll_o + " ; @POB")
        if s == GCHK - OPT.get("gpoll", 2):
            head.append(poll_p + " ; @PG")
        if s == CHKA:
            stamp(e)
            for x in poll_check("M_poa", poll_o, [low, f"v_cmp_gt_u32 vcc, 8, v{V_PVAL}"]):
                e(x)
            stamp(e)
        if s == CHKB:
            for x in poll_check("M_pob", poll_o, [f"v_cmp_gt_u32 vcc, 0x800, v{V_PVAL}"]):
                e(x)
        if s == GCHK:
            for x in poll_check("M_pg", poll_p, [f"v_cmp_gt_u32 vcc, 4, v{V_PVAL}"]):
                e(x)
        mem = tail_dma(3, "A") if s == 0 else []
        if s == CHKA:
            for x in range(7, s + 4):
                mem += tail_dma(x, "A")
        if s + 4 < n:
            mem += tail_dma(s + 4, "W" if 7 <= s + 4 < CHKA + 4 else "WA")
        if ost:
            side, ost = ost[:opace], ost[opace:]
        if s == 7:
            alu += pack("G", 1) + pack("G", 2) + pack("G", 3)
        if s >= 8 and gsend:
            assert not alu
            k = OPT.get("gpace", 2)
            side, gsend = gsend[:k], gsend[k:]
        if s == 19:
            assert not mem
            side += xres
        if s == last:
            head += ["WAITVM XRES"] + [f"ds_read_b64 {vr(V_X+2*nb,2)}, v{V_XO} offset:{nb*32} ; @XRD" for nb in range(5)]
        if s >= GCHK:
            k = -(-len(late) // (last - s)) if s < last else 0
            side, late = side + late[:k], late[k:]
        mem = head + merge(mem, side)
        ds = [x for y in range(s + 1, s + 2 if s + 1 < last else n) for x in tail_reads(y)] if s < last else []
        first = s in (0, 7)
        acc_of = ACC[TSTEPS[s]]

        def chain(nb, rb, flip, b=b):
            acc = vr(acc_of[nb] + rb * 4, 4)
            return [mfma(acc, ar(b + 32 + (nb * 2 + t) * 4, 4), ar(b + (rb * 2 + t) * 4, 4), "0" if first and i == 0 else acc)
                    for i, t in enumerate((1, 0) if flip else (0, 1))]

        if s < last:
            mf = [m for nb in range(5) for i, rb in enumerate(snake(nb)) for m in chain(nb, rb, i % 2)]
            fixed = {(i // 3) * 4 + (0, 2, 3)[i % 3]: ([x], []) for i, x in enumerate(ds)}
            nvm = sum(x.startswith("buffer_") for x in mem)
            if nvm > 10:
                fixed = {2 * i: ([x], []) for i, x in enumerate(ds)}
            if len(ds) > 18:
                fixed = {2 * i: (ds[2 * i:2 * i + 2], []) for i in range(18)}
            interleave(e, mf, fixed, [mem, alu], space=4 if nvm <= 10 else 2)
            drain(e, [mem])
        else:
            for rb in (1, 2, 3, 0):
                bufs = [tbuf(y) for y in range(s, n)]
                mf = [m for nb in range(5) for bb in (bufs[::-1] if nb % 2 else bufs) for m in chain(nb, rb, nb % 2, bb)]
                interleave(e, mf, {}, [mem], space=OPT.get("sspace", 0))
                if rb:
                    mem += pack("S", rb) + send("S", rb)
            drain(e, [mem])
            e(poll_q)
    assert not gsend
    stamp(e)
    e(f"s_mov_b32 s6, {fbits(-LOG2E)}")
    e("s_mov_b32 s7, s6")

    def gate():
        accumulate("G")
        for nb in range(5):
            g = ACC["G"][nb]
            t = g + 4
            for p in range(2):
                e.safe(f"v_pk_mul_f32 {vr(t+2*p,2)}, {vr(g+2*p,2)}, s[6:7]")
            for r in range(4):
                e(f"v_exp_f32 v{t+r}, v{t+r}")
            for p in range(2):
                e(f"v_lshlrev_b32 v{t+4+2*p}, 16, v{V_X+2*nb+p}")
                e(f"v_and_b32 v{t+5+2*p}, 0xffff0000, v{V_X+2*nb+p}")
            for p in range(2):
                e(f"v_pk_add_f32 {vr(t+2*p,2)}, {vr(t+2*p,2)}, 1.0 op_sel_hi:[1,0]")
            for r in range(4):
                e(f"v_rcp_f32 v{t+r}, v{t+r}")
            for p in range(2):
                e.safe(f"v_pk_mul_f32 {vr(t+2*p,2)}, {vr(t+2*p,2)}, {vr(g+2*p,2)}")

    e("WAITLG XRD")
    gate()
    e("s_waitcnt vmcnt(0)")
    e("s_barrier")
    e(f"buffer_atomic_add v17, v16, {sr(S_WS)}, s{S_SIGP} offen")
    e("s_mov_b32 s4, 0")
    e("s_mov_b32 s3, 0x100000")
    e("M_gather:")
    e(f"v_readfirstlane_b32 s5, v{V_PVAL}")
    e("s_andn2_b32 s5, s5, s4")
    for k in range(3):
        e(f"s_bitcmp0_b32 s5, {k}")
        e(f"s_cbranch_scc1 M_skip{k}")
        for x in recv1("S", k):
            e(x)
        e(f"M_skip{k}:")
    e("s_or_b32 s4, s4, s5")
    e("s_cmp_eq_u32 s4, 7")
    e("s_cbranch_scc1 M_gathered")
    e(poll_q)
    e("s_sub_u32 s3, s3, 1")
    e("s_cmp_lg_u32 s3, 0")
    e("s_waitcnt vmcnt(0)")
    e("s_cbranch_scc1 M_gather")
    e("M_gathered:")
    stamp(e)
    accumulate("S")
    for nb in range(5):
        s = ACC["S"][nb]
        t = ACC["G"][nb] + 4
        for p in range(2):
            e.safe(f"v_pk_fma_f32 {vr(t+2*p,2)}, {vr(t+2*p,2)}, {vr(s+2*p,2)}, {vr(t+4+2*p,2)}")
        for p in range(2):
            e(f"v_cvt_pk_bf16_f32 v{t+4+p}, v{t+2*p}, v{t+2*p+1}")
        e(f"ds_write_b64 v24, {vr(t+4,2)} offset:{nb*32}")
    for n in range(3):
        e(f"ds_read_b128 {vr(PK+4*n,4)}, v{25+n} ; @OUT{n}")
    for n in range(3):
        e(f"WAITLG OUT{n}")
        e(f"buffer_store_dwordx4 {vr(PK+4*n,4)}, v{28+n}, {sr(S_OUT)}, s{S_XO} offen")


def attention(e, hst):
    m = V_M
    if len(hst) > 4:
        e(hst.pop(0))
    for i in range(8):
        for qb in range(4):
            b = V_S0 + qb * 16
            if i == 0:
                e(f"v_max_f32 v{m+qb}, v{b}, v{b+1}")
            else:
                e(f"v_max3_f32 v{m+qb}, v{m+qb}, v{b+2*i}, v{b+2*i+1}")
    e(f"s_mov_b32 s6, {fbits(-float(OPT.get('bias', 102)))}")
    e("WAITVM K1")
    e("M_restart:")
    e("s_barrier")
    for n in range(LK):
        e(k_read(1, n // 4, n % 4))
    for n in range(LV):
        for v in range(2):
            e(v_read(0, n // 2, n % 2, v))
    e(f"s_mov_b32 m0, s{S_M0K+3}")
    e(f"s_mov_b32 s{S_OFF}, {3*16384}")
    for n in range(2 + OPT.get("sh", 1)):
        e(k_dma(n))
    row_max_finish(e)
    e(f"s_mov_b32 s{S_CNT}, 8")
    if OPT.get("rmask", 128):
        e(f"s_andn2_b32 s7, {OPT.get('rmask', 128)}, s{S_RETRY}")
    for qb in range(4):
        b = V_S0 + qb * 16
        if hst:
            e(hst.pop(0))
        for p in range(8):
            e(f"v_pk_add_f32 {vr(b+2*p,2)}, {vr(b+2*p,2)}, {vr(V_NM+qb*4,2)}")
        for r in range(16):
            e(f"v_exp_f32 v{b+r}, v{b+r}")
        for p in range(8):
            e(f"v_cvt_pk_bf16_f32 v{V_P+qb*8+p}, v{b+2*p}, v{b+2*p+1}")
    assert not hst
    e("s_waitcnt lgkmcnt(0)")
    stamp(e)
    attn_step(e, 0, first=True)
    if OPT.get("ast"):
        stamp(e)
    e(".p2align 6")
    e("M_loop:")
    ra = OPT.get("rpos", 1)
    for j in (1, 2, 3, 0):
        attn_step(e, j)
        if OPT.get("rmask", 128) and j in (ra, (ra + 1) % 4):
            name = "M_shift" if j == ra else "M_rescale"
            e(f"s_cbranch_scc1 {name}")
            e(f"{name}_back:")
    e("s_cbranch_scc1 M_loop")
    if OPT.get("ast"):
        stamp(e)
    for x in poll_check("M_pa", POLL_A, [f"v_cmp_gt_u32 vcc, 32, v{V_PVAL}"]):
        e(x)
    mem = kv_tile("V", 31) + [f"v_add_u32 v{V_L4K}, 4096, v{V_L16}"] + tail_dma(0, "W")
    attn_step(e, 29, late=(mem, {10: (["s_waitcnt vmcnt(9)"], tail_dma(0, "A") + tail_dma(1, "W"))}))
    attn_step(e, 30, late=(mem, {10: (["WAITVM V31"], tail_dma(1, "A") + tail_dma(2, "W")),
                                 14: ([], tail_dma(2, "A") + tail_dma(3, "W"))}))
    if OPT.get("ast"):
        stamp(e)
    T = 24
    alu, rng, ost = [], [], []
    e("s_mov_b32 s6, 8192")

    def normalise(jp, every):
        for qb in range(4):
            for t in range(2):
                j = 2 * jp + t
                d = V_P + ((jp * 4 + qb) * 2 + t) * 4
                for u in range(2):
                    a = o_reg(2 * j + u, qb)
                    e.safe(f"v_pk_mul_f32 {vr(a,2)}, {vr(a,2)}, {vr(T+2*qb,2)} op_sel_hi:[1,0]")
                    e.safe(f"v_pk_mul_f32 {vr(a+2,2)}, {vr(a+2,2)}, {vr(T+2*qb,2)} op_sel_hi:[1,0]")
                for u in range(2):
                    a = o_reg(2 * j + u, qb)
                    e(f"v_cvt_pk_bf16_f32 v{d+2*u}, v{a}, v{a+1}")
                    e(f"v_cvt_pk_bf16_f32 v{d+2*u+1}, v{a+2}, v{a+3}")
                ost.append(f"buffer_store_dwordx4 {vr(d,4)}, v{V_L16 if qb < 2 else V_L4K}, {sr(S_ACT)}, {'s6' if jp else '0'} offen offset:{(qb%2)*2048+t*1024} sc1 ; @OST{jp}")
                if (qb * 2 + t) % every == 0:
                    e(ost.pop(0))

    mid = OPT.get("mid", 9)

    def extra(u):
        if u == 2:
            alu.extend(tail_vector_stream())
        if u == 6:
            for qb in range(4):
                alu.extend([f"v_accvgpr_read_b32 v{T+2*qb}, a{A_L+qb*4}", f"v_accvgpr_read_b32 v{T+2*qb+1}, a{A_L+qb*4+1}"])
            for qb in range(4):
                alu.append(f"v_add_f32 v{T+2*qb+1}, v{T+2*qb}, v{T+2*qb+1}")
            for qb in range(4):
                alu.append(f"v_rcp_f32 v{T+2*qb}, v{T+2*qb+1}")
        if u == mid:
            drain(e, [mem, alu, rng])
            normalise(0, OPT.get("oe0", 5))
        if u > mid and (u - mid) % OPT.get("oe1", 2) == 0:
            mem.append(ost.pop(0))
        if u >= 1:
            magnitude(u - 1)
        return [mem, alu, rng]

    def magnitude(u):
        for qb in ((u % 2) * 2, (u % 2) * 2 + 1):
            a = o_reg(u // 2, qb)
            third = f"v{V_MX+qb}" if u >= 2 else f"|v{a+1}|"
            rng.append(f"v_maximum3_f32 v{V_MX+qb}, |v{a}|, |v{a+1}|, {third}")
            rng.append(f"v_maximum3_f32 v{V_MX+qb}, |v{a+2}|, |v{a+3}|, v{V_MX+qb}")

    attn_step(e, 31, qk=False, extra=extra)
    magnitude(15)
    drain(e, [mem, alu, rng])
    stamp(e)

    e(f"v_maximum3_f32 v58, v{V_MX}, v{V_MX+1}, v{V_MX+2}")
    e(f"v_minimum3_f32 v59, v{V_MX}, v{V_MX+1}, v{V_MX+2}")
    e(f"v_maximum3_f32 v58, v58, v{V_MX+3}, v{T+1}")
    e(f"v_minimum3_f32 v59, v59, v{V_MX+3}, v{V_MX+3}")
    e(f"v_maximum3_f32 v58, v58, v{T+3}, v{T+5}")
    e(f"v_cmp_nle_f32 vcc, {fbits(O_LOW)}, v59")
    e(f"v_maximum3_f32 v58, v58, v{T+7}, v{T+7}")
    e("s_mov_b64 s[4:5], vcc")
    e(f"v_cmp_nge_f32 vcc, {fbits(L_LIMIT)}, v58")
    e(f"s_lshl_b32 s7, s{S_W}, 2")
    e(f"s_add_u32 s7, s7, {LDS_FLAG}")
    e("s_or_b64 s[4:5], s[4:5], vcc")
    e("s_or_b32 s4, s4, s5")
    e("v_mov_b32 v59, s7")
    e("v_mov_b32 v58, s4")
    e("ds_write_b32 v59, v58")
    e(f"v_mov_b32 v59, {LDS_FLAG}")
    if mid > 15:
        normalise(0, OPT.get("oe0", 5))
    e("s_waitcnt lgkmcnt(0)")
    e("WAITVM T0")
    e("s_barrier")
    e("ds_read_b128 v[60:63], v59 ; @FLG")
    for x in tail_reads(0):
        e(x)
    normalise(1, OPT.get("oe2", 3))
    e("WAITLG FLG")
    e("v_or_b32 v60, v60, v61")
    e("v_or3_b32 v60, v60, v62, v63")
    e.safe("v_readfirstlane_b32 s4, v60")
    e(f"s_andn2_b32 s4, s4, s{S_RETRY}")
    e("s_cbranch_scc1 M_fallback")
    return ost


def recentre(e):
    t, A_F = SBUF[0], A_RP + 8
    e("M_shift:")
    e("s_nop 1")
    for qb in range(4):
        e(f"v_accvgpr_read_b32 v{t+qb}, a{A_L+qb*4}")
        e(f"v_accvgpr_read_b32 v{t+4+qb}, a{A_L+qb*4+1}")
    steps = ["v_add_f32 v{a}, v{a}, v{b}", "v_frexp_exp_i32_f32 v{a}, v{a}", f"v_sub_u32 v{{a}}, {1 - OPT.get('bias', 102)}, v{{a}}",
             "v_min_i32 v{a}, 0, v{a}", "v_max_i32 v{a}, -126, v{a}", "v_ldexp_f32 v{b}, 1.0, v{a}", "v_cvt_f32_i32 v{a}, v{a}",
             "v_accvgpr_write_b32 a{f}, v{b}"]
    for x in steps:
        for qb in range(4):
            e(x.format(a=t + qb, b=t + 4 + qb, f=A_F + qb))
    for qb in range(4):
        sel = "op_sel_hi:[1,0]" if qb % 2 == 0 else "op_sel:[0,1] op_sel_hi:[1,1]"
        for p in range(2):
            e(f"v_pk_add_f32 {vr(V_NM+qb*4+2*p,2)}, {vr(V_NM+qb*4+2*p,2)}, {vr(t+(qb//2)*2,2)} {sel}")
    e("s_nop 0")
    e("s_branch M_shift_back")
    e("M_rescale:")
    for qb in range(4):
        e(f"v_accvgpr_read_b32 v{t+qb}, a{A_F+qb}")
    for q0 in (0, 2):
        for i in range(4):
            e(f"v_accvgpr_read_b32 v{t+4+i}, a{A_L+(q0+i//2)*4+i%2}")
        for i in range(4):
            e(f"v_mul_f32 v{t+4+i}, v{t+4+i}, v{t+q0+i//2}")
        for i in range(4):
            e(f"v_accvgpr_write_b32 a{A_L+(q0+i//2)*4+i%2}, v{t+4+i}")
    for db in range(8):
        for qb in range(4):
            sel = "op_sel_hi:[1,0]" if qb % 2 == 0 else "op_sel:[0,1] op_sel_hi:[1,1]"
            for p in range(2):
                a = o_reg(db, qb) + 2 * p
                e(f"v_pk_mul_f32 {vr(a,2)}, {vr(a,2)}, {vr(t+(qb//2)*2,2)} {sel}")
    e("s_branch M_rescale_back")


def fallback(e):
    m = V_M
    e("M_fallback:")
    e(f"s_mov_b32 s{S_RETRY}, -1")
    e(f"s_mov_b32 s{S_SIGA}, {OOB}")
    e(f"s_mov_b32 s{S_ACTH+2}, 0")
    e(f"s_sub_u32 s{S_GA}, s{S_GA}, {3*8192}")
    e(f"s_sub_u32 s{S_GW}, s{S_GW}, {4*WP_PAIR}")
    for qb in range(4):
        e(f"v_mov_b32 v{m+qb}, 0xff800000")
    e(f"s_mov_b32 s{S_OFF}, 0")
    e("M_maxloop:")
    e("s_waitcnt vmcnt(0) lgkmcnt(0)")
    e("s_barrier")
    e(f"s_mov_b32 m0, s{S_M0K}")
    e("s_nop 0")
    for n in range(4):
        e(k_dma(n))
    e("s_waitcnt vmcnt(0)")
    e("s_barrier")
    for kb in range(4):
        for ks in range(4):
            e(k_read(0, kb, ks))
        e("s_waitcnt lgkmcnt(0)")
        for qb in range(4):
            d = vr(V_P + qb * 4, 4)
            for ks in range(4):
                e(mfma(d, ar(A_KF + (kb * 4 + ks) * 4, 4), ar(A_Q + (qb * 4 + ks) * 4, 4), "0" if ks == 0 else d))
        e("s_nop 7")
        for qb in range(4):
            b = V_P + qb * 4
            e(f"v_max3_f32 v{m+qb}, v{m+qb}, v{b}, v{b+1}")
            e(f"v_max3_f32 v{m+qb}, v{m+qb}, v{b+2}, v{b+3}")
    e(f"s_add_u32 s{S_OFF}, s{S_OFF}, 16384")
    e(f"s_cmp_lt_u32 s{S_OFF}, 524288")
    e("s_cbranch_scc1 M_maxloop")
    e("s_barrier")
    for w, t in (("K", 0), ("K", 1), ("K", 2), ("V", 0), ("V", 1)):
        for x in kv_tile(w, t):
            e(x)
    e("s_waitcnt vmcnt(0)")
    e("s_barrier")
    for kb in range(4):
        for ks in range(4):
            e(k_read(0, kb, ks))
    e("s_waitcnt lgkmcnt(0)")
    for x in first_scores():
        e(x)
    for r in range(16):
        e(f"v_accvgpr_write_b32 a{A_L+r}, 0")
    e("s_mov_b32 s6, 0")
    e("s_branch M_restart")


HEADER = """
; One persistent launch, 256 workgroups x 4 waves, one workgroup per CU; workgroup = (head, 256 query rows).
;  1. Projection: [Q_head | 64 columns of FFN1] = x @ [wq | w1] on raw x. LayerNorm is applied to the accumulators,
;     (acc - mean * colsum(W)) / std; row statistics are computed once (8 rows per workgroup) and handed over in d_ws.
;     Softmax reference: the true row maximum of the first 64 keys (plus a constant exponent offset), raised once
;     to the running row sum by an exact power of two. Any term lost to underflow is below half an fp32 ulp of the
;     running sum. After the last tile the row sums and accumulators are range-checked; if a sum overflowed or the
;     accumulators came near the underflow limit, the workgroup computes the true maximum over all keys and redoes
;     the pass with it (M_fallback).
;     wo and w2 are repacked into MFMA fragment order in d_ws inside the loop.
; Hand-offs: write-through stores, vmcnt wait, barrier, atomic counter; consumers poll, then use sc1 loads.
; Counters in d_ws are zeroed by this launch before the first arrival on the counters in d_debug.
"""


def build():
    e = Asm()
    for l in open(f"cdna_kernels/{NAME}.s.ref").read().split("\n"):
        if not l.startswith(";"):
            break
        if "@launch" not in l:
            e(l)
    e("; @launch grid=(256,1,1) block=(256,1,1) lds=163840")
    e(HEADER)
    e('.amdgcn_target "amdgcn-amd-amdhsa--gfx950"')
    e(".text")
    e(f".globl {KERNEL}")
    e(".p2align 8")
    e(f".type {KERNEL},@function")
    e(f"{KERNEL}:")
    e("; ---- setup and first loads")
    carry = setup(e)
    phase1(e, carry)
    e("; ---- layernorm on the accumulators, Q fragments, H = silu(.), scores of the first key tile")
    hst = proj_epilogue(e)
    stamp(e)
    e("; ---- attention")
    ost = attention(e, hst)
    stamp(e)
    tail(e, ost)
    stamp_flush(e)
    e("M_exit:")
    e("s_endpgm")
    emit_spins(e)
    if OPT.get("rmask", 128):
        recentre(e)
    e("M_hot_end:")
    e("; ---- exact row maximum over all keys, then repeat the attention pass")
    fallback(e)
    e('.section .rodata,"a"')
    e(".p2align 6")
    e(f".amdhsa_kernel {KERNEL}")
    for d in ("next_free_vgpr 512", "next_free_sgpr 102", "accum_offset 256", "group_segment_fixed_size 0", "kernarg_size 88",
              "user_sgpr_count 2", "user_sgpr_kernarg_segment_ptr 1", "system_sgpr_workgroup_id_x 1"):
        e(f".amdhsa_{d}")
    e(".end_amdhsa_kernel")
    e.resolve()
    if OPT.get("jitter"):
        import random
        rnd = random.Random(OPT["jitter"])
        out, n = [], 0
        for l in e.lines:
            site = l.startswith(("s_barrier", "buffer_atomic")) or (l.startswith("buffer_store") and rnd.random() < 0.2)
            if site and rnd.random() < 0.7:
                n += 1
                pre = ["s_cselect_b32 s99, 1, 0", f"s_mul_i32 s98, s2, {rnd.randrange(3, 1000, 2)}", f"s_add_u32 s98, s98, s{S_W}",
                       f"s_mul_i32 s98, s98, {rnd.randrange(3, 1000, 2)}", f"s_bitcmp1_b32 s98, {rnd.randrange(0, 4)}",
                       f"s_cbranch_scc0 J{n}", f"s_sleep {rnd.choice([1, 3, 10, 30, 60])}", f"J{n}:", "s_cmp_lg_u32 s99, 0"]
                out += pre + [l] if rnd.random() < 0.5 else [l] + pre
            else:
                out.append(l)
        e.lines = out
    errs = []
    errs += check_trace(e.trace(KERNEL, {"M_loop": [True, True, False], "M_gathered": [True], "M_nost2": [False, True, False], "M_nost6": [False, True, False], "M_shift": [False, True], "M_rescale": [False, True]}), "fast")
    errs += check_trace(e.trace(KERNEL, {"M_loop": [True, False, True, False], "M_fallback": [True, False], "M_maxloop": [True, False],
                                         "M_ps_spin": [True], "M_pa_spin": [True, True], "M_poa_spin": [True], "M_pob_spin": [True], "M_poa_back": [True], "M_pob_back": [True], "M_skip0": [True, False], "M_skip1": [False, True], "M_skip2": [False, True], "M_gather": [True], "M_gathered": [False, True], "M_pg_spin": [True], "M_pg_back": [True],
                                         "M_ps_back": [True], "M_pa_back": [True, True]}), "slow")
    return e.text(), errs


if __name__ == "__main__":
    if "--stamps" in sys.argv:
        sys.argv.remove("--stamps")
        STAMPS = True
    for a in [x for x in sys.argv if "=" in x]:
        sys.argv.remove(a)
        k, v = a.split("=")
        OPT[k] = int(v)
    text, errs = build()
    for x in errs[:6]:
        print(x)
    out = sys.argv[1] if len(sys.argv) > 1 else f"cdna_kernels/{NAME}.s"
    open(out, "w").write(text)
    print("wrote", out, len(text), "bytes;", len(errs), "check findings; stamps", nstamp[0])
```

```python
import sys, struct
from asm import Asm, check_trace

NAME = "recurrent_scan__gqa_block_cached__dense_activation_silu__prompt"
KERNEL = NAME + "_kernel"
WS_MISC = 0
MISC_CNTA, MISC_CNTO, MISC_CNTP, MISC_SIZE = 16384, 20480, 28672, 45056
WS_ACT = 4 << 20
WS_WP = 32 << 20
WS_STAMP = 64 << 20
WS_PART = 96 << 20
PART_SRC, PART_WAVE, PART_DST, PART_TILE = 2560, 16384, 65536, 262144
NPAIR = 91
ACT_RG = NPAIR * 8192
WP_PAIR = 81920
SRD3 = "0x00020000"
OOB = 0x1000000
LOG2E = 1.4426950408889634
L_LIMIT = 2.0 ** 120
O_LOW = 2.0 ** -110
STAMPS = False
OPT = {}

S_X, S_WQ, S_W1, S_K, S_V, S_ACT, S_ACTH, S_DBG, S_WS, S_R0, S_R1, S_WP, S_TA, S_TW, S_OUT = range(8, 68, 4)
S_M0K, S_M0V = 68, 72
S_W, S_HEAD, S_QT, S_W4K, S_OFF, S_CNT, S_RETRY = range(76, 83)
S_RSRC, S_RSRC2, S_RDST, S_M0R = 83, 84, 85, 86
S_GA, S_GW, S_SA, S_SW, S_XO = range(87, 92)
S_SIGS, S_SIGA, S_SIGO, S_POLLO = 92, 93, 94, 95
S_W2K, S_W8K = 100, 101
P_IN = 52
S_PART, S_KQ, S_SIGP, S_M0A, S_M0W, S_PS = 48, 12, 13, 14, 15, 16
V_L16 = 1
V_KRD, V_VRD, V_KDMA, V_VDMA = 2, 6, 14, 18
V_STAMP, V_IDX, V_ONES, V_NM, V_P, V_O = 34, 35, 36, 40, 64, 128
SBUF = [56, 60, 24, 28]
V_POFF, V_PVAL, V_ONE, V_SIG = 20, 21, 32, 33
V_XDMA, V_XRD = 20, 24
V_RDMA, V_RRD = 22, 23
V_WQRD, V_W1RD, V_WQDMA, V_W1DMA, V_ST = 40, 48, 52, 56, 52
A_Q, A_KF, A_VF, A_L = 0, 64, 128, 160
A_XF, A_WF, A_CS, A_RP = 64, 128, 192, 176
LDS_K, LDS_V, LDS_W1 = 0, 65536, 131072
LDS_CS = LDS_W1 + 3 * 8192
LDS_FLAG = 163840 - 16
WQ_SLOT = [LDS_V + 3 * 16384, LDS_V + 2 * 16384, LDS_K + 2 * 16384, LDS_K + 3 * 16384]
X_SLOT = [LDS_V, LDS_K]
LK = LV = 5


def fbits(x):
    return "0x%08x" % struct.unpack("<I", struct.pack("<f", x))[0]


def vr(b, n=1):
    return f"v{b}" if n == 1 else f"v[{b}:{b+n-1}]"


def ar(b, n=1):
    return f"a{b}" if n == 1 else f"a[{b}:{b+n-1}]"


def sr(b, n=4):
    return f"s[{b}:{b+n-1}]"


def srd(e, d, src, off, size):
    if off is not None:
        e(f"s_add_u32 s{d}, s{src}, {off}")
        e(f"s_addc_u32 s{d+1}, s{src+1}, 0")
    elif src != d:
        e(f"s_mov_b32 s{d}, s{src}")
        e(f"s_mov_b32 s{d+1}, s{src+1}")
    e(f"s_mov_b32 s{d+2}, {size}")
    e(f"s_mov_b32 s{d+3}, {SRD3}")


def mfma(d, a, b, c):
    return f"v_mfma_f32_16x16x32_bf16 {d}, {a}, {b}, {c}"


def smfmac(d, b):
    return f"v_smfmac_f32_16x16x64_bf16 {d}, {vr(V_ONES,4)}, {b}, v{V_IDX}"


nstamp = [0]


def stamp(e):
    if STAMPS:
        i = nstamp[0]
        nstamp[0] += 1
        e("s_memrealtime s[96:97]")
        e("s_memtime s[98:99]")
        e("s_waitcnt lgkmcnt(0)")
        e(f"v_writelane_b32 v{V_STAMP}, s96, {2*i}")
        e(f"v_writelane_b32 v{V_STAMP}, s98, {2*i+1}")


def stamp_flush(e):
    if not STAMPS:
        return
    e("s_waitcnt vmcnt(0) lgkmcnt(0)")
    stamp(e)
    srd(e, 8, S_WS, WS_STAMP - WS_MISC, 262144)
    e("s_lshl_b32 s12, s2, 2")
    e(f"s_add_u32 s12, s12, s{S_W}")
    e("s_lshl_b32 s12, s12, 8")
    e(f"v_lshrrev_b32 v2, 2, v{V_L16}")
    e(f"buffer_store_dword v{V_STAMP}, v2, s[8:11], s12 offen")
    if "ea" in OPT:
        k = OPT.get("ecyc", 0)
        e(f"v_readlane_b32 s4, v{V_STAMP}, {2*OPT['ea']+k}")
        e(f"v_readlane_b32 s5, v{V_STAMP}, {2*OPT['eb']+k}")
        e("s_nop 3")
        e("s_sub_u32 s5, s5, s4")
        if k:
            e("s_mul_i32 s5, s5, 3277")
            e("s_lshr_b32 s5, s5, 16")
        e("s_add_u32 s5, s5, s96")
        e("M_echo:")
        e("s_memrealtime s[6:7]")
        e("s_waitcnt lgkmcnt(0)")
        e("s_sub_u32 s4, s6, s5")
        e("s_cmp_lt_i32 s4, 0")
        e("s_cbranch_scc1 M_echo")


def kind_of(x):
    if x.startswith("buffer_"):
        return "vm"
    if x.startswith("ds_"):
        return "ds"
    if x.startswith(("v_exp", "v_rcp", "v_sqrt", "v_permlane")):
        return "slow"
    return "valu" if x.startswith("v_") else "scalar"


prev_valu = [False]


def interleave(e, mf, fixed, streams, cap=2, quota=99, space=0):
    last_vm = -space
    for i, m in enumerate(mf):
        e.safe(m)
        pre, post = fixed.get(i, ([], []))
        items = post + pre
        shadow, used, valu = True, 0, False

        def emit(x, safe=False):
            nonlocal shadow, used, valu
            k = kind_of(x)
            (e.safe if safe else e)(x)
            if not (k == "scalar" and shadow):
                used += 2 if k in ("vm", "slow") else 1
            used += x.count("\ns_")
            shadow = False
            valu |= k in ("valu", "slow")

        if not (items and kind_of(items[0]) == "scalar"):
            for s in streams:
                if s and kind_of(s[0]) == "scalar" and e.hazard_free(s[0]):
                    emit(s.pop(0))
                    break
        for x in items:
            emit(x, True)
        want_vm = quota > 0 and i + 1 - last_vm >= space and any(
            s and "vm" in [kind_of(y) for y in s[:2]] for s in streams) and i + 1 not in fixed
        progress = True
        while used < cap and progress:
            progress = False
            for kinds in (("vm", "ds", "scalar"), ("valu", "slow"), ("scalar",)):
                for s in streams:
                    if not s or kind_of(s[0]) not in kinds:
                        continue
                    k = kind_of(s[0])
                    if k == "scalar" and len(kinds) > 1 and s is streams[-1]:
                        continue
                    if used + (2 if k in ("vm", "slow") else 1) > cap or not e.hazard_free(s[0]):
                        continue
                    if k == "vm" and (valu or prev_valu[0] or quota == 0 or i - last_vm < space):
                        continue
                    if k == "ds" and valu:
                        continue
                    if k in ("valu", "slow") and want_vm and not valu:
                        continue
                    if k == "vm":
                        last_vm = i
                        quota -= 1
                        want_vm = want_vm and space <= 1 and quota > 0
                    emit(s.pop(0))
                    progress = True
                    break
                if progress:
                    break
        prev_valu[0] = valu


def drain(e, streams):
    for s in streams:
        while s:
            e.safe(s.pop(0))


def snake(k):
    return (3, 2, 1, 0) if k % 2 and OPT.get("snake", 1) else (0, 1, 2, 3)


def o_reg(db, qb):
    return V_O + (db * 4 + qb) * 4


KVF = ["", " sc1", " nt", " sc0", " sc0 sc1"]


def k_dma(n, tag=""):
    return f"buffer_load_dwordx4 v{V_KDMA+n}, {sr(S_K)}, s{S_OFF} offen offset:{n*1024}{KVF[OPT.get('kvf', 0)]} lds{tag}"


def v_dma(n, tag=""):
    return f"buffer_load_dwordx4 v{V_VDMA+(n&1)}, {sr(S_V)}, s{S_OFF} offen offset:{n*1024}{KVF[OPT.get('kvf', 0)]} lds{tag}"


def k_read(tile, kb, ks):
    return f"ds_read_b128 {ar(A_KF+(kb*4+ks)*4,4)}, v{V_KRD+ks} offset:{(tile%4)*16384+kb*4096}"


def v_read(tile, db, t, v):
    return f"ds_read_b64_tr_b16 {ar(A_VF+((db%4)*2+t)*4+2*v,2)}, v{V_VRD+db} offset:{(tile%4)*16384+t*8192+v*4096}"


def kv_tile(which, tile):
    tag = f" ; @{which}{tile}"
    out = [f"s_mov_b32 m0, s{(S_M0K if which == 'K' else S_M0V) + tile % 4}", f"s_mov_b32 s{S_OFF}, {tile*16384}"]
    return out + [(k_dma if which == "K" else v_dma)(n, tag) for n in range(4)]


spins = []


def poll_check(name, load, cond):
    spins.append((name, load, cond))
    return cond + [f"s_cbranch_vccnz {name}_spin\n{name}_back:"]


def emit_spins(e):
    for name, load, cond in spins:
        e(f"{name}_spin:")
        e("s_mov_b32 s3, 0x100000")
        e(f"{name}_loop:")
        if OPT.get("slp", 0):
            e(f"s_sleep {OPT['slp']}")
        e(load)
        e("s_waitcnt vmcnt(0)")
        for x in cond:
            e(x)
        e(f"s_cbranch_vccz {name}_back")
        e("s_sub_u32 s3, s3, 1")
        e("s_cmp_lg_u32 s3, 0")
        e(f"s_cbranch_scc1 {name}_loop")
        e(f"s_branch {name}_back")


POLL_A = f"buffer_load_dword v{V_PVAL}, v{V_POFF}, {sr(S_WS)}, 0 offen sc1"


S_RB = S_DBG


def repack_offsets():
    return [f"s_mul_i32 s3, s{S_RB}, 52429", "s_lshr_b32 s3, s3, 18", f"s_mul_i32 s{S_RSRC}, s3, 39680", f"s_lshl_b32 s4, s{S_RB}, 8",
            f"s_add_u32 s{S_RSRC}, s{S_RSRC}, s4", f"s_add_u32 s{S_RSRC2}, s{S_RSRC}, 4096", f"s_lshl_b32 s{S_RDST}, s{S_RB}, 14",
            "s_mul_i32 s4, s3, 40960", f"s_sub_u32 s{S_RDST}, s{S_RDST}, s4", "s_and_b32 s3, s3, 1", "s_mul_i32 s3, s3, 39936",
            f"s_sub_u32 s{S_RDST}, s{S_RDST}, s3", f"s_add_u32 s{S_RDST}, s{S_RDST}, s{S_W4K}"]


def attn_step(e, j, qk=True, first=False, extra=None, late=None):
    pw = V_P + ((j + 1) % 2) * 32
    pr = V_P + (j % 2) * 32
    pv = True

    def pdst(x):
        on, base = (qk, pw) if x >= 0 else (not first, pr)
        x %= 16
        return on, base + (x % 4) * 8 + (x // 4) * 2, SBUF[x % 4]

    for u in range(16):
        def qk_chain(x, rev):
            kb, qb, d = x // 4, x % 4, vr(SBUF[x % 4], 4)
            return [mfma(d, ar(A_KF + (kb * 4 + ks) * 4, 4), ar(A_Q + (qb * 4 + ks) * 4, 4), d if i else vr(V_NM + qb * 4, 4))
                    for i, ks in enumerate((3, 2, 1, 0) if rev else (0, 1, 2, 3))]

        def pv_chains(x, rev=False):
            out, db = [], x // 2
            for h in range(2):
                q2 = (x % 2) * 2 + (1 - h if rev else h)
                o = vr(o_reg(db, q2), 4)
                for t in ((0, 1) if h == 0 else (1, 0)):
                    out.append(mfma(o, ar(A_VF + ((db % 4) * 2 + t) * 4, 4), vr(pr + q2 * 8 + t * 4, 4), "0" if first and t == h else o))
            return out

        if not qk:
            M = [None] * 4 + pv_chains(u)
        elif not OPT.get("sup", 2):
            M = qk_chain(u, False) + pv_chains(u)
        elif OPT.get("sup", 2) == 2:
            x = (u // 4) * 4 + (u % 2) * 2
            if u % 4 < 2:
                M = qk_chain(x, False) + qk_chain(x + 1, True)
            elif u % 4 == 2:
                M = pv_chains(x) + pv_chains(x + 1)
            else:
                M = pv_chains(x + 1, True) + pv_chains(x, True)
        elif u % 2 == 0:
            M = qk_chain(u, False) + qk_chain(u + 1, True)
        else:
            M = pv_chains(u - 1) + pv_chains(u)
        F = [[] for _ in range(8)]
        sc = []
        nreads = 0
        n = u + LK
        if qk and not (j == 30 and n >= 16):
            F[2].append(k_read(j + 1 + n // 16, (n % 16) // 4, n % 4))
            nreads += 1
        n = u + LV
        if n < 16 or qk:
            F[5].append(v_read(j + n // 16, (n % 16) // 2, n % 2, 0))
            F[6].append(v_read(j + n // 16, (n % 16) // 2, n % 2, 1))
            nreads += 2
        on, p, sb = pdst(u - 1)
        if on:
            for r in range(4):
                F[(0, 1, 3, 4)[r]].append(f"v_exp_f32 v{sb+r}, v{sb+r}")
            F[5].append(f"v_cvt_pk_bf16_f32 v{p}, v{sb}, v{sb+1}")
        on, p, sb = pdst(u - 2)
        if on:
            F[2].append(f"v_cvt_pk_bf16_f32 v{p+1}, v{sb+2}, v{sb+3}")
        post = []
        sh = OPT.get("sh", 1)
        ud, up = (u + 2 * sh) % 16, u + sh
        if late:
            q, syncs = late
            while q and kind_of(q[0]) == "scalar" and len(sc) < 6:
                sc.append(q.pop(0))
            if q:
                F[7].append(q.pop(0))
            if up in syncs:
                wait, more = syncs[up]
                assert j != 29 or not any(kind_of(x) == "vm" for x in q)
                post += wait + ["s_barrier"]
                q.extend(more)
            elif up % 4 == 2 and q and kind_of(q[0]) == "vm":
                post.append(q.pop(0))
        elif qk:
            if up == 10:
                post += ["WAITVM K2" if first else f"s_waitcnt vmcnt({[9 + sh, 10 - sh, 9, 8 if OPT.get('skip', 1) else 10][j % 4]})", "s_barrier"]
            if ud == 12:
                sc += [f"s_add_u32 s{S_OFF}, s{S_OFF}, 32768", f"s_mov_b32 m0, s{S_M0K + j % 4}"]
            if ud in (12, 14):
                F[7].append(k_dma((ud - 12) // 2))
            if ud in (0, 2):
                F[7].append(k_dma(2 + ud // 2))
            if ud == 4:
                sc += [f"s_sub_u32 s{S_OFF}, s{S_OFF}, 16384", f"s_mov_b32 m0, s{S_M0V + (j + 2) % 4}"]
            if ud in (4, 6, 8, 10):
                F[7].append(v_dma((ud - 4) // 2))
            if j % 4 == 0:
                if ud in (3, 11):
                    sc.append(f"s_mov_b32 m0, s{S_M0R}")
                if ud == 3:
                    F[7].append(f"buffer_load_dwordx4 v{V_RDMA}, {sr(S_R0)}, s{S_RSRC} offen lds")
                if ud == 11:
                    F[7].append(f"buffer_load_dwordx4 v{V_RDMA}, {sr(S_R0)}, s{S_RSRC2} offen offset:1024 lds")
                if ud == 13:
                    sc += [f"s_cmp_gt_u32 s{S_CNT}, 5", f"s_cselect_b32 s{S_R0+2}, s{S_R0+2}, 0"]
                if up == 14:
                    sc += [f"s_cmp_eq_u32 s{S_CNT}, 4", f"s_cselect_b32 s5, s{S_SIGA}, {OOB}"]
                    post.append(f"buffer_atomic_add v{V_ONE}, v{V_SIG}, {sr(S_WS)}, s5 offen")
                if u == 15 and not first:
                    sc.append(f"s_cmp_gt_u32 s{S_CNT}, 1")
            if j % 4 == 2:
                if up == 6:
                    post.append(POLL_A)
                if 11 <= u < 15:
                    k = u - 11
                    F[6].append(f"ds_read_b64_tr_b16 {ar(A_RP+2*k,2)}, v{V_RRD} offset:{(k//2)*32+(k%2)*4096}")
                    nreads += 1
            if j % 4 == 3 and u == 0:
                sc.append(f"s_sub_u32 s{S_CNT}, s{S_CNT}, 1")
            if j % 4 in (1, 2) and u == 15 and OPT.get("rmask", 128):
                sc.append(f"s_bitcmp1_b32 s7, s{S_CNT}")
            if j % 4 == 3:
                if up in (2, 6):
                    st = f"buffer_store_dwordx4 {ar(A_RP+(up//4)*4,4)}, v{V_L16}, {sr(S_WP)}, s{S_RDST} offen offset:{(up//4)*2048} sc1"
                    if OPT.get("skip", 1):
                        sc.append(f"s_cmp_eq_u32 s{S_WP+2}, 0")
                        post += [f"s_cbranch_scc1 M_nost{up}", st, f"M_nost{up}:"]
                    else:
                        post.append(st)
                if u == 7:
                    sc += [f"s_cmp_gt_u32 s{S_CNT}, 4", f"s_cselect_b32 s{S_WP+2}, s{S_WP+2}, 0", f"s_add_u32 s{S_RB}, s{S_RB}, 1"]
                if u in (11, 13):
                    sc += repack_offsets()[(u - 11) // 2 * 7:][:7]
        for i, x in enumerate(sc):
            F[i].insert(0, x)
        if u % 2 == 1:
            F[7].insert(0, f"s_waitcnt lgkmcnt({nreads})")
        if qk and not late and not first:
            drop = tuple(p for k, p in (("nodma", "buffer_"), ("nobar", "s_barrier"), ("novm", "s_waitcnt vmcnt"), ("nolg", "s_waitcnt lgkm"), ("nods", "ds_"), ("nost", "buffer_store"), ("norp", "buffer_load_dwordx4 v22")) if OPT.get(k))
            if drop:
                keep = lambda x: not x.startswith(drop) or "atomic" in x or x == POLL_A
                F = [[x for x in f if keep(x)] for f in F]
                post = [x for x in post if keep(x)]
        if qk:
            for i in range(8):
                e(M[i])
                for x in F[i]:
                    e.safe(x)
        else:
            for x in F[0] + F[1] + F[2] + F[3] + F[4]:
                e.safe(x)
            fixed = {}
            if F[5]:
                fixed[0] = (F[5][:1] + F[6] + F[5][1:], [])
            if 2 <= u < 6:
                M.append(smfmac(ar(A_L + (u - 2) * 4, 4), vr(pr + (u - 2) * 8, 8)))
            interleave(e, M[4:], fixed, extra(u), cap=OPT.get("fcap", 3), quota=OPT.get("fq", 2))
            for x in F[7]:
                e(x)
        if qk and up % 4 == 2:
            q2 = u // 4
            e(smfmac(ar(A_L + q2 * 4, 4), vr(pr + q2 * 8, 8)))
        for x in post:
            e(x)


V_M = 24


def row_max_finish(e):
    m, t = V_M, V_M + 4
    for swap in ("v_permlane32_swap_b32", "v_permlane16_swap_b32"):
        for qb in range(4):
            e(f"v_mov_b32 v{t+qb}, v{m+qb}")
        for qb in range(4):
            e(f"{swap} v{m+qb}, v{t+qb}")
        for qb in range(4):
            e(f"v_max_f32 v{m+qb}, v{m+qb}, v{t+qb}")
    for qb in range(4):
        sel = "op_sel_hi:[0,0]" if qb % 2 == 0 else "op_sel:[0,1] op_sel_hi:[0,1]"
        for p in range(2):
            e(f"v_pk_add_f32 {vr(V_NM+qb*4+2*p,2)}, s[6:7], {vr(m+(qb//2)*2,2)} {sel} neg_lo:[0,1] neg_hi:[0,1]")


def x_dma(c):
    out = []
    for h in range(2):
        out += [f"s_add_u32 m0, s{S_W8K}, {X_SLOT[c%2] + h*4096}", f"s_mov_b32 s{S_OFF}, {c*128 + h*40960}"]
        out += [f"buffer_load_dwordx4 v{V_XDMA+n}, {sr(S_X)}, s{S_OFF} offen offset:{n*1024} lds ; @X{c}" for n in range(4)]
    return out


def w_dma(c):
    out = [f"s_add_u32 m0, s{S_W4K}, {WQ_SLOT[c%4]}", f"s_mov_b32 s{S_OFF}, {c*64*8192}"]
    out += [f"buffer_load_dwordx4 v{V_WQDMA+n}, {sr(S_WQ)}, s{S_OFF} offen offset:{n*1024} lds ; @W{c}" for n in range(4)]
    out += [f"s_add_u32 m0, s{S_W2K}, {LDS_W1+(c%4)*8192}", f"s_mov_b32 s{S_OFF}, {c*64*3456}"]
    out += [f"buffer_load_dwordx4 v{V_W1DMA+n}, {sr(S_W1)}, s{S_OFF} offen offset:{n*1024} lds ; @W{c}" for n in range(2)]
    return out


def x_read(c):
    out = [f"ds_read_b128 {ar(A_XF+(c%2)*32+(qb*2+t)*4,4)}, v{V_XRD+t} offset:{qb*2048} ; @XR{c}" for qb in range(4) for t in range(2)]
    return out + [f"v_xor_b32 v{V_XRD+t}, 0x10000, v{V_XRD+t}" for t in range(2)]


def code_prefetch(e):
    e("s_getpc_b64 s[6:7]")
    e("M_pc:")
    e("s_lshr_b32 s3, s2, 3")
    e("s_lshl_b32 s3, s3, 11")
    e("v_lshl_add_u32 v60, v62, 3, s3")
    e("v_min_u32 v60, M_hot_end-M_pc-4, v60")
    e("v_mov_b32 v61, 0")
    e("v_lshl_add_u64 v[60:61], v[60:61], 0, s[6:7]")
    e("global_load_dword v63, v[60:61], off ; nocheck")


def setup(e):
    if STAMPS:
        e("s_memrealtime s[92:93]")
        e("s_memtime s[94:95]")
    e(f"s_load_dwordx16 {sr(P_IN,16)}, s[0:1], 0")
    e("s_cmp_ge_u32 s2, 256")
    e("s_cbranch_scc1 M_exit")
    e("v_lshrrev_b32 v31, 6, v0")
    e("v_mov_b32 v62, v0")
    e(f"v_readfirstlane_b32 s{S_W}, v31")
    if OPT.get("pf", 2) == 1:
        code_prefetch(e)
    e("v_and_b32 v0, 63, v0")
    e(f"s_lshr_b32 s{S_QT}, s2, 5")
    e("v_lshrrev_b32 v29, 4, v0")
    e("v_lshrrev_b32 v30, 3, v0")
    e("v_and_b32 v31, 7, v0")
    e(f"s_lshl_b32 s{S_W8K}, s{S_W}, 13")
    e(f"s_lshl_b32 s5, s{S_QT}, 2")
    e(f"s_add_u32 s5, s5, s{S_W}")
    e("s_mul_i32 s6, s5, 81920")
    e("v_mul_u32_u24 v26, 1280, v30")
    e("v_add_u32 v26, s6, v26")
    e("v_xor_b32 v27, v31, v29")
    e(f"v_lshl_add_u32 v{V_XDMA}, v27, 4, v26")
    e(f"v_add_u32 v{V_XDMA+2}, {2*(10240-1024)}, v{V_XDMA}")
    e(f"v_xor_b32 v27, 64, v{V_XDMA}")
    e(f"v_add_u32 v{V_XDMA+1}, {10240-1024}, v27")
    e(f"v_add_u32 v{V_XDMA+3}, {3*(10240-1024)}, v27")
    e(f"s_mov_b32 s{S_X+2}, 2621440")
    e(f"s_mov_b32 s{S_X+3}, {SRD3}")
    first = x_dma(0)
    pre = Asm()
    pre("s_and_b32 s3, s2, 7")
    pre("s_bfe_u32 s7, s2, 0x20003")
    pre(f"s_lshl_b32 s{S_HEAD}, s3, 2")
    pre(f"s_add_u32 s{S_HEAD}, s{S_HEAD}, s7")
    pre(f"s_lshl_b32 s{S_W2K}, s{S_W}, 11")
    pre(f"s_lshl_b32 s{S_W4K}, s{S_W}, 12")
    pre("v_and_b32 v28, 15, v0")
    pre(f"s_lshl_b32 s6, s{S_W}, 17")
    pre("v_lshlrev_b32 v26, 13, v29")
    pre("v_add_u32 v26, s6, v26")
    pre("v_lshlrev_b32 v27, 2, v29")
    pre("v_xor_b32 v27, v27, v28")
    pre(f"v_lshl_add_u32 v{V_WQDMA}, v27, 4, v26")
    for n in range(1, 4):
        pre(f"v_add_u32 v{V_WQDMA+n}, {n*(32768-1024)}, v{V_WQDMA}")
    pre(f"s_lshl_b32 s6, s{S_HEAD}, 8")
    early = OPT.get("early", 0)
    for x in first[:2] + (pre.lines if early else []):
        e(x)
    e("s_waitcnt lgkmcnt(0)")
    if STAMPS:
        e(f"v_writelane_b32 v{V_STAMP}, s92, 0")
        e(f"v_writelane_b32 v{V_STAMP}, s94, 1")
        nstamp[0] += 1
    if OPT.get("st0"):
        stamp(e)
    e(f"s_mov_b64 {sr(S_X,2)}, {sr(P_IN,2)}")
    for x in first[2:]:
        e.safe(x)
    if OPT.get("pf", 2) == 2:
        code_prefetch(e)
    for reg, off in ((S_R1, 64), (S_DBG, 72), (S_WS, 80)):
        e(f"s_load_dwordx2 {sr(reg,2)}, s[0:1], {off}")
    for x in ([] if early else pre.lines):
        e(x)
    srd(e, S_WQ, P_IN + 6, "s6", 640 * 8192 - 31 * 256)
    for x in w_dma(0)[:6]:
        e.safe(x)
    if OPT.get("spread", 1):
        e("s_min_u32 s4, s3, 5")
        e(f"s_sub_u32 s{S_CNT}, s{S_HEAD}, s4")
        e("s_cmp_lt_u32 s3, 5")
        e("s_cselect_b32 s4, s7, 0")
        e("s_cmp_eq_u32 s4, 3")
        e(f"s_cselect_b32 s{S_CNT}, 27, s{S_CNT}")
    else:
        e(f"s_mov_b32 s{S_CNT}, s{S_HEAD}")
    e(f"s_lshl_b32 s6, s{S_CNT}, 7")
    srd(e, S_W1, P_IN + 12, "s6", 640 * 3456 - 26 * 128)
    e(f"s_cmp_lt_u32 s{S_CNT}, 27")
    e(f"s_cselect_b32 s{S_W1+2}, s{S_W1+2}, 0")
    e(f"s_mul_i32 s6, s{S_W}, {16*3456}")
    e("v_mul_u32_u24 v26, 3456, v30")
    e("v_add_u32 v26, s6, v26")
    e("v_and_b32 v27, 2, v30")
    e("v_xor_b32 v27, v27, v31")
    e(f"v_lshl_add_u32 v{V_W1DMA}, v27, 4, v26")
    e(f"v_xor_b32 v27, 64, v{V_W1DMA}")
    e(f"v_add_u32 v{V_W1DMA+1}, {8*3456-1024}, v27")
    for x in w_dma(0)[6:]:
        e.safe(x)
    e(f"v_lshlrev_b32 v{V_L16}, 4, v0")
    e("v_bfe_u32 v30, v0, 2, 3")
    e("v_and_b32 v31, 3, v0")
    e("v_bfe_u32 v12, v0, 2, 2")
    e("v_lshl_add_u32 v26, v29, 3, v12")
    e("v_lshlrev_b32 v27, 8, v26")
    e("v_lshl_add_u32 v27, v31, 4, v27")
    e(f"v_xor_b32 v12, s{S_W}, v12")
    e(f"v_lshl_add_u32 v{V_WQRD}, v12, 6, v27")
    for j in range(1, 4):
        e(f"v_xor_b32 v{V_WQRD+j}, {j*64}, v{V_WQRD}")
    e("v_lshlrev_b32 v27, 7, v26")
    e("v_lshl_add_u32 v27, v31, 3, v27")
    e(f"v_add_u32 v27, {LDS_W1}, v27")
    e("v_lshrrev_b32 v12, 1, v30")
    e(f"s_and_b32 s6, s{S_W}, 2")
    e("v_xor_b32 v12, s6, v12")
    e(f"v_lshl_add_u32 v{V_W1RD}, v12, 5, v27")
    for nb in range(1, 4):
        e(f"v_xor_b32 v{V_W1RD+nb}, {nb*32}, v{V_W1RD}")
    e("v_lshrrev_b32 v12, 1, v28")
    e("v_xor_b32 v12, v12, v29")
    e("v_lshlrev_b32 v12, 4, v12")
    e("v_lshl_add_u32 v12, v28, 7, v12")
    e(f"s_add_u32 s6, s{S_W8K}, {X_SLOT[0]}")
    e(f"v_add_u32 v{V_XRD}, s6, v12")
    e(f"v_xor_b32 v{V_XRD+1}, 64, v{V_XRD}")
    e("v_and_b32 v26, 1, v0")
    e("v_cmp_eq_u32 vcc, 0, v26")
    e("v_mov_b32 v27, 0x44444444")
    e("v_mov_b32 v12, 0xeeeeeeee")
    e(f"v_cndmask_b32 v{V_IDX}, v12, v27, vcc")
    e("v_and_b32 v26, 2, v0")
    e("v_cmp_eq_u32 vcc, 0, v26")
    e("v_mov_b32 v27, 0x3f803f80")
    e("v_mov_b32 v12, 0")
    for r in range(4):
        e(f"v_cndmask_b32 v{V_ONES+r}, v12, v27, vcc")
    for r in range(16):
        e(f"v_accvgpr_write_b32 a{A_CS+r}, 0")
    if OPT.get("st0"):
        stamp(e)
    mem = x_dma(1) + w_dma(1)
    for x in mem[:OPT.get("nearly", 10)]:
        e.safe(x)
    e("s_waitcnt lgkmcnt(0)")
    return mem[OPT.get("nearly", 10):]


def glued(lines):
    out = []
    for x in lines:
        if x.startswith(("s_addc", "s_subb", "s_cselect")):
            out[-1] += "\n" + x
        else:
            out.append(x)
    return out


def late_stream():
    e = Asm()
    e(f"s_lshl_b32 s6, s{S_QT}, 5")
    e(f"s_add_u32 s6, s6, s{S_HEAD}")
    e("s_lshl_b32 s6, s6, 2")
    e(f"s_add_u32 s6, s6, s{S_W}")
    e("s_lshl_b32 s6, s6, 1")
    e("v_lshrrev_b32 v26, 5, v0")
    e("v_add_u32 v26, s6, v26")
    e("v_mul_u32_u24 v27, 1280, v26")
    e("v_and_b32 v12, 31, v0")
    e("v_lshl_add_u32 v13, v12, 4, v27")
    e("v_lshl_add_u32 v14, v12, 3, v27")
    e("v_lshlrev_b32 v26, 3, v26")
    e("v_lshl_add_u32 v19, v12, 24, v26")
    e("v_min_u32 v12, 1, v62")
    e(f"v_lshlrev_b32 v{V_SIG}, 24, v12")
    e(f"v_mov_b32 v{V_ONE}, 0")
    late_setup(e)
    return glued(e.lines) + early_mem()


SROW = [f"buffer_load_dwordx4 v[2:5], v13, {sr(S_X)}, 0 offen ; @SROW",
        f"buffer_load_dwordx4 v[6:9], v13, {sr(S_X)}, 0 offen offset:512 ; @SROW",
        f"buffer_load_dwordx2 v[10:11], v14, {sr(S_X)}, 0 offen offset:1024 ; @SROW"]


def tile_ids(e):
    e("s_bfe_u32 s4, s2, 0x20001")
    e("s_and_b32 s5, s2, 1")
    e("s_lshl_b32 s5, s5, 3")
    e("s_bfe_u32 s6, s2, 0x30003")
    e("s_add_u32 s5, s5, s6")
    e("s_lshr_b32 s6, s2, 6")


def late_setup(e):
    e(f"s_lshl_b32 s6, s{S_HEAD}, 19")
    srd(e, S_K, P_IN + 2, "s6", 524288)
    srd(e, S_V, P_IN + 4, "s6", 524288)
    e(f"s_sub_u32 s{P_IN+14}, s{P_IN+14}, {128*40960}")
    e(f"s_subb_u32 s{P_IN+15}, s{P_IN+15}, 0")
    e("s_cmp_lt_u32 s2, 160")
    e(f"s_cselect_b64 {sr(S_R0,2)}, {sr(P_IN+8,2)}, {sr(P_IN+14,2)}")
    e(f"s_cselect_b32 s7, 64, {NPAIR}")
    e(f"s_mul_i32 s{S_R0+2}, s7, 81920")
    e(f"s_mov_b32 s{S_R0+3}, {SRD3}")
    e(f"s_mul_i32 s6, s5, {ACT_RG}")
    e(f"s_add_u32 s6, s6, {WS_ACT}")
    e(f"s_lshl_b32 s7, s{S_HEAD}, 14")
    e("s_add_u32 s7, s7, s6")
    srd(e, S_ACT, S_WS, "s7", 16384)
    e(f"s_lshl_b32 s7, s{S_CNT}, 13")
    e(f"s_add_u32 s7, s7, {64*8192}")
    e("s_add_u32 s7, s7, s6")
    srd(e, S_ACTH, S_WS, "s7", 8192)
    e(f"s_cmp_lt_u32 s{S_CNT}, 27")
    e(f"s_cselect_b32 s{S_ACTH+2}, s{S_ACTH+2}, 0")
    srd(e, S_DBG, S_DBG, None, 256)
    srd(e, S_OUT, S_R1, None, 2621440)
    tile_ids(e)
    e("s_lshl_b32 s7, s5, 1")
    e(f"s_lshr_b32 s3, s{S_W}, 1")
    e("s_add_u32 s3, s7, s3")
    e(f"s_mul_i32 s7, s3, {ACT_RG}")
    e(f"s_add_u32 s7, s7, {WS_ACT}")
    e(f"s_and_b32 s{S_XO}, s{S_W4K}, 4096")
    e(f"s_add_u32 s7, s7, s{S_XO}")
    srd(e, S_TA, S_WS, "s7", (NPAIR - 1) * 8192 + 4096)
    e("s_lshl_b32 s7, s6, 2")
    e(f"s_add_u32 s7, s7, s{S_W}")
    e("s_mul_i32 s7, s7, 5120")
    e(f"s_add_u32 s7, s7, {WS_WP}")
    srd(e, S_TW, S_WS, "s7", (NPAIR - 1) * WP_PAIR + 5120)
    e("s_lshl_b32 s3, s3, 2")
    e("s_add_u32 s3, s3, s4")
    e(f"s_mul_i32 s{S_XO}, s3, 20480")
    e("s_lshl_b32 s7, s6, 1")
    e(f"s_and_b32 s3, s{S_W}, 1")
    e("s_add_u32 s7, s7, s3")
    e("s_mul_i32 s7, s7, 160")
    e(f"s_add_u32 s{S_XO}, s{S_XO}, s7")
    e("s_lshr_b32 s7, s5, 1")
    e("s_lshl_b32 s7, s7, 2")
    e("s_add_u32 s7, s7, s4")
    e("s_lshl_b32 s7, s7, 8")
    e(f"s_add_u32 s{S_POLLO}, s7, {MISC_CNTO}")
    e("s_mul_i32 s7, s4, 7")
    e("s_add_u32 s7, s7, 64")
    e(f"s_lshl_b32 s{S_GA}, s7, 13")
    e(f"s_mul_i32 s{S_GW}, s7, {WP_PAIR}")
    e(f"s_lshl_b32 s{S_SA}, s4, 17")
    e(f"s_mul_i32 s{S_SW}, s4, {16*WP_PAIR}")
    e("s_lshl_b32 s5, s5, 2")
    e("s_add_u32 s5, s5, s6")
    e("s_lshl_b32 s5, s5, 8")
    e(f"s_add_u32 s5, s5, {MISC_CNTP}")
    e("s_cmp_eq_u32 s4, 0")
    e(f"s_cselect_b32 s5, s5, {OOB}")
    srd(e, S_WP, S_WS, WS_WP, NPAIR * WP_PAIR)
    e(f"s_add_u32 s{S_M0R}, s{S_W2K}, {LDS_W1}")
    srd(e, S_WS, S_WS, WS_MISC if WS_MISC else None, MISC_SIZE)
    e(f"s_lshl_b32 s{S_SIGS}, s{S_QT}, 5")
    e(f"s_lshl_b32 s7, s{S_QT}, 8")
    e(f"s_add_u32 s{S_SIGA}, s7, {MISC_CNTA}")
    e(f"s_lshl_b32 s7, s{S_QT}, 2")
    e(f"s_lshr_b32 s6, s{S_HEAD}, 3")
    e("s_add_u32 s7, s7, s6")
    e("s_lshl_b32 s7, s7, 8")
    e(f"s_add_u32 s{S_SIGO}, s7, {MISC_CNTO}")
    for i in range(4):
        e(f"s_add_u32 s{S_M0K+i}, s{S_W4K}, {LDS_K + i*16384}")
        e(f"s_add_u32 s{S_M0V+i}, s{S_W4K}, {LDS_V + i*16384}")
    e(f"s_mov_b32 s{S_RETRY}, 0")
    e(f"s_cmp_eq_u32 s{S_HEAD}, 0")
    e(f"s_cselect_b32 s6, s{S_SIGA}, {OOB}")
    e(f"s_and_b32 s7, s{S_HEAD}, 7")
    e(f"s_cselect_b32 s7, {OOB}, s{S_SIGO}")

def early_mem():
    out = [f"buffer_store_dword v{V_ONE}, v{V_SIG}, {sr(S_WS)}, s6 offen sc1",
           f"buffer_store_dword v{V_ONE}, v{V_SIG}, {sr(S_WS)}, s7 offen sc1",
           "v_lshrrev_b32 v12, 3, v62", "v_lshlrev_b32 v26, 2, v62", "v_lshl_add_u32 v12, v12, 24, v26",
           f"buffer_store_dword v{V_ONE}, v12, {sr(S_WS)}, s5 offen sc1"]
    return out + [f"v_mov_b32 v{V_ONE}, 1"]


def stats_stream():
    s = ["WAITVM SROW"]

    def unpack(i, dst):
        return f"v_lshlrev_b32 v{dst}, 16, v{2+i//2}" if i % 2 == 0 else f"v_and_b32 v{dst}, 0xffff0000, v{2+i//2}"

    def reduce32():
        out = ["v_add_f32 v12, v12, v13"]
        for rot in (8, 4, 2, 1):
            out.append(f"v_add_f32_dpp v12, v12, v12 row_ror:{rot} row_mask:0xf bank_mask:0xf")
        out += ["v_mov_b32 v13, v12", "v_permlane16_swap_b32 v12, v13", "v_add_f32 v12, v12, v13",
                f"v_mul_f32 v12, {fbits(1.0/640)}, v12"]
        return out

    s += [unpack(0, 12), unpack(1, 13)]
    for i in range(2, 20, 2):
        s += [unpack(i, 14), unpack(i + 1, 15), "v_add_f32 v12, v12, v14", "v_add_f32 v13, v13, v15"]
    s += reduce32() + ["v_mov_b32 v16, v12"]
    for i in range(0, 20, 2):
        s += [unpack(i, 14), unpack(i + 1, 15), "v_sub_f32 v14, v14, v16", "v_sub_f32 v15, v15, v16"]
        op = "v_mul_f32" if i == 0 else "v_fmac_f32"
        s += [f"{op} v12, v14, v14", f"{op} v13, v15, v15"]
    s += reduce32()
    s += ["v_cvt_pk_bf16_f32 v13, v12, v16", "v_and_b32 v16, 0xffff0000, v13", "v_lshlrev_b32 v12, 16, v13",
          "v_xor_b32 v16, 0x80000000, v16", f"v_add_f32 v12, {fbits(1e-5)}, v12", "v_cvt_pk_bf16_f32 v12, v12, v12",
          "v_lshlrev_b32 v12, 16, v12", "v_sqrt_f32 v12, v12", "v_cvt_pk_bf16_f32 v12, v12, v12",
          "v_lshlrev_b32 v12, 16, v12", "v_rcp_f32 v17, v12", "s_nop 0",
          f"buffer_store_dwordx2 v[16:17], v19, {sr(S_WS)}, 0 offen sc1 ; @SST"]
    return s


def kv_addr_stream():
    s = [f"s_lshl_b32 s5, s{S_W}, 2", "v_xor_b32 v26, v28, v29", "v_xor_b32 v27, s5, v26", "v_lshlrev_b32 v27, 4, v27",
         f"v_lshl_add_u32 v{V_KRD}, v28, 8, v27"]
    s += [f"v_xor_b32 v{V_KRD+ks}, {64*ks}, v{V_KRD}" for ks in range(1, 4)]
    s += ["v_lshlrev_b32 v27, 8, v29", f"v_add_u32 v27, s{S_W4K}, v27", f"v_lshl_add_u32 v{V_KDMA}, v26, 4, v27"]
    s += [f"v_xor_b32 v{V_KDMA+n}, {64*n}, v{V_KDMA}" for n in range(1, 4)]
    s += ["v_lshlrev_b32 v26, 1, v29", "v_xor_b32 v26, v26, v28", f"v_lshl_add_u32 v{V_VDMA}, v26, 4, v27",
          f"v_xor_b32 v{V_VDMA+1}, 128, v{V_VDMA}"]
    s += ["v_lshrrev_b32 v27, 2, v0", "v_lshlrev_b32 v27, 8, v27", "v_lshl_add_u32 v27, v31, 3, v27",
          f"v_add_u32 v27, {LDS_V}, v27", f"v_lshl_add_u32 v{V_VRD}, v30, 5, v27"]
    s += [f"v_xor_b32 v{V_VRD+db}, {32*db}, v{V_VRD}" for db in range(1, 8)]
    return s


def repack_addr_stream():
    e = Asm()
    e(f"v_and_b32 v{V_POFF}, 7, v0")
    e(f"v_lshlrev_b32 v{V_POFF}, 8, v{V_POFF}")
    e(f"v_add_u32 v{V_POFF}, {MISC_CNTA}, v{V_POFF}")
    e(f"s_mul_i32 s5, s{S_W}, {8*1280}")
    e("v_mul_u32_u24 v27, 1280, v29")
    e("v_add_u32 v27, s5, v27")
    e("v_lshlrev_b32 v26, 2, v29")
    e("v_xor_b32 v26, v26, v28")
    e(f"v_lshl_add_u32 v{V_RDMA}, v26, 4, v27")
    e("v_lshrrev_b32 v26, 2, v0")
    e("v_and_b32 v27, 3, v26")
    e(f"v_xor_b32 v27, s{S_W}, v27")
    e("v_lshlrev_b32 v27, 6, v27")
    e("v_lshl_add_u32 v27, v26, 8, v27")
    e("v_lshl_add_u32 v27, v31, 3, v27")
    e(f"v_add_u32 v{V_RRD}, {LDS_W1}, v27")
    return e.lines


CS_SITES = {0: 0, 1: 1, 8: 2, 9: 3}


XR_AT = 6


def phase1(e, carry):
    half = ["lo"] * 8

    def w_reads(c, nb):
        out = []
        if nb < 8:
            base = WQ_SLOT[c % 4]
            h = "hi" if base >= 65536 else "lo"
            if half[nb // 2] != h:
                out.append(f"v_xor_b32 v{V_WQRD+nb//2}, 0x10000, v{V_WQRD+nb//2}")
                half[nb // 2] = h
        for t in range(2):
            for v in range(2):
                d = ar(A_WF + ((nb % 4) * 2 + t) * 4 + 2 * v, 2)
                if nb < 8:
                    out.append(f"ds_read_b64_tr_b16 {d}, v{V_WQRD+nb//2} offset:{base%65536+t*8192+v*1024+(nb%2)*8} ; @WR{c}_{nb}")
                else:
                    out.append(f"ds_read_b64_tr_b16 {d}, v{V_W1RD+nb-8} offset:{(c%4)*8192+t*4096+v*512} ; @WR{c}_{nb}")
        return out

    e("WAITVM W0")
    e("s_barrier")
    stamp(e)
    for x in x_read(0) + w_reads(0, 0) + w_reads(0, 1):
        e(x)
    e("WAITLG WR0_0")
    poll_s = f"buffer_load_dword v63, v62, {sr(S_DBG)}, 0 offen sc1"
    mem, alu, xr = carry, [], []
    ramp = OPT.get("ramp", 36)
    srow = [int(x) for x in "%03d" % OPT.get("srow", 222)]
    SIG_AT = srow[2] + OPT.get("sigd", 3)
    for c in range(10):
        mem += [x for k, x in enumerate(SROW) if srow[k] == c]
        if c + 2 < 10:
            mem += x_dma(c + 2) + w_dma(c + 2)
        if c == 0:
            alu += late_stream()
        assert c != srow[0] or not any("v14" in x for x in alu), alu
        if c == srow[2] + 1:
            alu += stats_stream()
        if c == 6:
            alu += [f"v_accvgpr_write_b32 a{A_L+r}, 0" for r in range(16)]
        if c == 7:
            alu += kv_addr_stream()
        if c == 8:
            assert not alu
            alu += tail_scalar_stream() + repack_addr_stream()
            mem += ["v_and_b32 v62, 7, v0", "v_lshlrev_b32 v62, 5, v62", poll_s + " ; @PS"]
            mem += kv_tile("V", 0) + kv_tile("V", 1)
        if c == 9:
            assert not alu
            pre9 = ["WAITVM PS"] + poll_check("M_ps", poll_s, ["v_cmp_gt_u32 vcc, 32, v63"])
            pre9 += [f"s_lshl_b32 s5, s{S_QT}, 2", f"s_add_u32 s5, s5, s{S_W}", "s_lshl_b32 s5, s5, 9", "v_lshlrev_b32 v62, 3, v28"]
            pre9 += [f"buffer_load_dwordx2 {vr(V_ST+2*qb,2)}, v62, {sr(S_WS)}, s5 offen offset:{qb*128} sc1 ; @STL" for qb in range(4)]
            mem += pre9 + kv_tile("K", 1) + kv_tile("K", 2)
        for nb in range(12):
            fixed = {}
            n2 = nb + 2
            reads = w_reads(c, n2) if n2 < 12 else (w_reads(c + 1, n2 - 12) if c < 9 else [])
            pre = []
            if nb == XR_AT and c < 9:
                xr += [f"WAITVM X{c+1}"] + x_read(c + 1)
            if nb == 10 and c < 9:
                assert not xr, (c, xr)
                pre = [f"WAITVM W{c+1}" + (" SST" if c == SIG_AT else ""), "s_barrier"]
                if c >= 7:
                    pre = [f"WAITLG XR{c+1}"] + pre
                if c == SIG_AT:
                    assert not alu
                    mem.insert(0, f"buffer_atomic_add v{V_ONE}, v{V_SIG}, {sr(S_DBG)}, s{S_SIGS} offen")
                if c == 8:
                    mem += kv_tile("K", 0)
            if c == 9 and nb == 10:
                assert not alu and not any("@STL" in x for x in mem), alu
                alu += [f"s_lshl_b32 s5, s{S_W}, 7", f"s_add_u32 s5, s5, {LDS_CS}", "v_lshl_add_u32 v60, v28, 2, s5",
                        f"s_and_b32 s5, s{S_W}, 2", "s_lshl_b32 s5, s5, 6", f"s_add_u32 s5, s5, {LDS_CS+512}", "v_lshl_add_u32 v61, v28, 2, s5"]
                for k in range(4):
                    alu += [f"v_accvgpr_read_b32 v62, a{A_CS+4*k}", f"v_accvgpr_read_b32 v63, a{A_CS+4*k+1}",
                            f"v_add_f32 v{24+k}, v62, v63", f"ds_write_b32 v{60+k//2}, v{24+k} offset:{(k%2)*64}"]
            slot = 0
            if pre:
                fixed[0] = (pre, [])
                slot = 1
            extra = len(reads) - 4
            for i, x in enumerate(reads):
                k = slot + max(0, i - max(extra, 0))
                fixed.setdefault(k, ([], []))[0].append(x)
            nxt = (c, nb + 1) if nb < 11 else (c + 1, 0)
            mf = []
            for i, qb in enumerate(snake(nb)):
                for t in ((0, 1) if i % 2 == 0 else (1, 0)):
                    acc = vr(o_reg(nb, qb), 4) if nb < 8 else vr(V_P + ((nb - 8) * 4 + qb) * 4, 4)
                    first = c == 0 and len(mf) % 2 == 0
                    mf.append(mfma(acc, ar(A_WF + ((nb % 4) * 2 + t) * 4, 4), ar(A_XF + (c % 2) * 32 + (qb * 2 + t) * 4, 4), "0" if first else acc))
            if nb in CS_SITES:
                mf.append(smfmac(ar(A_CS + 4 * CS_SITES[nb], 4), ar(A_WF + (nb % 4) * 8, 8)))
            if nxt[0] < 10:
                fixed.setdefault(len(mf) - 1, ([], []))[1].append(f"WAITLG WR{nxt[0]}_{nxt[1]}")
            nvm = sum(x.startswith("buffer_") for x in mem)
            quota = min(-(-nvm // (12 - nb)), (nb + 1) * ramp // 12 - nb * ramp // 12)
            interleave(e, mf, fixed, [xr, mem, alu], quota=quota + any(x.startswith("buffer_") for x in alu[:12]))
        assert not mem or c in (0, 1, 2, 3, 4, 8), (c, mem)
        if OPT.get("p1st") and c < 9:
            stamp(e)
    drain(e, [mem, alu])
    stamp(e)
    e("s_waitcnt lgkmcnt(0)")
    e("s_barrier")


def proj_epilogue(e):
    CSR = 40
    e(f"s_lshl_b32 s5, s{S_W}, 7")
    e(f"s_add_u32 s5, s5, {LDS_CS}")
    e("v_lshl_add_u32 v60, v29, 4, s5")
    e(f"s_and_b32 s5, s{S_W}, 2")
    e("s_lshl_b32 s6, s5, 6")
    e(f"s_add_u32 s6, s6, {LDS_CS+512}")
    e("v_lshl_add_u32 v61, v29, 4, s6")
    e("s_lshl_b32 s5, s5, 9")
    e(f"v_xor_b32 v62, s5, v{V_L16}")
    e("v_xor_b32 v63, 1024, v62")

    def cs_read(g):
        out = []
        src = 60 if g < 4 else 61
        k = g if g < 4 else g - 4
        if k:
            out.append(f"v_xor_b32 v{src}, {128*(k^(k-1))}, v{src}")
        for u in range(2):
            out.append(f"ds_read_b128 {vr(CSR+u*4,4)}, v{src} offset:{u*64} ; @CS{g}")
        return out

    for x in cs_read(0):
        e(x)
    e("WAITVM STL")
    e(f"s_mov_b32 s6, {fbits(LOG2E * 128 ** -0.5)}")
    for qb in range(4):
        e(f"v_mul_f32 v{48+qb}, s6, v{V_ST+2*qb+1}")

    def center(g, regs):
        e(f"WAITLG CS{g}")
        for qb in range(4):
            for u in range(2):
                a = regs(u, qb)
                for p in range(2):
                    e(f"v_pk_fma_f32 {vr(a+2*p,2)}, {vr(CSR+u*4+2*p,2)}, {vr(V_ST+2*qb,2)}, {vr(a+2*p,2)} op_sel_hi:[1,0,1]")
        if g < 5:
            for x in cs_read(g + 1):
                e(x)

    for j in range(4):
        center(j, lambda u, qb: o_reg(2 * j + u, qb))
        for qb in range(4):
            sel = "op_sel_hi:[1,0]" if qb % 2 == 0 else "op_sel:[0,1] op_sel_hi:[1,1]"
            regs = [o_reg(2 * j + u, qb) + 2 * p for u in range(2) for p in range(2)]
            for a in regs:
                e(f"v_pk_mul_f32 {vr(a,2)}, {vr(a,2)}, {vr(48+(qb//2)*2,2)} {sel}")
            for a in regs:
                e(f"v_cvt_pk_bf16_f32 v{a}, v{a}, v{a+1}")
            for r, a in enumerate(regs):
                e(f"v_accvgpr_write_b32 a{A_Q+(qb*4+j)*4+r}, v{a}")
    e(f"s_mov_b32 s6, {fbits(-LOG2E)}")
    for qb in range(4):
        e(f"v_mul_f32 v{48+qb}, s6, v{V_ST+2*qb+1}")
        e(f"v_rcp_f32 v{V_ST+2*qb+1}, v{V_ST+2*qb+1}")
    for jj in range(2):
        hreg = lambda u, qb: V_P + ((2 * jj + u) * 4 + qb) * 4
        center(4 + jj, hreg)
        if jj == 0:
            e("WAITVM K0")
            e("s_barrier")
            for kb in range(4):
                for ks in range(4):
                    e(k_read(0, kb, ks) + f" ; @K0R{kb}")
        for qb in range(4):
            sel = "op_sel_hi:[1,0]" if qb % 2 == 0 else "op_sel:[0,1] op_sel_hi:[1,1]"
            for u in range(2):
                for p in range(2):
                    a = hreg(u, qb) + 2 * p
                    e(f"v_pk_mul_f32 {vr(a+64,2)}, {vr(a,2)}, {vr(48+(qb//2)*2,2)} {sel}")
    e("WAITLG K0R3")
    scalars = [f"s_lshl_b32 s{S_RB}, s2, 2"] + repack_offsets()
    for i, m in enumerate(first_scores()):
        e.safe(m)
        if scalars:
            e(scalars.pop(0))
        e(f"v_exp_f32 v{V_O+i}, v{V_O+i}")
    e("s_mov_b32 s5, 4096")
    hst = []
    for jj in range(2):
        for qb in range(4):
            regs = [V_P + ((2 * jj + u) * 4 + qb) * 4 + 2 * p for u in range(2) for p in range(2)]
            d = regs[0] + 64
            for a in regs:
                e(f"v_pk_fma_f32 {vr(a+64,2)}, {vr(a+64,2)}, {vr(V_ST+2*qb,2)}, {vr(V_ST+2*qb,2)} op_sel:[0,1,1] op_sel_hi:[1,1,1]")
            for a in regs:
                e(f"v_rcp_f32 v{a+64}, v{a+64}")
                e(f"v_rcp_f32 v{a+65}, v{a+65}")
            for a in regs:
                e(f"v_pk_mul_f32 {vr(a,2)}, {vr(a,2)}, {vr(a+64,2)}")
            for p, a in enumerate(regs):
                e(f"v_cvt_pk_bf16_f32 v{d+p}, v{a}, v{a+1}")
            hst.append(f"buffer_store_dwordx4 {vr(d,4)}, v{62+jj}, {sr(S_ACTH)}, {'s5' if qb >= 2 else '0'} offen offset:{(qb%2)*2048} sc1 ; @HST")
            if (jj * 4 + qb) % OPT.get("he", 1) == 0:
                e(hst.pop(0))
    return hst


V_S0 = V_O + 64


def first_scores():
    out = []
    for kb in range(4):
        for n, qb in enumerate(snake(kb)):
            d = vr(V_S0 + (qb * 4 + kb) * 4, 4)
            for i, ks in enumerate(snake(n)):
                out.append(mfma(d, ar(A_KF + (kb * 4 + ks) * 4, 4), ar(A_Q + (qb * 4 + ks) * 4, 4), "0" if i == 0 else d))
    return out


V_MX, V_L8, V_XO, V_C256, V_TRD, V_X = 40, 45, 46, 47, 48, 2
V_L4K = V_RDMA
ACC = {"G": [128, 144, 160, 176, 192], "S": [64, 80, 96, 112, 208]}
TSTEPS = ["G"] * 7 + ["S"] * 16
TW_SLOT = [LDS_W1 + 8192, 0, 20480, 40960]
PK = 224


def tail_scalar_stream():
    t = Asm()
    tile_ids(t)
    t("s_lshl_b32 s5, s5, 2")
    t("s_add_u32 s5, s5, s6")
    t(f"s_lshl_b32 s{S_SIGP}, s5, 8")
    t(f"s_add_u32 s{S_SIGP}, s{S_SIGP}, {MISC_CNTP}")
    t(f"s_mul_i32 s5, s5, {PART_TILE}")
    t(f"s_mul_i32 s6, s{S_W}, {PART_WAVE}")
    t("s_add_u32 s5, s5, s6")
    t(f"s_add_u32 s5, s5, {WS_PART - WS_MISC}")
    srd(t, S_PART, S_WS, "s5", PART_TILE - 3 * PART_WAVE)
    t(f"s_mul_i32 s{S_M0W}, s{S_W}, 5120")
    for k in range(1, 4):
        t(f"s_xor_b32 s5, s4, {k}")
        t(f"s_mul_i32 s5, s5, {PART_DST}")
        t(f"s_add_u32 s{S_PS+k}, s5, {(k-1)*PART_SRC}")
    t(f"s_mul_i32 s{S_PS}, s4, {PART_DST}")
    t(f"s_add_u32 s{S_M0A}, s{S_PS}, {PART_SRC}")
    t(f"s_add_u32 s{S_KQ}, s{S_PS}, {2*PART_SRC}")
    return glued(t.lines)


def tail_vector_stream():
    t = Asm()
    t(f"s_lshr_b32 s5, s{S_W}, 1")
    t("s_lshl_b32 s5, s5, 2")
    t("s_bfe_u32 s4, s2, 0x20001")
    t("s_add_u32 s5, s5, s4")
    t("s_lshl_b32 s5, s5, 11")
    t(f"s_add_u32 s5, s5, {LDS_V}")
    t(f"v_add_u32 v{V_TRD}, s5, v{V_L16}")
    for k in range(1, 4):
        t(f"v_xor_b32 v{V_TRD+k}, {2048*k}, v{V_TRD}")
    t(f"s_and_b32 s5, s{S_W}, 1")
    t("s_mul_i32 s5, s5, 10240")
    t(f"v_add_u32 v{V_TRD+4}, s5, v{V_L16}")
    t(f"v_add_u32 v{V_TRD+5}, {TW_SLOT[0]}, v{V_TRD+4}")
    return t.lines


def tail_vector_late():
    t = Asm()
    t(f"v_and_b32 v12, 255, v{V_L16}")
    t("v_mul_u32_u24 v12, 10, v12")
    t(f"v_lshrrev_b32 v13, 8, v{V_L16}")
    t("v_lshl_add_u32 v12, v13, 3, v12")
    t(f"v_add_u32 v{V_XO}, s{S_M0V+3}, v12")
    t(f"v_lshrrev_b32 v{V_L8}, 1, v{V_L16}")
    t(f"v_add_u32 v14, 8192, v{V_L16}")
    t(f"v_add_u32 v15, 8192, v{V_L8}")
    t(f"v_mov_b32 v{V_C256}, 0x100")
    t(f"v_and_b32 v12, 255, v{V_L16}")
    t("v_mul_u32_u24 v12, 11, v12")
    t("v_lshl_add_u32 v12, v13, 3, v12")
    t(f"v_add_u32 v24, s{S_M0K}, v12")
    t(f"v_lshrrev_b32 v18, 4, v{V_L16}")
    for n in range(3):
        if n:
            t("v_add_u32 v18, 64, v18")
        t("v_mul_u32_u24 v12, 6554, v18")
        t("v_lshrrev_b32 v12, 16, v12")
        t("v_lshlrev_b32 v13, 4, v18")
        t(f"v_lshl_add_u32 v{25+n}, v12, 4, v13")
        t(f"v_add_u32 v{25+n}, s{S_M0K}, v{25+n}")
        t("v_mul_u32_u24 v19, 1120, v12")
        t(f"v_add_u32 v{28+n}, v19, v13")
    t("v_lshrrev_b32 v12, 4, v12")
    t("v_lshl_add_u32 v30, v12, 24, v30")
    t("s_bfe_u32 s4, s2, 0x20001")
    t(f"v_lshrrev_b32 v12, 4, v{V_L16}")
    t("v_lshlrev_b32 v17, v12, 1".replace("v12, 1", f"v12, v{V_ONE}"))
    t("v_add_u32 v13, 1, v12")
    t("v_xor_b32 v16, s4, v13")
    t("v_lshl_add_u32 v16, v16, 2, 4")
    t("v_lshrrev_b32 v13, 2, v13")
    t(f"v_add_u32 v13, s{S_W}, v13")
    t("v_lshl_add_u32 v16, v13, 24, v16")
    t("s_lshl_b32 s4, s4, 2")
    t(f"s_add_u32 s{S_SIGS}, s4, s{S_SIGP}")
    t(f"s_add_u32 s{S_SIGS}, s{S_SIGS}, 4")
    t("v_mov_b32 v12, 0x3f80")
    t("v_mov_b32 v13, 0x3f800000")
    return t.lines


def tail_dma(s, part="WA"):
    g = TSTEPS[s] == "G"
    sa, sw = (S_GA, S_GW) if g else (S_SA, S_SW)
    step = 1 if g else (2 if s != 14 else -13)
    op = "s_add_u32" if step > 0 else "s_sub_u32"
    out = []
    if "W" in part:
        base = TW_SLOT[s % 4]
        out += [f"s_add_u32 m0, s{S_M0W}, {base}"]
        out += [f"buffer_load_dwordx4 v{V_L16}, {sr(S_TW)}, s{sw} offen offset:{f*1024} sc1 lds ; @T{s}" for f in range(4)]
        out += [f"s_add_u32 m0, s{S_M0W}, {base+4096}", f"buffer_load_dwordx4 v{V_L4K}, {sr(S_TW)}, s{sw} offen sc1 lds ; @T{s}",
                f"{op} s{sw}, s{sw}, {abs(step)*WP_PAIR}"]
    if "A" in part:
        out += [f"s_mov_b32 m0, s{S_M0V + s % 4}"]
        out += [f"buffer_load_dwordx4 v{V_L16}, {sr(S_TA)}, s{sa} offen offset:{f*1024} sc1 lds ; @T{s}" for f in range(4)]
        out += [f"{op} s{sa}, s{sa}, {abs(step)*8192}"]
    return out


def tbuf(s):
    return 144 if s == 22 and OPT.get("merge", 1) else ((s + 1) % 2) * 72


def tail_reads(s):
    b = tbuf(s)
    wr, wo = (V_TRD + 5, 0) if s % 4 == 0 else (V_TRD + 4, TW_SLOT[s % 4])
    wl = [f"ds_read_b128 {ar(b+32+f*4,4)}, v{wr} offset:{wo+f*1024} ; @TR{s}" for f in range(10)]
    al = [f"ds_read_b128 {ar(b+f*4,4)}, v{V_TRD+f//2} offset:{(s%4)*16384+(f%2)*1024} ; @TR{s}" for f in range(8)]
    return wl[:2] + al + wl[2:]


def merge(a, b):
    pos = [i for i, x in enumerate(a) if x.startswith("buffer_")]
    out = list(a)
    for k in range(len(b) - 1, -1, -1):
        out.insert(pos[k * len(pos) // len(b)] + 1 if pos else 0, b[k])
    return out


def tail(e, ost):
    rsoff = [S_PS, S_M0A, S_KQ]

    def xfer(op, kind, base, soff, tag):
        v16, v8 = (V_L16, V_L8) if kind == "S" else (14, 15)
        return [f"buffer_{op}_dwordx4 {vr(base,4)}, v{v16}, {sr(S_PART)}, s{soff} offen sc1 ; @{tag}",
                f"buffer_{op}_dwordx4 {vr(base+4,4)}, v{v16}, {sr(S_PART)}, s{soff} offen offset:1024 sc1 ; @{tag}",
                f"buffer_{op}_dwordx2 {vr(base+8,2)}, v{v8}, {sr(S_PART)}, s{soff} offen offset:2048 sc1 ; @{tag}"]

    def pack(kind, k):
        out = [f"v_cvt_pk_bf16_f32 v{PK+(k-1)*10+2*nb+p}, v{ACC[kind][nb]+4*k+2*p}, v{ACC[kind][nb]+4*k+2*p+1}"
               for nb in range(5) for p in range(2)]
        return out

    def send(kind, k):
        return xfer("store", kind, PK + (k - 1) * 10, S_PS + k, "SEND" + kind)

    RCV = {"G": [ACC["G"][k] + 4 for k in range(3)], "S": [ACC["S"][k] + 4 for k in range(3)]}

    def recv1(kind, k):
        return xfer("load", kind, RCV[kind][k], rsoff[k], f"R{kind}{k}")

    def recv(kind):
        return [x for k in range(3) for x in recv1(kind, k)]

    def accumulate(kind):
        for k in range(3):
            if kind == "G":
                e(f"WAITVM R{kind}{k}")
            elif k == 0:
                e("s_waitcnt vmcnt(0)")
            b = RCV[kind][k]
            for nb in range(5):
                for r in range(4):
                    a = ACC[kind][nb] + r
                    e.safe(f"v_dot2_f32_bf16 v{a}, v{b+2*nb+r//2}, v{12+r%2}, v{a}")

    def atomic(val, soff):
        return f"buffer_atomic_add v{val}, v{V_SIG}, {sr(S_WS)}, s{soff} offen"

    poll_o = f"buffer_load_dword v{V_PVAL}, off, {sr(S_WS)}, s{S_POLLO} sc1"
    poll_p = f"buffer_load_dword v{V_PVAL}, off, {sr(S_WS)}, s{S_SIGP} sc1"
    poll_q = f"buffer_load_dword v{V_PVAL}, off, {sr(S_WS)}, s{S_SIGS} sc1"
    low = f"v_and_b32 v{V_PVAL}, 0xff, v{V_PVAL}"
    n = len(TSTEPS)
    SIGA, CHKA, SIGB, CHKB = OPT.get("siga", 1), OPT.get("chka", 3), OPT.get("sigb", 5), 11
    GSIG, GCHK = OPT.get("gsig", 14), OPT.get("gchk", 19)
    opace = OPT.get("opace", 2)
    gsend = [x for k in range(1, 4) for x in send("G", k)]
    xres = [x for k in range(3) for x in (f"s_add_u32 m0, s{S_M0V+3}, {k*1024}", f"buffer_load_dwordx4 v{28+k}, {sr(S_X)}, s{S_XO} offen lds ; @XRES")]
    late = recv("G")
    alu = tail_vector_late()
    last = n - 1 - OPT.get("merge", 1)
    for s in range(last + 1):
        b = tbuf(s)
        e(f"WAITLG TR{s if s < last else n - 1}")
        if s < last:
            e(f"WAITVM T{s+1 if s + 1 < last else n - 1}" + {SIGA: " OST0", SIGB: " OST1", CHKA: " POA", CHKB: " POB", GSIG: " SENDG", GCHK: " PG"}.get(s, ""))
            e("s_barrier")
        if OPT.get("tst") and s != CHKA and s not in (9, 13, 15):
            stamp(e)
        head, side = [], []
        assert s != 6 or not alu
        assert s != 7 or not ost
        if s == SIGA:
            head.append(atomic(V_ONE, S_SIGO))
        if s == SIGB:
            head.append(atomic(V_C256, S_SIGO))
        if s == GSIG:
            head.append(atomic(V_ONE, S_SIGP))
        if s == CHKA - 1:
            head.append(poll_o + " ; @POA")
        if s == CHKB - 2:
            head.append(poll_o + " ; @POB")
        if s == GCHK - OPT.get("gpoll", 2):
            head.append(poll_p + " ; @PG")
        if s == CHKA:
            stamp(e)
            for x in poll_check("M_poa", poll_o, [low, f"v_cmp_gt_u32 vcc, 8, v{V_PVAL}"]):
                e(x)
            stamp(e)
        if s == CHKB:
            for x in poll_check("M_pob", poll_o, [f"v_cmp_gt_u32 vcc, 0x800, v{V_PVAL}"]):
                e(x)
        if s == GCHK:
            for x in poll_check("M_pg", poll_p, [f"v_cmp_gt_u32 vcc, 4, v{V_PVAL}"]):
                e(x)
        mem = tail_dma(3, "A") if s == 0 else []
        if s == CHKA:
            for x in range(7, s + 4):
                mem += tail_dma(x, "A")
        if s + 4 < n:
            mem += tail_dma(s + 4, "W" if 7 <= s + 4 < CHKA + 4 else "WA")
        if ost:
            side, ost = ost[:opace], ost[opace:]
        if s == 7:
            alu += pack("G", 1) + pack("G", 2) + pack("G", 3)
        if s >= 8 and gsend:
            assert not alu
            k = OPT.get("gpace", 2)
            side, gsend = gsend[:k], gsend[k:]
        if s == 19:
            assert not mem
            side += xres
        if s == last:
            head += ["WAITVM XRES"] + [f"ds_read_b64 {vr(V_X+2*nb,2)}, v{V_XO} offset:{nb*32} ; @XRD" for nb in range(5)]
        if s >= GCHK:
            k = -(-len(late) // (last - s)) if s < last else 0
            side, late = side + late[:k], late[k:]
        mem = head + merge(mem, side)
        ds = [x for y in range(s + 1, s + 2 if s + 1 < last else n) for x in tail_reads(y)] if s < last else []
        first = s in (0, 7)
        acc_of = ACC[TSTEPS[s]]

        def chain(nb, rb, flip, b=b):
            acc = vr(acc_of[nb] + rb * 4, 4)
            return [mfma(acc, ar(b + 32 + (nb * 2 + t) * 4, 4), ar(b + (rb * 2 + t) * 4, 4), "0" if first and i == 0 else acc)
                    for i, t in enumerate((1, 0) if flip else (0, 1))]

        if s < last:
            mf = [m for nb in range(5) for i, rb in enumerate(snake(nb)) for m in chain(nb, rb, i % 2)]
            fixed = {(i // 3) * 4 + (0, 2, 3)[i % 3]: ([x], []) for i, x in enumerate(ds)}
            nvm = sum(x.startswith("buffer_") for x in mem)
            if nvm > 10:
                fixed = {2 * i: ([x], []) for i, x in enumerate(ds)}
            tds = OPT.get("tds", 0)
            if tds == 1:
                fixed = {2 * i: (ds[2 * i:2 * i + 2], []) for i in range(9)}
            if tds == 2:
                fixed = {4 * i: (ds[2 * i:2 * i + 2], []) for i in range(9)}
            if tds == 3:
                fixed = {3 * i + 1: (ds[2 * i:2 * i + 2], []) for i in range(9)}
            if len(ds) > 18:
                fixed = {2 * i: (ds[2 * i:2 * i + 2], []) for i in range(18)}
            space = 4 if nvm <= 10 else 2
            if tds:
                space = max(1, min(OPT.get("tsp", 4), 38 // max(nvm, 1)))
            interleave(e, mf, fixed, [mem, alu], space=space)
            drain(e, [mem])
        else:
            for rb in (1, 2, 3, 0):
                bufs = [tbuf(y) for y in range(s, n)]
                mf = [m for nb in range(5) for bb in (bufs[::-1] if nb % 2 else bufs) for m in chain(nb, rb, nb % 2, bb)]
                interleave(e, mf, {}, [mem], space=OPT.get("sspace", 0))
                if rb:
                    mem += pack("S", rb) + send("S", rb)
            drain(e, [mem])
            e(poll_q)
    assert not gsend
    stamp(e)
    e(f"s_mov_b32 s6, {fbits(-LOG2E)}")
    e("s_mov_b32 s7, s6")

    def gate():
        accumulate("G")
        for nb in range(5):
            g = ACC["G"][nb]
            t = g + 4
            for p in range(2):
                e.safe(f"v_pk_mul_f32 {vr(t+2*p,2)}, {vr(g+2*p,2)}, s[6:7]")
            for r in range(4):
                e(f"v_exp_f32 v{t+r}, v{t+r}")
            for p in range(2):
                e(f"v_lshlrev_b32 v{t+4+2*p}, 16, v{V_X+2*nb+p}")
                e(f"v_and_b32 v{t+5+2*p}, 0xffff0000, v{V_X+2*nb+p}")
            for p in range(2):
                e(f"v_pk_add_f32 {vr(t+2*p,2)}, {vr(t+2*p,2)}, 1.0 op_sel_hi:[1,0]")
            for r in range(4):
                e(f"v_rcp_f32 v{t+r}, v{t+r}")
            for p in range(2):
                e.safe(f"v_pk_mul_f32 {vr(t+2*p,2)}, {vr(t+2*p,2)}, {vr(g+2*p,2)}")

    e("WAITLG XRD")
    gate()
    e("s_waitcnt vmcnt(0)")
    e("s_barrier")
    e(f"buffer_atomic_add v17, v16, {sr(S_WS)}, s{S_SIGP} offen")
    e("s_mov_b32 s4, 0")
    e("s_mov_b32 s3, 0x100000")
    e("M_gather:")
    e(f"v_readfirstlane_b32 s5, v{V_PVAL}")
    e("s_andn2_b32 s5, s5, s4")
    for k in range(3):
        e(f"s_bitcmp0_b32 s5, {k}")
        e(f"s_cbranch_scc1 M_skip{k}")
        for x in recv1("S", k):
            e(x)
        e(f"M_skip{k}:")
    e("s_or_b32 s4, s4, s5")
    e("s_cmp_eq_u32 s4, 7")
    e("s_cbranch_scc1 M_gathered")
    e(poll_q)
    e("s_sub_u32 s3, s3, 1")
    e("s_cmp_lg_u32 s3, 0")
    e("s_waitcnt vmcnt(0)")
    e("s_cbranch_scc1 M_gather")
    e("M_gathered:")
    stamp(e)
    accumulate("S")
    for nb in range(5):
        s = ACC["S"][nb]
        t = ACC["G"][nb] + 4
        for p in range(2):
            e.safe(f"v_pk_fma_f32 {vr(t+2*p,2)}, {vr(t+2*p,2)}, {vr(s+2*p,2)}, {vr(t+4+2*p,2)}")
        for p in range(2):
            e(f"v_cvt_pk_bf16_f32 v{t+4+p}, v{t+2*p}, v{t+2*p+1}")
        e(f"ds_write_b64 v24, {vr(t+4,2)} offset:{nb*32}")
    for n in range(3):
        e(f"ds_read_b128 {vr(PK+4*n,4)}, v{25+n} ; @OUT{n}")
    for n in range(3):
        e(f"WAITLG OUT{n}")
        e(f"buffer_store_dwordx4 {vr(PK+4*n,4)}, v{28+n}, {sr(S_OUT)}, s{S_XO} offen")


def attention(e, hst):
    m = V_M
    if len(hst) > 4:
        e(hst.pop(0))
    for i in range(8):
        for qb in range(4):
            b = V_S0 + qb * 16
            if i == 0:
                e(f"v_max_f32 v{m+qb}, v{b}, v{b+1}")
            else:
                e(f"v_max3_f32 v{m+qb}, v{m+qb}, v{b+2*i}, v{b+2*i+1}")
    e(f"s_mov_b32 s6, {fbits(-float(OPT.get('bias', 102)))}")
    e("WAITVM K1")
    e("M_restart:")
    e("s_barrier")
    for n in range(LK):
        e(k_read(1, n // 4, n % 4))
    for n in range(LV):
        for v in range(2):
            e(v_read(0, n // 2, n % 2, v))
    e(f"s_mov_b32 m0, s{S_M0K+3}")
    e(f"s_mov_b32 s{S_OFF}, {3*16384}")
    for n in range(2 + OPT.get("sh", 1)):
        e(k_dma(n))
    row_max_finish(e)
    e(f"s_mov_b32 s{S_CNT}, 8")
    if OPT.get("rmask", 128):
        e(f"s_andn2_b32 s7, {OPT.get('rmask', 128)}, s{S_RETRY}")
    for qb in range(4):
        b = V_S0 + qb * 16
        if hst:
            e(hst.pop(0))
        for p in range(8):
            e(f"v_pk_add_f32 {vr(b+2*p,2)}, {vr(b+2*p,2)}, {vr(V_NM+qb*4,2)}")
        for r in range(16):
            e(f"v_exp_f32 v{b+r}, v{b+r}")
        for p in range(8):
            e(f"v_cvt_pk_bf16_f32 v{V_P+qb*8+p}, v{b+2*p}, v{b+2*p+1}")
    assert not hst
    e("s_waitcnt lgkmcnt(0)")
    stamp(e)
    attn_step(e, 0, first=True)
    if OPT.get("ast"):
        stamp(e)
    e(".p2align 6")
    e("M_loop:")
    ra = OPT.get("rpos", 1)
    for j in (1, 2, 3, 0):
        attn_step(e, j)
        if OPT.get("rmask", 128) and j in (ra, (ra + 1) % 4):
            name = "M_shift" if j == ra else "M_rescale"
            e(f"s_cbranch_scc1 {name}")
            e(f"{name}_back:")
    e("s_cbranch_scc1 M_loop")
    if OPT.get("ast"):
        stamp(e)
    for x in poll_check("M_pa", POLL_A, [f"v_cmp_gt_u32 vcc, 32, v{V_PVAL}"]):
        e(x)
    mem = kv_tile("V", 31) + [f"v_add_u32 v{V_L4K}, 4096, v{V_L16}"] + tail_dma(0, "W")
    attn_step(e, 29, late=(mem, {10: (["s_waitcnt vmcnt(9)"], tail_dma(0, "A") + tail_dma(1, "W"))}))
    attn_step(e, 30, late=(mem, {10: (["WAITVM V31"], tail_dma(1, "A") + tail_dma(2, "W")),
                                 14: ([], tail_dma(2, "A") + tail_dma(3, "W"))}))
    if OPT.get("ast"):
        stamp(e)
    T = 24
    alu, rng, ost = [], [], []
    e("s_mov_b32 s6, 8192")

    def normalise(jp, every):
        for qb in range(4):
            for t in range(2):
                j = 2 * jp + t
                d = V_P + ((jp * 4 + qb) * 2 + t) * 4
                for u in range(2):
                    a = o_reg(2 * j + u, qb)
                    e.safe(f"v_pk_mul_f32 {vr(a,2)}, {vr(a,2)}, {vr(T+2*qb,2)} op_sel_hi:[1,0]")
                    e.safe(f"v_pk_mul_f32 {vr(a+2,2)}, {vr(a+2,2)}, {vr(T+2*qb,2)} op_sel_hi:[1,0]")
                for u in range(2):
                    a = o_reg(2 * j + u, qb)
                    e(f"v_cvt_pk_bf16_f32 v{d+2*u}, v{a}, v{a+1}")
                    e(f"v_cvt_pk_bf16_f32 v{d+2*u+1}, v{a+2}, v{a+3}")
                ost.append(f"buffer_store_dwordx4 {vr(d,4)}, v{V_L16 if qb < 2 else V_L4K}, {sr(S_ACT)}, {'s6' if jp else '0'} offen offset:{(qb%2)*2048+t*1024} sc1 ; @OST{jp}")
                if (qb * 2 + t) % every == 0:
                    e(ost.pop(0))

    mid = OPT.get("mid", 9)

    def extra(u):
        if u == 2:
            alu.extend(tail_vector_stream())
        if u == 6:
            for qb in range(4):
                alu.extend([f"v_accvgpr_read_b32 v{T+2*qb}, a{A_L+qb*4}", f"v_accvgpr_read_b32 v{T+2*qb+1}, a{A_L+qb*4+1}"])
            for qb in range(4):
                alu.append(f"v_add_f32 v{T+2*qb+1}, v{T+2*qb}, v{T+2*qb+1}")
            for qb in range(4):
                alu.append(f"v_rcp_f32 v{T+2*qb}, v{T+2*qb+1}")
        if u == mid:
            drain(e, [mem, alu, rng])
            normalise(0, OPT.get("oe0", 5))
        if u > mid and (u - mid) % OPT.get("oe1", 2) == 0:
            mem.append(ost.pop(0))
        if u >= 1:
            magnitude(u - 1)
        return [mem, alu, rng]

    def magnitude(u):
        for qb in ((u % 2) * 2, (u % 2) * 2 + 1):
            a = o_reg(u // 2, qb)
            third = f"v{V_MX+qb}" if u >= 2 else f"|v{a+1}|"
            rng.append(f"v_maximum3_f32 v{V_MX+qb}, |v{a}|, |v{a+1}|, {third}")
            rng.append(f"v_maximum3_f32 v{V_MX+qb}, |v{a+2}|, |v{a+3}|, v{V_MX+qb}")

    attn_step(e, 31, qk=False, extra=extra)
    magnitude(15)
    drain(e, [mem, alu, rng])
    stamp(e)

    e(f"v_maximum3_f32 v58, v{V_MX}, v{V_MX+1}, v{V_MX+2}")
    e(f"v_minimum3_f32 v59, v{V_MX}, v{V_MX+1}, v{V_MX+2}")
    e(f"v_maximum3_f32 v58, v58, v{V_MX+3}, v{T+1}")
    e(f"v_minimum3_f32 v59, v59, v{V_MX+3}, v{V_MX+3}")
    e(f"v_maximum3_f32 v58, v58, v{T+3}, v{T+5}")
    e(f"v_cmp_nle_f32 vcc, {fbits(O_LOW)}, v59")
    e(f"v_maximum3_f32 v58, v58, v{T+7}, v{T+7}")
    e("s_mov_b64 s[4:5], vcc")
    e(f"v_cmp_nge_f32 vcc, {fbits(L_LIMIT)}, v58")
    e(f"s_lshl_b32 s7, s{S_W}, 2")
    e(f"s_add_u32 s7, s7, {LDS_FLAG}")
    e("s_or_b64 s[4:5], s[4:5], vcc")
    e("s_or_b32 s4, s4, s5")
    e("v_mov_b32 v59, s7")
    e("v_mov_b32 v58, s4")
    e("ds_write_b32 v59, v58")
    e(f"v_mov_b32 v59, {LDS_FLAG}")
    if mid > 15:
        normalise(0, OPT.get("oe0", 5))
    e("s_waitcnt lgkmcnt(0)")
    e("WAITVM T0")
    e("s_barrier")
    e("ds_read_b128 v[60:63], v59 ; @FLG")
    for x in tail_reads(0):
        e(x)
    normalise(1, OPT.get("oe2", 3))
    e("WAITLG FLG")
    e("v_or_b32 v60, v60, v61")
    e("v_or3_b32 v60, v60, v62, v63")
    e.safe("v_readfirstlane_b32 s4, v60")
    e(f"s_andn2_b32 s4, s4, s{S_RETRY}")
    e("s_cbranch_scc1 M_fallback")
    return ost


def recentre(e):
    t, A_F = SBUF[0], A_RP + 8
    e("M_shift:")
    e("s_nop 1")
    for qb in range(4):
        e(f"v_accvgpr_read_b32 v{t+qb}, a{A_L+qb*4}")
        e(f"v_accvgpr_read_b32 v{t+4+qb}, a{A_L+qb*4+1}")
    steps = ["v_add_f32 v{a}, v{a}, v{b}", "v_frexp_exp_i32_f32 v{a}, v{a}", f"v_sub_u32 v{{a}}, {1 - OPT.get('bias', 102)}, v{{a}}",
             "v_min_i32 v{a}, 0, v{a}", "v_max_i32 v{a}, -126, v{a}", "v_ldexp_f32 v{b}, 1.0, v{a}", "v_cvt_f32_i32 v{a}, v{a}",
             "v_accvgpr_write_b32 a{f}, v{b}"]
    for x in steps:
        for qb in range(4):
            e(x.format(a=t + qb, b=t + 4 + qb, f=A_F + qb))
    for qb in range(4):
        sel = "op_sel_hi:[1,0]" if qb % 2 == 0 else "op_sel:[0,1] op_sel_hi:[1,1]"
        for p in range(2):
            e(f"v_pk_add_f32 {vr(V_NM+qb*4+2*p,2)}, {vr(V_NM+qb*4+2*p,2)}, {vr(t+(qb//2)*2,2)} {sel}")
    e("s_nop 0")
    e("s_branch M_shift_back")
    e("M_rescale:")
    for qb in range(4):
        e(f"v_accvgpr_read_b32 v{t+qb}, a{A_F+qb}")
    for q0 in (0, 2):
        for i in range(4):
            e(f"v_accvgpr_read_b32 v{t+4+i}, a{A_L+(q0+i//2)*4+i%2}")
        for i in range(4):
            e(f"v_mul_f32 v{t+4+i}, v{t+4+i}, v{t+q0+i//2}")
        for i in range(4):
            e(f"v_accvgpr_write_b32 a{A_L+(q0+i//2)*4+i%2}, v{t+4+i}")
    for db in range(8):
        for qb in range(4):
            sel = "op_sel_hi:[1,0]" if qb % 2 == 0 else "op_sel:[0,1] op_sel_hi:[1,1]"
            for p in range(2):
                a = o_reg(db, qb) + 2 * p
                e(f"v_pk_mul_f32 {vr(a,2)}, {vr(a,2)}, {vr(t+(qb//2)*2,2)} {sel}")
    e("s_branch M_rescale_back")


def fallback(e):
    m = V_M
    e("M_fallback:")
    e(f"s_mov_b32 s{S_RETRY}, -1")
    e(f"s_mov_b32 s{S_SIGA}, {OOB}")
    e(f"s_mov_b32 s{S_ACTH+2}, 0")
    e(f"s_sub_u32 s{S_GA}, s{S_GA}, {3*8192}")
    e(f"s_sub_u32 s{S_GW}, s{S_GW}, {4*WP_PAIR}")
    for qb in range(4):
        e(f"v_mov_b32 v{m+qb}, 0xff800000")
    e(f"s_mov_b32 s{S_OFF}, 0")
    e("M_maxloop:")
    e("s_waitcnt vmcnt(0) lgkmcnt(0)")
    e("s_barrier")
    e(f"s_mov_b32 m0, s{S_M0K}")
    e("s_nop 0")
    for n in range(4):
        e(k_dma(n))
    e("s_waitcnt vmcnt(0)")
    e("s_barrier")
    for kb in range(4):
        for ks in range(4):
            e(k_read(0, kb, ks))
        e("s_waitcnt lgkmcnt(0)")
        for qb in range(4):
            d = vr(V_P + qb * 4, 4)
            for ks in range(4):
                e(mfma(d, ar(A_KF + (kb * 4 + ks) * 4, 4), ar(A_Q + (qb * 4 + ks) * 4, 4), "0" if ks == 0 else d))
        e("s_nop 7")
        for qb in range(4):
            b = V_P + qb * 4
            e(f"v_max3_f32 v{m+qb}, v{m+qb}, v{b}, v{b+1}")
            e(f"v_max3_f32 v{m+qb}, v{m+qb}, v{b+2}, v{b+3}")
    e(f"s_add_u32 s{S_OFF}, s{S_OFF}, 16384")
    e(f"s_cmp_lt_u32 s{S_OFF}, 524288")
    e("s_cbranch_scc1 M_maxloop")
    e("s_barrier")
    for w, t in (("K", 0), ("K", 1), ("K", 2), ("V", 0), ("V", 1)):
        for x in kv_tile(w, t):
            e(x)
    e("s_waitcnt vmcnt(0)")
    e("s_barrier")
    for kb in range(4):
        for ks in range(4):
            e(k_read(0, kb, ks))
    e("s_waitcnt lgkmcnt(0)")
    for x in first_scores():
        e(x)
    for r in range(16):
        e(f"v_accvgpr_write_b32 a{A_L+r}, 0")
    e("s_mov_b32 s6, 0")
    e("s_branch M_restart")


HEADER = """
; One launch, 256 workgroups x 4 waves, one workgroup per CU; workgroup = (head, 256 query rows).
;  1. Projection: [Q_head | 64 columns of FFN1] = x @ [wq | w1] on raw x. LayerNorm is applied to the accumulators,
;     (acc - mean * colsum(W)) / std; row statistics are computed once (8 rows per workgroup) and handed over in d_ws.
;     Softmax reference: the true row maximum of the first 64 keys plus a constant exponent offset (headroom for
;     larger scores later in the row); after six tiles it is raised to the running row sum by an exact power of two.
;     A term can only underflow if it is below half an fp32 ulp of the running row sum.
;     After the last tile the row sums and accumulators are range-checked: if anything overflowed or came near the
;     underflow limit, the workgroup computes the true maximum over all keys and redoes the pass with it (M_fallback).
; Hand-offs: write-through (sc1) stores, vmcnt wait, barrier, atomic counter; consumers poll, then use sc1 loads.
; Counters in d_ws are zeroed by this launch ahead of the first arrival on the counters in d_debug.
"""


def build():
    e = Asm()
    for l in open(f"cdna_kernels/{NAME}.s.ref").read().split("\n"):
        if not l.startswith(";"):
            break
        if "@launch" not in l:
            e(l)
    e("; @launch grid=(256,1,1) block=(256,1,1) lds=163840")
    e(HEADER)
    e('.amdgcn_target "amdgcn-amd-amdhsa--gfx950"')
    e(".text")
    e(f".globl {KERNEL}")
    e(".p2align 8")
    e(f".type {KERNEL},@function")
    e(f"{KERNEL}:")
    e("; ---- setup and first loads")
    carry = setup(e)
    phase1(e, carry)
    e("; ---- layernorm on the accumulators, Q fragments, H = silu(.), scores of the first key tile")
    hst = proj_epilogue(e)
    stamp(e)
    e("; ---- attention")
    ost = attention(e, hst)
    stamp(e)
    tail(e, ost)
    stamp_flush(e)
    e("M_exit:")
    e("s_endpgm")
    emit_spins(e)
    if OPT.get("rmask", 128):
        recentre(e)
    e("M_hot_end:")
    e("; ---- exact row maximum over all keys, then repeat the attention pass")
    fallback(e)
    e('.section .rodata,"a"')
    e(".p2align 6")
    e(f".amdhsa_kernel {KERNEL}")
    for d in ("next_free_vgpr 512", "next_free_sgpr 102", "accum_offset 256", "group_segment_fixed_size 0", "kernarg_size 88",
              "user_sgpr_count 2", "user_sgpr_kernarg_segment_ptr 1", "system_sgpr_workgroup_id_x 1"):
        e(f".amdhsa_{d}")
    e(".end_amdhsa_kernel")
    e.resolve()
    if OPT.get("jitter"):
        import random
        rnd = random.Random(OPT["jitter"])
        out, n = [], 0
        for l in e.lines:
            site = l.startswith(("s_barrier", "buffer_atomic")) or (l.startswith("buffer_store") and rnd.random() < 0.2)
            if site and rnd.random() < 0.7:
                n += 1
                pre = ["s_cselect_b32 s99, 1, 0", f"s_mul_i32 s98, s2, {rnd.randrange(3, 1000, 2)}", f"s_add_u32 s98, s98, s{S_W}",
                       f"s_mul_i32 s98, s98, {rnd.randrange(3, 1000, 2)}", f"s_bitcmp1_b32 s98, {rnd.randrange(0, 4)}",
                       f"s_cbranch_scc0 J{n}", f"s_sleep {rnd.choice([1, 3, 10, 30, 60])}", f"J{n}:", "s_cmp_lg_u32 s99, 0"]
                out += pre + [l] if rnd.random() < 0.5 else [l] + pre
            else:
                out.append(l)
        e.lines = out
    errs = []
    errs += check_trace(e.trace(KERNEL, {"M_loop": [True, True, False], "M_gathered": [True], "M_nost2": [False, True, False], "M_nost6": [False, True, False], "M_shift": [False, True], "M_rescale": [False, True]}), "fast")
    errs += check_trace(e.trace(KERNEL, {"M_loop": [True, False, True, False], "M_fallback": [True, False], "M_maxloop": [True, False],
                                         "M_ps_spin": [True], "M_pa_spin": [True, True], "M_poa_spin": [True], "M_pob_spin": [True], "M_poa_back": [True], "M_pob_back": [True], "M_skip0": [True, False], "M_skip1": [False, True], "M_skip2": [False, True], "M_gather": [True], "M_gathered": [False, True], "M_pg_spin": [True], "M_pg_back": [True],
                                         "M_ps_back": [True], "M_pa_back": [True, True]}), "slow")
    return e.text(), errs


if __name__ == "__main__":
    if "--stamps" in sys.argv:
        sys.argv.remove("--stamps")
        STAMPS = True
    for a in [x for x in sys.argv if "=" in x]:
        sys.argv.remove(a)
        k, v = a.split("=")
        OPT[k] = int(v)
    text, errs = build()
    for x in errs[:6]:
        print(x)
    out = sys.argv[1] if len(sys.argv) > 1 else f"cdna_kernels/{NAME}.s"
    open(out, "w").write(text)
    print("wrote", out, len(text), "bytes;", len(errs), "check findings; stamps", nstamp[0])
```

```python
import sys, struct
from asm import Asm, check_trace

NAME = "recurrent_scan__gqa_block_cached__dense_activation_silu__prompt"
KERNEL = NAME + "_kernel"
WS_MISC = 0
MISC_CNTA, MISC_CNTO, MISC_CNTP, MISC_SIZE = 16384, 20480, 28672, 45056
WS_ACT = 4 << 20
WS_WP = 32 << 20
WS_STAMP = 64 << 20
WS_PART = 96 << 20
PART_SRC, PART_WAVE, PART_DST, PART_TILE = 2560, 16384, 65536, 262144
NPAIR = 91
ACT_RG = NPAIR * 8192
WP_PAIR = 81920
SRD3 = "0x00020000"
OOB = 0x1000000
LOG2E = 1.4426950408889634
L_LIMIT = 2.0 ** 120
O_LOW = 2.0 ** -110
STAMPS = False
OPT = {}

S_X, S_WQ, S_W1, S_K, S_V, S_ACT, S_ACTH, S_DBG, S_WS, S_R0, S_R1, S_WP, S_TA, S_TW, S_OUT = range(8, 68, 4)
S_M0K, S_M0V = 68, 72
S_W, S_HEAD, S_QT, S_W4K, S_OFF, S_CNT, S_RETRY = range(76, 83)
S_RSRC, S_RSRC2, S_RDST, S_M0R = 83, 84, 85, 86
S_GA, S_GW, S_SA, S_SW, S_XO = range(87, 92)
S_SIGS, S_SIGA, S_SIGO, S_POLLO = 92, 93, 94, 95
S_W2K, S_W8K = 100, 101
P_IN = 52
S_PART, S_KQ, S_SIGP, S_M0A, S_M0W, S_PS = 48, 12, 13, 14, 15, 16
V_L16 = 1
V_KRD, V_VRD, V_KDMA, V_VDMA = 2, 6, 14, 18
V_STAMP, V_IDX, V_ONES, V_NM, V_P, V_O = 34, 35, 36, 40, 64, 128
SBUF = [56, 60, 24, 28]
V_POFF, V_PVAL, V_ONE, V_SIG = 20, 21, 32, 33
V_XDMA, V_XRD = 20, 24
V_RDMA, V_RRD = 22, 23
V_WQRD, V_W1RD, V_WQDMA, V_W1DMA, V_ST = 40, 48, 52, 56, 52
A_Q, A_KF, A_VF, A_L = 0, 64, 128, 160
A_XF, A_WF, A_CS, A_RP = 64, 128, 192, 176
LDS_K, LDS_V, LDS_W1 = 0, 65536, 131072
LDS_CS = LDS_W1 + 3 * 8192
LDS_FLAG = 163840 - 16
WQ_SLOT = [LDS_V + 3 * 16384, LDS_V + 2 * 16384, LDS_K + 2 * 16384, LDS_K + 3 * 16384]
X_SLOT = [LDS_V, LDS_K]
LK = LV = 5


def fbits(x):
    return "0x%08x" % struct.unpack("<I", struct.pack("<f", x))[0]


def vr(b, n=1):
    return f"v{b}" if n == 1 else f"v[{b}:{b+n-1}]"


def ar(b, n=1):
    return f"a{b}" if n == 1 else f"a[{b}:{b+n-1}]"


def sr(b, n=4):
    return f"s[{b}:{b+n-1}]"


def srd(e, d, src, off, size):
    if off is not None:
        e(f"s_add_u32 s{d}, s{src}, {off}")
        e(f"s_addc_u32 s{d+1}, s{src+1}, 0")
    elif src != d:
        e(f"s_mov_b32 s{d}, s{src}")
        e(f"s_mov_b32 s{d+1}, s{src+1}")
    e(f"s_mov_b32 s{d+2}, {size}")
    e(f"s_mov_b32 s{d+3}, {SRD3}")


def mfma(d, a, b, c):
    return f"v_mfma_f32_16x16x32_bf16 {d}, {a}, {b}, {c}"


def smfmac(d, b):
    return f"v_smfmac_f32_16x16x64_bf16 {d}, {vr(V_ONES,4)}, {b}, v{V_IDX}"


nstamp = [0]


def stamp(e):
    if STAMPS:
        i = nstamp[0]
        nstamp[0] += 1
        e("s_memrealtime s[96:97]")
        e("s_memtime s[98:99]")
        e("s_waitcnt lgkmcnt(0)")
        e(f"v_writelane_b32 v{V_STAMP}, s96, {2*i}")
        e(f"v_writelane_b32 v{V_STAMP}, s98, {2*i+1}")


def stamp_flush(e):
    if not STAMPS:
        return
    e("s_waitcnt vmcnt(0) lgkmcnt(0)")
    stamp(e)
    srd(e, 8, S_WS, WS_STAMP - WS_MISC, 262144)
    e("s_lshl_b32 s12, s2, 2")
    e(f"s_add_u32 s12, s12, s{S_W}")
    e("s_lshl_b32 s12, s12, 8")
    e(f"v_lshrrev_b32 v2, 2, v{V_L16}")
    e(f"buffer_store_dword v{V_STAMP}, v2, s[8:11], s12 offen")
    if "ea" in OPT:
        k = OPT.get("ecyc", 0)
        e(f"v_readlane_b32 s4, v{V_STAMP}, {2*OPT['ea']+k}")
        e(f"v_readlane_b32 s5, v{V_STAMP}, {2*OPT['eb']+k}")
        e("s_nop 3")
        e("s_sub_u32 s5, s5, s4")
        if k:
            e("s_mul_i32 s5, s5, 3277")
            e("s_lshr_b32 s5, s5, 16")
        e("s_add_u32 s5, s5, s96")
        e("M_echo:")
        e("s_memrealtime s[6:7]")
        e("s_waitcnt lgkmcnt(0)")
        e("s_sub_u32 s4, s6, s5")
        e("s_cmp_lt_i32 s4, 0")
        e("s_cbranch_scc1 M_echo")


def kind_of(x):
    if x.startswith("buffer_"):
        return "vm"
    if x.startswith("ds_"):
        return "ds"
    if x.startswith(("v_exp", "v_rcp", "v_sqrt", "v_permlane")):
        return "slow"
    return "valu" if x.startswith("v_") else "scalar"


prev_valu = [False]


def interleave(e, mf, fixed, streams, cap=2, quota=99, space=0):
    last_vm = -space
    for i, m in enumerate(mf):
        e.safe(m)
        pre, post = fixed.get(i, ([], []))
        items = post + pre
        shadow, used, valu = True, 0, False

        def emit(x, safe=False):
            nonlocal shadow, used, valu
            k = kind_of(x)
            (e.safe if safe else e)(x)
            if not (k == "scalar" and shadow):
                used += 2 if k in ("vm", "slow") else 1
            used += x.count("\ns_")
            shadow = False
            valu |= k in ("valu", "slow")

        if not (items and kind_of(items[0]) == "scalar"):
            for s in streams:
                if s and kind_of(s[0]) == "scalar" and e.hazard_free(s[0]):
                    emit(s.pop(0))
                    break
        for x in items:
            emit(x, True)
        want_vm = quota > 0 and i + 1 - last_vm >= space and any(
            s and "vm" in [kind_of(y) for y in s[:2]] for s in streams) and i + 1 not in fixed
        progress = True
        while used < cap and progress:
            progress = False
            for kinds in (("vm", "ds", "scalar"), ("valu", "slow"), ("scalar",)):
                for s in streams:
                    if not s or kind_of(s[0]) not in kinds:
                        continue
                    k = kind_of(s[0])
                    if k == "scalar" and len(kinds) > 1 and s is streams[-1]:
                        continue
                    if used + (2 if k in ("vm", "slow") else 1) > cap or not e.hazard_free(s[0]):
                        continue
                    if k == "vm" and (valu or prev_valu[0] or quota == 0 or i - last_vm < space):
                        continue
                    if k == "ds" and valu:
                        continue
                    if k in ("valu", "slow") and want_vm and not valu:
                        continue
                    if k == "vm":
                        last_vm = i
                        quota -= 1
                        want_vm = want_vm and space <= 1 and quota > 0
                    emit(s.pop(0))
                    progress = True
                    break
                if progress:
                    break
        prev_valu[0] = valu


def drain(e, streams):
    for s in streams:
        while s:
            e.safe(s.pop(0))


def snake(k):
    return (3, 2, 1, 0) if k % 2 and OPT.get("snake", 1) else (0, 1, 2, 3)


def o_reg(db, qb):
    return V_O + (db * 4 + qb) * 4


KVF = ["", " sc1", " nt", " sc0", " sc0 sc1"]


def k_dma(n, tag=""):
    return f"buffer_load_dwordx4 v{V_KDMA+n}, {sr(S_K)}, s{S_OFF} offen offset:{n*1024}{KVF[OPT.get('kvf', 0)]} lds{tag}"


def v_dma(n, tag=""):
    return f"buffer_load_dwordx4 v{V_VDMA+(n&1)}, {sr(S_V)}, s{S_OFF} offen offset:{n*1024}{KVF[OPT.get('kvf', 0)]} lds{tag}"


def k_read(tile, kb, ks):
    return f"ds_read_b128 {ar(A_KF+(kb*4+ks)*4,4)}, v{V_KRD+ks} offset:{(tile%4)*16384+kb*4096}"


def v_read(tile, db, t, v):
    return f"ds_read_b64_tr_b16 {ar(A_VF+((db%4)*2+t)*4+2*v,2)}, v{V_VRD+db} offset:{(tile%4)*16384+t*8192+v*4096}"


def kv_tile(which, tile):
    tag = f" ; @{which}{tile}"
    out = [f"s_mov_b32 m0, s{(S_M0K if which == 'K' else S_M0V) + tile % 4}", f"s_mov_b32 s{S_OFF}, {tile*16384}"]
    return out + [(k_dma if which == "K" else v_dma)(n, tag) for n in range(4)]


spins = []


def poll_check(name, load, cond):
    spins.append((name, load, cond))
    return cond + [f"s_cbranch_vccnz {name}_spin\n{name}_back:"]


def emit_spins(e):
    for name, load, cond in spins:
        e(f"{name}_spin:")
        e("s_mov_b32 s3, 0x100000")
        e(f"{name}_loop:")
        if OPT.get("slp", 0):
            e(f"s_sleep {OPT['slp']}")
        e(load)
        e("s_waitcnt vmcnt(0)")
        for x in cond:
            e(x)
        e(f"s_cbranch_vccz {name}_back")
        e("s_sub_u32 s3, s3, 1")
        e("s_cmp_lg_u32 s3, 0")
        e(f"s_cbranch_scc1 {name}_loop")
        e(f"s_branch {name}_back")


POLL_A = f"buffer_load_dword v{V_PVAL}, v{V_POFF}, {sr(S_WS)}, 0 offen sc1"


S_RB = S_DBG


def repack_offsets():
    return [f"s_mul_i32 s3, s{S_RB}, 52429", "s_lshr_b32 s3, s3, 18", f"s_mul_i32 s{S_RSRC}, s3, 39680", f"s_lshl_b32 s4, s{S_RB}, 8",
            f"s_add_u32 s{S_RSRC}, s{S_RSRC}, s4", f"s_add_u32 s{S_RSRC2}, s{S_RSRC}, 4096", f"s_lshl_b32 s{S_RDST}, s{S_RB}, 14",
            "s_mul_i32 s4, s3, 40960", f"s_sub_u32 s{S_RDST}, s{S_RDST}, s4", "s_and_b32 s3, s3, 1", "s_mul_i32 s3, s3, 39936",
            f"s_sub_u32 s{S_RDST}, s{S_RDST}, s3", f"s_add_u32 s{S_RDST}, s{S_RDST}, s{S_W4K}"]


def attn_step(e, j, qk=True, first=False, extra=None, late=None):
    pw = V_P + ((j + 1) % 2) * 32
    pr = V_P + (j % 2) * 32
    pv = True

    def pdst(x):
        on, base = (qk, pw) if x >= 0 else (not first, pr)
        x %= 16
        return on, base + (x % 4) * 8 + (x // 4) * 2, SBUF[x % 4]

    for u in range(16):
        def qk_chain(x, rev):
            kb, qb, d = x // 4, x % 4, vr(SBUF[x % 4], 4)
            return [mfma(d, ar(A_KF + (kb * 4 + ks) * 4, 4), ar(A_Q + (qb * 4 + ks) * 4, 4), d if i else vr(V_NM + qb * 4, 4))
                    for i, ks in enumerate((3, 2, 1, 0) if rev else (0, 1, 2, 3))]

        def pv_chains(x, rev=False):
            out, db = [], x // 2
            for h in range(2):
                q2 = (x % 2) * 2 + (1 - h if rev else h)
                o = vr(o_reg(db, q2), 4)
                for t in ((0, 1) if h == 0 else (1, 0)):
                    out.append(mfma(o, ar(A_VF + ((db % 4) * 2 + t) * 4, 4), vr(pr + q2 * 8 + t * 4, 4), "0" if first and t == h else o))
            return out

        if not qk:
            M = [None] * 4 + pv_chains(u)
        elif not OPT.get("sup", 2):
            M = qk_chain(u, False) + pv_chains(u)
        elif OPT.get("sup", 2) == 2:
            x = (u // 4) * 4 + (u % 2) * 2
            if u % 4 < 2:
                M = qk_chain(x, False) + qk_chain(x + 1, True)
            elif u % 4 == 2:
                M = pv_chains(x) + pv_chains(x + 1)
            else:
                M = pv_chains(x + 1, True) + pv_chains(x, True)
        elif u % 2 == 0:
            M = qk_chain(u, False) + qk_chain(u + 1, True)
        else:
            M = pv_chains(u - 1) + pv_chains(u)
        F = [[] for _ in range(8)]
        sc = []
        nreads = 0
        n = u + LK
        if qk and not (j == 30 and n >= 16):
            F[2].append(k_read(j + 1 + n // 16, (n % 16) // 4, n % 4))
            nreads += 1
        n = u + LV
        if n < 16 or qk:
            F[5].append(v_read(j + n // 16, (n % 16) // 2, n % 2, 0))
            F[6].append(v_read(j + n // 16, (n % 16) // 2, n % 2, 1))
            nreads += 2
        on, p, sb = pdst(u - 1)
        if on:
            for r in range(4):
                F[(0, 1, 3, 4)[r]].append(f"v_exp_f32 v{sb+r}, v{sb+r}")
            F[5].append(f"v_cvt_pk_bf16_f32 v{p}, v{sb}, v{sb+1}")
        on, p, sb = pdst(u - 2)
        if on:
            F[2].append(f"v_cvt_pk_bf16_f32 v{p+1}, v{sb+2}, v{sb+3}")
        post = []
        sh = OPT.get("sh", 1)
        ud, up = (u + 2 * sh) % 16, u + sh
        if late:
            q, syncs = late
            while q and kind_of(q[0]) == "scalar" and len(sc) < 6:
                sc.append(q.pop(0))
            if q:
                F[7].append(q.pop(0))
            if up in syncs:
                wait, more = syncs[up]
                assert j != 29 or not any(kind_of(x) == "vm" for x in q)
                post += wait + ["s_barrier"]
                q.extend(more)
            elif up % 4 == 2 and q and kind_of(q[0]) == "vm":
                post.append(q.pop(0))
        elif qk:
            if up == 10:
                post += ["WAITVM K2" if first else f"s_waitcnt vmcnt({[9 + sh, 10 - sh, 9, 8 if OPT.get('skip', 1) else 10][j % 4]})", "s_barrier"]
            if ud == 12:
                sc += [f"s_add_u32 s{S_OFF}, s{S_OFF}, 32768", f"s_mov_b32 m0, s{S_M0K + j % 4}"]
            if ud in (12, 14):
                F[7].append(k_dma((ud - 12) // 2))
            if ud in (0, 2):
                F[7].append(k_dma(2 + ud // 2))
            if ud == 4:
                sc += [f"s_sub_u32 s{S_OFF}, s{S_OFF}, 16384", f"s_mov_b32 m0, s{S_M0V + (j + 2) % 4}"]
            if ud in (4, 6, 8, 10):
                F[7].append(v_dma((ud - 4) // 2))
            if j % 4 == 0:
                if ud in (3, 11):
                    sc.append(f"s_mov_b32 m0, s{S_M0R}")
                if ud == 3:
                    F[7].append(f"buffer_load_dwordx4 v{V_RDMA}, {sr(S_R0)}, s{S_RSRC} offen lds")
                if ud == 11:
                    F[7].append(f"buffer_load_dwordx4 v{V_RDMA}, {sr(S_R0)}, s{S_RSRC2} offen offset:1024 lds")
                if ud == 13:
                    sc += [f"s_cmp_gt_u32 s{S_CNT}, 5", f"s_cselect_b32 s{S_R0+2}, s{S_R0+2}, 0"]
                if up == 14:
                    sc += [f"s_cmp_eq_u32 s{S_CNT}, 4", f"s_cselect_b32 s5, s{S_SIGA}, {OOB}"]
                    post.append(f"buffer_atomic_add v{V_ONE}, v{V_SIG}, {sr(S_WS)}, s5 offen")
                if u == 15 and not first:
                    sc.append(f"s_cmp_gt_u32 s{S_CNT}, 1")
            if j % 4 == 2:
                if up == 6:
                    post.append(POLL_A)
                if 11 <= u < 15:
                    k = u - 11
                    F[6].append(f"ds_read_b64_tr_b16 {ar(A_RP+2*k,2)}, v{V_RRD} offset:{(k//2)*32+(k%2)*4096}")
                    nreads += 1
            if j % 4 == 3 and u == 0:
                sc.append(f"s_sub_u32 s{S_CNT}, s{S_CNT}, 1")
            if j % 4 in (1, 2) and u == 15 and OPT.get("rmask", 0):
                sc.append(f"s_bitcmp1_b32 s7, s{S_CNT}")
            if j % 4 == 3:
                if up in (2, 6):
                    st = f"buffer_store_dwordx4 {ar(A_RP+(up//4)*4,4)}, v{V_L16}, {sr(S_WP)}, s{S_RDST} offen offset:{(up//4)*2048} sc1"
                    if OPT.get("skip", 1):
                        sc.append(f"s_cmp_eq_u32 s{S_WP+2}, 0")
                        post += [f"s_cbranch_scc1 M_nost{up}", st, f"M_nost{up}:"]
                    else:
                        post.append(st)
                if u == 7:
                    sc += [f"s_cmp_gt_u32 s{S_CNT}, 4", f"s_cselect_b32 s{S_WP+2}, s{S_WP+2}, 0", f"s_add_u32 s{S_RB}, s{S_RB}, 1"]
                if u in (11, 13):
                    sc += repack_offsets()[(u - 11) // 2 * 7:][:7]
        for i, x in enumerate(sc):
            F[i].insert(0, x)
        if u % 2 == 1:
            F[7].insert(0, f"s_waitcnt lgkmcnt({nreads})")
        if qk and not late and not first:
            drop = tuple(p for k, p in (("nodma", "buffer_"), ("nobar", "s_barrier"), ("novm", "s_waitcnt vmcnt"), ("nolg", "s_waitcnt lgkm"), ("nods", "ds_"), ("nost", "buffer_store"), ("norp", "buffer_load_dwordx4 v22")) if OPT.get(k))
            if drop:
                keep = lambda x: not x.startswith(drop) or "atomic" in x or x == POLL_A
                F = [[x for x in f if keep(x)] for f in F]
                post = [x for x in post if keep(x)]
        if qk:
            for i in range(8):
                e(M[i])
                for x in F[i]:
                    e.safe(x)
        else:
            for x in F[0] + F[1] + F[2] + F[3] + F[4]:
                e.safe(x)
            fixed = {}
            if F[5]:
                fixed[0] = (F[5][:1] + F[6] + F[5][1:], [])
            if 2 <= u < 6:
                M.append(smfmac(ar(A_L + (u - 2) * 4, 4), vr(pr + (u - 2) * 8, 8)))
            interleave(e, M[4:], fixed, extra(u), cap=OPT.get("fcap", 3), quota=OPT.get("fq", 2))
            for x in F[7]:
                e(x)
        if qk and up % 4 == 2:
            q2 = u // 4
            e(smfmac(ar(A_L + q2 * 4, 4), vr(pr + q2 * 8, 8)))
        for x in post:
            e(x)


V_M = 24


def row_max_finish(e):
    m, t = V_M, V_M + 4
    for swap in ("v_permlane32_swap_b32", "v_permlane16_swap_b32"):
        for qb in range(4):
            e(f"v_mov_b32 v{t+qb}, v{m+qb}")
        for qb in range(4):
            e(f"{swap} v{m+qb}, v{t+qb}")
        for qb in range(4):
            e(f"v_max_f32 v{m+qb}, v{m+qb}, v{t+qb}")
    for qb in range(4):
        sel = "op_sel_hi:[0,0]" if qb % 2 == 0 else "op_sel:[0,1] op_sel_hi:[0,1]"
        for p in range(2):
            e(f"v_pk_add_f32 {vr(V_NM+qb*4+2*p,2)}, s[6:7], {vr(m+(qb//2)*2,2)} {sel} neg_lo:[0,1] neg_hi:[0,1]")


def x_dma(c):
    out = []
    for h in range(2):
        out += [f"s_add_u32 m0, s{S_W8K}, {X_SLOT[c%2] + h*4096}", f"s_mov_b32 s{S_OFF}, {c*128 + h*40960}"]
        out += [f"buffer_load_dwordx4 v{V_XDMA+n}, {sr(S_X)}, s{S_OFF} offen offset:{n*1024} lds ; @X{c}" for n in range(4)]
    return out


def w_dma(c):
    out = [f"s_add_u32 m0, s{S_W4K}, {WQ_SLOT[c%4]}", f"s_mov_b32 s{S_OFF}, {c*64*8192}"]
    out += [f"buffer_load_dwordx4 v{V_WQDMA+n}, {sr(S_WQ)}, s{S_OFF} offen offset:{n*1024} lds ; @W{c}" for n in range(4)]
    out += [f"s_add_u32 m0, s{S_W2K}, {LDS_W1+(c%4)*8192}", f"s_mov_b32 s{S_OFF}, {c*64*3456}"]
    out += [f"buffer_load_dwordx4 v{V_W1DMA+n}, {sr(S_W1)}, s{S_OFF} offen offset:{n*1024} lds ; @W{c}" for n in range(2)]
    return out


def x_read(c):
    out = [f"ds_read_b128 {ar(A_XF+(c%2)*32+(qb*2+t)*4,4)}, v{V_XRD+t} offset:{qb*2048} ; @XR{c}" for qb in range(4) for t in range(2)]
    return out + [f"v_xor_b32 v{V_XRD+t}, 0x10000, v{V_XRD+t}" for t in range(2)]


def code_prefetch(e):
    e("s_getpc_b64 s[6:7]")
    e("M_pc:")
    e("s_lshr_b32 s3, s2, 3")
    e("s_lshl_b32 s3, s3, 11")
    e("v_lshl_add_u32 v60, v62, 3, s3")
    e("v_min_u32 v60, M_hot_end-M_pc-4, v60")
    e("v_mov_b32 v61, 0")
    e("v_lshl_add_u64 v[60:61], v[60:61], 0, s[6:7]")
    e("global_load_dword v63, v[60:61], off ; nocheck")


def setup(e):
    if STAMPS:
        e("s_memrealtime s[92:93]")
        e("s_memtime s[94:95]")
    e(f"s_load_dwordx16 {sr(P_IN,16)}, s[0:1], 0")
    e("s_cmp_ge_u32 s2, 256")
    e("s_cbranch_scc1 M_exit")
    e("v_lshrrev_b32 v31, 6, v0")
    e("v_mov_b32 v62, v0")
    e(f"v_readfirstlane_b32 s{S_W}, v31")
    if OPT.get("pf", 2) == 1:
        code_prefetch(e)
    e("v_and_b32 v0, 63, v0")
    e(f"s_lshr_b32 s{S_QT}, s2, 5")
    e("v_lshrrev_b32 v29, 4, v0")
    e("v_lshrrev_b32 v30, 3, v0")
    e("v_and_b32 v31, 7, v0")
    e(f"s_lshl_b32 s{S_W8K}, s{S_W}, 13")
    e(f"s_lshl_b32 s5, s{S_QT}, 2")
    e(f"s_add_u32 s5, s5, s{S_W}")
    e("s_mul_i32 s6, s5, 81920")
    e("v_mul_u32_u24 v26, 1280, v30")
    e("v_add_u32 v26, s6, v26")
    e("v_xor_b32 v27, v31, v29")
    e(f"v_lshl_add_u32 v{V_XDMA}, v27, 4, v26")
    e(f"v_add_u32 v{V_XDMA+2}, {2*(10240-1024)}, v{V_XDMA}")
    e(f"v_xor_b32 v27, 64, v{V_XDMA}")
    e(f"v_add_u32 v{V_XDMA+1}, {10240-1024}, v27")
    e(f"v_add_u32 v{V_XDMA+3}, {3*(10240-1024)}, v27")
    e(f"s_mov_b32 s{S_X+2}, 2621440")
    e(f"s_mov_b32 s{S_X+3}, {SRD3}")
    first = x_dma(0)
    pre = Asm()
    pre("s_and_b32 s3, s2, 7")
    pre("s_bfe_u32 s7, s2, 0x20003")
    pre(f"s_lshl_b32 s{S_HEAD}, s3, 2")
    pre(f"s_add_u32 s{S_HEAD}, s{S_HEAD}, s7")
    pre(f"s_lshl_b32 s{S_W2K}, s{S_W}, 11")
    pre(f"s_lshl_b32 s{S_W4K}, s{S_W}, 12")
    pre("v_and_b32 v28, 15, v0")
    pre(f"s_lshl_b32 s6, s{S_W}, 17")
    pre("v_lshlrev_b32 v26, 13, v29")
    pre("v_add_u32 v26, s6, v26")
    pre("v_lshlrev_b32 v27, 2, v29")
    pre("v_xor_b32 v27, v27, v28")
    pre(f"v_lshl_add_u32 v{V_WQDMA}, v27, 4, v26")
    for n in range(1, 4):
        pre(f"v_add_u32 v{V_WQDMA+n}, {n*(32768-1024)}, v{V_WQDMA}")
    pre(f"s_lshl_b32 s6, s{S_HEAD}, 8")
    early = OPT.get("early", 0)
    for x in first[:2] + (pre.lines if early else []):
        e(x)
    e("s_waitcnt lgkmcnt(0)")
    if STAMPS:
        e(f"v_writelane_b32 v{V_STAMP}, s92, 0")
        e(f"v_writelane_b32 v{V_STAMP}, s94, 1")
        nstamp[0] += 1
    if OPT.get("st0"):
        stamp(e)
    e(f"s_mov_b64 {sr(S_X,2)}, {sr(P_IN,2)}")
    for x in first[2:]:
        e.safe(x)
    if OPT.get("pf", 2) == 2:
        code_prefetch(e)
    for reg, off in ((S_R1, 64), (S_DBG, 72), (S_WS, 80)):
        e(f"s_load_dwordx2 {sr(reg,2)}, s[0:1], {off}")
    for x in ([] if early else pre.lines):
        e(x)
    srd(e, S_WQ, P_IN + 6, "s6", 640 * 8192 - 31 * 256)
    for x in w_dma(0)[:6]:
        e.safe(x)
    if OPT.get("spread", 1):
        e("s_min_u32 s4, s3, 5")
        e(f"s_sub_u32 s{S_CNT}, s{S_HEAD}, s4")
        e("s_cmp_lt_u32 s3, 5")
        e("s_cselect_b32 s4, s7, 0")
        e("s_cmp_eq_u32 s4, 3")
        e(f"s_cselect_b32 s{S_CNT}, 27, s{S_CNT}")
    else:
        e(f"s_mov_b32 s{S_CNT}, s{S_HEAD}")
    e(f"s_lshl_b32 s6, s{S_CNT}, 7")
    srd(e, S_W1, P_IN + 12, "s6", 640 * 3456 - 26 * 128)
    e(f"s_cmp_lt_u32 s{S_CNT}, 27")
    e(f"s_cselect_b32 s{S_W1+2}, s{S_W1+2}, 0")
    e(f"s_mul_i32 s6, s{S_W}, {16*3456}")
    e("v_mul_u32_u24 v26, 3456, v30")
    e("v_add_u32 v26, s6, v26")
    e("v_and_b32 v27, 2, v30")
    e("v_xor_b32 v27, v27, v31")
    e(f"v_lshl_add_u32 v{V_W1DMA}, v27, 4, v26")
    e(f"v_xor_b32 v27, 64, v{V_W1DMA}")
    e(f"v_add_u32 v{V_W1DMA+1}, {8*3456-1024}, v27")
    for x in w_dma(0)[6:]:
        e.safe(x)
    e(f"v_lshlrev_b32 v{V_L16}, 4, v0")
    e("v_bfe_u32 v30, v0, 2, 3")
    e("v_and_b32 v31, 3, v0")
    e("v_bfe_u32 v12, v0, 2, 2")
    e("v_lshl_add_u32 v26, v29, 3, v12")
    e("v_lshlrev_b32 v27, 8, v26")
    e("v_lshl_add_u32 v27, v31, 4, v27")
    e(f"v_xor_b32 v12, s{S_W}, v12")
    e(f"v_lshl_add_u32 v{V_WQRD}, v12, 6, v27")
    for j in range(1, 4):
        e(f"v_xor_b32 v{V_WQRD+j}, {j*64}, v{V_WQRD}")
    e("v_lshlrev_b32 v27, 7, v26")
    e("v_lshl_add_u32 v27, v31, 3, v27")
    e(f"v_add_u32 v27, {LDS_W1}, v27")
    e("v_lshrrev_b32 v12, 1, v30")
    e(f"s_and_b32 s6, s{S_W}, 2")
    e("v_xor_b32 v12, s6, v12")
    e(f"v_lshl_add_u32 v{V_W1RD}, v12, 5, v27")
    for nb in range(1, 4):
        e(f"v_xor_b32 v{V_W1RD+nb}, {nb*32}, v{V_W1RD}")
    e("v_lshrrev_b32 v12, 1, v28")
    e("v_xor_b32 v12, v12, v29")
    e("v_lshlrev_b32 v12, 4, v12")
    e("v_lshl_add_u32 v12, v28, 7, v12")
    e(f"s_add_u32 s6, s{S_W8K}, {X_SLOT[0]}")
    e(f"v_add_u32 v{V_XRD}, s6, v12")
    e(f"v_xor_b32 v{V_XRD+1}, 64, v{V_XRD}")
    e("v_and_b32 v26, 1, v0")
    e("v_cmp_eq_u32 vcc, 0, v26")
    e("v_mov_b32 v27, 0x44444444")
    e("v_mov_b32 v12, 0xeeeeeeee")
    e(f"v_cndmask_b32 v{V_IDX}, v12, v27, vcc")
    e("v_and_b32 v26, 2, v0")
    e("v_cmp_eq_u32 vcc, 0, v26")
    e("v_mov_b32 v27, 0x3f803f80")
    e("v_mov_b32 v12, 0")
    for r in range(4):
        e(f"v_cndmask_b32 v{V_ONES+r}, v12, v27, vcc")
    for r in range(16):
        e(f"v_accvgpr_write_b32 a{A_CS+r}, 0")
    if OPT.get("st0"):
        stamp(e)
    mem = x_dma(1) + w_dma(1)
    for x in mem[:OPT.get("nearly", 10)]:
        e.safe(x)
    e("s_waitcnt lgkmcnt(0)")
    return mem[OPT.get("nearly", 10):]


def glued(lines):
    out = []
    for x in lines:
        if x.startswith(("s_addc", "s_subb", "s_cselect")):
            out[-1] += "\n" + x
        else:
            out.append(x)
    return out


def late_stream():
    e = Asm()
    e(f"s_lshl_b32 s6, s{S_QT}, 5")
    e(f"s_add_u32 s6, s6, s{S_HEAD}")
    e("s_lshl_b32 s6, s6, 2")
    e(f"s_add_u32 s6, s6, s{S_W}")
    e("s_lshl_b32 s6, s6, 1")
    e("v_lshrrev_b32 v26, 5, v0")
    e("v_add_u32 v26, s6, v26")
    e("v_mul_u32_u24 v27, 1280, v26")
    e("v_and_b32 v12, 31, v0")
    e("v_lshl_add_u32 v13, v12, 4, v27")
    e("v_lshl_add_u32 v14, v12, 3, v27")
    e("v_lshlrev_b32 v26, 3, v26")
    e("v_lshl_add_u32 v19, v12, 24, v26")
    e("v_min_u32 v12, 1, v62")
    e(f"v_lshlrev_b32 v{V_SIG}, 24, v12")
    e(f"v_mov_b32 v{V_ONE}, 1")
    late_setup(e)
    return glued(e.lines) + zero_addr() + ([] if OPT.get("zlate", 0) else [ZERO_STORE])


SROW = [f"buffer_load_dwordx4 v[2:5], v13, {sr(S_X)}, 0 offen ; @SROW",
        f"buffer_load_dwordx4 v[6:9], v13, {sr(S_X)}, 0 offen offset:512 ; @SROW",
        f"buffer_load_dwordx2 v[10:11], v14, {sr(S_X)}, 0 offen offset:1024 ; @SROW"]


def tile_ids(e):
    e("s_bfe_u32 s4, s2, 0x20001")
    e("s_and_b32 s5, s2, 1")
    e("s_lshl_b32 s5, s5, 3")
    e("s_bfe_u32 s6, s2, 0x30003")
    e("s_add_u32 s5, s5, s6")
    e("s_lshr_b32 s6, s2, 6")


def late_setup(e):
    e(f"s_lshl_b32 s6, s{S_HEAD}, 19")
    srd(e, S_K, P_IN + 2, "s6", 524288)
    srd(e, S_V, P_IN + 4, "s6", 524288)
    e(f"s_sub_u32 s{P_IN+14}, s{P_IN+14}, {128*40960}")
    e(f"s_subb_u32 s{P_IN+15}, s{P_IN+15}, 0")
    e("s_cmp_lt_u32 s2, 160")
    e(f"s_cselect_b64 {sr(S_R0,2)}, {sr(P_IN+8,2)}, {sr(P_IN+14,2)}")
    e(f"s_cselect_b32 s7, 64, {NPAIR}")
    e(f"s_mul_i32 s{S_R0+2}, s7, 81920")
    e(f"s_mov_b32 s{S_R0+3}, {SRD3}")
    e(f"s_mul_i32 s6, s5, {ACT_RG}")
    e(f"s_add_u32 s6, s6, {WS_ACT}")
    e(f"s_lshl_b32 s7, s{S_HEAD}, 14")
    e("s_add_u32 s7, s7, s6")
    srd(e, S_ACT, S_WS, "s7", 16384)
    e(f"s_lshl_b32 s7, s{S_CNT}, 13")
    e(f"s_add_u32 s7, s7, {64*8192}")
    e("s_add_u32 s7, s7, s6")
    srd(e, S_ACTH, S_WS, "s7", 8192)
    e(f"s_cmp_lt_u32 s{S_CNT}, 27")
    e(f"s_cselect_b32 s{S_ACTH+2}, s{S_ACTH+2}, 0")
    srd(e, S_DBG, S_DBG, None, 256)
    srd(e, S_OUT, S_R1, None, 2621440)
    tile_ids(e)
    e("s_lshl_b32 s7, s5, 1")
    e(f"s_lshr_b32 s3, s{S_W}, 1")
    e("s_add_u32 s3, s7, s3")
    e(f"s_mul_i32 s7, s3, {ACT_RG}")
    e(f"s_add_u32 s7, s7, {WS_ACT}")
    e(f"s_and_b32 s{S_XO}, s{S_W4K}, 4096")
    e(f"s_add_u32 s7, s7, s{S_XO}")
    srd(e, S_TA, S_WS, "s7", (NPAIR - 1) * 8192 + 4096)
    e("s_lshl_b32 s7, s6, 2")
    e(f"s_add_u32 s7, s7, s{S_W}")
    e("s_mul_i32 s7, s7, 5120")
    e(f"s_add_u32 s7, s7, {WS_WP}")
    srd(e, S_TW, S_WS, "s7", (NPAIR - 1) * WP_PAIR + 5120)
    e("s_lshl_b32 s3, s3, 2")
    e("s_add_u32 s3, s3, s4")
    e(f"s_mul_i32 s{S_XO}, s3, 20480")
    e("s_lshl_b32 s7, s6, 1")
    e(f"s_and_b32 s3, s{S_W}, 1")
    e("s_add_u32 s7, s7, s3")
    e("s_mul_i32 s7, s7, 160")
    e(f"s_add_u32 s{S_XO}, s{S_XO}, s7")
    e("s_lshr_b32 s7, s5, 1")
    e("s_lshl_b32 s7, s7, 2")
    e("s_add_u32 s7, s7, s4")
    e("s_lshl_b32 s7, s7, 8")
    e(f"s_add_u32 s{S_POLLO}, s7, {MISC_CNTO}")
    e("s_mul_i32 s7, s4, 7")
    e("s_add_u32 s7, s7, 64")
    e(f"s_lshl_b32 s{S_GA}, s7, 13")
    e(f"s_mul_i32 s{S_GW}, s7, {WP_PAIR}")
    e(f"s_lshl_b32 s{S_SA}, s4, 17")
    e(f"s_mul_i32 s{S_SW}, s4, {16*WP_PAIR}")
    e("s_lshl_b32 s5, s5, 2")
    e("s_add_u32 s5, s5, s6")
    e("s_lshl_b32 s5, s5, 8")
    e(f"s_add_u32 s5, s5, {MISC_CNTP}")
    e("s_cmp_eq_u32 s4, 0")
    e(f"s_cselect_b32 s5, s5, {OOB}")
    srd(e, S_WP, S_WS, WS_WP, NPAIR * WP_PAIR)
    e(f"s_add_u32 s{S_M0R}, s{S_W2K}, {LDS_W1}")
    srd(e, S_WS, S_WS, WS_MISC if WS_MISC else None, MISC_SIZE)
    e(f"s_lshl_b32 s{S_SIGS}, s{S_QT}, 5")
    e(f"s_lshl_b32 s7, s{S_QT}, 8")
    e(f"s_add_u32 s{S_SIGA}, s7, {MISC_CNTA}")
    e(f"s_lshl_b32 s7, s{S_QT}, 2")
    e(f"s_lshr_b32 s6, s{S_HEAD}, 3")
    e("s_add_u32 s7, s7, s6")
    e("s_lshl_b32 s7, s7, 8")
    e(f"s_add_u32 s{S_SIGO}, s7, {MISC_CNTO}")
    for i in range(4):
        e(f"s_add_u32 s{S_M0K+i}, s{S_W4K}, {LDS_K + i*16384}")
        e(f"s_add_u32 s{S_M0V+i}, s{S_W4K}, {LDS_V + i*16384}")
    e(f"s_mov_b32 s{S_RETRY}, 0")
    e(f"s_cmp_eq_u32 s{S_HEAD}, 0")
    e(f"s_cselect_b32 s6, s{S_SIGA}, {OOB}")
    e(f"s_and_b32 s7, s{S_HEAD}, 7")
    e(f"s_cselect_b32 s7, {OOB}, s{S_SIGO}")

def zero_addr():
    return ["v_lshl_add_u32 v26, v62, 2, s5", f"v_mov_b32 v27, {OOB}", "v_cmp_gt_u32 vcc, 8, v62", "v_cndmask_b32 v26, v27, v26, vcc",
            "v_mov_b32 v27, s6", "v_cmp_eq_u32 vcc, 8, v62", "v_cndmask_b32 v26, v26, v27, vcc",
            "v_mov_b32 v27, s7", "v_cmp_eq_u32 vcc, 9, v62", "v_cndmask_b32 v26, v26, v27, vcc", "v_mov_b32 v27, 0"]


ZERO_STORE = f"buffer_store_dword v27, v26, {sr(S_WS)}, 0 offen sc1"


def stats_stream():
    s = ["WAITVM SROW"]

    def unpack(i, dst):
        return f"v_lshlrev_b32 v{dst}, 16, v{2+i//2}" if i % 2 == 0 else f"v_and_b32 v{dst}, 0xffff0000, v{2+i//2}"

    def reduce32():
        out = ["v_add_f32 v12, v12, v13"]
        for rot in (8, 4, 2, 1):
            out.append(f"v_add_f32_dpp v12, v12, v12 row_ror:{rot} row_mask:0xf bank_mask:0xf")
        out += ["v_mov_b32 v13, v12", "v_permlane16_swap_b32 v12, v13", "v_add_f32 v12, v12, v13",
                f"v_mul_f32 v12, {fbits(1.0/640)}, v12"]
        return out

    s += [unpack(0, 12), unpack(1, 13)]
    for i in range(2, 20, 2):
        s += [unpack(i, 14), unpack(i + 1, 15), "v_add_f32 v12, v12, v14", "v_add_f32 v13, v13, v15"]
    s += reduce32() + ["v_mov_b32 v16, v12"]
    for i in range(0, 20, 2):
        s += [unpack(i, 14), unpack(i + 1, 15), "v_sub_f32 v14, v14, v16", "v_sub_f32 v15, v15, v16"]
        op = "v_mul_f32" if i == 0 else "v_fmac_f32"
        s += [f"{op} v12, v14, v14", f"{op} v13, v15, v15"]
    s += reduce32()
    s += ["v_cvt_pk_bf16_f32 v13, v12, v16", "v_and_b32 v16, 0xffff0000, v13", "v_lshlrev_b32 v12, 16, v13",
          "v_xor_b32 v16, 0x80000000, v16", f"v_add_f32 v12, {fbits(1e-5)}, v12", "v_cvt_pk_bf16_f32 v12, v12, v12",
          "v_lshlrev_b32 v12, 16, v12", "v_sqrt_f32 v12, v12", "v_cvt_pk_bf16_f32 v12, v12, v12",
          "v_lshlrev_b32 v12, 16, v12", "v_rcp_f32 v17, v12", ZERO_STORE if OPT.get("zlate", 0) else "s_nop 0",
          f"buffer_store_dwordx2 v[16:17], v19, {sr(S_WS)}, 0 offen sc1 ; @SST"]
    return s


def kv_addr_stream():
    s = [f"s_lshl_b32 s5, s{S_W}, 2", "v_xor_b32 v26, v28, v29", "v_xor_b32 v27, s5, v26", "v_lshlrev_b32 v27, 4, v27",
         f"v_lshl_add_u32 v{V_KRD}, v28, 8, v27"]
    s += [f"v_xor_b32 v{V_KRD+ks}, {64*ks}, v{V_KRD}" for ks in range(1, 4)]
    s += ["v_lshlrev_b32 v27, 8, v29", f"v_add_u32 v27, s{S_W4K}, v27", f"v_lshl_add_u32 v{V_KDMA}, v26, 4, v27"]
    s += [f"v_xor_b32 v{V_KDMA+n}, {64*n}, v{V_KDMA}" for n in range(1, 4)]
    s += ["v_lshlrev_b32 v26, 1, v29", "v_xor_b32 v26, v26, v28", f"v_lshl_add_u32 v{V_VDMA}, v26, 4, v27",
          f"v_xor_b32 v{V_VDMA+1}, 128, v{V_VDMA}"]
    s += ["v_lshrrev_b32 v27, 2, v0", "v_lshlrev_b32 v27, 8, v27", "v_lshl_add_u32 v27, v31, 3, v27",
          f"v_add_u32 v27, {LDS_V}, v27", f"v_lshl_add_u32 v{V_VRD}, v30, 5, v27"]
    s += [f"v_xor_b32 v{V_VRD+db}, {32*db}, v{V_VRD}" for db in range(1, 8)]
    return s


def repack_addr_stream():
    e = Asm()
    e(f"v_and_b32 v{V_POFF}, 7, v0")
    e(f"v_lshlrev_b32 v{V_POFF}, 8, v{V_POFF}")
    e(f"v_add_u32 v{V_POFF}, {MISC_CNTA}, v{V_POFF}")
    e(f"s_mul_i32 s5, s{S_W}, {8*1280}")
    e("v_mul_u32_u24 v27, 1280, v29")
    e("v_add_u32 v27, s5, v27")
    e("v_lshlrev_b32 v26, 2, v29")
    e("v_xor_b32 v26, v26, v28")
    e(f"v_lshl_add_u32 v{V_RDMA}, v26, 4, v27")
    e("v_lshrrev_b32 v26, 2, v0")
    e("v_and_b32 v27, 3, v26")
    e(f"v_xor_b32 v27, s{S_W}, v27")
    e("v_lshlrev_b32 v27, 6, v27")
    e("v_lshl_add_u32 v27, v26, 8, v27")
    e("v_lshl_add_u32 v27, v31, 3, v27")
    e(f"v_add_u32 v{V_RRD}, {LDS_W1}, v27")
    return e.lines


CS_SITES = {0: 0, 1: 1, 8: 2, 9: 3}


XR_AT = 6


CSR, V_SC = (44, 24), (30, 62)
LAST_ORDER = [0, 1, 8, 9, 2, 3, 4, 5, 6, 7, 10, 11]


def bsel(qb):
    return "op_sel_hi:[1,0]" if qb % 2 == 0 else "op_sel:[0,1] op_sel_hi:[1,1]"


def cs_read(g):
    src, k = (60, g) if g < 4 else (61, g - 4)
    out = [f"ds_read_b128 {vr(CSR[u],4)}, v{src} offset:{u*64} ; @CS{g}" for u in range(2)]
    return out + ([f"v_xor_b32 v{src}, {128*(k^(k+1))}, v{src}"] if g not in (3, 5) else [])


def center(e, g, regs):
    e(f"WAITLG CS{g}")
    for qb in range(4):
        for u in range(2):
            a = regs(u, qb)
            for p in range(2):
                e.safe(f"v_pk_fma_f32 {vr(a+2*p,2)}, {vr(CSR[u]+2*p,2)}, {vr(V_ST+2*qb,2)}, {vr(a+2*p,2)} op_sel_hi:[1,0,1]")
    if g < 5:
        for x in cs_read(g + 1):
            e(x)


def q_scale(e, j):
    center(e, j, lambda u, qb: o_reg(2 * j + u, qb))
    out = []
    for qb in range(4):
        regs = [o_reg(2 * j + u, qb) + 2 * p for u in range(2) for p in range(2)]
        for a in regs:
            e(f"v_pk_mul_f32 {vr(a,2)}, {vr(a,2)}, {vr(V_SC[qb//2],2)} {bsel(qb)}")
        out += [f"v_cvt_pk_bf16_f32 v{a}, v{a}, v{a+1}" for a in regs]
        out += [f"v_accvgpr_write_b32 a{A_Q+(qb*4+j)*4+r}, v{a}" for r, a in enumerate(regs)]
    return out


def phase1(e, carry):
    half = ["lo"] * 8
    seq = [(c, nb) for c in range(9) for nb in range(12)] + [(9, nb) for nb in LAST_ORDER]

    def w_reads(pos):
        if pos >= len(seq):
            return []
        c, nb = seq[pos]
        out = []
        if nb < 8:
            base = WQ_SLOT[c % 4]
            h = "hi" if base >= 65536 else "lo"
            if half[nb // 2] != h:
                out.append(f"v_xor_b32 v{V_WQRD+nb//2}, 0x10000, v{V_WQRD+nb//2}")
                half[nb // 2] = h
        for t in range(2):
            for v in range(2):
                d = ar(A_WF + ((pos % 4) * 2 + t) * 4 + 2 * v, 2)
                if nb < 8:
                    out.append(f"ds_read_b64_tr_b16 {d}, v{V_WQRD+nb//2} offset:{base%65536+t*8192+v*1024+(nb%2)*8} ; @WR{pos}")
                else:
                    out.append(f"ds_read_b64_tr_b16 {d}, v{V_W1RD+nb-8} offset:{(c%4)*8192+t*4096+v*512} ; @WR{pos}")
        return out

    e("WAITVM W0")
    e("s_barrier")
    stamp(e)
    for x in x_read(0) + w_reads(0) + w_reads(1):
        e(x)
    e("WAITLG WR0")
    poll_s = f"buffer_load_dword v63, v62, {sr(S_DBG)}, 0 offen sc1"
    mem, alu, xr = carry, [], []
    srow = [int(x) for x in "%03d" % OPT.get("srow", 222)]
    SIG_AT = srow[2] + OPT.get("sigd", 3)
    bursts = {6: 0, 8: 1, 11: 2}
    for c in range(10):
        mem += [x for k, x in enumerate(SROW) if srow[k] == c]
        if c + 2 < 10:
            mem += x_dma(c + 2) + w_dma(c + 2)
        if c == 0:
            alu += late_stream()
        assert c != srow[0] or not any("v14" in x for x in alu), alu
        if c == srow[2] + 1:
            alu += stats_stream()
        if c == 6:
            alu += [f"v_accvgpr_write_b32 a{A_L+r}, 0" for r in range(16)]
        if c == 7:
            alu += kv_addr_stream()
        if c == 8:
            assert not alu
            alu += tail_scalar_stream() + repack_addr_stream()
            mem += ["v_and_b32 v62, 7, v0", "v_lshlrev_b32 v62, 5, v62", poll_s + " ; @PS"]
            mem += kv_tile("V", 0) + kv_tile("V", 1)
        if c == 9:
            if not OPT.get("klate"):
                mem += kv_tile("K", 1) + kv_tile("K", 2)
            assert not alu and not any("@STL" in x for x in mem), mem
            alu += [f"s_lshl_b32 s5, s{S_W}, 7", f"s_add_u32 s5, s5, {LDS_CS}", "v_lshl_add_u32 v60, v28, 2, s5",
                    f"s_and_b32 s6, s{S_W}, 2", "s_lshl_b32 s6, s6, 6", f"s_add_u32 s6, s6, {LDS_CS+512}", "v_lshl_add_u32 v61, v28, 2, s6"]
        for p in range(12):
            pos = c * 12 + p
            nb = seq[pos][1]
            fixed = {}
            reads = w_reads(pos + 2)
            pre = []
            if p == OPT.get("xrat", 8) and c < 9:
                xr += [f"WAITVM X{c+1}"] + x_read(c + 1)
            if c == 8 and p == OPT.get("stat", 9):
                assert not alu, alu
                st = ["WAITVM PS"] + poll_check("M_ps", poll_s, ["v_cmp_gt_u32 vcc, 32, v63"])
                st += [f"s_lshl_b32 s5, s{S_QT}, 2", f"s_add_u32 s5, s5, s{S_W}", "s_lshl_b32 s5, s5, 9", "v_lshlrev_b32 v62, 3, v28"]
                st += [f"buffer_load_dwordx2 {vr(V_ST+2*qb,2)}, v62, {sr(S_WS)}, s5 offen offset:{qb*128} sc1 ; @STL" for qb in range(4)]
                mem[:0] = st
            if p == 10 and c < 9:
                assert not any(x.startswith("ds_") for x in xr), (c, xr)
                pre = [f"WAITVM W{c+1}" + (" SST" if c == SIG_AT else ""), "s_barrier"]
                if c >= 7:
                    pre = [f"WAITLG XR{c+1}"] + pre
                if c == SIG_AT:
                    assert not alu
                    mem.insert(0, f"buffer_atomic_add v{V_ONE}, v{V_SIG}, {sr(S_DBG)}, s{S_SIGS} offen")
                if c == 8:
                    mem += kv_tile("K", 0)
            if c == 9:
                if 1 <= p <= 4:
                    k = p - 1
                    alu += [f"v_accvgpr_read_b32 v62, a{A_CS+4*k}", f"v_accvgpr_read_b32 v63, a{A_CS+4*k+1}",
                            f"v_add_f32 v{24+k}, v62, v63", f"ds_write_b32 v{60+k//2}, v{24+k} offset:{(k%2)*64} ; @CSW"]
                if p == 5:
                    drain(e, [alu])
                    pre = ["WAITLG CSW", "s_barrier"]
                    alu += ["v_lshl_add_u32 v60, v29, 4, s5", "v_lshl_add_u32 v61, v29, 4, s6"] + cs_read(0)
                    alu += ["WAITVM STL", f"s_mov_b32 s6, {fbits(LOG2E * 128 ** -0.5)}"]
                    alu += [f"v_mul_f32 v{V_SC[qb//2]+qb%2}, s6, v{V_ST+2*qb+1}" for qb in range(4)]
                if p in bursts:
                    if bursts[p] == 0:
                        drain(e, [alu])
                    alu += q_scale(e, bursts[p])
            slot = 0
            if pre:
                fixed[0] = (pre, [])
                slot = 1
            extra = len(reads) - 4
            for i, x in enumerate(reads):
                k = slot + max(0, i - max(extra, 0))
                fixed.setdefault(k, ([], []))[0].append(x)
            mf = []
            for i, qb in enumerate(snake(p)):
                for t in ((0, 1) if i % 2 == 0 else (1, 0)):
                    acc = vr(o_reg(nb, qb), 4) if nb < 8 else vr(V_P + ((nb - 8) * 4 + qb) * 4, 4)
                    first = c == 0 and len(mf) % 2 == 0
                    mf.append(mfma(acc, ar(A_WF + ((pos % 4) * 2 + t) * 4, 4), ar(A_XF + (c % 2) * 32 + (qb * 2 + t) * 4, 4), "0" if first else acc))
            if nb in CS_SITES:
                mf.append(smfmac(ar(A_CS + 4 * CS_SITES[nb], 4), ar(A_WF + (pos % 4) * 8, 8)))
            if pos + 1 < len(seq):
                fixed.setdefault(len(mf) - 1, ([], []))[1].append(f"WAITLG WR{pos+1}")
            nvm = sum(x.startswith("buffer_") for x in mem)
            quota = min(-(-nvm // (12 - p)), 3) if c < 9 else OPT.get("q9", 1)
            interleave(e, mf, fixed, [xr, mem, alu], quota=quota + any(x.startswith("buffer_") for x in alu[:12]))
        assert not mem or c in (0, 1, 8, 9), (c, mem)
        if OPT.get("p1st") and c < 9:
            stamp(e)
    stamp(e)
    e("WAITVM K0")
    e("s_barrier")
    for kb in range(4):
        for ks in range(4):
            e(k_read(0, kb, ks) + f" ; @K0R{kb}")
    if OPT.get("klate"):
        mem += kv_tile("K", 1) + kv_tile("K", 2)
    drain(e, [mem, alu])


def proj_epilogue(e):
    for x in q_scale(e, 3):
        e(x)
    e(f"s_mov_b32 s6, {fbits(-LOG2E)}")
    for qb in range(4):
        e(f"v_mul_f32 v{V_SC[qb//2]+qb%2}, s6, v{V_ST+2*qb+1}")
        e(f"v_rcp_f32 v{V_ST+2*qb+1}, v{V_ST+2*qb+1}")
    for jj in range(2):
        hreg = lambda u, qb: V_P + ((2 * jj + u) * 4 + qb) * 4
        center(e, 4 + jj, hreg)
        for qb in range(4):
            for u in range(2):
                for p in range(2):
                    a = hreg(u, qb) + 2 * p
                    e(f"v_pk_mul_f32 {vr(a+64,2)}, {vr(a,2)}, {vr(V_SC[qb//2],2)} {bsel(qb)}")
    scalars = [f"s_lshl_b32 s{S_RB}, s2, 2"] + repack_offsets()
    scalars += [f"s_and_b32 s6, s{S_W}, 2", "s_lshl_b32 s6, s6, 9", "s_mov_b32 s5, 4096"]
    for i, m in enumerate(first_scores()):
        e.safe(m)
        if scalars:
            e(scalars.pop(0))
        e(f"v_exp_f32 v{V_O+i}, v{V_O+i}")
    e(f"v_xor_b32 v62, s6, v{V_L16}")
    e("v_xor_b32 v63, 1024, v62")
    hst = []
    for jj in range(2):
        for qb in range(4):
            regs = [V_P + ((2 * jj + u) * 4 + qb) * 4 + 2 * p for u in range(2) for p in range(2)]
            d = regs[0] + 64
            for a in regs:
                e(f"v_pk_fma_f32 {vr(a+64,2)}, {vr(a+64,2)}, {vr(V_ST+2*qb,2)}, {vr(V_ST+2*qb,2)} op_sel:[0,1,1] op_sel_hi:[1,1,1]")
            for a in regs:
                e(f"v_rcp_f32 v{a+64}, v{a+64}")
                e(f"v_rcp_f32 v{a+65}, v{a+65}")
            for a in regs:
                e(f"v_pk_mul_f32 {vr(a,2)}, {vr(a,2)}, {vr(a+64,2)}")
            for p, a in enumerate(regs):
                e(f"v_cvt_pk_bf16_f32 v{d+p}, v{a}, v{a+1}")
            hst.append(f"buffer_store_dwordx4 {vr(d,4)}, v{62+jj}, {sr(S_ACTH)}, {'s5' if qb >= 2 else '0'} offen offset:{(qb%2)*2048} sc1 ; @HST")
            if (jj * 4 + qb) % OPT.get("he", 1) == 0:
                e(hst.pop(0))
    return hst


V_S0 = V_O + 64


def first_scores():
    out = []
    for kb in range(4):
        for n, qb in enumerate(snake(kb)):
            d = vr(V_S0 + (qb * 4 + kb) * 4, 4)
            for i, ks in enumerate(snake(n)):
                out.append(mfma(d, ar(A_KF + (kb * 4 + ks) * 4, 4), ar(A_Q + (qb * 4 + ks) * 4, 4), "0" if i == 0 else d))
    return out


V_MX, V_L8, V_XO, V_C256, V_TRD, V_X = 40, 45, 46, 47, 48, 2
V_L4K = V_RDMA
ACC = {"G": [128, 144, 160, 176, 192], "S": [64, 80, 96, 112, 208]}
TSTEPS = ["G"] * 7 + ["S"] * 16
TW_SLOT = [LDS_W1 + 8192, 0, 20480, 40960]
PK = 224


def tail_scalar_stream():
    t = Asm()
    tile_ids(t)
    t("s_lshl_b32 s5, s5, 2")
    t("s_add_u32 s5, s5, s6")
    t(f"s_lshl_b32 s{S_SIGP}, s5, 8")
    t(f"s_add_u32 s{S_SIGP}, s{S_SIGP}, {MISC_CNTP}")
    t(f"s_mul_i32 s5, s5, {PART_TILE}")
    t(f"s_mul_i32 s6, s{S_W}, {PART_WAVE}")
    t("s_add_u32 s5, s5, s6")
    t(f"s_add_u32 s5, s5, {WS_PART - WS_MISC}")
    srd(t, S_PART, S_WS, "s5", PART_TILE - 3 * PART_WAVE)
    t(f"s_mul_i32 s{S_M0W}, s{S_W}, 5120")
    for k in range(1, 4):
        t(f"s_xor_b32 s5, s4, {k}")
        t(f"s_mul_i32 s5, s5, {PART_DST}")
        t(f"s_add_u32 s{S_PS+k}, s5, {(k-1)*PART_SRC}")
    t(f"s_mul_i32 s{S_PS}, s4, {PART_DST}")
    t(f"s_add_u32 s{S_M0A}, s{S_PS}, {PART_SRC}")
    t(f"s_add_u32 s{S_KQ}, s{S_PS}, {2*PART_SRC}")
    return glued(t.lines)


def tail_vector_stream():
    t = Asm()
    t(f"s_lshr_b32 s5, s{S_W}, 1")
    t("s_lshl_b32 s5, s5, 2")
    t("s_bfe_u32 s4, s2, 0x20001")
    t("s_add_u32 s5, s5, s4")
    t("s_lshl_b32 s5, s5, 11")
    t(f"s_add_u32 s5, s5, {LDS_V}")
    t(f"v_add_u32 v{V_TRD}, s5, v{V_L16}")
    for k in range(1, 4):
        t(f"v_xor_b32 v{V_TRD+k}, {2048*k}, v{V_TRD}")
    t(f"s_and_b32 s5, s{S_W}, 1")
    t("s_mul_i32 s5, s5, 10240")
    t(f"v_add_u32 v{V_TRD+4}, s5, v{V_L16}")
    t(f"v_add_u32 v{V_TRD+5}, {TW_SLOT[0]}, v{V_TRD+4}")
    return t.lines


def tail_vector_late():
    t = Asm()
    t(f"v_and_b32 v12, 255, v{V_L16}")
    t("v_mul_u32_u24 v12, 10, v12")
    t(f"v_lshrrev_b32 v13, 8, v{V_L16}")
    t("v_lshl_add_u32 v12, v13, 3, v12")
    t(f"v_add_u32 v{V_XO}, s{S_M0V+3}, v12")
    t(f"v_lshrrev_b32 v{V_L8}, 1, v{V_L16}")
    t(f"v_add_u32 v14, 8192, v{V_L16}")
    t(f"v_add_u32 v15, 8192, v{V_L8}")
    t(f"v_mov_b32 v{V_C256}, 0x100")
    t(f"v_and_b32 v12, 255, v{V_L16}")
    t("v_mul_u32_u24 v12, 11, v12")
    t("v_lshl_add_u32 v12, v13, 3, v12")
    t(f"v_add_u32 v24, s{S_M0K}, v12")
    t(f"v_lshrrev_b32 v18, 4, v{V_L16}")
    for n in range(3):
        if n:
            t("v_add_u32 v18, 64, v18")
        t("v_mul_u32_u24 v12, 6554, v18")
        t("v_lshrrev_b32 v12, 16, v12")
        t("v_lshlrev_b32 v13, 4, v18")
        t(f"v_lshl_add_u32 v{25+n}, v12, 4, v13")
        t(f"v_add_u32 v{25+n}, s{S_M0K}, v{25+n}")
        t("v_mul_u32_u24 v19, 1120, v12")
        t(f"v_add_u32 v{28+n}, v19, v13")
    t("v_lshrrev_b32 v12, 4, v12")
    t("v_lshl_add_u32 v30, v12, 24, v30")
    t("s_bfe_u32 s4, s2, 0x20001")
    t(f"v_lshrrev_b32 v12, 4, v{V_L16}")
    t("v_lshlrev_b32 v17, v12, 1".replace("v12, 1", f"v12, v{V_ONE}"))
    t("v_add_u32 v13, 1, v12")
    t("v_xor_b32 v16, s4, v13")
    t("v_lshl_add_u32 v16, v16, 2, 4")
    t("v_lshrrev_b32 v13, 2, v13")
    t(f"v_add_u32 v13, s{S_W}, v13")
    t("v_lshl_add_u32 v16, v13, 24, v16")
    t("s_lshl_b32 s4, s4, 2")
    t(f"s_add_u32 s{S_SIGS}, s4, s{S_SIGP}")
    t(f"s_add_u32 s{S_SIGS}, s{S_SIGS}, 4")
    t("v_mov_b32 v12, 0x3f80")
    t("v_mov_b32 v13, 0x3f800000")
    return t.lines


def tail_dma(s, part="WA"):
    g = TSTEPS[s] == "G"
    sa, sw = (S_GA, S_GW) if g else (S_SA, S_SW)
    step = 1 if g else (2 if s != 14 else -13)
    op = "s_add_u32" if step > 0 else "s_sub_u32"
    out = []
    if "W" in part:
        base = TW_SLOT[s % 4]
        out += [f"s_add_u32 m0, s{S_M0W}, {base}"]
        out += [f"buffer_load_dwordx4 v{V_L16}, {sr(S_TW)}, s{sw} offen offset:{f*1024} sc1 lds ; @T{s}" for f in range(4)]
        out += [f"s_add_u32 m0, s{S_M0W}, {base+4096}", f"buffer_load_dwordx4 v{V_L4K}, {sr(S_TW)}, s{sw} offen sc1 lds ; @T{s}",
                f"{op} s{sw}, s{sw}, {abs(step)*WP_PAIR}"]
    if "A" in part:
        out += [f"s_mov_b32 m0, s{S_M0V + s % 4}"]
        out += [f"buffer_load_dwordx4 v{V_L16}, {sr(S_TA)}, s{sa} offen offset:{f*1024} sc1 lds ; @T{s}" for f in range(4)]
        out += [f"{op} s{sa}, s{sa}, {abs(step)*8192}"]
    return out


def tbuf(s):
    return 144 if s == 22 and OPT.get("merge", 1) else ((s + 1) % 2) * 72


def tail_reads(s):
    b = tbuf(s)
    wr, wo = (V_TRD + 5, 0) if s % 4 == 0 else (V_TRD + 4, TW_SLOT[s % 4])
    wl = [f"ds_read_b128 {ar(b+32+f*4,4)}, v{wr} offset:{wo+f*1024} ; @TR{s}" for f in range(10)]
    al = [f"ds_read_b128 {ar(b+f*4,4)}, v{V_TRD+f//2} offset:{(s%4)*16384+(f%2)*1024} ; @TR{s}" for f in range(8)]
    return wl[:2] + al + wl[2:]


def merge(a, b):
    pos = [i for i, x in enumerate(a) if x.startswith("buffer_")]
    out = list(a)
    for k in range(len(b) - 1, -1, -1):
        out.insert(pos[k * len(pos) // len(b)] + 1 if pos else 0, b[k])
    return out


def tail(e, ost):
    rsoff = [S_PS, S_M0A, S_KQ]

    def xfer(op, kind, base, soff, tag):
        v16, v8 = (V_L16, V_L8) if kind == "S" else (14, 15)
        return [f"buffer_{op}_dwordx4 {vr(base,4)}, v{v16}, {sr(S_PART)}, s{soff} offen sc1 ; @{tag}",
                f"buffer_{op}_dwordx4 {vr(base+4,4)}, v{v16}, {sr(S_PART)}, s{soff} offen offset:1024 sc1 ; @{tag}",
                f"buffer_{op}_dwordx2 {vr(base+8,2)}, v{v8}, {sr(S_PART)}, s{soff} offen offset:2048 sc1 ; @{tag}"]

    def pack(kind, k):
        out = [f"v_cvt_pk_bf16_f32 v{PK+(k-1)*10+2*nb+p}, v{ACC[kind][nb]+4*k+2*p}, v{ACC[kind][nb]+4*k+2*p+1}"
               for nb in range(5) for p in range(2)]
        return out

    def send(kind, k):
        return xfer("store", kind, PK + (k - 1) * 10, S_PS + k, "SEND" + kind)

    RCV = {"G": [ACC["G"][k] + 4 for k in range(3)], "S": [ACC["S"][k] + 4 for k in range(3)]}

    def recv1(kind, k):
        return xfer("load", kind, RCV[kind][k], rsoff[k], f"R{kind}{k}")

    def recv(kind):
        return [x for k in range(3) for x in recv1(kind, k)]

    def accumulate(kind):
        for k in range(3):
            if kind == "G":
                e(f"WAITVM R{kind}{k}")
            elif k == 0:
                e("s_waitcnt vmcnt(0)")
            b = RCV[kind][k]
            for nb in range(5):
                for r in range(4):
                    a = ACC[kind][nb] + r
                    e.safe(f"v_dot2_f32_bf16 v{a}, v{b+2*nb+r//2}, v{12+r%2}, v{a}")

    def atomic(val, soff):
        return f"buffer_atomic_add v{val}, v{V_SIG}, {sr(S_WS)}, s{soff} offen"

    poll_o = f"buffer_load_dword v{V_PVAL}, off, {sr(S_WS)}, s{S_POLLO} sc1"
    poll_p = f"buffer_load_dword v{V_PVAL}, off, {sr(S_WS)}, s{S_SIGP} sc1"
    poll_q = f"buffer_load_dword v{V_PVAL}, off, {sr(S_WS)}, s{S_SIGS} sc1"
    low = f"v_and_b32 v{V_PVAL}, 0xff, v{V_PVAL}"
    n = len(TSTEPS)
    SIGA, CHKA, SIGB, CHKB = OPT.get("siga", 2), OPT.get("chka", 4), OPT.get("sigb", 6), 11
    GSIG, GCHK = OPT.get("gsig", 14), OPT.get("gchk", 19)
    opace = OPT.get("opace", 3)
    gsend = [x for k in range(1, 4) for x in send("G", k)]
    xres = [x for k in range(3) for x in (f"s_add_u32 m0, s{S_M0V+3}, {k*1024}", f"buffer_load_dwordx4 v{28+k}, {sr(S_X)}, s{S_XO} offen lds ; @XRES")]
    late = recv("G")
    alu = tail_vector_late()
    last = n - 1 - OPT.get("merge", 1)
    for s in range(last + 1):
        b = tbuf(s)
        e(f"WAITLG TR{s if s < last else n - 1}")
        if s < last:
            e(f"WAITVM T{s+1 if s + 1 < last else n - 1}" + {SIGA: " OST0", SIGB: " OST1", CHKA: " POA", CHKB: " POB", GSIG: " SENDG", GCHK: " PG"}.get(s, ""))
            e("s_barrier")
        if OPT.get("tst") and s != CHKA and s not in (9, 13, 15):
            stamp(e)
        head, side = [], []
        assert s != 6 or not alu
        assert s != 7 or not ost
        if s == SIGA:
            head.append(atomic(V_ONE, S_SIGO))
        if s == SIGB:
            head.append(atomic(V_C256, S_SIGO))
        if s == GSIG:
            head.append(atomic(V_ONE, S_SIGP))
        if s == CHKA - 1:
            head.append(poll_o + " ; @POA")
        if s == CHKB - 2:
            head.append(poll_o + " ; @POB")
        if s == GCHK - OPT.get("gpoll", 2):
            head.append(poll_p + " ; @PG")
        if s == CHKA:
            stamp(e)
            for x in poll_check("M_poa", poll_o, [low, f"v_cmp_gt_u32 vcc, 8, v{V_PVAL}"]):
                e(x)
            stamp(e)
        if s == CHKB:
            for x in poll_check("M_pob", poll_o, [f"v_cmp_gt_u32 vcc, 0x800, v{V_PVAL}"]):
                e(x)
        if s == GCHK:
            for x in poll_check("M_pg", poll_p, [f"v_cmp_gt_u32 vcc, 4, v{V_PVAL}"]):
                e(x)
        mem = tail_dma(3, "A") if s == 0 else []
        if s == CHKA:
            for x in range(7, s + 4):
                mem += tail_dma(x, "A")
        if s + 4 < n:
            mem += tail_dma(s + 4, "W" if 7 <= s + 4 < CHKA + 4 else "WA")
        if ost:
            side, ost = ost[:opace], ost[opace:]
        if s == 7:
            alu += pack("G", 1) + pack("G", 2) + pack("G", 3)
        if s >= 8 and gsend:
            assert not alu
            k = OPT.get("gpace", 2)
            side, gsend = gsend[:k], gsend[k:]
        if s == 19:
            assert not mem
            side += xres
        if s == last:
            head += ["WAITVM XRES"] + [f"ds_read_b64 {vr(V_X+2*nb,2)}, v{V_XO} offset:{nb*32} ; @XRD" for nb in range(5)]
        if s >= GCHK:
            k = -(-len(late) // (last - s)) if s < last else 0
            side, late = side + late[:k], late[k:]
        mem = head + merge(mem, side)
        ds = [x for y in range(s + 1, s + 2 if s + 1 < last else n) for x in tail_reads(y)] if s < last else []
        first = s in (0, 7)
        acc_of = ACC[TSTEPS[s]]

        def chain(nb, rb, flip, b=b):
            acc = vr(acc_of[nb] + rb * 4, 4)
            return [mfma(acc, ar(b + 32 + (nb * 2 + t) * 4, 4), ar(b + (rb * 2 + t) * 4, 4), "0" if first and i == 0 else acc)
                    for i, t in enumerate((1, 0) if flip else (0, 1))]

        if s < last:
            mf = [m for nb in range(5) for i, rb in enumerate(snake(nb)) for m in chain(nb, rb, i % 2)]
            fixed = {(i // 3) * 4 + (0, 2, 3)[i % 3]: ([x], []) for i, x in enumerate(ds)}
            nvm = sum(x.startswith("buffer_") for x in mem)
            if nvm > 10:
                fixed = {2 * i: ([x], []) for i, x in enumerate(ds)}
            tds = OPT.get("tds", 0)
            if tds == 1:
                fixed = {2 * i: (ds[2 * i:2 * i + 2], []) for i in range(9)}
            if tds == 2:
                fixed = {4 * i: (ds[2 * i:2 * i + 2], []) for i in range(9)}
            if tds == 3:
                fixed = {3 * i + 1: (ds[2 * i:2 * i + 2], []) for i in range(9)}
            if len(ds) > 18:
                fixed = {2 * i: (ds[2 * i:2 * i + 2], []) for i in range(18)}
            space = 4 if nvm <= 10 else 2
            if tds:
                space = max(1, min(OPT.get("tsp", 4), 38 // max(nvm, 1)))
            interleave(e, mf, fixed, [mem, alu], space=space)
            drain(e, [mem])
        else:
            for rb in (1, 2, 3, 0):
                bufs = [tbuf(y) for y in range(s, n)]
                mf = [m for nb in range(5) for bb in (bufs[::-1] if nb % 2 else bufs) for m in chain(nb, rb, nb % 2, bb)]
                interleave(e, mf, {}, [mem], space=OPT.get("sspace", 0))
                if rb:
                    mem += pack("S", rb) + send("S", rb)
            drain(e, [mem])
            e(poll_q)
    assert not gsend
    stamp(e)
    e(f"s_mov_b32 s6, {fbits(-LOG2E)}")
    e("s_mov_b32 s7, s6")

    def gate():
        accumulate("G")
        for nb in range(5):
            g = ACC["G"][nb]
            t = g + 4
            for p in range(2):
                e.safe(f"v_pk_mul_f32 {vr(t+2*p,2)}, {vr(g+2*p,2)}, s[6:7]")
            for r in range(4):
                e(f"v_exp_f32 v{t+r}, v{t+r}")
            for p in range(2):
                e(f"v_lshlrev_b32 v{t+4+2*p}, 16, v{V_X+2*nb+p}")
                e(f"v_and_b32 v{t+5+2*p}, 0xffff0000, v{V_X+2*nb+p}")
            for p in range(2):
                e(f"v_pk_add_f32 {vr(t+2*p,2)}, {vr(t+2*p,2)}, 1.0 op_sel_hi:[1,0]")
            for r in range(4):
                e(f"v_rcp_f32 v{t+r}, v{t+r}")
            for p in range(2):
                e.safe(f"v_pk_mul_f32 {vr(t+2*p,2)}, {vr(t+2*p,2)}, {vr(g+2*p,2)}")

    e("WAITLG XRD")
    gate()
    e("s_waitcnt vmcnt(0)")
    e("s_barrier")
    e(f"buffer_atomic_add v17, v16, {sr(S_WS)}, s{S_SIGP} offen")
    e("s_mov_b32 s4, 0")
    e("s_mov_b32 s3, 0x100000")
    e("M_gather:")
    e(f"v_readfirstlane_b32 s5, v{V_PVAL}")
    e("s_andn2_b32 s5, s5, s4")
    for k in range(3):
        e(f"s_bitcmp0_b32 s5, {k}")
        e(f"s_cbranch_scc1 M_skip{k}")
        for x in recv1("S", k):
            e(x)
        e(f"M_skip{k}:")
    e("s_or_b32 s4, s4, s5")
    e("s_cmp_eq_u32 s4, 7")
    e("s_cbranch_scc1 M_gathered")
    e(poll_q)
    e("s_sub_u32 s3, s3, 1")
    e("s_cmp_lg_u32 s3, 0")
    e("s_waitcnt vmcnt(0)")
    e("s_cbranch_scc1 M_gather")
    e("M_gathered:")
    stamp(e)
    accumulate("S")
    for nb in range(5):
        s = ACC["S"][nb]
        t = ACC["G"][nb] + 4
        for p in range(2):
            e.safe(f"v_pk_fma_f32 {vr(t+2*p,2)}, {vr(t+2*p,2)}, {vr(s+2*p,2)}, {vr(t+4+2*p,2)}")
        for p in range(2):
            e(f"v_cvt_pk_bf16_f32 v{t+4+p}, v{t+2*p}, v{t+2*p+1}")
        e(f"ds_write_b64 v24, {vr(t+4,2)} offset:{nb*32}")
    for n in range(3):
        e(f"ds_read_b128 {vr(PK+4*n,4)}, v{25+n} ; @OUT{n}")
    for n in range(3):
        e(f"WAITLG OUT{n}")
        e(f"buffer_store_dwordx4 {vr(PK+4*n,4)}, v{28+n}, {sr(S_OUT)}, s{S_XO} offen")


def attention(e, hst):
    m = V_M
    if len(hst) > 4:
        e(hst.pop(0))
    for i in range(8):
        for qb in range(4):
            b = V_S0 + qb * 16
            if i == 0:
                e(f"v_max_f32 v{m+qb}, v{b}, v{b+1}")
            else:
                e(f"v_max3_f32 v{m+qb}, v{m+qb}, v{b+2*i}, v{b+2*i+1}")
    e(f"s_mov_b32 s6, {fbits(-float(OPT.get('bias', 102)))}")
    e("WAITVM K1")
    e("M_restart:")
    e("s_barrier")
    for n in range(LK):
        e(k_read(1, n // 4, n % 4))
    for n in range(LV):
        for v in range(2):
            e(v_read(0, n // 2, n % 2, v))
    e(f"s_mov_b32 m0, s{S_M0K+3}")
    e(f"s_mov_b32 s{S_OFF}, {3*16384}")
    for n in range(2 + OPT.get("sh", 1)):
        e(k_dma(n))
    row_max_finish(e)
    e(f"s_mov_b32 s{S_CNT}, 8")
    if OPT.get("rmask", 0):
        e(f"s_andn2_b32 s7, {OPT.get('rmask', 0)}, s{S_RETRY}")
    for qb in range(4):
        b = V_S0 + qb * 16
        if hst:
            e(hst.pop(0))
        for p in range(8):
            e(f"v_pk_add_f32 {vr(b+2*p,2)}, {vr(b+2*p,2)}, {vr(V_NM+qb*4,2)}")
        for r in range(16):
            e(f"v_exp_f32 v{b+r}, v{b+r}")
        for p in range(8):
            e(f"v_cvt_pk_bf16_f32 v{V_P+qb*8+p}, v{b+2*p}, v{b+2*p+1}")
    assert not hst
    e("s_waitcnt lgkmcnt(0)")
    stamp(e)
    attn_step(e, 0, first=True)
    if OPT.get("ast"):
        stamp(e)
    e(".p2align 6")
    e("M_loop:")
    ra = OPT.get("rpos", 1)
    for j in (1, 2, 3, 0):
        attn_step(e, j)
        if OPT.get("rmask", 0) and j in (ra, (ra + 1) % 4):
            name = "M_shift" if j == ra else "M_rescale"
            e(f"s_cbranch_scc1 {name}")
            e(f"{name}_back:")
    e("s_cbranch_scc1 M_loop")
    if OPT.get("ast"):
        stamp(e)
    for x in poll_check("M_pa", POLL_A, [f"v_cmp_gt_u32 vcc, 32, v{V_PVAL}"]):
        e(x)
    mem = kv_tile("V", 31) + [f"v_add_u32 v{V_L4K}, 4096, v{V_L16}"] + tail_dma(0, "W")
    attn_step(e, 29, late=(mem, {10: (["s_waitcnt vmcnt(9)"], tail_dma(0, "A") + tail_dma(1, "W"))}))
    attn_step(e, 30, late=(mem, {10: (["WAITVM V31"], tail_dma(1, "A") + tail_dma(2, "W")),
                                 14: ([], tail_dma(2, "A") + tail_dma(3, "W"))}))
    if OPT.get("ast"):
        stamp(e)
    T = 24
    alu, rng, ost = [], [], []
    e("s_mov_b32 s6, 8192")

    def normalise(jp, every):
        for qb in range(4):
            for t in range(2):
                j = 2 * jp + t
                d = V_P + ((jp * 4 + qb) * 2 + t) * 4
                for u in range(2):
                    a = o_reg(2 * j + u, qb)
                    e.safe(f"v_pk_mul_f32 {vr(a,2)}, {vr(a,2)}, {vr(T+2*qb,2)} op_sel_hi:[1,0]")
                    e.safe(f"v_pk_mul_f32 {vr(a+2,2)}, {vr(a+2,2)}, {vr(T+2*qb,2)} op_sel_hi:[1,0]")
                for u in range(2):
                    a = o_reg(2 * j + u, qb)
                    e(f"v_cvt_pk_bf16_f32 v{d+2*u}, v{a}, v{a+1}")
                    e(f"v_cvt_pk_bf16_f32 v{d+2*u+1}, v{a+2}, v{a+3}")
                ost.append(f"buffer_store_dwordx4 {vr(d,4)}, v{V_L16 if qb < 2 else V_L4K}, {sr(S_ACT)}, {'s6' if jp else '0'} offen offset:{(qb%2)*2048+t*1024} sc1 ; @OST{jp}")
                if every < 9 and (qb * 2 + t) % every == 0:
                    e(ost.pop(0))

    mid = OPT.get("mid", 9)

    def extra(u):
        if u == 2:
            alu.extend(tail_vector_stream())
        if u == 6:
            for qb in range(4):
                alu.extend([f"v_accvgpr_read_b32 v{T+2*qb}, a{A_L+qb*4}", f"v_accvgpr_read_b32 v{T+2*qb+1}, a{A_L+qb*4+1}"])
            for qb in range(4):
                alu.append(f"v_add_f32 v{T+2*qb+1}, v{T+2*qb}, v{T+2*qb+1}")
            for qb in range(4):
                alu.append(f"v_rcp_f32 v{T+2*qb}, v{T+2*qb+1}")
        if u == mid:
            drain(e, [mem, alu, rng])
            normalise(0, OPT.get("oe0", 8))
        if u > mid and (u - mid) % OPT.get("oe1", 3) == 0:
            mem.append(ost.pop(0))
        if u >= 1:
            magnitude(u - 1)
        return [mem, alu, rng]

    def magnitude(u):
        for qb in ((u % 2) * 2, (u % 2) * 2 + 1):
            a = o_reg(u // 2, qb)
            third = f"v{V_MX+qb}" if u >= 2 else f"|v{a+1}|"
            rng.append(f"v_maximum3_f32 v{V_MX+qb}, |v{a}|, |v{a+1}|, {third}")
            rng.append(f"v_maximum3_f32 v{V_MX+qb}, |v{a+2}|, |v{a+3}|, v{V_MX+qb}")

    attn_step(e, 31, qk=False, extra=extra)
    magnitude(15)
    drain(e, [mem, alu, rng])
    stamp(e)

    e(f"v_maximum3_f32 v58, v{V_MX}, v{V_MX+1}, v{V_MX+2}")
    e(f"v_minimum3_f32 v59, v{V_MX}, v{V_MX+1}, v{V_MX+2}")
    e(f"v_maximum3_f32 v58, v58, v{V_MX+3}, v{T+1}")
    e(f"v_minimum3_f32 v59, v59, v{V_MX+3}, v{V_MX+3}")
    e(f"v_maximum3_f32 v58, v58, v{T+3}, v{T+5}")
    e(f"v_cmp_nle_f32 vcc, {fbits(O_LOW)}, v59")
    e(f"v_maximum3_f32 v58, v58, v{T+7}, v{T+7}")
    e("s_mov_b64 s[4:5], vcc")
    e(f"v_cmp_nge_f32 vcc, {fbits(L_LIMIT)}, v58")
    e(f"s_lshl_b32 s7, s{S_W}, 2")
    e(f"s_add_u32 s7, s7, {LDS_FLAG}")
    e("s_or_b64 s[4:5], s[4:5], vcc")
    e("s_or_b32 s4, s4, s5")
    e("v_mov_b32 v59, s7")
    e("v_mov_b32 v58, s4")
    e("ds_write_b32 v59, v58")
    e(f"v_mov_b32 v59, {LDS_FLAG}")
    if mid > 15:
        normalise(0, OPT.get("oe0", 8))
    e("s_waitcnt lgkmcnt(0)")
    e("WAITVM T0")
    e("s_barrier")
    e("ds_read_b128 v[60:63], v59 ; @FLG")
    for x in tail_reads(0):
        e(x)
    normalise(1, OPT.get("oe2", 5))
    e("WAITLG FLG")
    e("v_or_b32 v60, v60, v61")
    e("v_or3_b32 v60, v60, v62, v63")
    e.safe("v_readfirstlane_b32 s4, v60")
    e(f"s_andn2_b32 s4, s4, s{S_RETRY}")
    e("s_cbranch_scc1 M_fallback")
    return ost


def recentre(e):
    t, A_F = SBUF[0], A_RP + 8
    e("M_shift:")
    e("s_nop 1")
    for qb in range(4):
        e(f"v_accvgpr_read_b32 v{t+qb}, a{A_L+qb*4}")
        e(f"v_accvgpr_read_b32 v{t+4+qb}, a{A_L+qb*4+1}")
    steps = ["v_add_f32 v{a}, v{a}, v{b}", "v_frexp_exp_i32_f32 v{a}, v{a}", f"v_sub_u32 v{{a}}, {1 - OPT.get('bias', 102)}, v{{a}}",
             "v_min_i32 v{a}, 0, v{a}", "v_max_i32 v{a}, -126, v{a}", "v_ldexp_f32 v{b}, 1.0, v{a}", "v_cvt_f32_i32 v{a}, v{a}",
             "v_accvgpr_write_b32 a{f}, v{b}"]
    for x in steps:
        for qb in range(4):
            e(x.format(a=t + qb, b=t + 4 + qb, f=A_F + qb))
    for qb in range(4):
        sel = "op_sel_hi:[1,0]" if qb % 2 == 0 else "op_sel:[0,1] op_sel_hi:[1,1]"
        for p in range(2):
            e(f"v_pk_add_f32 {vr(V_NM+qb*4+2*p,2)}, {vr(V_NM+qb*4+2*p,2)}, {vr(t+(qb//2)*2,2)} {sel}")
    e("s_nop 0")
    e("s_branch M_shift_back")
    e("M_rescale:")
    for qb in range(4):
        e(f"v_accvgpr_read_b32 v{t+qb}, a{A_F+qb}")
    for q0 in (0, 2):
        for i in range(4):
            e(f"v_accvgpr_read_b32 v{t+4+i}, a{A_L+(q0+i//2)*4+i%2}")
        for i in range(4):
            e(f"v_mul_f32 v{t+4+i}, v{t+4+i}, v{t+q0+i//2}")
        for i in range(4):
            e(f"v_accvgpr_write_b32 a{A_L+(q0+i//2)*4+i%2}, v{t+4+i}")
    for db in range(8):
        for qb in range(4):
            sel = "op_sel_hi:[1,0]" if qb % 2 == 0 else "op_sel:[0,1] op_sel_hi:[1,1]"
            for p in range(2):
                a = o_reg(db, qb) + 2 * p
                e(f"v_pk_mul_f32 {vr(a,2)}, {vr(a,2)}, {vr(t+(qb//2)*2,2)} {sel}")
    e("s_branch M_rescale_back")


def fallback(e):
    m = V_M
    e("M_fallback:")
    e(f"s_mov_b32 s{S_RETRY}, -1")
    e(f"s_mov_b32 s{S_SIGA}, {OOB}")
    e(f"s_mov_b32 s{S_ACTH+2}, 0")
    e(f"s_sub_u32 s{S_GA}, s{S_GA}, {3*8192}")
    e(f"s_sub_u32 s{S_GW}, s{S_GW}, {4*WP_PAIR}")
    for qb in range(4):
        e(f"v_mov_b32 v{m+qb}, 0xff800000")
    e(f"s_mov_b32 s{S_OFF}, 0")
    e("M_maxloop:")
    e("s_waitcnt vmcnt(0) lgkmcnt(0)")
    e("s_barrier")
    e(f"s_mov_b32 m0, s{S_M0K}")
    e("s_nop 0")
    for n in range(4):
        e(k_dma(n))
    e("s_waitcnt vmcnt(0)")
    e("s_barrier")
    for kb in range(4):
        for ks in range(4):
            e(k_read(0, kb, ks))
        e("s_waitcnt lgkmcnt(0)")
        for qb in range(4):
            d = vr(V_P + qb * 4, 4)
            for ks in range(4):
                e(mfma(d, ar(A_KF + (kb * 4 + ks) * 4, 4), ar(A_Q + (qb * 4 + ks) * 4, 4), "0" if ks == 0 else d))
        e("s_nop 7")
        for qb in range(4):
            b = V_P + qb * 4
            e(f"v_max3_f32 v{m+qb}, v{m+qb}, v{b}, v{b+1}")
            e(f"v_max3_f32 v{m+qb}, v{m+qb}, v{b+2}, v{b+3}")
    e(f"s_add_u32 s{S_OFF}, s{S_OFF}, 16384")
    e(f"s_cmp_lt_u32 s{S_OFF}, 524288")
    e("s_cbranch_scc1 M_maxloop")
    e("s_barrier")
    for w, t in (("K", 0), ("K", 1), ("K", 2), ("V", 0), ("V", 1)):
        for x in kv_tile(w, t):
            e(x)
    e("s_waitcnt vmcnt(0)")
    e("s_barrier")
    for kb in range(4):
        for ks in range(4):
            e(k_read(0, kb, ks))
    e("s_waitcnt lgkmcnt(0)")
    for x in first_scores():
        e(x)
    for r in range(16):
        e(f"v_accvgpr_write_b32 a{A_L+r}, 0")
    e("s_mov_b32 s6, 0")
    e("s_branch M_restart")


HEADER = """
; One launch, 256 workgroups x 4 waves, one workgroup per CU; workgroup = (head, 256 query rows).
;  1. Projection: [Q_head | 64 columns of FFN1] = x @ [wq | w1] on raw x. LayerNorm is applied to the accumulators,
;     (acc - mean * colsum(W)) / std; row statistics are computed once (8 rows per workgroup) and handed over in d_ws.
;     Softmax reference: the true row maximum of the first 64 keys plus a constant exponent offset (headroom for
;     larger scores later in the row). A term can only underflow if it is below half an fp32 ulp of the row sum.
;     After the last tile the row sums and accumulators are range-checked: if anything overflowed or came near the
;     underflow limit, the workgroup computes the true maximum over all keys and redoes the pass with it (M_fallback).
; Hand-offs: write-through (sc1) stores, vmcnt wait, barrier, atomic counter; consumers poll, then use sc1 loads.
; Counters in d_ws are zeroed by this launch ahead of the first arrival on the counters in d_debug.
"""


def build():
    e = Asm()
    for l in open(f"cdna_kernels/{NAME}.s.ref").read().split("\n"):
        if not l.startswith(";"):
            break
        if "@launch" not in l:
            e(l)
    e("; @launch grid=(256,1,1) block=(256,1,1) lds=163840")
    e(HEADER)
    e('.amdgcn_target "amdgcn-amd-amdhsa--gfx950"')
    e(".text")
    e(f".globl {KERNEL}")
    e(".p2align 8")
    e(f".type {KERNEL},@function")
    e(f"{KERNEL}:")
    e("; ---- setup and first loads")
    carry = setup(e)
    phase1(e, carry)
    e("; ---- layernorm on the accumulators, Q fragments, H = silu(.), scores of the first key tile")
    hst = proj_epilogue(e)
    stamp(e)
    e("; ---- attention")
    ost = attention(e, hst)
    stamp(e)
    tail(e, ost)
    stamp_flush(e)
    e("M_exit:")
    e("s_endpgm")
    emit_spins(e)
    if OPT.get("rmask", 0):
        recentre(e)
    e("M_hot_end:")
    e("; ---- exact row maximum over all keys, then repeat the attention pass")
    fallback(e)
    e('.section .rodata,"a"')
    e(".p2align 6")
    e(f".amdhsa_kernel {KERNEL}")
    for d in ("next_free_vgpr 512", "next_free_sgpr 102", "accum_offset 256", "group_segment_fixed_size 0", "kernarg_size 88",
              "user_sgpr_count 2", "user_sgpr_kernarg_segment_ptr 1", "system_sgpr_workgroup_id_x 1"):
        e(f".amdhsa_{d}")
    e(".end_amdhsa_kernel")
    e.resolve()
    if OPT.get("jitter"):
        import random
        rnd = random.Random(OPT["jitter"])
        out, n = [], 0
        for l in e.lines:
            site = l.startswith(("s_barrier", "buffer_atomic")) or (l.startswith("buffer_store") and rnd.random() < 0.2)
            if site and rnd.random() < 0.7:
                n += 1
                pre = ["s_cselect_b32 s99, 1, 0", f"s_mul_i32 s98, s2, {rnd.randrange(3, 1000, 2)}", f"s_add_u32 s98, s98, s{S_W}",
                       f"s_mul_i32 s98, s98, {rnd.randrange(3, 1000, 2)}", f"s_bitcmp1_b32 s98, {rnd.randrange(0, 4)}",
                       f"s_cbranch_scc0 J{n}", f"s_sleep {rnd.choice([1, 3, 10, 30, 60])}", f"J{n}:", "s_cmp_lg_u32 s99, 0"]
                out += pre + [l] if rnd.random() < 0.5 else [l] + pre
            else:
                out.append(l)
        e.lines = out
    errs = []
    errs += check_trace(e.trace(KERNEL, {"M_loop": [True, True, False], "M_gathered": [True], "M_nost2": [False, True, False], "M_nost6": [False, True, False], "M_shift": [False, True], "M_rescale": [False, True]}), "fast")
    errs += check_trace(e.trace(KERNEL, {"M_loop": [True, False, True, False], "M_fallback": [True, False], "M_maxloop": [True, False],
                                         "M_ps_spin": [True], "M_pa_spin": [True, True], "M_poa_spin": [True], "M_pob_spin": [True], "M_poa_back": [True], "M_pob_back": [True], "M_skip0": [True, False], "M_skip1": [False, True], "M_skip2": [False, True], "M_gather": [True], "M_gathered": [False, True], "M_pg_spin": [True], "M_pg_back": [True],
                                         "M_ps_back": [True], "M_pa_back": [True, True]}), "slow")
    return e.text(), errs


if __name__ == "__main__":
    if "--stamps" in sys.argv:
        sys.argv.remove("--stamps")
        STAMPS = True
    for a in [x for x in sys.argv if "=" in x]:
        sys.argv.remove(a)
        k, v = a.split("=")
        OPT[k] = int(v)
    text, errs = build()
    for x in errs[:6]:
        print(x)
    out = sys.argv[1] if len(sys.argv) > 1 else f"cdna_kernels/{NAME}.s"
    open(out, "w").write(text)
    print("wrote", out, len(text), "bytes;", len(errs), "check findings; stamps", nstamp[0])
```

```python
import sys, struct
from asm import Asm, check_trace

NAME = "recurrent_scan__gqa_block_cached__dense_activation_silu__prompt"
KERNEL = NAME + "_kernel"
WS_MISC = 0
MISC_CNTA, MISC_CNTO, MISC_CNTP, MISC_SIZE = 16384, 20480, 28672, 45056
WS_ACT = 4 << 20
WS_WP = 32 << 20
WS_STAMP = 64 << 20
WS_PART = 96 << 20
PART_SRC, PART_WAVE, PART_DST, PART_TILE = 2560, 16384, 65536, 262144
NPAIR = 91
ACT_RG = NPAIR * 8192
WP_PAIR = 81920
SRD3 = "0x00020000"
OOB = 0x1000000
LOG2E = 1.4426950408889634
L_LIMIT = 2.0 ** 120
O_LOW = 2.0 ** -110
STAMPS = False
OPT = {}

S_X, S_WQ, S_W1, S_K, S_V, S_ACT, S_ACTH, S_DBG, S_WS, S_R0, S_R1, S_WP, S_TA, S_TW, S_OUT = range(8, 68, 4)
S_M0K, S_M0V = 68, 72
S_W, S_HEAD, S_QT, S_W4K, S_OFF, S_CNT, S_RETRY = range(76, 83)
S_RSRC, S_RSRC2, S_RDST, S_M0R = 83, 84, 85, 86
S_GA, S_GW, S_SA, S_SW, S_XO = range(87, 92)
S_SIGS, S_SIGA, S_SIGO, S_POLLO = 92, 93, 94, 95
S_W2K, S_W8K = 100, 101
P_IN = 52
S_PART, S_KQ, S_SIGP, S_M0A, S_M0W, S_PS = 48, 12, 13, 14, 15, 16
V_L16 = 1
V_KRD, V_VRD, V_KDMA, V_VDMA = 2, 6, 14, 18
V_STAMP, V_IDX, V_ONES, V_NM, V_P, V_O = 34, 35, 36, 40, 64, 128
SBUF = [56, 60, 24, 28]
V_POFF, V_PVAL, V_ONE, V_SIG = 20, 21, 32, 33
V_XDMA, V_XRD = 20, 24
V_RDMA, V_RRD = 22, 23
V_WQRD, V_W1RD, V_WQDMA, V_W1DMA, V_ST = 40, 48, 52, 56, 52
A_Q, A_KF, A_VF, A_L = 0, 64, 128, 160
A_XF, A_WF, A_CS, A_RP = 64, 128, 192, 176
LDS_K, LDS_V, LDS_W1 = 0, 65536, 131072
LDS_CS = LDS_W1 + 3 * 8192
LDS_FLAG = 163840 - 16
WQ_SLOT = [LDS_V + 3 * 16384, LDS_V + 2 * 16384, LDS_K + 2 * 16384, LDS_K + 3 * 16384]
X_SLOT = [LDS_V, LDS_K]
LK = LV = 5


def fbits(x):
    return "0x%08x" % struct.unpack("<I", struct.pack("<f", x))[0]


def vr(b, n=1):
    return f"v{b}" if n == 1 else f"v[{b}:{b+n-1}]"


def ar(b, n=1):
    return f"a{b}" if n == 1 else f"a[{b}:{b+n-1}]"


def sr(b, n=4):
    return f"s[{b}:{b+n-1}]"


def srd(e, d, src, off, size):
    if off is not None:
        e(f"s_add_u32 s{d}, s{src}, {off}")
        e(f"s_addc_u32 s{d+1}, s{src+1}, 0")
    elif src != d:
        e(f"s_mov_b32 s{d}, s{src}")
        e(f"s_mov_b32 s{d+1}, s{src+1}")
    e(f"s_mov_b32 s{d+2}, {size}")
    e(f"s_mov_b32 s{d+3}, {SRD3}")


def mfma(d, a, b, c):
    return f"v_mfma_f32_16x16x32_bf16 {d}, {a}, {b}, {c}"


def smfmac(d, b):
    return f"v_smfmac_f32_16x16x64_bf16 {d}, {vr(V_ONES,4)}, {b}, v{V_IDX}"


nstamp = [0]


def stamp(e):
    if STAMPS:
        i = nstamp[0]
        nstamp[0] += 1
        e("s_memrealtime s[96:97]")
        e("s_memtime s[98:99]")
        e("s_waitcnt lgkmcnt(0)")
        e(f"v_writelane_b32 v{V_STAMP}, s96, {2*i}")
        e(f"v_writelane_b32 v{V_STAMP}, s98, {2*i+1}")


def stamp_flush(e):
    if not STAMPS:
        return
    e("s_waitcnt vmcnt(0) lgkmcnt(0)")
    stamp(e)
    srd(e, 8, S_WS, WS_STAMP - WS_MISC, 262144)
    e("s_lshl_b32 s12, s2, 2")
    e(f"s_add_u32 s12, s12, s{S_W}")
    e("s_lshl_b32 s12, s12, 8")
    e(f"v_lshrrev_b32 v2, 2, v{V_L16}")
    e(f"buffer_store_dword v{V_STAMP}, v2, s[8:11], s12 offen")
    if "ea" in OPT:
        k = OPT.get("ecyc", 0)
        e(f"v_readlane_b32 s4, v{V_STAMP}, {2*OPT['ea']+k}")
        e(f"v_readlane_b32 s5, v{V_STAMP}, {2*OPT['eb']+k}")
        e("s_nop 3")
        e("s_sub_u32 s5, s5, s4")
        if k:
            e("s_mul_i32 s5, s5, 3277")
            e("s_lshr_b32 s5, s5, 16")
        e("s_add_u32 s5, s5, s96")
        e("M_echo:")
        e("s_memrealtime s[6:7]")
        e("s_waitcnt lgkmcnt(0)")
        e("s_sub_u32 s4, s6, s5")
        e("s_cmp_lt_i32 s4, 0")
        e("s_cbranch_scc1 M_echo")


def kind_of(x):
    if x.startswith("buffer_"):
        return "vm"
    if x.startswith("ds_"):
        return "ds"
    if x.startswith(("v_exp", "v_rcp", "v_sqrt", "v_permlane")):
        return "slow"
    return "valu" if x.startswith("v_") else "scalar"


prev_valu = [False]


def interleave(e, mf, fixed, streams, cap=2, quota=99, space=0):
    last_vm = -space
    for i, m in enumerate(mf):
        e.safe(m)
        pre, post = fixed.get(i, ([], []))
        items = post + pre
        shadow, used, valu = True, 0, False

        def emit(x, safe=False):
            nonlocal shadow, used, valu
            k = kind_of(x)
            (e.safe if safe else e)(x)
            if not (k == "scalar" and shadow):
                used += 2 if k in ("vm", "slow") else 1
            used += x.count("\ns_")
            shadow = False
            valu |= k in ("valu", "slow")

        if not (items and kind_of(items[0]) == "scalar"):
            for s in streams:
                if s and kind_of(s[0]) == "scalar" and e.hazard_free(s[0]):
                    emit(s.pop(0))
                    break
        for x in items:
            emit(x, True)
        want_vm = quota > 0 and i + 1 - last_vm >= space and any(
            s and "vm" in [kind_of(y) for y in s[:2]] for s in streams) and i + 1 not in fixed
        progress = True
        while used < cap and progress:
            progress = False
            for kinds in (("vm", "ds", "scalar"), ("valu", "slow"), ("scalar",)):
                for s in streams:
                    if not s or kind_of(s[0]) not in kinds:
                        continue
                    k = kind_of(s[0])
                    if k == "scalar" and len(kinds) > 1 and s is streams[-1]:
                        continue
                    if used + (2 if k in ("vm", "slow") else 1) > cap or not e.hazard_free(s[0]):
                        continue
                    if k == "vm" and (valu or prev_valu[0] or quota == 0 or i - last_vm < space):
                        continue
                    if k == "ds" and valu:
                        continue
                    if k in ("valu", "slow") and want_vm and not valu:
                        continue
                    if k == "vm":
                        last_vm = i
                        quota -= 1
                        want_vm = want_vm and space <= 1 and quota > 0
                    emit(s.pop(0))
                    progress = True
                    break
                if progress:
                    break
        prev_valu[0] = valu


def drain(e, streams):
    for s in streams:
        while s:
            e.safe(s.pop(0))


def snake(k):
    return (3, 2, 1, 0) if k % 2 and OPT.get("snake", 1) else (0, 1, 2, 3)


def o_reg(db, qb):
    return V_O + (db * 4 + qb) * 4


KVF = ["", " sc1", " nt", " sc0", " sc0 sc1"]


def k_dma(n, tag=""):
    return f"buffer_load_dwordx4 v{V_KDMA+n}, {sr(S_K)}, s{S_OFF} offen offset:{n*1024}{KVF[OPT.get('kvf', 0)]} lds{tag}"


def v_dma(n, tag=""):
    return f"buffer_load_dwordx4 v{V_VDMA+(n&1)}, {sr(S_V)}, s{S_OFF} offen offset:{n*1024}{KVF[OPT.get('kvf', 0)]} lds{tag}"


def k_read(tile, kb, ks):
    return f"ds_read_b128 {ar(A_KF+(kb*4+ks)*4,4)}, v{V_KRD+ks} offset:{(tile%4)*16384+kb*4096}"


def v_read(tile, db, t, v):
    return f"ds_read_b64_tr_b16 {ar(A_VF+((db%4)*2+t)*4+2*v,2)}, v{V_VRD+db} offset:{(tile%4)*16384+t*8192+v*4096}"


def kv_tile(which, tile):
    tag = f" ; @{which}{tile}"
    out = [f"s_mov_b32 m0, s{(S_M0K if which == 'K' else S_M0V) + tile % 4}", f"s_mov_b32 s{S_OFF}, {tile*16384}"]
    return out + [(k_dma if which == "K" else v_dma)(n, tag) for n in range(4)]


spins = []


def poll_check(name, load, cond):
    spins.append((name, load, cond))
    return cond + [f"s_cbranch_vccnz {name}_spin\n{name}_back:"]


def emit_spins(e):
    for name, load, cond in spins:
        e(f"{name}_spin:")
        e("s_mov_b32 s3, 0x100000")
        e(f"{name}_loop:")
        if OPT.get("slp", 0):
            e(f"s_sleep {OPT['slp']}")
        e(load)
        e("s_waitcnt vmcnt(0)")
        for x in cond:
            e(x)
        e(f"s_cbranch_vccz {name}_back")
        e("s_sub_u32 s3, s3, 1")
        e("s_cmp_lg_u32 s3, 0")
        e(f"s_cbranch_scc1 {name}_loop")
        e(f"s_branch {name}_back")


POLL_A = f"buffer_load_dword v{V_PVAL}, v{V_POFF}, {sr(S_WS)}, 0 offen sc1"


S_RB = S_DBG


def repack_offsets():
    return [f"s_mul_i32 s3, s{S_RB}, 52429", "s_lshr_b32 s3, s3, 18", f"s_mul_i32 s{S_RSRC}, s3, 39680", f"s_lshl_b32 s4, s{S_RB}, 8",
            f"s_add_u32 s{S_RSRC}, s{S_RSRC}, s4", f"s_add_u32 s{S_RSRC2}, s{S_RSRC}, 4096", f"s_lshl_b32 s{S_RDST}, s{S_RB}, 14",
            "s_mul_i32 s4, s3, 40960", f"s_sub_u32 s{S_RDST}, s{S_RDST}, s4", "s_and_b32 s3, s3, 1", "s_mul_i32 s3, s3, 39936",
            f"s_sub_u32 s{S_RDST}, s{S_RDST}, s3", f"s_add_u32 s{S_RDST}, s{S_RDST}, s{S_W4K}"]


def attn_step(e, j, qk=True, first=False, extra=None, late=None):
    pw = V_P + ((j + 1) % 2) * 32
    pr = V_P + (j % 2) * 32
    pv = True

    def pdst(x):
        on, base = (qk, pw) if x >= 0 else (not first, pr)
        x %= 16
        return on, base + (x % 4) * 8 + (x // 4) * 2, SBUF[x % 4]

    for u in range(16):
        def qk_chain(x, rev):
            kb, qb, d = x // 4, x % 4, vr(SBUF[x % 4], 4)
            return [mfma(d, ar(A_KF + (kb * 4 + ks) * 4, 4), ar(A_Q + (qb * 4 + ks) * 4, 4), d if i else vr(V_NM + qb * 4, 4))
                    for i, ks in enumerate((3, 2, 1, 0) if rev else (0, 1, 2, 3))]

        def pv_chains(x, rev=False):
            out, db = [], x // 2
            for h in range(2):
                q2 = (x % 2) * 2 + (1 - h if rev else h)
                o = vr(o_reg(db, q2), 4)
                for t in ((0, 1) if h == 0 else (1, 0)):
                    out.append(mfma(o, ar(A_VF + ((db % 4) * 2 + t) * 4, 4), vr(pr + q2 * 8 + t * 4, 4), "0" if first and t == h else o))
            return out

        if not qk:
            M = [None] * 4 + pv_chains(u)
        elif not OPT.get("sup", 2):
            M = qk_chain(u, False) + pv_chains(u)
        elif OPT.get("sup", 2) == 2:
            x = (u // 4) * 4 + (u % 2) * 2
            if u % 4 < 2:
                M = qk_chain(x, False) + qk_chain(x + 1, True)
            elif u % 4 == 2:
                M = pv_chains(x) + pv_chains(x + 1)
            else:
                M = pv_chains(x + 1, True) + pv_chains(x, True)
        elif u % 2 == 0:
            M = qk_chain(u, False) + qk_chain(u + 1, True)
        else:
            M = pv_chains(u - 1) + pv_chains(u)
        F = [[] for _ in range(8)]
        sc = []
        nreads = 0
        n = u + LK
        if qk and not (j == 30 and n >= 16):
            F[2].append(k_read(j + 1 + n // 16, (n % 16) // 4, n % 4))
            nreads += 1
        n = u + LV
        if n < 16 or qk:
            F[5].append(v_read(j + n // 16, (n % 16) // 2, n % 2, 0))
            F[6].append(v_read(j + n // 16, (n % 16) // 2, n % 2, 1))
            nreads += 2
        on, p, sb = pdst(u - 1)
        if on:
            for r in range(4):
                F[(0, 1, 3, 4)[r]].append(f"v_exp_f32 v{sb+r}, v{sb+r}")
            F[5].append(f"v_cvt_pk_bf16_f32 v{p}, v{sb}, v{sb+1}")
        on, p, sb = pdst(u - 2)
        if on:
            F[2].append(f"v_cvt_pk_bf16_f32 v{p+1}, v{sb+2}, v{sb+3}")
        post = []
        sh = OPT.get("sh", 1)
        ud, up = (u + 2 * sh) % 16, u + sh
        if late:
            q, syncs = late
            while q and kind_of(q[0]) == "scalar" and len(sc) < 6:
                sc.append(q.pop(0))
            if q:
                F[7].append(q.pop(0))
            if up in syncs:
                wait, more = syncs[up]
                assert j != 29 or not any(kind_of(x) == "vm" for x in q)
                post += wait + ["s_barrier"]
                q.extend(more)
            elif up % 4 == 2 and q and kind_of(q[0]) == "vm":
                post.append(q.pop(0))
        elif qk:
            if up == 10:
                post += ["WAITVM K2" if first else f"s_waitcnt vmcnt({[9 + sh, 10 - sh, 9, 8 if OPT.get('skip', 1) else 10][j % 4]})", "s_barrier"]
            if ud == 12:
                sc += [f"s_add_u32 s{S_OFF}, s{S_OFF}, 32768", f"s_mov_b32 m0, s{S_M0K + j % 4}"]
            if ud in (12, 14):
                F[7].append(k_dma((ud - 12) // 2))
            if ud in (0, 2):
                F[7].append(k_dma(2 + ud // 2))
            if ud == 4:
                sc += [f"s_sub_u32 s{S_OFF}, s{S_OFF}, 16384", f"s_mov_b32 m0, s{S_M0V + (j + 2) % 4}"]
            if ud in (4, 6, 8, 10):
                F[7].append(v_dma((ud - 4) // 2))
            if j % 4 == 0:
                if ud in (3, 11):
                    sc.append(f"s_mov_b32 m0, s{S_M0R}")
                if ud == 3:
                    F[7].append(f"buffer_load_dwordx4 v{V_RDMA}, {sr(S_R0)}, s{S_RSRC} offen lds")
                if ud == 11:
                    F[7].append(f"buffer_load_dwordx4 v{V_RDMA}, {sr(S_R0)}, s{S_RSRC2} offen offset:1024 lds")
                if ud == 13:
                    sc += [f"s_cmp_gt_u32 s{S_CNT}, 5", f"s_cselect_b32 s{S_R0+2}, s{S_R0+2}, 0"]
                if up == 14:
                    sc += [f"s_cmp_eq_u32 s{S_CNT}, 4", f"s_cselect_b32 s5, s{S_SIGA}, {OOB}"]
                    post.append(f"buffer_atomic_add v{V_ONE}, v{V_SIG}, {sr(S_WS)}, s5 offen")
                if u == 15 and not first:
                    sc.append(f"s_cmp_gt_u32 s{S_CNT}, 1")
            if j % 4 == 2:
                if up == 6:
                    post.append(POLL_A)
                if 11 <= u < 15:
                    k = u - 11
                    F[6].append(f"ds_read_b64_tr_b16 {ar(A_RP+2*k,2)}, v{V_RRD} offset:{(k//2)*32+(k%2)*4096}")
                    nreads += 1
            if j % 4 == 3 and u == 0:
                sc.append(f"s_sub_u32 s{S_CNT}, s{S_CNT}, 1")
            if j % 4 in (1, 2) and u == 15 and OPT.get("rmask", 0):
                sc.append(f"s_bitcmp1_b32 s7, s{S_CNT}")
            if j % 4 == 3:
                if up in (2, 6):
                    st = f"buffer_store_dwordx4 {ar(A_RP+(up//4)*4,4)}, v{V_L16}, {sr(S_WP)}, s{S_RDST} offen offset:{(up//4)*2048} sc1"
                    if OPT.get("skip", 1):
                        sc.append(f"s_cmp_eq_u32 s{S_WP+2}, 0")
                        post += [f"s_cbranch_scc1 M_nost{up}", st, f"M_nost{up}:"]
                    else:
                        post.append(st)
                if u == 7:
                    sc += [f"s_cmp_gt_u32 s{S_CNT}, 4", f"s_cselect_b32 s{S_WP+2}, s{S_WP+2}, 0", f"s_add_u32 s{S_RB}, s{S_RB}, 1"]
                if u in (11, 13):
                    sc += repack_offsets()[(u - 11) // 2 * 7:][:7]
        for i, x in enumerate(sc):
            F[i].insert(0, x)
        if u % 2 == 1:
            F[7].insert(0, f"s_waitcnt lgkmcnt({nreads})")
        if qk and not late and not first:
            drop = tuple(p for k, p in (("nodma", "buffer_"), ("nobar", "s_barrier"), ("novm", "s_waitcnt vmcnt"), ("nolg", "s_waitcnt lgkm"), ("nods", "ds_"), ("nost", "buffer_store"), ("norp", "buffer_load_dwordx4 v22")) if OPT.get(k))
            if drop:
                keep = lambda x: not x.startswith(drop) or "atomic" in x or x == POLL_A
                F = [[x for x in f if keep(x)] for f in F]
                post = [x for x in post if keep(x)]
        if qk:
            for i in range(8):
                e(M[i])
                for x in F[i]:
                    e.safe(x)
        else:
            for x in F[0] + F[1] + F[2] + F[3] + F[4]:
                e.safe(x)
            fixed = {}
            if F[5]:
                fixed[0] = (F[5][:1] + F[6] + F[5][1:], [])
            if 2 <= u < 6:
                M.append(smfmac(ar(A_L + (u - 2) * 4, 4), vr(pr + (u - 2) * 8, 8)))
            interleave(e, M[4:], fixed, extra(u), cap=OPT.get("fcap", 3), quota=OPT.get("fq", 2))
            for x in F[7]:
                e(x)
        if qk and up % 4 == 2:
            q2 = u // 4
            e(smfmac(ar(A_L + q2 * 4, 4), vr(pr + q2 * 8, 8)))
        for x in post:
            e(x)


V_M = 24


def row_max_finish(e):
    m, t = V_M, V_M + 4
    for swap in ("v_permlane32_swap_b32", "v_permlane16_swap_b32"):
        for qb in range(4):
            e(f"v_mov_b32 v{t+qb}, v{m+qb}")
        for qb in range(4):
            e(f"{swap} v{m+qb}, v{t+qb}")
        for qb in range(4):
            e(f"v_max_f32 v{m+qb}, v{m+qb}, v{t+qb}")
    for qb in range(4):
        sel = "op_sel_hi:[0,0]" if qb % 2 == 0 else "op_sel:[0,1] op_sel_hi:[0,1]"
        for p in range(2):
            e(f"v_pk_add_f32 {vr(V_NM+qb*4+2*p,2)}, s[6:7], {vr(m+(qb//2)*2,2)} {sel} neg_lo:[0,1] neg_hi:[0,1]")


def x_dma(c):
    out = []
    for h in range(2):
        out += [f"s_add_u32 m0, s{S_W8K}, {X_SLOT[c%2] + h*4096}", f"s_mov_b32 s{S_OFF}, {c*128 + h*40960}"]
        out += [f"buffer_load_dwordx4 v{V_XDMA+n}, {sr(S_X)}, s{S_OFF} offen offset:{n*1024} lds ; @X{c}" for n in range(4)]
    return out


def w_dma(c):
    out = [f"s_add_u32 m0, s{S_W4K}, {WQ_SLOT[c%4]}", f"s_mov_b32 s{S_OFF}, {c*64*8192}"]
    out += [f"buffer_load_dwordx4 v{V_WQDMA+n}, {sr(S_WQ)}, s{S_OFF} offen offset:{n*1024} lds ; @W{c}" for n in range(4)]
    out += [f"s_add_u32 m0, s{S_W2K}, {LDS_W1+(c%4)*8192}", f"s_mov_b32 s{S_OFF}, {c*64*3456}"]
    out += [f"buffer_load_dwordx4 v{V_W1DMA+n}, {sr(S_W1)}, s{S_OFF} offen offset:{n*1024} lds ; @W{c}" for n in range(2)]
    return out


def x_read(c):
    out = [f"ds_read_b128 {ar(A_XF+(c%2)*32+(qb*2+t)*4,4)}, v{V_XRD+t} offset:{qb*2048} ; @XR{c}" for qb in range(4) for t in range(2)]
    return out + [f"v_xor_b32 v{V_XRD+t}, 0x10000, v{V_XRD+t}" for t in range(2)]


def code_prefetch(e):
    e("s_getpc_b64 s[6:7]")
    e("M_pc:")
    e("s_lshr_b32 s3, s2, 3")
    e("s_lshl_b32 s3, s3, 11")
    e("v_lshl_add_u32 v60, v62, 3, s3")
    e("v_min_u32 v60, M_hot_end-M_pc-4, v60")
    e("v_mov_b32 v61, 0")
    e("v_lshl_add_u64 v[60:61], v[60:61], 0, s[6:7]")
    e("global_load_dword v63, v[60:61], off ; nocheck")


def setup(e):
    if STAMPS:
        e("s_memrealtime s[92:93]")
        e("s_memtime s[94:95]")
    e(f"s_load_dwordx16 {sr(P_IN,16)}, s[0:1], 0")
    e("s_cmp_ge_u32 s2, 256")
    e("s_cbranch_scc1 M_exit")
    e("v_lshrrev_b32 v31, 6, v0")
    e("v_mov_b32 v62, v0")
    e(f"v_readfirstlane_b32 s{S_W}, v31")
    if OPT.get("pf", 2) == 1:
        code_prefetch(e)
    e("v_and_b32 v0, 63, v0")
    e(f"s_lshr_b32 s{S_QT}, s2, 5")
    e("v_lshrrev_b32 v29, 4, v0")
    e("v_lshrrev_b32 v30, 3, v0")
    e("v_and_b32 v31, 7, v0")
    e(f"s_lshl_b32 s{S_W8K}, s{S_W}, 13")
    e(f"s_lshl_b32 s5, s{S_QT}, 2")
    e(f"s_add_u32 s5, s5, s{S_W}")
    e("s_mul_i32 s6, s5, 81920")
    e("v_mul_u32_u24 v26, 1280, v30")
    e("v_add_u32 v26, s6, v26")
    e("v_xor_b32 v27, v31, v29")
    e(f"v_lshl_add_u32 v{V_XDMA}, v27, 4, v26")
    e(f"v_add_u32 v{V_XDMA+2}, {2*(10240-1024)}, v{V_XDMA}")
    e(f"v_xor_b32 v27, 64, v{V_XDMA}")
    e(f"v_add_u32 v{V_XDMA+1}, {10240-1024}, v27")
    e(f"v_add_u32 v{V_XDMA+3}, {3*(10240-1024)}, v27")
    e(f"s_mov_b32 s{S_X+2}, 2621440")
    e(f"s_mov_b32 s{S_X+3}, {SRD3}")
    first = x_dma(0)
    pre = Asm()
    pre("s_and_b32 s3, s2, 7")
    pre("s_bfe_u32 s7, s2, 0x20003")
    pre(f"s_lshl_b32 s{S_HEAD}, s3, 2")
    pre(f"s_add_u32 s{S_HEAD}, s{S_HEAD}, s7")
    pre(f"s_lshl_b32 s{S_W2K}, s{S_W}, 11")
    pre(f"s_lshl_b32 s{S_W4K}, s{S_W}, 12")
    pre("v_and_b32 v28, 15, v0")
    pre(f"s_lshl_b32 s6, s{S_W}, 17")
    pre("v_lshlrev_b32 v26, 13, v29")
    pre("v_add_u32 v26, s6, v26")
    pre("v_lshlrev_b32 v27, 2, v29")
    pre("v_xor_b32 v27, v27, v28")
    pre(f"v_lshl_add_u32 v{V_WQDMA}, v27, 4, v26")
    for n in range(1, 4):
        pre(f"v_add_u32 v{V_WQDMA+n}, {n*(32768-1024)}, v{V_WQDMA}")
    pre(f"s_lshl_b32 s6, s{S_HEAD}, 8")
    early = OPT.get("early", 0)
    for x in first[:2] + (pre.lines if early else []):
        e(x)
    e("s_waitcnt lgkmcnt(0)")
    if STAMPS:
        e(f"v_writelane_b32 v{V_STAMP}, s92, 0")
        e(f"v_writelane_b32 v{V_STAMP}, s94, 1")
        nstamp[0] += 1
    if OPT.get("st0"):
        stamp(e)
    e(f"s_mov_b64 {sr(S_X,2)}, {sr(P_IN,2)}")
    for x in first[2:]:
        e.safe(x)
    if OPT.get("pf", 2) == 2:
        code_prefetch(e)
    for reg, off in ((S_R1, 64), (S_DBG, 72), (S_WS, 80)):
        e(f"s_load_dwordx2 {sr(reg,2)}, s[0:1], {off}")
    for x in ([] if early else pre.lines):
        e(x)
    srd(e, S_WQ, P_IN + 6, "s6", 640 * 8192 - 31 * 256)
    for x in w_dma(0)[:6]:
        e.safe(x)
    if OPT.get("spread", 1):
        e("s_min_u32 s4, s3, 5")
        e(f"s_sub_u32 s{S_CNT}, s{S_HEAD}, s4")
        e("s_cmp_lt_u32 s3, 5")
        e("s_cselect_b32 s4, s7, 0")
        e("s_cmp_eq_u32 s4, 3")
        e(f"s_cselect_b32 s{S_CNT}, 27, s{S_CNT}")
    else:
        e(f"s_mov_b32 s{S_CNT}, s{S_HEAD}")
    e(f"s_lshl_b32 s6, s{S_CNT}, 7")
    srd(e, S_W1, P_IN + 12, "s6", 640 * 3456 - 26 * 128)
    e(f"s_cmp_lt_u32 s{S_CNT}, 27")
    e(f"s_cselect_b32 s{S_W1+2}, s{S_W1+2}, 0")
    e(f"s_mul_i32 s6, s{S_W}, {16*3456}")
    e("v_mul_u32_u24 v26, 3456, v30")
    e("v_add_u32 v26, s6, v26")
    e("v_and_b32 v27, 2, v30")
    e("v_xor_b32 v27, v27, v31")
    e(f"v_lshl_add_u32 v{V_W1DMA}, v27, 4, v26")
    e(f"v_xor_b32 v27, 64, v{V_W1DMA}")
    e(f"v_add_u32 v{V_W1DMA+1}, {8*3456-1024}, v27")
    for x in w_dma(0)[6:]:
        e.safe(x)
    e(f"v_lshlrev_b32 v{V_L16}, 4, v0")
    e("v_bfe_u32 v30, v0, 2, 3")
    e("v_and_b32 v31, 3, v0")
    e("v_bfe_u32 v12, v0, 2, 2")
    e("v_lshl_add_u32 v26, v29, 3, v12")
    e("v_lshlrev_b32 v27, 8, v26")
    e("v_lshl_add_u32 v27, v31, 4, v27")
    e(f"v_xor_b32 v12, s{S_W}, v12")
    e(f"v_lshl_add_u32 v{V_WQRD}, v12, 6, v27")
    for j in range(1, 4):
        e(f"v_xor_b32 v{V_WQRD+j}, {j*64}, v{V_WQRD}")
    e("v_lshlrev_b32 v27, 7, v26")
    e("v_lshl_add_u32 v27, v31, 3, v27")
    e(f"v_add_u32 v27, {LDS_W1}, v27")
    e("v_lshrrev_b32 v12, 1, v30")
    e(f"s_and_b32 s6, s{S_W}, 2")
    e("v_xor_b32 v12, s6, v12")
    e(f"v_lshl_add_u32 v{V_W1RD}, v12, 5, v27")
    for nb in range(1, 4):
        e(f"v_xor_b32 v{V_W1RD+nb}, {nb*32}, v{V_W1RD}")
    e("v_lshrrev_b32 v12, 1, v28")
    e("v_xor_b32 v12, v12, v29")
    e("v_lshlrev_b32 v12, 4, v12")
    e("v_lshl_add_u32 v12, v28, 7, v12")
    e(f"s_add_u32 s6, s{S_W8K}, {X_SLOT[0]}")
    e(f"v_add_u32 v{V_XRD}, s6, v12")
    e(f"v_xor_b32 v{V_XRD+1}, 64, v{V_XRD}")
    e("v_and_b32 v26, 1, v0")
    e("v_cmp_eq_u32 vcc, 0, v26")
    e("v_mov_b32 v27, 0x44444444")
    e("v_mov_b32 v12, 0xeeeeeeee")
    e(f"v_cndmask_b32 v{V_IDX}, v12, v27, vcc")
    e("v_and_b32 v26, 2, v0")
    e("v_cmp_eq_u32 vcc, 0, v26")
    e("v_mov_b32 v27, 0x3f803f80")
    e("v_mov_b32 v12, 0")
    for r in range(4):
        e(f"v_cndmask_b32 v{V_ONES+r}, v12, v27, vcc")
    for r in range(16):
        e(f"v_accvgpr_write_b32 a{A_CS+r}, 0")
    if OPT.get("st0"):
        stamp(e)
    mem = x_dma(1) + w_dma(1)
    for x in mem[:OPT.get("nearly", 10)]:
        e.safe(x)
    e("s_waitcnt lgkmcnt(0)")
    return mem[OPT.get("nearly", 10):]


def glued(lines):
    out = []
    for x in lines:
        if x.startswith(("s_addc", "s_subb", "s_cselect")):
            out[-1] += "\n" + x
        else:
            out.append(x)
    return out


def late_stream():
    e = Asm()
    e(f"s_lshl_b32 s6, s{S_QT}, 5")
    e(f"s_add_u32 s6, s6, s{S_HEAD}")
    e("s_lshl_b32 s6, s6, 2")
    e(f"s_add_u32 s6, s6, s{S_W}")
    e("s_lshl_b32 s6, s6, 1")
    e("v_lshrrev_b32 v26, 5, v0")
    e("v_add_u32 v26, s6, v26")
    e("v_mul_u32_u24 v27, 1280, v26")
    e("v_and_b32 v12, 31, v0")
    e("v_lshl_add_u32 v13, v12, 4, v27")
    e("v_lshl_add_u32 v14, v12, 3, v27")
    e("v_lshlrev_b32 v26, 3, v26")
    e("v_lshl_add_u32 v19, v12, 24, v26")
    e("v_min_u32 v12, 1, v62")
    e(f"v_lshlrev_b32 v{V_SIG}, 24, v12")
    e(f"v_mov_b32 v{V_ONE}, 1")
    late_setup(e)
    return glued(e.lines) + zero_addr() + ([] if OPT.get("zlate", 0) else [ZERO_STORE])


SROW = [f"buffer_load_dwordx4 v[2:5], v13, {sr(S_X)}, 0 offen ; @SROW",
        f"buffer_load_dwordx4 v[6:9], v13, {sr(S_X)}, 0 offen offset:512 ; @SROW",
        f"buffer_load_dwordx2 v[10:11], v14, {sr(S_X)}, 0 offen offset:1024 ; @SROW"]


def tile_ids(e):
    e("s_bfe_u32 s4, s2, 0x20001")
    e("s_and_b32 s5, s2, 1")
    e("s_lshl_b32 s5, s5, 3")
    e("s_bfe_u32 s6, s2, 0x30003")
    e("s_add_u32 s5, s5, s6")
    e("s_lshr_b32 s6, s2, 6")


def late_setup(e):
    e(f"s_lshl_b32 s6, s{S_HEAD}, 19")
    srd(e, S_K, P_IN + 2, "s6", 524288)
    srd(e, S_V, P_IN + 4, "s6", 524288)
    e(f"s_sub_u32 s{P_IN+14}, s{P_IN+14}, {128*40960}")
    e(f"s_subb_u32 s{P_IN+15}, s{P_IN+15}, 0")
    e("s_cmp_lt_u32 s2, 160")
    e(f"s_cselect_b64 {sr(S_R0,2)}, {sr(P_IN+8,2)}, {sr(P_IN+14,2)}")
    e(f"s_cselect_b32 s7, 64, {NPAIR}")
    e(f"s_mul_i32 s{S_R0+2}, s7, 81920")
    e(f"s_mov_b32 s{S_R0+3}, {SRD3}")
    e(f"s_mul_i32 s6, s5, {ACT_RG}")
    e(f"s_add_u32 s6, s6, {WS_ACT}")
    e(f"s_lshl_b32 s7, s{S_HEAD}, 14")
    e("s_add_u32 s7, s7, s6")
    srd(e, S_ACT, S_WS, "s7", 16384)
    e(f"s_lshl_b32 s7, s{S_CNT}, 13")
    e(f"s_add_u32 s7, s7, {64*8192}")
    e("s_add_u32 s7, s7, s6")
    srd(e, S_ACTH, S_WS, "s7", 8192)
    e(f"s_cmp_lt_u32 s{S_CNT}, 27")
    e(f"s_cselect_b32 s{S_ACTH+2}, s{S_ACTH+2}, 0")
    srd(e, S_DBG, S_DBG, None, 256)
    srd(e, S_OUT, S_R1, None, 2621440)
    tile_ids(e)
    e("s_lshl_b32 s7, s5, 1")
    e(f"s_lshr_b32 s3, s{S_W}, 1")
    e("s_add_u32 s3, s7, s3")
    e(f"s_mul_i32 s7, s3, {ACT_RG}")
    e(f"s_add_u32 s7, s7, {WS_ACT}")
    e(f"s_and_b32 s{S_XO}, s{S_W4K}, 4096")
    e(f"s_add_u32 s7, s7, s{S_XO}")
    srd(e, S_TA, S_WS, "s7", (NPAIR - 1) * 8192 + 4096)
    e("s_lshl_b32 s7, s6, 2")
    e(f"s_add_u32 s7, s7, s{S_W}")
    e("s_mul_i32 s7, s7, 5120")
    e(f"s_add_u32 s7, s7, {WS_WP}")
    srd(e, S_TW, S_WS, "s7", (NPAIR - 1) * WP_PAIR + 5120)
    e("s_lshl_b32 s3, s3, 2")
    e("s_add_u32 s3, s3, s4")
    e(f"s_mul_i32 s{S_XO}, s3, 20480")
    e("s_lshl_b32 s7, s6, 1")
    e(f"s_and_b32 s3, s{S_W}, 1")
    e("s_add_u32 s7, s7, s3")
    e("s_mul_i32 s7, s7, 160")
    e(f"s_add_u32 s{S_XO}, s{S_XO}, s7")
    e("s_lshr_b32 s7, s5, 1")
    e("s_lshl_b32 s7, s7, 2")
    e("s_add_u32 s7, s7, s4")
    e("s_lshl_b32 s7, s7, 8")
    e(f"s_add_u32 s{S_POLLO}, s7, {MISC_CNTO}")
    e("s_mul_i32 s7, s4, 7")
    e("s_add_u32 s7, s7, 64")
    e(f"s_lshl_b32 s{S_GA}, s7, 13")
    e(f"s_mul_i32 s{S_GW}, s7, {WP_PAIR}")
    e(f"s_lshl_b32 s{S_SA}, s4, 17")
    e(f"s_mul_i32 s{S_SW}, s4, {16*WP_PAIR}")
    e("s_lshl_b32 s5, s5, 2")
    e("s_add_u32 s5, s5, s6")
    e("s_lshl_b32 s5, s5, 8")
    e(f"s_add_u32 s5, s5, {MISC_CNTP}")
    e("s_cmp_eq_u32 s4, 0")
    e(f"s_cselect_b32 s5, s5, {OOB}")
    srd(e, S_WP, S_WS, WS_WP, NPAIR * WP_PAIR)
    e(f"s_add_u32 s{S_M0R}, s{S_W2K}, {LDS_W1}")
    srd(e, S_WS, S_WS, WS_MISC if WS_MISC else None, MISC_SIZE)
    e(f"s_lshl_b32 s{S_SIGS}, s{S_QT}, 5")
    e(f"s_lshl_b32 s7, s{S_QT}, 8")
    e(f"s_add_u32 s{S_SIGA}, s7, {MISC_CNTA}")
    e(f"s_lshl_b32 s7, s{S_QT}, 2")
    e(f"s_lshr_b32 s6, s{S_HEAD}, 3")
    e("s_add_u32 s7, s7, s6")
    e("s_lshl_b32 s7, s7, 8")
    e(f"s_add_u32 s{S_SIGO}, s7, {MISC_CNTO}")
    for i in range(4):
        e(f"s_add_u32 s{S_M0K+i}, s{S_W4K}, {LDS_K + i*16384}")
        e(f"s_add_u32 s{S_M0V+i}, s{S_W4K}, {LDS_V + i*16384}")
    e(f"s_mov_b32 s{S_RETRY}, 0")
    e(f"s_cmp_eq_u32 s{S_HEAD}, 0")
    e(f"s_cselect_b32 s6, s{S_SIGA}, {OOB}")
    e(f"s_and_b32 s7, s{S_HEAD}, 7")
    e(f"s_cselect_b32 s7, {OOB}, s{S_SIGO}")

def zero_addr():
    return ["v_lshl_add_u32 v26, v62, 2, s5", f"v_mov_b32 v27, {OOB}", "v_cmp_gt_u32 vcc, 8, v62", "v_cndmask_b32 v26, v27, v26, vcc",
            "v_mov_b32 v27, s6", "v_cmp_eq_u32 vcc, 8, v62", "v_cndmask_b32 v26, v26, v27, vcc",
            "v_mov_b32 v27, s7", "v_cmp_eq_u32 vcc, 9, v62", "v_cndmask_b32 v26, v26, v27, vcc", "v_mov_b32 v27, 0"]


ZERO_STORE = f"buffer_store_dword v27, v26, {sr(S_WS)}, 0 offen sc1"


def stats_stream():
    s = ["WAITVM SROW"]

    def unpack(i, dst):
        return f"v_lshlrev_b32 v{dst}, 16, v{2+i//2}" if i % 2 == 0 else f"v_and_b32 v{dst}, 0xffff0000, v{2+i//2}"

    def reduce32():
        out = ["v_add_f32 v12, v12, v13"]
        for rot in (8, 4, 2, 1):
            out.append(f"v_add_f32_dpp v12, v12, v12 row_ror:{rot} row_mask:0xf bank_mask:0xf")
        out += ["v_mov_b32 v13, v12", "v_permlane16_swap_b32 v12, v13", "v_add_f32 v12, v12, v13",
                f"v_mul_f32 v12, {fbits(1.0/640)}, v12"]
        return out

    s += [unpack(0, 12), unpack(1, 13)]
    for i in range(2, 20, 2):
        s += [unpack(i, 14), unpack(i + 1, 15), "v_add_f32 v12, v12, v14", "v_add_f32 v13, v13, v15"]
    s += reduce32() + ["v_mov_b32 v16, v12"]
    for i in range(0, 20, 2):
        s += [unpack(i, 14), unpack(i + 1, 15), "v_sub_f32 v14, v14, v16", "v_sub_f32 v15, v15, v16"]
        op = "v_mul_f32" if i == 0 else "v_fmac_f32"
        s += [f"{op} v12, v14, v14", f"{op} v13, v15, v15"]
    s += reduce32()
    s += ["v_cvt_pk_bf16_f32 v13, v12, v16", "v_and_b32 v16, 0xffff0000, v13", "v_lshlrev_b32 v12, 16, v13",
          "v_xor_b32 v16, 0x80000000, v16", f"v_add_f32 v12, {fbits(1e-5)}, v12", "v_cvt_pk_bf16_f32 v12, v12, v12",
          "v_lshlrev_b32 v12, 16, v12", "v_sqrt_f32 v12, v12", "v_cvt_pk_bf16_f32 v12, v12, v12",
          "v_lshlrev_b32 v12, 16, v12", "v_rcp_f32 v17, v12", ZERO_STORE if OPT.get("zlate", 0) else "s_nop 0",
          f"buffer_store_dwordx2 v[16:17], v19, {sr(S_WS)}, 0 offen sc1 ; @SST"]
    return s


def kv_addr_stream():
    s = [f"s_lshl_b32 s5, s{S_W}, 2", "v_xor_b32 v26, v28, v29", "v_xor_b32 v27, s5, v26", "v_lshlrev_b32 v27, 4, v27",
         f"v_lshl_add_u32 v{V_KRD}, v28, 8, v27"]
    s += [f"v_xor_b32 v{V_KRD+ks}, {64*ks}, v{V_KRD}" for ks in range(1, 4)]
    s += ["v_lshlrev_b32 v27, 8, v29", f"v_add_u32 v27, s{S_W4K}, v27", f"v_lshl_add_u32 v{V_KDMA}, v26, 4, v27"]
    s += [f"v_xor_b32 v{V_KDMA+n}, {64*n}, v{V_KDMA}" for n in range(1, 4)]
    s += ["v_lshlrev_b32 v26, 1, v29", "v_xor_b32 v26, v26, v28", f"v_lshl_add_u32 v{V_VDMA}, v26, 4, v27",
          f"v_xor_b32 v{V_VDMA+1}, 128, v{V_VDMA}"]
    s += ["v_lshrrev_b32 v27, 2, v0", "v_lshlrev_b32 v27, 8, v27", "v_lshl_add_u32 v27, v31, 3, v27",
          f"v_add_u32 v27, {LDS_V}, v27", f"v_lshl_add_u32 v{V_VRD}, v30, 5, v27"]
    s += [f"v_xor_b32 v{V_VRD+db}, {32*db}, v{V_VRD}" for db in range(1, 8)]
    return s


def repack_addr_stream():
    e = Asm()
    e(f"v_and_b32 v{V_POFF}, 7, v0")
    e(f"v_lshlrev_b32 v{V_POFF}, 8, v{V_POFF}")
    e(f"v_add_u32 v{V_POFF}, {MISC_CNTA}, v{V_POFF}")
    e(f"s_mul_i32 s5, s{S_W}, {8*1280}")
    e("v_mul_u32_u24 v27, 1280, v29")
    e("v_add_u32 v27, s5, v27")
    e("v_lshlrev_b32 v26, 2, v29")
    e("v_xor_b32 v26, v26, v28")
    e(f"v_lshl_add_u32 v{V_RDMA}, v26, 4, v27")
    e("v_lshrrev_b32 v26, 2, v0")
    e("v_and_b32 v27, 3, v26")
    e(f"v_xor_b32 v27, s{S_W}, v27")
    e("v_lshlrev_b32 v27, 6, v27")
    e("v_lshl_add_u32 v27, v26, 8, v27")
    e("v_lshl_add_u32 v27, v31, 3, v27")
    e(f"v_add_u32 v{V_RRD}, {LDS_W1}, v27")
    return e.lines


CS_SITES = {0: 0, 1: 1, 8: 2, 9: 3}


XR_AT = 6


CSR, V_SC = (44, 24), (30, 62)
LAST_ORDER = [0, 1, 8, 9, 2, 3, 4, 5, 6, 7, 10, 11]


def bsel(qb):
    return "op_sel_hi:[1,0]" if qb % 2 == 0 else "op_sel:[0,1] op_sel_hi:[1,1]"


def cs_read(g):
    src, k = (60, g) if g < 4 else (61, g - 4)
    out = [f"ds_read_b128 {vr(CSR[u],4)}, v{src} offset:{u*64} ; @CS{g}" for u in range(2)]
    return out + ([f"v_xor_b32 v{src}, {128*(k^(k+1))}, v{src}"] if g not in (3, 5) else [])


def center(e, g, regs):
    e(f"WAITLG CS{g}")
    for qb in range(4):
        for u in range(2):
            a = regs(u, qb)
            for p in range(2):
                e.safe(f"v_pk_fma_f32 {vr(a+2*p,2)}, {vr(CSR[u]+2*p,2)}, {vr(V_ST+2*qb,2)}, {vr(a+2*p,2)} op_sel_hi:[1,0,1]")
    if g < 5:
        for x in cs_read(g + 1):
            e(x)


def q_scale(e, j):
    center(e, j, lambda u, qb: o_reg(2 * j + u, qb))
    out = []
    for qb in range(4):
        regs = [o_reg(2 * j + u, qb) + 2 * p for u in range(2) for p in range(2)]
        for a in regs:
            e(f"v_pk_mul_f32 {vr(a,2)}, {vr(a,2)}, {vr(V_SC[qb//2],2)} {bsel(qb)}")
        out += [f"v_cvt_pk_bf16_f32 v{a}, v{a}, v{a+1}" for a in regs]
        out += [f"v_accvgpr_write_b32 a{A_Q+(qb*4+j)*4+r}, v{a}" for r, a in enumerate(regs)]
    return out


def phase1(e, carry):
    half = ["lo"] * 8
    seq = [(c, nb) for c in range(9) for nb in range(12)] + [(9, nb) for nb in LAST_ORDER]

    def w_reads(pos):
        if pos >= len(seq):
            return []
        c, nb = seq[pos]
        out = []
        if nb < 8:
            base = WQ_SLOT[c % 4]
            h = "hi" if base >= 65536 else "lo"
            if half[nb // 2] != h:
                out.append(f"v_xor_b32 v{V_WQRD+nb//2}, 0x10000, v{V_WQRD+nb//2}")
                half[nb // 2] = h
        for t in range(2):
            for v in range(2):
                d = ar(A_WF + ((pos % 4) * 2 + t) * 4 + 2 * v, 2)
                if nb < 8:
                    out.append(f"ds_read_b64_tr_b16 {d}, v{V_WQRD+nb//2} offset:{base%65536+t*8192+v*1024+(nb%2)*8} ; @WR{pos}")
                else:
                    out.append(f"ds_read_b64_tr_b16 {d}, v{V_W1RD+nb-8} offset:{(c%4)*8192+t*4096+v*512} ; @WR{pos}")
        return out

    e("WAITVM W0")
    e("s_barrier")
    stamp(e)
    for x in x_read(0) + w_reads(0) + w_reads(1):
        e(x)
    e("WAITLG WR0")
    poll_s = f"buffer_load_dword v63, v62, {sr(S_DBG)}, 0 offen sc1"
    mem, alu, xr = carry, [], []
    srow = [int(x) for x in "%03d" % OPT.get("srow", 222)]
    SIG_AT = srow[2] + OPT.get("sigd", 3)
    bursts = {6: 0, 8: 1, 11: 2}
    for c in range(10):
        mem += [x for k, x in enumerate(SROW) if srow[k] == c]
        if c + 2 < 10:
            mem += x_dma(c + 2) + w_dma(c + 2)
        if c == 0:
            alu += late_stream()
        assert c != srow[0] or not any("v14" in x for x in alu), alu
        if c == srow[2] + 1:
            alu += stats_stream()
        if c == 6:
            alu += [f"v_accvgpr_write_b32 a{A_L+r}, 0" for r in range(16)]
        if c == 7:
            alu += kv_addr_stream()
        if c == 8:
            assert not alu
            alu += tail_scalar_stream() + repack_addr_stream()
            mem += ["v_and_b32 v62, 7, v0", "v_lshlrev_b32 v62, 5, v62", poll_s + " ; @PS"]
            mem += kv_tile("V", 0) + kv_tile("V", 1)
        if c == 9:
            if not OPT.get("klate"):
                mem += kv_tile("K", 1) + kv_tile("K", 2)
            assert not alu and not any("@STL" in x for x in mem), mem
            alu += [f"s_lshl_b32 s5, s{S_W}, 7", f"s_add_u32 s5, s5, {LDS_CS}", "v_lshl_add_u32 v60, v28, 2, s5",
                    f"s_and_b32 s6, s{S_W}, 2", "s_lshl_b32 s6, s6, 6", f"s_add_u32 s6, s6, {LDS_CS+512}", "v_lshl_add_u32 v61, v28, 2, s6"]
        for p in range(12):
            pos = c * 12 + p
            nb = seq[pos][1]
            fixed = {}
            reads = w_reads(pos + 2)
            pre = []
            if p == OPT.get("xrat", 8) and c < 9:
                xr += [f"WAITVM X{c+1}"] + x_read(c + 1)
            if c == 8 and p == OPT.get("stat", 9):
                assert not alu, alu
                st = ["WAITVM PS"] + poll_check("M_ps", poll_s, ["v_cmp_gt_u32 vcc, 32, v63"])
                st += [f"s_lshl_b32 s5, s{S_QT}, 2", f"s_add_u32 s5, s5, s{S_W}", "s_lshl_b32 s5, s5, 9", "v_lshlrev_b32 v62, 3, v28"]
                st += [f"buffer_load_dwordx2 {vr(V_ST+2*qb,2)}, v62, {sr(S_WS)}, s5 offen offset:{qb*128} sc1 ; @STL" for qb in range(4)]
                mem[:0] = st
            if p == 10 and c < 9:
                assert not any(x.startswith("ds_") for x in xr), (c, xr)
                pre = [f"WAITVM W{c+1}" + (" SST" if c == SIG_AT else ""), "s_barrier"]
                if c >= 7:
                    pre = [f"WAITLG XR{c+1}"] + pre
                if c == SIG_AT:
                    assert not alu
                    mem.insert(0, f"buffer_atomic_add v{V_ONE}, v{V_SIG}, {sr(S_DBG)}, s{S_SIGS} offen")
                if c == 8:
                    mem += kv_tile("K", 0)
            if c == 9:
                if 1 <= p <= 4:
                    k = p - 1
                    alu += [f"v_accvgpr_read_b32 v62, a{A_CS+4*k}", f"v_accvgpr_read_b32 v63, a{A_CS+4*k+1}",
                            f"v_add_f32 v{24+k}, v62, v63", f"ds_write_b32 v{60+k//2}, v{24+k} offset:{(k%2)*64} ; @CSW"]
                if p == 5:
                    drain(e, [alu])
                    pre = ["WAITLG CSW", "s_barrier"]
                    alu += ["v_lshl_add_u32 v60, v29, 4, s5", "v_lshl_add_u32 v61, v29, 4, s6"] + cs_read(0)
                    alu += ["WAITVM STL", f"s_mov_b32 s6, {fbits(LOG2E * 128 ** -0.5)}"]
                    alu += [f"v_mul_f32 v{V_SC[qb//2]+qb%2}, s6, v{V_ST+2*qb+1}" for qb in range(4)]
                if p in bursts:
                    if bursts[p] == 0:
                        drain(e, [alu])
                    alu += q_scale(e, bursts[p])
            slot = 0
            if pre:
                fixed[0] = (pre, [])
                slot = 1
            extra = len(reads) - 4
            for i, x in enumerate(reads):
                k = slot + max(0, i - max(extra, 0))
                fixed.setdefault(k, ([], []))[0].append(x)
            mf = []
            for i, qb in enumerate(snake(p)):
                for t in ((0, 1) if i % 2 == 0 else (1, 0)):
                    acc = vr(o_reg(nb, qb), 4) if nb < 8 else vr(V_P + ((nb - 8) * 4 + qb) * 4, 4)
                    first = c == 0 and len(mf) % 2 == 0
                    mf.append(mfma(acc, ar(A_WF + ((pos % 4) * 2 + t) * 4, 4), ar(A_XF + (c % 2) * 32 + (qb * 2 + t) * 4, 4), "0" if first else acc))
            if nb in CS_SITES:
                mf.append(smfmac(ar(A_CS + 4 * CS_SITES[nb], 4), ar(A_WF + (pos % 4) * 8, 8)))
            if pos + 1 < len(seq):
                fixed.setdefault(len(mf) - 1, ([], []))[1].append(f"WAITLG WR{pos+1}")
            nvm = sum(x.startswith("buffer_") for x in mem)
            quota = min(-(-nvm // (12 - p)), 3) if c < 9 else OPT.get("q9", 1)
            interleave(e, mf, fixed, [xr, mem, alu], quota=quota + any(x.startswith("buffer_") for x in alu[:12]))
        assert not mem or c in (0, 1, 8, 9), (c, mem)
        if OPT.get("p1st") and c < 9:
            stamp(e)
    stamp(e)
    e("WAITVM K0")
    e("s_barrier")
    for kb in range(4):
        for ks in range(4):
            e(k_read(0, kb, ks) + f" ; @K0R{kb}")
    if OPT.get("klate"):
        mem += kv_tile("K", 1) + kv_tile("K", 2)
    drain(e, [mem, alu])


def proj_epilogue(e):
    for x in q_scale(e, 3):
        e(x)
    e(f"s_mov_b32 s6, {fbits(-LOG2E)}")
    for qb in range(4):
        e(f"v_mul_f32 v{V_SC[qb//2]+qb%2}, s6, v{V_ST+2*qb+1}")
        e(f"v_rcp_f32 v{V_ST+2*qb+1}, v{V_ST+2*qb+1}")
    for jj in range(2):
        hreg = lambda u, qb: V_P + ((2 * jj + u) * 4 + qb) * 4
        center(e, 4 + jj, hreg)
        for qb in range(4):
            for u in range(2):
                for p in range(2):
                    a = hreg(u, qb) + 2 * p
                    e(f"v_pk_mul_f32 {vr(a+64,2)}, {vr(a,2)}, {vr(V_SC[qb//2],2)} {bsel(qb)}")
    scalars = [f"s_lshl_b32 s{S_RB}, s2, 2"] + repack_offsets()
    scalars += [f"s_and_b32 s6, s{S_W}, 2", "s_lshl_b32 s6, s6, 9", "s_mov_b32 s5, 4096"]
    for i, m in enumerate(first_scores()):
        e.safe(m)
        if scalars:
            e(scalars.pop(0))
        e(f"v_exp_f32 v{V_O+i}, v{V_O+i}")
    e(f"v_xor_b32 v62, s6, v{V_L16}")
    e("v_xor_b32 v63, 1024, v62")
    hst = []
    for jj in range(2):
        for qb in range(4):
            regs = [V_P + ((2 * jj + u) * 4 + qb) * 4 + 2 * p for u in range(2) for p in range(2)]
            d = regs[0] + 64
            for a in regs:
                e(f"v_pk_fma_f32 {vr(a+64,2)}, {vr(a+64,2)}, {vr(V_ST+2*qb,2)}, {vr(V_ST+2*qb,2)} op_sel:[0,1,1] op_sel_hi:[1,1,1]")
            for a in regs:
                e(f"v_rcp_f32 v{a+64}, v{a+64}")
                e(f"v_rcp_f32 v{a+65}, v{a+65}")
            for a in regs:
                e(f"v_pk_mul_f32 {vr(a,2)}, {vr(a,2)}, {vr(a+64,2)}")
            for p, a in enumerate(regs):
                e(f"v_cvt_pk_bf16_f32 v{d+p}, v{a}, v{a+1}")
            hst.append(f"buffer_store_dwordx4 {vr(d,4)}, v{62+jj}, {sr(S_ACTH)}, {'s5' if qb >= 2 else '0'} offen offset:{(qb%2)*2048} sc1 ; @HST")
            if (jj * 4 + qb) % OPT.get("he", 1) == 0:
                e(hst.pop(0))
    return hst


V_S0 = V_O + 64


def first_scores():
    out = []
    for kb in range(4):
        for n, qb in enumerate(snake(kb)):
            d = vr(V_S0 + (qb * 4 + kb) * 4, 4)
            for i, ks in enumerate(snake(n)):
                out.append(mfma(d, ar(A_KF + (kb * 4 + ks) * 4, 4), ar(A_Q + (qb * 4 + ks) * 4, 4), "0" if i == 0 else d))
    return out


V_MX, V_L8, V_XO, V_C256, V_TRD, V_X = 40, 45, 46, 47, 48, 2
V_L4K = V_RDMA
ACC = {"G": [128, 144, 160, 176, 192], "S": [64, 80, 96, 112, 208]}
TSTEPS = ["G"] * 7 + ["S"] * 16
TW_SLOT = [LDS_W1 + 8192, 0, 20480, 40960]
PK = 224


def tail_scalar_stream():
    t = Asm()
    tile_ids(t)
    t("s_lshl_b32 s5, s5, 2")
    t("s_add_u32 s5, s5, s6")
    t(f"s_lshl_b32 s{S_SIGP}, s5, 8")
    t(f"s_add_u32 s{S_SIGP}, s{S_SIGP}, {MISC_CNTP}")
    t(f"s_mul_i32 s5, s5, {PART_TILE}")
    t(f"s_mul_i32 s6, s{S_W}, {PART_WAVE}")
    t("s_add_u32 s5, s5, s6")
    t(f"s_add_u32 s5, s5, {WS_PART - WS_MISC}")
    srd(t, S_PART, S_WS, "s5", PART_TILE - 3 * PART_WAVE)
    t(f"s_mul_i32 s{S_M0W}, s{S_W}, 5120")
    for k in range(1, 4):
        t(f"s_xor_b32 s5, s4, {k}")
        t(f"s_mul_i32 s5, s5, {PART_DST}")
        t(f"s_add_u32 s{S_PS+k}, s5, {(k-1)*PART_SRC}")
    t(f"s_mul_i32 s{S_PS}, s4, {PART_DST}")
    t(f"s_add_u32 s{S_M0A}, s{S_PS}, {PART_SRC}")
    t(f"s_add_u32 s{S_KQ}, s{S_PS}, {2*PART_SRC}")
    return glued(t.lines)


def tail_vector_stream():
    t = Asm()
    t(f"s_lshr_b32 s5, s{S_W}, 1")
    t("s_lshl_b32 s5, s5, 2")
    t("s_bfe_u32 s4, s2, 0x20001")
    t("s_add_u32 s5, s5, s4")
    t("s_lshl_b32 s5, s5, 11")
    t(f"s_add_u32 s5, s5, {LDS_V}")
    t(f"v_add_u32 v{V_TRD}, s5, v{V_L16}")
    for k in range(1, 4):
        t(f"v_xor_b32 v{V_TRD+k}, {2048*k}, v{V_TRD}")
    t(f"s_and_b32 s5, s{S_W}, 1")
    t("s_mul_i32 s5, s5, 10240")
    t(f"v_add_u32 v{V_TRD+4}, s5, v{V_L16}")
    t(f"v_add_u32 v{V_TRD+5}, {TW_SLOT[0]}, v{V_TRD+4}")
    return t.lines


def tail_vector_late():
    t = Asm()
    t(f"v_and_b32 v12, 255, v{V_L16}")
    t("v_mul_u32_u24 v12, 10, v12")
    t(f"v_lshrrev_b32 v13, 8, v{V_L16}")
    t("v_lshl_add_u32 v12, v13, 3, v12")
    t(f"v_add_u32 v{V_XO}, s{S_M0V+3}, v12")
    t(f"v_lshrrev_b32 v{V_L8}, 1, v{V_L16}")
    t(f"v_add_u32 v14, 8192, v{V_L16}")
    t(f"v_add_u32 v15, 8192, v{V_L8}")
    t(f"v_mov_b32 v{V_C256}, 0x100")
    t(f"v_and_b32 v12, 255, v{V_L16}")
    t("v_mul_u32_u24 v12, 11, v12")
    t("v_lshl_add_u32 v12, v13, 3, v12")
    t(f"v_add_u32 v24, s{S_M0K}, v12")
    t(f"v_lshrrev_b32 v18, 4, v{V_L16}")
    for n in range(3):
        if n:
            t("v_add_u32 v18, 64, v18")
        t("v_mul_u32_u24 v12, 6554, v18")
        t("v_lshrrev_b32 v12, 16, v12")
        t("v_lshlrev_b32 v13, 4, v18")
        t(f"v_lshl_add_u32 v{25+n}, v12, 4, v13")
        t(f"v_add_u32 v{25+n}, s{S_M0K}, v{25+n}")
        t("v_mul_u32_u24 v19, 1120, v12")
        t(f"v_add_u32 v{28+n}, v19, v13")
    t("v_lshrrev_b32 v12, 4, v12")
    t("v_lshl_add_u32 v30, v12, 24, v30")
    t("s_bfe_u32 s4, s2, 0x20001")
    t(f"v_lshrrev_b32 v12, 4, v{V_L16}")
    t("v_lshlrev_b32 v17, v12, 1".replace("v12, 1", f"v12, v{V_ONE}"))
    t("v_add_u32 v13, 1, v12")
    t("v_xor_b32 v16, s4, v13")
    t("v_lshl_add_u32 v16, v16, 2, 4")
    t("v_lshrrev_b32 v13, 2, v13")
    t(f"v_add_u32 v13, s{S_W}, v13")
    t("v_lshl_add_u32 v16, v13, 24, v16")
    t("s_lshl_b32 s4, s4, 2")
    t(f"s_add_u32 s{S_SIGS}, s4, s{S_SIGP}")
    t(f"s_add_u32 s{S_SIGS}, s{S_SIGS}, 4")
    t("v_mov_b32 v12, 0x3f80")
    t("v_mov_b32 v13, 0x3f800000")
    return t.lines


def tail_dma(s, part="WA"):
    g = TSTEPS[s] == "G"
    sa, sw = (S_GA, S_GW) if g else (S_SA, S_SW)
    step = 1 if g else (2 if s != 14 else -13)
    op = "s_add_u32" if step > 0 else "s_sub_u32"
    out = []
    if "W" in part:
        base = TW_SLOT[s % 4]
        out += [f"s_add_u32 m0, s{S_M0W}, {base}"]
        out += [f"buffer_load_dwordx4 v{V_L16}, {sr(S_TW)}, s{sw} offen offset:{f*1024} sc1 lds ; @T{s}" for f in range(4)]
        out += [f"s_add_u32 m0, s{S_M0W}, {base+4096}", f"buffer_load_dwordx4 v{V_L4K}, {sr(S_TW)}, s{sw} offen sc1 lds ; @T{s}",
                f"{op} s{sw}, s{sw}, {abs(step)*WP_PAIR}"]
    if "A" in part:
        out += [f"s_mov_b32 m0, s{S_M0V + s % 4}"]
        out += [f"buffer_load_dwordx4 v{V_L16}, {sr(S_TA)}, s{sa} offen offset:{f*1024} sc1 lds ; @T{s}" for f in range(4)]
        out += [f"{op} s{sa}, s{sa}, {abs(step)*8192}"]
    return out


def tbuf(s):
    return 144 if s == 22 and OPT.get("merge", 1) else ((s + 1) % 2) * 72


def tail_reads(s):
    b = tbuf(s)
    wr, wo = (V_TRD + 5, 0) if s % 4 == 0 else (V_TRD + 4, TW_SLOT[s % 4])
    wl = [f"ds_read_b128 {ar(b+32+f*4,4)}, v{wr} offset:{wo+f*1024} ; @TR{s}" for f in range(10)]
    al = [f"ds_read_b128 {ar(b+f*4,4)}, v{V_TRD+f//2} offset:{(s%4)*16384+(f%2)*1024} ; @TR{s}" for f in range(8)]
    return wl[:2] + al + wl[2:]


def merge(a, b):
    pos = [i for i, x in enumerate(a) if x.startswith("buffer_")]
    out = list(a)
    for k in range(len(b) - 1, -1, -1):
        out.insert(pos[k * len(pos) // len(b)] + 1 if pos else 0, b[k])
    return out


def tail(e, ost):
    rsoff = [S_PS, S_M0A, S_KQ]

    def xfer(op, kind, base, soff, tag):
        v16, v8 = (V_L16, V_L8) if kind == "S" else (14, 15)
        return [f"buffer_{op}_dwordx4 {vr(base,4)}, v{v16}, {sr(S_PART)}, s{soff} offen sc1 ; @{tag}",
                f"buffer_{op}_dwordx4 {vr(base+4,4)}, v{v16}, {sr(S_PART)}, s{soff} offen offset:1024 sc1 ; @{tag}",
                f"buffer_{op}_dwordx2 {vr(base+8,2)}, v{v8}, {sr(S_PART)}, s{soff} offen offset:2048 sc1 ; @{tag}"]

    def pack(kind, k):
        out = [f"v_cvt_pk_bf16_f32 v{PK+(k-1)*10+2*nb+p}, v{ACC[kind][nb]+4*k+2*p}, v{ACC[kind][nb]+4*k+2*p+1}"
               for nb in range(5) for p in range(2)]
        return out

    def send(kind, k):
        return xfer("store", kind, PK + (k - 1) * 10, S_PS + k, "SEND" + kind)

    RCV = {"G": [ACC["G"][k] + 4 for k in range(3)], "S": [ACC["S"][k] + 4 for k in range(3)]}

    def recv1(kind, k):
        return xfer("load", kind, RCV[kind][k], rsoff[k], f"R{kind}{k}")

    def recv(kind):
        return [x for k in range(3) for x in recv1(kind, k)]

    def accumulate(kind):
        for k in range(3):
            if kind == "G":
                e(f"WAITVM R{kind}{k}")
            elif k == 0:
                e("s_waitcnt vmcnt(0)")
            b = RCV[kind][k]
            for nb in range(5):
                for r in range(4):
                    a = ACC[kind][nb] + r
                    e.safe(f"v_dot2_f32_bf16 v{a}, v{b+2*nb+r//2}, v{12+r%2}, v{a}")

    def atomic(val, soff):
        return f"buffer_atomic_add v{val}, v{V_SIG}, {sr(S_WS)}, s{soff} offen"

    poll_o = f"buffer_load_dword v{V_PVAL}, off, {sr(S_WS)}, s{S_POLLO} sc1"
    poll_p = f"buffer_load_dword v{V_PVAL}, off, {sr(S_WS)}, s{S_SIGP} sc1"
    poll_q = f"buffer_load_dword v{V_PVAL}, off, {sr(S_WS)}, s{S_SIGS} sc1"
    low = f"v_and_b32 v{V_PVAL}, 0xff, v{V_PVAL}"
    n = len(TSTEPS)
    SIGA, CHKA, SIGB, CHKB = OPT.get("siga", 2), OPT.get("chka", 4), OPT.get("sigb", 6), 11
    GSIG, GCHK = OPT.get("gsig", 14), OPT.get("gchk", 19)
    opace = OPT.get("opace", 3)
    gsend = [x for k in range(1, 4) for x in send("G", k)]
    xres = [x for k in range(3) for x in (f"s_add_u32 m0, s{S_M0V+3}, {k*1024}", f"buffer_load_dwordx4 v{28+k}, {sr(S_X)}, s{S_XO} offen lds ; @XRES")]
    late = recv("G")
    alu = tail_vector_late()
    last = n - 1 - OPT.get("merge", 1)
    for s in range(last + 1):
        b = tbuf(s)
        e(f"WAITLG TR{s if s < last else n - 1}")
        if s < last:
            e(f"WAITVM T{s+1 if s + 1 < last else n - 1}" + {SIGA: " OST0", SIGB: " OST1", CHKA: " POA", CHKB: " POB", GSIG: " SENDG", GCHK: " PG"}.get(s, ""))
            e("s_barrier")
        if OPT.get("tst") and s != CHKA and s not in (9, 13, 15):
            stamp(e)
        head, side = [], []
        assert s != 6 or not alu
        assert s != 7 or not ost
        if s == SIGA:
            head.append(atomic(V_ONE, S_SIGO))
        if s == SIGB:
            head.append(atomic(V_C256, S_SIGO))
        if s == GSIG:
            head.append(atomic(V_ONE, S_SIGP))
        if s == CHKA - 1:
            head.append(poll_o + " ; @POA")
        if s == CHKB - 2:
            head.append(poll_o + " ; @POB")
        if s == GCHK - OPT.get("gpoll", 2):
            head.append(poll_p + " ; @PG")
        if s == CHKA:
            stamp(e)
            for x in poll_check("M_poa", poll_o, [low, f"v_cmp_gt_u32 vcc, 8, v{V_PVAL}"]):
                e(x)
            stamp(e)
        if s == CHKB:
            for x in poll_check("M_pob", poll_o, [f"v_cmp_gt_u32 vcc, 0x800, v{V_PVAL}"]):
                e(x)
        if s == GCHK:
            for x in poll_check("M_pg", poll_p, [f"v_cmp_gt_u32 vcc, 4, v{V_PVAL}"]):
                e(x)
        mem = tail_dma(3, "A") if s == 0 else []
        if s == CHKA:
            for x in range(7, s + 4):
                mem += tail_dma(x, "A")
        if s + 4 < n:
            mem += tail_dma(s + 4, "W" if 7 <= s + 4 < CHKA + 4 else "WA")
        if ost:
            side, ost = ost[:opace], ost[opace:]
        if s == 7:
            alu += pack("G", 1) + pack("G", 2) + pack("G", 3)
        if s >= 8 and gsend:
            assert not alu
            k = OPT.get("gpace", 2)
            side, gsend = gsend[:k], gsend[k:]
        if s == 19:
            assert not mem
            side += xres
        if s == last:
            head += ["WAITVM XRES"] + [f"ds_read_b64 {vr(V_X+2*nb,2)}, v{V_XO} offset:{nb*32} ; @XRD" for nb in range(5)]
        if s >= GCHK:
            k = -(-len(late) // (last - s)) if s < last else 0
            side, late = side + late[:k], late[k:]
        mem = head + merge(mem, side)
        ds = [x for y in range(s + 1, s + 2 if s + 1 < last else n) for x in tail_reads(y)] if s < last else []
        first = s in (0, 7)
        acc_of = ACC[TSTEPS[s]]

        def chain(nb, rb, flip, b=b):
            acc = vr(acc_of[nb] + rb * 4, 4)
            return [mfma(acc, ar(b + 32 + (nb * 2 + t) * 4, 4), ar(b + (rb * 2 + t) * 4, 4), "0" if first and i == 0 else acc)
                    for i, t in enumerate((1, 0) if flip else (0, 1))]

        if s < last:
            mf = [m for nb in range(5) for i, rb in enumerate(snake(nb)) for m in chain(nb, rb, i % 2)]
            fixed = {(i // 3) * 4 + (0, 2, 3)[i % 3]: ([x], []) for i, x in enumerate(ds)}
            nvm = sum(x.startswith("buffer_") for x in mem)
            if nvm > 10:
                fixed = {2 * i: ([x], []) for i, x in enumerate(ds)}
            tds = OPT.get("tds", 0)
            if tds == 1:
                fixed = {2 * i: (ds[2 * i:2 * i + 2], []) for i in range(9)}
            if tds == 2:
                fixed = {4 * i: (ds[2 * i:2 * i + 2], []) for i in range(9)}
            if tds == 3:
                fixed = {3 * i + 1: (ds[2 * i:2 * i + 2], []) for i in range(9)}
            if len(ds) > 18:
                fixed = {2 * i: (ds[2 * i:2 * i + 2], []) for i in range(18)}
            space = 4 if nvm <= 10 else 2
            if tds:
                space = max(1, min(OPT.get("tsp", 4), 38 // max(nvm, 1)))
            interleave(e, mf, fixed, [mem, alu], space=space)
            drain(e, [mem])
        else:
            for rb in (1, 2, 3, 0):
                bufs = [tbuf(y) for y in range(s, n)]
                mf = [m for nb in range(5) for bb in (bufs[::-1] if nb % 2 else bufs) for m in chain(nb, rb, nb % 2, bb)]
                interleave(e, mf, {}, [mem], space=OPT.get("sspace", 0))
                if rb:
                    mem += pack("S", rb) + send("S", rb)
            drain(e, [mem])
            e(poll_q)
    assert not gsend
    stamp(e)
    e(f"s_mov_b32 s6, {fbits(-LOG2E)}")
    e("s_mov_b32 s7, s6")

    def gate():
        accumulate("G")
        for nb in range(5):
            g = ACC["G"][nb]
            t = g + 4
            for p in range(2):
                e.safe(f"v_pk_mul_f32 {vr(t+2*p,2)}, {vr(g+2*p,2)}, s[6:7]")
            for r in range(4):
                e(f"v_exp_f32 v{t+r}, v{t+r}")
            for p in range(2):
                e(f"v_lshlrev_b32 v{t+4+2*p}, 16, v{V_X+2*nb+p}")
                e(f"v_and_b32 v{t+5+2*p}, 0xffff0000, v{V_X+2*nb+p}")
            for p in range(2):
                e(f"v_pk_add_f32 {vr(t+2*p,2)}, {vr(t+2*p,2)}, 1.0 op_sel_hi:[1,0]")
            for r in range(4):
                e(f"v_rcp_f32 v{t+r}, v{t+r}")
            for p in range(2):
                e.safe(f"v_pk_mul_f32 {vr(t+2*p,2)}, {vr(t+2*p,2)}, {vr(g+2*p,2)}")

    e("WAITLG XRD")
    gate()
    e("s_waitcnt vmcnt(0)")
    e("s_barrier")
    e(f"buffer_atomic_add v17, v16, {sr(S_WS)}, s{S_SIGP} offen")
    e("s_mov_b32 s4, 0")
    e("s_mov_b32 s3, 0x100000")
    e("M_gather:")
    e(f"v_readfirstlane_b32 s5, v{V_PVAL}")
    e("s_andn2_b32 s5, s5, s4")
    for k in range(3):
        e(f"s_bitcmp0_b32 s5, {k}")
        e(f"s_cbranch_scc1 M_skip{k}")
        for x in recv1("S", k):
            e(x)
        e(f"M_skip{k}:")
    e("s_or_b32 s4, s4, s5")
    e("s_cmp_eq_u32 s4, 7")
    e("s_cbranch_scc1 M_gathered")
    e(poll_q)
    e("s_sub_u32 s3, s3, 1")
    e("s_cmp_lg_u32 s3, 0")
    e("s_waitcnt vmcnt(0)")
    e("s_cbranch_scc1 M_gather")
    e("M_gathered:")
    stamp(e)
    accumulate("S")
    for nb in range(5):
        s = ACC["S"][nb]
        t = ACC["G"][nb] + 4
        for p in range(2):
            e.safe(f"v_pk_fma_f32 {vr(t+2*p,2)}, {vr(t+2*p,2)}, {vr(s+2*p,2)}, {vr(t+4+2*p,2)}")
        for p in range(2):
            e(f"v_cvt_pk_bf16_f32 v{t+4+p}, v{t+2*p}, v{t+2*p+1}")
        e(f"ds_write_b64 v24, {vr(t+4,2)} offset:{nb*32}")
    for n in range(3):
        e(f"ds_read_b128 {vr(PK+4*n,4)}, v{25+n} ; @OUT{n}")
    for n in range(3):
        e(f"WAITLG OUT{n}")
        e(f"buffer_store_dwordx4 {vr(PK+4*n,4)}, v{28+n}, {sr(S_OUT)}, s{S_XO} offen")


def attention(e, hst):
    m = V_M
    if len(hst) > 4:
        e(hst.pop(0))
    for i in range(8):
        for qb in range(4):
            b = V_S0 + qb * 16
            if i == 0:
                e(f"v_max_f32 v{m+qb}, v{b}, v{b+1}")
            else:
                e(f"v_max3_f32 v{m+qb}, v{m+qb}, v{b+2*i}, v{b+2*i+1}")
    e(f"s_mov_b32 s6, {fbits(-float(OPT.get('bias', 102)))}")
    e("WAITVM K1")
    e("M_restart:")
    e("s_barrier")
    for n in range(LK):
        e(k_read(1, n // 4, n % 4))
    for n in range(LV):
        for v in range(2):
            e(v_read(0, n // 2, n % 2, v))
    e(f"s_mov_b32 m0, s{S_M0K+3}")
    e(f"s_mov_b32 s{S_OFF}, {3*16384}")
    for n in range(2 + OPT.get("sh", 1)):
        e(k_dma(n))
    row_max_finish(e)
    e(f"s_mov_b32 s{S_CNT}, 8")
    if OPT.get("rmask", 0):
        e(f"s_andn2_b32 s7, {OPT.get('rmask', 0)}, s{S_RETRY}")
    for qb in range(4):
        b = V_S0 + qb * 16
        if hst:
            e(hst.pop(0))
        for p in range(8):
            e(f"v_pk_add_f32 {vr(b+2*p,2)}, {vr(b+2*p,2)}, {vr(V_NM+qb*4,2)}")
        for r in range(16):
            e(f"v_exp_f32 v{b+r}, v{b+r}")
        for p in range(8):
            e(f"v_cvt_pk_bf16_f32 v{V_P+qb*8+p}, v{b+2*p}, v{b+2*p+1}")
    assert not hst
    e("s_waitcnt lgkmcnt(0)")
    stamp(e)
    attn_step(e, 0, first=True)
    if OPT.get("ast"):
        stamp(e)
    e(".p2align 6")
    e("M_loop:")
    ra = OPT.get("rpos", 1)
    for j in (1, 2, 3, 0):
        attn_step(e, j)
        if OPT.get("rmask", 0) and j in (ra, (ra + 1) % 4):
            name = "M_shift" if j == ra else "M_rescale"
            e(f"s_cbranch_scc1 {name}")
            e(f"{name}_back:")
    e("s_cbranch_scc1 M_loop")
    if OPT.get("ast"):
        stamp(e)
    for x in poll_check("M_pa", POLL_A, [f"v_cmp_gt_u32 vcc, 32, v{V_PVAL}"]):
        e(x)
    mem = kv_tile("V", 31) + [f"v_add_u32 v{V_L4K}, 4096, v{V_L16}"] + tail_dma(0, "W")
    attn_step(e, 29, late=(mem, {10: (["s_waitcnt vmcnt(9)"], tail_dma(0, "A") + tail_dma(1, "W"))}))
    attn_step(e, 30, late=(mem, {10: (["WAITVM V31"], tail_dma(1, "A") + tail_dma(2, "W")),
                                 14: ([], tail_dma(2, "A") + tail_dma(3, "W"))}))
    if OPT.get("ast"):
        stamp(e)
    T = 24
    alu, rng, ost = [], [], []
    e("s_mov_b32 s6, 8192")

    def normalise(jp, every):
        for qb in range(4):
            for t in range(2):
                j = 2 * jp + t
                d = V_P + ((jp * 4 + qb) * 2 + t) * 4
                for u in range(2):
                    a = o_reg(2 * j + u, qb)
                    e.safe(f"v_pk_mul_f32 {vr(a,2)}, {vr(a,2)}, {vr(T+2*qb,2)} op_sel_hi:[1,0]")
                    e.safe(f"v_pk_mul_f32 {vr(a+2,2)}, {vr(a+2,2)}, {vr(T+2*qb,2)} op_sel_hi:[1,0]")
                for u in range(2):
                    a = o_reg(2 * j + u, qb)
                    e(f"v_cvt_pk_bf16_f32 v{d+2*u}, v{a}, v{a+1}")
                    e(f"v_cvt_pk_bf16_f32 v{d+2*u+1}, v{a+2}, v{a+3}")
                ost.append(f"buffer_store_dwordx4 {vr(d,4)}, v{V_L16 if qb < 2 else V_L4K}, {sr(S_ACT)}, {'s6' if jp else '0'} offen offset:{(qb%2)*2048+t*1024} sc1 ; @OST{jp}")
                if every < 9 and (qb * 2 + t) % every == 0:
                    e(ost.pop(0))

    mid = OPT.get("mid", 9)

    def extra(u):
        if u == 2:
            alu.extend(tail_vector_stream())
        if u == 6:
            for qb in range(4):
                alu.extend([f"v_accvgpr_read_b32 v{T+2*qb}, a{A_L+qb*4}", f"v_accvgpr_read_b32 v{T+2*qb+1}, a{A_L+qb*4+1}"])
            for qb in range(4):
                alu.append(f"v_add_f32 v{T+2*qb+1}, v{T+2*qb}, v{T+2*qb+1}")
            for qb in range(4):
                alu.append(f"v_rcp_f32 v{T+2*qb}, v{T+2*qb+1}")
        if u == mid:
            drain(e, [mem, alu, rng])
            normalise(0, OPT.get("oe0", 8))
        if u > mid and (u - mid) % OPT.get("oe1", 3) == 0:
            mem.append(ost.pop(0))
        if u >= 1:
            magnitude(u - 1)
        return [mem, alu, rng]

    def magnitude(u):
        for qb in ((u % 2) * 2, (u % 2) * 2 + 1):
            a = o_reg(u // 2, qb)
            third = f"v{V_MX+qb}" if u >= 2 else f"|v{a+1}|"
            rng.append(f"v_maximum3_f32 v{V_MX+qb}, |v{a}|, |v{a+1}|, {third}")
            rng.append(f"v_maximum3_f32 v{V_MX+qb}, |v{a+2}|, |v{a+3}|, v{V_MX+qb}")

    attn_step(e, 31, qk=False, extra=extra)
    magnitude(15)
    drain(e, [mem, alu, rng])
    stamp(e)

    e(f"v_maximum3_f32 v58, v{V_MX}, v{V_MX+1}, v{V_MX+2}")
    e(f"v_minimum3_f32 v59, v{V_MX}, v{V_MX+1}, v{V_MX+2}")
    e(f"v_maximum3_f32 v58, v58, v{V_MX+3}, v{T+1}")
    e(f"v_minimum3_f32 v59, v59, v{V_MX+3}, v{V_MX+3}")
    e(f"v_maximum3_f32 v58, v58, v{T+3}, v{T+5}")
    e(f"v_cmp_nle_f32 vcc, {fbits(O_LOW)}, v59")
    e(f"v_maximum3_f32 v58, v58, v{T+7}, v{T+7}")
    e("s_mov_b64 s[4:5], vcc")
    e(f"v_cmp_nge_f32 vcc, {fbits(L_LIMIT)}, v58")
    e(f"s_lshl_b32 s7, s{S_W}, 2")
    e(f"s_add_u32 s7, s7, {LDS_FLAG}")
    e("s_or_b64 s[4:5], s[4:5], vcc")
    e("s_or_b32 s4, s4, s5")
    e("v_mov_b32 v59, s7")
    e("v_mov_b32 v58, s4")
    e("ds_write_b32 v59, v58")
    e(f"v_mov_b32 v59, {LDS_FLAG}")
    if mid > 15:
        normalise(0, OPT.get("oe0", 8))
    e("s_waitcnt lgkmcnt(0)")
    e("WAITVM T0")
    e("s_barrier")
    e("ds_read_b128 v[60:63], v59 ; @FLG")
    for x in tail_reads(0):
        e(x)
    normalise(1, OPT.get("oe2", 5))
    e("WAITLG FLG")
    e("v_or_b32 v60, v60, v61")
    e("v_or3_b32 v60, v60, v62, v63")
    e.safe("v_readfirstlane_b32 s4, v60")
    e(f"s_andn2_b32 s4, s4, s{S_RETRY}")
    e("s_cbranch_scc1 M_fallback")
    return ost


def recentre(e):
    t, A_F = SBUF[0], A_RP + 8
    e("M_shift:")
    e("s_nop 1")
    for qb in range(4):
        e(f"v_accvgpr_read_b32 v{t+qb}, a{A_L+qb*4}")
        e(f"v_accvgpr_read_b32 v{t+4+qb}, a{A_L+qb*4+1}")
    steps = ["v_add_f32 v{a}, v{a}, v{b}", "v_frexp_exp_i32_f32 v{a}, v{a}", f"v_sub_u32 v{{a}}, {1 - OPT.get('bias', 102)}, v{{a}}",
             "v_min_i32 v{a}, 0, v{a}", "v_max_i32 v{a}, -126, v{a}", "v_ldexp_f32 v{b}, 1.0, v{a}", "v_cvt_f32_i32 v{a}, v{a}",
             "v_accvgpr_write_b32 a{f}, v{b}"]
    for x in steps:
        for qb in range(4):
            e(x.format(a=t + qb, b=t + 4 + qb, f=A_F + qb))
    for qb in range(4):
        sel = "op_sel_hi:[1,0]" if qb % 2 == 0 else "op_sel:[0,1] op_sel_hi:[1,1]"
        for p in range(2):
            e(f"v_pk_add_f32 {vr(V_NM+qb*4+2*p,2)}, {vr(V_NM+qb*4+2*p,2)}, {vr(t+(qb//2)*2,2)} {sel}")
    e("s_nop 0")
    e("s_branch M_shift_back")
    e("M_rescale:")
    for qb in range(4):
        e(f"v_accvgpr_read_b32 v{t+qb}, a{A_F+qb}")
    for q0 in (0, 2):
        for i in range(4):
            e(f"v_accvgpr_read_b32 v{t+4+i}, a{A_L+(q0+i//2)*4+i%2}")
        for i in range(4):
            e(f"v_mul_f32 v{t+4+i}, v{t+4+i}, v{t+q0+i//2}")
        for i in range(4):
            e(f"v_accvgpr_write_b32 a{A_L+(q0+i//2)*4+i%2}, v{t+4+i}")
    for db in range(8):
        for qb in range(4):
            sel = "op_sel_hi:[1,0]" if qb % 2 == 0 else "op_sel:[0,1] op_sel_hi:[1,1]"
            for p in range(2):
                a = o_reg(db, qb) + 2 * p
                e(f"v_pk_mul_f32 {vr(a,2)}, {vr(a,2)}, {vr(t+(qb//2)*2,2)} {sel}")
    e("s_branch M_rescale_back")


def fallback(e):
    m = V_M
    e("M_fallback:")
    e(f"s_mov_b32 s{S_RETRY}, -1")
    e(f"s_mov_b32 s{S_SIGA}, {OOB}")
    e(f"s_mov_b32 s{S_ACTH+2}, 0")
    e(f"s_sub_u32 s{S_GA}, s{S_GA}, {3*8192}")
    e(f"s_sub_u32 s{S_GW}, s{S_GW}, {4*WP_PAIR}")
    for qb in range(4):
        e(f"v_mov_b32 v{m+qb}, 0xff800000")
    e(f"s_mov_b32 s{S_OFF}, 0")
    e("M_maxloop:")
    e("s_waitcnt vmcnt(0) lgkmcnt(0)")
    e("s_barrier")
    e(f"s_mov_b32 m0, s{S_M0K}")
    e("s_nop 0")
    for n in range(4):
        e(k_dma(n))
    e("s_waitcnt vmcnt(0)")
    e("s_barrier")
    for kb in range(4):
        for ks in range(4):
            e(k_read(0, kb, ks))
        e("s_waitcnt lgkmcnt(0)")
        for qb in range(4):
            d = vr(V_P + qb * 4, 4)
            for ks in range(4):
                e(mfma(d, ar(A_KF + (kb * 4 + ks) * 4, 4), ar(A_Q + (qb * 4 + ks) * 4, 4), "0" if ks == 0 else d))
        e("s_nop 7")
        for qb in range(4):
            b = V_P + qb * 4
            e(f"v_max3_f32 v{m+qb}, v{m+qb}, v{b}, v{b+1}")
            e(f"v_max3_f32 v{m+qb}, v{m+qb}, v{b+2}, v{b+3}")
    e(f"s_add_u32 s{S_OFF}, s{S_OFF}, 16384")
    e(f"s_cmp_lt_u32 s{S_OFF}, 524288")
    e("s_cbranch_scc1 M_maxloop")
    e("s_barrier")
    for w, t in (("K", 0), ("K", 1), ("K", 2), ("V", 0), ("V", 1)):
        for x in kv_tile(w, t):
            e(x)
    e("s_waitcnt vmcnt(0)")
    e("s_barrier")
    for kb in range(4):
        for ks in range(4):
            e(k_read(0, kb, ks))
    e("s_waitcnt lgkmcnt(0)")
    for x in first_scores():
        e(x)
    for r in range(16):
        e(f"v_accvgpr_write_b32 a{A_L+r}, 0")
    e("s_mov_b32 s6, 0")
    e("s_branch M_restart")


HEADER = """
; One launch, 256 workgroups x 4 waves, one workgroup per CU; workgroup = (head, 256 query rows).
;  1. Projection: [Q_head | 64 columns of FFN1] = x @ [wq | w1] on raw x. LayerNorm is applied to the accumulators,
;     (acc - mean * colsum(W)) / std; row statistics are computed once (8 rows per workgroup) and handed over in d_ws.
;     Softmax reference: the true row maximum of the first 64 keys plus a constant exponent offset (headroom for
;     larger scores later in the row). A term can only underflow if it is below half an fp32 ulp of the row sum.
;     After the last tile the row sums and accumulators are range-checked: if anything overflowed or came near the
;     underflow limit, the workgroup computes the true maximum over all keys and redoes the pass with it (M_fallback).
; Hand-offs: write-through (sc1) stores, vmcnt wait, barrier, atomic counter; consumers poll, then use sc1 loads.
; Counters in d_ws are zeroed by this launch ahead of the first arrival on the counters in d_debug.
"""


def build():
    e = Asm()
    for l in open(f"cdna_kernels/{NAME}.s.ref").read().split("\n"):
        if not l.startswith(";"):
            break
        if "@launch" not in l:
            e(l)
    e("; @launch grid=(256,1,1) block=(256,1,1) lds=163840")
    e(HEADER)
    e('.amdgcn_target "amdgcn-amd-amdhsa--gfx950"')
    e(".text")
    e(f".globl {KERNEL}")
    e(".p2align 8")
    e(f".type {KERNEL},@function")
    e(f"{KERNEL}:")
    e("; ---- setup and first loads")
    carry = setup(e)
    phase1(e, carry)
    e("; ---- layernorm on the accumulators, Q fragments, H = silu(.), scores of the first key tile")
    hst = proj_epilogue(e)
    stamp(e)
    e("; ---- attention")
    ost = attention(e, hst)
    stamp(e)
    tail(e, ost)
    stamp_flush(e)
    e("M_exit:")
    e("s_endpgm")
    emit_spins(e)
    if OPT.get("rmask", 0):
        recentre(e)
    e("M_hot_end:")
    e("; ---- exact row maximum over all keys, then repeat the attention pass")
    fallback(e)
    e('.section .rodata,"a"')
    e(".p2align 6")
    e(f".amdhsa_kernel {KERNEL}")
    for d in ("next_free_vgpr 512", "next_free_sgpr 102", "accum_offset 256", "group_segment_fixed_size 0", "kernarg_size 88",
              "user_sgpr_count 2", "user_sgpr_kernarg_segment_ptr 1", "system_sgpr_workgroup_id_x 1"):
        e(f".amdhsa_{d}")
    e(".end_amdhsa_kernel")
    abl = OPT.get("abl", 0)
    if abl:
        oob = lambda l: l.replace(sr(S_PART), sr(S_R0)).replace(sr(S_ACT), sr(S_R0))
        f = {1: lambda l: oob(l) if "@SENDG" in l or "@RG" in l else l,
             2: lambda l: oob(l) if "@OST" in l else l,
             3: lambda l: "s_nop 0" if l.startswith("v_smfmac") and "v[36:39], v[" in l and "a[172" not in l else l,
             4: lambda l: "s_nop 0" if l.startswith("v_smfmac") and "v[36:39], a[" in l else ("" if "op_sel_hi:[1,0,1]" in l else l),
             5: lambda l: oob(l) if "@SENDS" in l or "@RS" in l else l.replace("s_cmp_eq_u32 s4, 7", "s_cmp_eq_u32 s4, s4")}[abl]
        e.lines = [y for y in (f(x) for x in e.lines) if y]
        e.lines = [x.replace("s_cbranch_scc1 M_fallback", "s_nop 0") for x in e.lines]
    e.resolve()
    if OPT.get("jitter"):
        import random
        rnd = random.Random(OPT["jitter"])
        out, n = [], 0
        for l in e.lines:
            site = l.startswith(("s_barrier", "buffer_atomic")) or (l.startswith("buffer_store") and rnd.random() < 0.2)
            if site and rnd.random() < 0.7:
                n += 1
                pre = ["s_cselect_b32 s99, 1, 0", f"s_mul_i32 s98, s2, {rnd.randrange(3, 1000, 2)}", f"s_add_u32 s98, s98, s{S_W}",
                       f"s_mul_i32 s98, s98, {rnd.randrange(3, 1000, 2)}", f"s_bitcmp1_b32 s98, {rnd.randrange(0, 4)}",
                       f"s_cbranch_scc0 J{n}", f"s_sleep {rnd.choice([1, 3, 10, 30, 60])}", f"J{n}:", "s_cmp_lg_u32 s99, 0"]
                out += pre + [l] if rnd.random() < 0.5 else [l] + pre
            else:
                out.append(l)
        e.lines = out
    errs = []
    errs += check_trace(e.trace(KERNEL, {"M_loop": [True, True, False], "M_gathered": [True], "M_nost2": [False, True, False], "M_nost6": [False, True, False], "M_shift": [False, True], "M_rescale": [False, True]}), "fast")
    errs += check_trace(e.trace(KERNEL, {"M_loop": [True, False, True, False], "M_fallback": [True, False], "M_maxloop": [True, False],
                                         "M_ps_spin": [True], "M_pa_spin": [True, True], "M_poa_spin": [True], "M_pob_spin": [True], "M_poa_back": [True], "M_pob_back": [True], "M_skip0": [True, False], "M_skip1": [False, True], "M_skip2": [False, True], "M_gather": [True], "M_gathered": [False, True], "M_pg_spin": [True], "M_pg_back": [True],
                                         "M_ps_back": [True], "M_pa_back": [True, True]}), "slow")
    return e.text(), errs


if __name__ == "__main__":
    if "--stamps" in sys.argv:
        sys.argv.remove("--stamps")
        STAMPS = True
    for a in [x for x in sys.argv if "=" in x]:
        sys.argv.remove(a)
        k, v = a.split("=")
        OPT[k] = int(v)
    text, errs = build()
    for x in errs[:6]:
        print(x)
    out = sys.argv[1] if len(sys.argv) > 1 else f"cdna_kernels/{NAME}.s"
    open(out, "w").write(text)
    print("wrote", out, len(text), "bytes;", len(errs), "check findings; stamps", nstamp[0])
```
